```python
import torch

def _softmax(x, axis=-1):
    return torch.softmax(x, dim=axis)
def _gelu(x):
    return torch.nn.functional.gelu(x, approximate="tanh")
def _silu(x):
    return torch.nn.functional.silu(x)
def _sigmoid(x):
    return torch.sigmoid(x)
def _layernorm(x, axis=-1, eps=1e-5):
    m = x.mean(dim=axis, keepdim=True)
    v = x.var(dim=axis, keepdim=True, unbiased=False)
    return (x - m) / torch.sqrt(v + eps)
def _scatter_add(tgt, idx, src, axis=0):
    return tgt.clone().index_add_(axis, idx, src)
def _segment_sum(src, seg, n):
    out = torch.zeros((n,) + src.shape[1:], dtype=src.dtype)
    return out.index_add_(0, seg, src)
def _pad(x, pw):
    flat = tuple(v for pair in reversed(pw) for v in pair)
    return torch.nn.functional.pad(x, flat)

kernel_name = 'parallel_sum__ssm_conv_s5__geglu_ffn__prompt'

def setup_inputs():

    _w = (lambda a: (lambda t: t.to(torch.bfloat16) if t.is_floating_point() else t)(torch.as_tensor(a)))
    def _A_setup():
        B, S, D = 1, 2048, 576
        P = D
        Lambda_re = -0.5 * (lambda _x: torch.exp(torch.as_tensor(_x)))((lambda *s: torch.randn(*s, dtype=torch.bfloat16) * 0.8)(P))
        Lambda_im = (lambda *s: torch.randn(*s, dtype=torch.bfloat16) * 0.8)(P) * 1.0
        B_re = (lambda *s: torch.randn(*s, dtype=torch.bfloat16) * 0.8)(P, D) * (D ** -0.5)
        B_im = (lambda *s: torch.randn(*s, dtype=torch.bfloat16) * 0.8)(P, D) * (D ** -0.5)
        C_re = (lambda *s: torch.randn(*s, dtype=torch.bfloat16) * 0.8)(D, P) * (P ** -0.5)
        C_im = (lambda *s: torch.randn(*s, dtype=torch.bfloat16) * 0.8)(D, P) * (P ** -0.5)
        log_dt = (lambda *s: torch.randn(*s, dtype=torch.bfloat16) * 0.8)(P) * 0.3 - 2.0
        Dskip = (lambda *s: torch.randn(*s, dtype=torch.bfloat16) * 0.8)(D)
        return {
            "x": _w((lambda *s: torch.randn(*s, dtype=torch.bfloat16) * 0.05)(B, S, D)),
            "Lambda_re": _w(Lambda_re),
            "Lambda_im": _w(Lambda_im),
            "B_re": _w(B_re),
            "B_im": _w(B_im),
            "C_re": _w(C_re),
            "C_im": _w(C_im),
            "log_dt": _w(log_dt),
            "Dskip": _w(Dskip),
        }
    _A_in = _A_setup()

    def _B_setup():
        B, S, D, F = 1, 2048, 576, 4608
        return {
            "x": _w((lambda *s: torch.randn(*s, dtype=torch.bfloat16) * 0.05)(B, S, D)),
            "w_gate": _w((lambda *s: torch.randn(*s, dtype=torch.bfloat16) * 0.05)(D, F)),
            "w_up": _w((lambda *s: torch.randn(*s, dtype=torch.bfloat16) * 0.05)(D, F)),
            "w_down": _w((lambda *s: torch.randn(*s, dtype=torch.bfloat16) * 0.05)(F, D)),
        }
    _B_in = _B_setup()

    return {
        "A_x": _A_in["x"],
        "A_Lambda_re": _A_in["Lambda_re"],
        "A_Lambda_im": _A_in["Lambda_im"],
        "A_B_re": _A_in["B_re"],
        "A_B_im": _A_in["B_im"],
        "A_C_re": _A_in["C_re"],
        "A_C_im": _A_in["C_im"],
        "A_log_dt": _A_in["log_dt"],
        "A_Dskip": _A_in["Dskip"],
        "B_x": _B_in["x"],
        "B_w_gate": _B_in["w_gate"],
        "B_w_up": _B_in["w_up"],
        "B_w_down": _B_in["w_down"],
    }

def reference(A_x, A_Lambda_re, A_Lambda_im, A_B_re, A_B_im, A_C_re, A_C_im, A_log_dt, A_Dskip, B_x, B_w_gate, B_w_up, B_w_down):
    def _A_ref(x, Lambda_re, Lambda_im, B_re, B_im, C_re, C_im, log_dt, Dskip):
        Bsz, L, H = x.shape
        Lam = Lambda_re + 1j * Lambda_im
        Bmat = B_re + 1j * B_im
        Cmat = C_re + 1j * C_im
        dt = torch.exp(log_dt)
        Lam_bar = torch.exp(dt * Lam)
        B_bar = ((Lam_bar - 1.0) / Lam)[:, None] * Bmat
        Bu = torch.einsum("bld,pd->blp", x + 0j, B_bar)
        h = torch.zeros_like(Bu[:, 0, :])
        hs = []
        for t in range(L):
            h = Lam_bar[None, :] * h + Bu[:, t, :]
            hs.append(h)
        hseq = torch.stack(hs, 1)
        y = 2.0 * torch.einsum("blp,dp->bld", hseq, Cmat).real + x * Dskip[None, None, :]
        return y

    def _B_ref(x, w_gate, w_up, w_down):
        return (_gelu(x @ w_gate) * (x @ w_up)) @ w_down

    x = A_x
    xn = _layernorm(x, axis=-1)
    return x + _A_ref(xn, A_Lambda_re, A_Lambda_im, A_B_re, A_B_im, A_C_re, A_C_im, A_log_dt, A_Dskip) + _B_ref(xn, B_w_gate, B_w_up, B_w_down)
```

```python
import sys, struct
from layout import *

def f32(x): return '0x%08x' % struct.unpack('<I', struct.pack('<f', x))[0]
LOG2E = f32(1.4426950408889634)
INV2PI = f32(0.15915494309189535)

class Asm:
    def __init__(self): self.L = []
    def __call__(self, s):
        for line in s.strip().split('\n'):
            line = line.strip()
            if line: self.L.append('    ' + line)
    def lab(self, s): self.L.append(s + ':')
    def raw(self, s): self.L.append(s)
def vr(a, n): return f'v[{a}:{a+n-1}]'
def sr(a, n): return f's[{a}:{a+n-1}]'

def srd(A, d, base, nbytes):
    A(f's_mov_b32 s{d}, s{base}\ns_mov_b32 s{d+1}, s{base+1}\ns_mov_b32 s{d+2}, {nbytes}\ns_mov_b32 s{d+3}, 0x20000')
def srd_off(A, d, base, off, nbytes):
    A(f's_add_u32 s{d}, s{base}, {off}\ns_addc_u32 s{d+1}, s{base+1}, 0\ns_mov_b32 s{d+2}, {nbytes}\ns_mov_b32 s{d+3}, 0x20000')

def lam_consts(A, lre, lim, ldt, lr, li, cr, ci, t0, t1, t2, t3, need_coef=True):
    A(f'''
    v_lshlrev_b32 v{lre}, 16, v{lre}
    v_lshlrev_b32 v{lim}, 16, v{lim}
    v_lshlrev_b32 v{ldt}, 16, v{ldt}
    v_mul_f32 v{t0}, {LOG2E}, v{ldt}
    v_exp_f32 v{t0}, v{t0}
    s_nop 0
    v_cvt_pk_bf16_f32 v{t0}, v{t0}, v{t0}
    v_lshlrev_b32 v{t0}, 16, v{t0}
    v_mul_f32 v{t1}, v{t0}, v{lre}
    v_mul_f32 v{t2}, v{t0}, v{lim}
    v_mul_f32 v{t1}, {LOG2E}, v{t1}
    v_exp_f32 v{t1}, v{t1}
    v_mul_f32 v{t2}, {INV2PI}, v{t2}
    v_rndne_f32 v{t3}, v{t2}
    v_sub_f32 v{t2}, v{t2}, v{t3}
    v_cos_f32 v{t3}, v{t2}
    v_sin_f32 v{t2}, v{t2}
    s_nop 0
    v_mul_f32 v{lr}, v{t1}, v{t3}
    v_mul_f32 v{li}, v{t1}, v{t2}
    ''')
    if need_coef:
        A(f'''
        v_add_f32 v{t0}, -1.0, v{lr}
        v_mul_f32 v{t1}, v{lre}, v{lre}
        v_fmac_f32 v{t1}, v{lim}, v{lim}
        v_rcp_f32 v{t1}, v{t1}
        v_mul_f32 v{cr}, v{t0}, v{lre}
        v_fmac_f32 v{cr}, v{li}, v{lim}
        v_mul_f32 v{ci}, v{li}, v{lre}
        v_fma_f32 v{ci}, -v{t0}, v{lim}, v{ci}
        v_mul_f32 v{cr}, v{cr}, v{t1}
        v_mul_f32 v{ci}, v{ci}, v{t1}
        ''')
def csq(A, r, i, r2, i2, t):
    A(f'''
    v_mul_f32 v{t}, v{i}, v{i}
    v_mul_f32 v{i2}, v{r}, v{i}
    v_fma_f32 v{r2}, v{r}, v{r}, -v{t}
    v_add_f32 v{i2}, v{i2}, v{i2}
    ''')
def cmul(A, ar, ai, br, bi, r, i):
    A(f'''
    v_mul_f32 v{r}, v{ar}, v{br}
    v_mul_f32 v{i}, v{ar}, v{bi}
    v_fma_f32 v{r}, -v{ai}, v{bi}, v{r}
    v_fmac_f32 v{i}, v{ai}, v{br}
    ''')
DPP8 = 'row_ror:8 row_mask:0xf bank_mask:0xf'
def mapply(A, dst, t, lamr, slami, add):
    if add is None: A(f'v_mul_f32 v{dst}, v{lamr}, v{t}')
    else: A(f'v_fma_f32 v{dst}, v{lamr}, v{t}, v{add}')
    A('s_nop 0')
    A(f'v_fmac_f32_dpp v{dst}, v{t}, v{slami} {DPP8}')

def kd(name, vgpr, sgpr=102, accum=None):
    if accum is None: accum = (vgpr + 3)//4*4
    return f'''.p2align 6
.amdhsa_kernel {name}
  .amdhsa_next_free_vgpr {vgpr}
  .amdhsa_next_free_sgpr {sgpr}
  .amdhsa_accum_offset {accum}
  .amdhsa_group_segment_fixed_size 0
  .amdhsa_kernarg_size 128
  .amdhsa_user_sgpr_count 2
  .amdhsa_user_sgpr_kernarg_segment_ptr 1
  .amdhsa_system_sgpr_workgroup_id_x 1
  .amdhsa_float_denorm_mode_32 3
.end_amdhsa_kernel'''
def khead(A, name):
    A.raw(f'.globl {name}\n.p2align 8\n.type {name},@function\n{name}:')

L0_LDS = 82944
def gen_l0(A):
    name = 'pre_kernel'
    khead(A, name)
    X = 16; B = 48; ST = 120; ACC = 136
    LR, SLI, A1, A2, L16R, SL16I = 152, 153, 154, 155, 156, 157
    DS = 160
    STAT = 73728; MR = 78336
    A(f'''
    s_cmp_ge_u32 s2, 256
    s_cbranch_scc1 L0_END
    s_load_dwordx16 s[16:31], s[0:1], 0
    s_load_dwordx2 s[32:33], s[0:1], 64
    s_load_dwordx2 s[34:35], s[0:1], 104
    s_load_dwordx2 s[36:37], s[0:1], 120
    v_and_b32 v1, 63, v0
    v_lshrrev_b32 v2, 6, v0
    s_and_b32 s3, s2, 7
    s_lshr_b32 s4, s2, 3
    v_readfirstlane_b32 s7, v2
    s_lshr_b32 s5, s4, 3
    s_lshl_b32 s3, s3, 2
    s_add_u32 s5, s5, s3
    s_and_b32 s6, s4, 7
    v_lshrrev_b32 v3, 3, v1
    v_and_b32 v4, 7, v1
    v_mul_u32_u24 v5, 1152, v3
    v_lshl_add_u32 v5, v4, 4, v5
    s_mul_i32 s8, s5, 73728
    s_lshl_b32 s9, s7, 7
    s_add_u32 s8, s8, s9
    s_mul_i32 s10, s6, 72
    s_lshl_b32 s11, s7, 3
    s_add_u32 s10, s10, s11
    v_add_u32 v6, s10, v4
    v_lshlrev_b32 v7, 1, v6
    v_lshl_add_u32 v8, v4, 4, s9
    v_mul_u32_u24 v9, 1152, v6
    v_lshrrev_b32 v2, 4, v1
    v_lshl_add_u32 v9, v2, 4, v9
    v_and_b32 v10, 8, v1
    v_cmp_ne_u32 vcc, 0, v10
    s_waitcnt lgkmcnt(0)
    ''')
    srd(A, 40, 16, 2359296)
    srd(A, 44, 36, 0x10000000)
    srd(A, 48, 34, 4718592)
    A(f'''
    global_load_ushort v{ACC}, v7, s[18:19]
    global_load_ushort v{ACC+1}, v7, s[20:21]
    global_load_ushort v{ACC+2}, v7, s[30:31]
    ''')
    for i in range(8):
        A(f'buffer_load_dwordx4 {vr(X+4*i,4)}, v5, s[40:43], s8 offen')
        if i < 7: A('s_add_u32 s8, s8, 9216')
    A(f'global_load_dwordx4 {vr(DS,4)}, v8, s[32:33]')
    A('''
    v_mov_b32 v12, s22
    v_mov_b32 v13, s24
    v_cndmask_b32 v12, v12, v13, vcc
    v_mov_b32 v13, s23
    v_mov_b32 v14, s25
    v_cndmask_b32 v13, v13, v14, vcc
    v_add_co_u32 v12, vcc, v12, v9
    s_nop 1
    v_addc_co_u32 v13, vcc, 0, v13, vcc
    ''')
    for s in range(18):
        A(f'global_load_dwordx4 {vr(B+4*s,4)}, v[12:13], off offset:{64*s}')
    A('s_waitcnt vmcnt(27)')
    t = ACC
    lam_consts(A, t, t+1, t+2, LR, t+3, t+4, t+5, t+6, t+7, t+8, t+9)
    A(f'''
    v_lshlrev_b32 v10, 28, v10
    v_xor_b32 v{SLI}, v10, v{t+3}
    v_add_f32 v{A1}, v{t+4}, v{t+4}
    v_xor_b32 v{A1}, v10, v{A1}
    v_mul_f32 v{A2}, -2.0, v{t+5}
    ''')
    csq(A, LR, t+3, L16R, SL16I, t+6)
    for _ in range(3): csq(A, L16R, SL16I, L16R, SL16I, t+6)
    A(f'v_xor_b32 v{SL16I}, v10, v{SL16I}')
    A('s_mov_b32 s12, 0x3f803f80')
    for i in range(8):
        A(f's_waitcnt vmcnt({26-i})')
        for q in range(4):
            c0 = '0' if q == 0 else f'v{ST+2*i}'
            c1 = '0' if q == 0 else f'v{ST+2*i+1}'
            A(f'v_dot2_f32_bf16 v{ST+2*i}, v{X+4*i+q}, s12, {c0}')
            A(f'v_dot2_f32_bf16 v{ST+2*i+1}, v{X+4*i+q}, v{X+4*i+q}, {c1}')
    A('s_nop 2')
    for pat in ('quad_perm:[1,0,3,2]', 'quad_perm:[2,3,0,1]', 'row_half_mirror'):
        for k in range(16):
            A(f'v_add_f32_dpp v{ST+k}, v{ST+k}, v{ST+k} {pat} row_mask:0xf bank_mask:0xf')
    A(f'''
    s_lshl_b32 s13, s7, 9
    s_add_u32 s14, s13, {STAT}
    v_lshl_add_u32 v11, v3, 3, s14
    s_mov_b64 s[52:53], exec
    s_mov_b32 s54, 0x01010101
    s_mov_b32 s55, 0x01010101
    s_mov_b64 exec, s[54:55]
    ''')
    for i in range(8):
        A(f'ds_write_b64 v11, {vr(ST+2*i,2)} offset:{64*i}')
    A(f'''
    s_mov_b64 exec, s[52:53]
    v_lshlrev_b32 v14, 3, v1
    v_add_u32 v15, {STAT}, v14
    s_waitcnt lgkmcnt(0)
    s_barrier
    ''')
    for k in range(4):
        A(f'ds_read2st64_b64 {vr(ST+4*k,4)}, v15 offset0:{2*k} offset1:{2*k+1}')
    A(f'ds_read_b64 {vr(ACC,2)}, v15 offset:4096')
    A('s_waitcnt lgkmcnt(0)')
    for k in range(8):
        A(f'v_add_f32 v{ACC}, v{ACC}, v{ST+2*k}')
        A(f'v_add_f32 v{ACC+1}, v{ACC+1}, v{ST+2*k+1}')
    inv = f32(1.0/576.0)
    A(f'''
    v_mul_f32 v{ACC}, {inv}, v{ACC}
    v_mul_f32 v{ACC+1}, {inv}, v{ACC+1}
    v_fma_f32 v{ACC+1}, -v{ACC}, v{ACC}, v{ACC+1}
    v_max_f32 v{ACC+1}, 0, v{ACC+1}
    v_cvt_pk_bf16_f32 v{ACC+2}, v{ACC}, v{ACC+1}
    v_lshlrev_b32 v{ACC}, 16, v{ACC+2}
    v_and_b32 v{ACC+1}, 0xffff0000, v{ACC+2}
    v_add_f32 v{ACC+1}, {f32(1e-5)}, v{ACC+1}
    v_cvt_pk_bf16_f32 v{ACC+1}, v{ACC+1}, v{ACC+1}
    v_lshlrev_b32 v{ACC+1}, 16, v{ACC+1}
    v_sqrt_f32 v{ACC+1}, v{ACC+1}
    s_nop 0
    v_cvt_pk_bf16_f32 v{ACC+1}, v{ACC+1}, v{ACC+1}
    v_lshlrev_b32 v{ACC+1}, 16, v{ACC+1}
    v_rcp_f32 v{ACC+1}, v{ACC+1}
    s_add_u32 s14, s13, {MR}
    v_add_u32 v15, s14, v14
    v_lshl_add_u32 v11, v3, 3, s14
    ds_write_b64 v15, {vr(ACC,2)}
    s_waitcnt lgkmcnt(0)
    ''')
    for i in range(8):
        A(f'ds_read_b64 {vr(ST+2*i,2)}, v11 offset:{64*i}')
    A(f'''
    v_lshrrev_b32 v11, 2, v3
    v_mul_u32_u24 v11, 18, v11
    v_lshrrev_b32 v14, 2, v4
    v_add_u32 v11, v11, v14
    s_lshl_b32 s14, s7, 1
    v_add_u32 v11, s14, v11
    v_lshlrev_b32 v11, 10, v11
    v_and_b32 v14, 3, v4
    v_lshl_add_u32 v11, v14, 8, v11
    v_and_b32 v14, 3, v3
    v_xor_b32 v14, v14, v4
    v_lshl_add_u32 v11, v14, 4, v11
    s_mov_b32 s15, 0xffff0000
    ''')
    T0 = ACC
    for i in range(8):
        A(f's_waitcnt lgkmcnt({7-i})' if i == 0 else f's_waitcnt lgkmcnt({min(15, 7-i+ i)})' if False else '')
        if i == 0: A('s_waitcnt lgkmcnt(0)')
        A(f's_cmp_lg_u32 s6, {i}\ns_cbranch_scc1 L0_S{i}a')
        for q in range(4): A(f'v_mov_b32 v{T0+8+q}, v{X+4*i+q}')
        A.lab(f'L0_S{i}a')
        m = ST+2*i
        for q in range(4):
            x = X+4*i+q; a = T0+2*q
            A(f'v_lshlrev_b32 v{a}, 16, v{x}\nv_and_b32 v{a+1}, s15, v{x}')
        for q in range(4):
            a = T0+2*q
            A(f'v_pk_add_f32 {vr(a,2)}, {vr(a,2)}, {vr(m,2)} op_sel_hi:[1,0] neg_lo:[0,1] neg_hi:[0,1]')
        for q in range(4):
            a = T0+2*q
            A(f'v_cvt_pk_bf16_f32 v{a+1}, v{a}, v{a+1}')
        for q in range(4):
            a = T0+2*q
            A(f'v_lshlrev_b32 v{a}, 16, v{a+1}\nv_and_b32 v{a+1}, s15, v{a+1}')
        for q in range(4):
            a = T0+2*q
            A(f'v_pk_mul_f32 {vr(a,2)}, {vr(a,2)}, {vr(m,2)} op_sel:[0,1] op_sel_hi:[1,1]')
        for q in range(4):
            a = T0+2*q
            A(f'v_cvt_pk_bf16_f32 v{X+4*i+q}, v{a}, v{a+1}')
        xr = ((i >> 1) & 1) * 64 + (i >> 2) * 128
        A(f'v_xor_b32 v14, {xr}, v11')
        A(f'ds_write_b128 v14, {vr(X+4*i,4)} offset:{36864*(i&1)}')
        A(f's_cmp_lg_u32 s6, {i}\ns_cbranch_scc1 L0_S{i}b')
        for q in range(4): A(f'v_mov_b32 v{T0+12+q}, v{X+4*i+q}')
        A.lab(f'L0_S{i}b')
    A(f'''
    s_lshl_b32 s12, s5, 1
    s_lshr_b32 s13, s6, 2
    s_add_u32 s12, s12, s13
    s_mul_i32 s12, s12, 36
    s_lshl_b32 s13, s7, 2
    s_add_u32 s12, s12, s13
    s_lshl_b32 s12, s12, 10
    s_and_b32 s13, s6, 3
    s_lshl_b32 s13, s13, 7
    s_add_u32 s12, s12, s13
    v_lshlrev_b32 v14, 9, v4
    v_lshl_add_u32 v14, v3, 4, v14
    buffer_store_dwordx4 {vr(T0+12,4)}, v14, s[44:47], s12 offen
    s_waitcnt vmcnt(19)
    ''')
    for q in range(4):
        a = T0+2*q
        A(f'''
        v_lshlrev_b32 v{a}, 16, v{T0+12+q}
        v_and_b32 v{a+1}, s15, v{T0+12+q}
        v_lshlrev_b32 v2, 16, v{DS+q}
        v_and_b32 v15, s15, v{DS+q}
        v_mul_f32 v{a}, v{a}, v2
        v_mul_f32 v{a+1}, v{a+1}, v15
        v_cvt_pk_bf16_f32 v{a+1}, v{a}, v{a+1}
        v_lshlrev_b32 v{a}, 16, v{a+1}
        v_and_b32 v{a+1}, s15, v{a+1}
        v_lshlrev_b32 v2, 16, v{T0+8+q}
        v_and_b32 v15, s15, v{T0+8+q}
        v_add_f32 v{a}, v{a}, v2
        v_add_f32 v{a+1}, v{a+1}, v15
        ''')
    A(f'''
    s_lshl_b32 s12, s5, 3
    s_add_u32 s12, s12, s6
    s_mul_i32 s12, s12, {8*2304}
    s_lshl_b32 s13, s7, 8
    s_add_u32 s12, s12, s13
    v_lshlrev_b32 v14, 1, v5
    buffer_store_dwordx4 {vr(T0,4)}, v14, s[48:51], s12 offen
    buffer_store_dwordx4 {vr(T0+4,4)}, v14, s[48:51], s12 offen offset:16
    ''')
    A(f'''
    v_lshrrev_b32 v2, 4, v1
    v_xor_b32 v6, v1, v2
    v_lshlrev_b32 v6, 4, v6
    v_xor_b32 v7, 64, v6
    v_add_u32 v8, 36864, v6
    v_add_u32 v9, 36864, v7
    s_waitcnt lgkmcnt(0)
    s_barrier
    ''')
    def rd(s):
        for tb in range(4):
            ad = (6 if s % 2 == 0 else 7) + (2 if tb >= 2 else 0)
            A(f'ds_read_b128 {vr(X+16*(s%2)+4*tb,4)}, v{ad} offset:{((tb%2)*18+s)*1024}')
    rd(0)
    A('s_waitcnt vmcnt(3)')
    for s in range(18):
        if s < 17: rd(s+1)
        A(f's_waitcnt lgkmcnt({4 if s < 17 else 0})')
        for tb in range(4):
            c = '0' if s == 0 else vr(ACC+4*tb, 4)
            A(f'v_mfma_f32_16x16x32_bf16 {vr(ACC+4*tb,4)}, {vr(X+16*(s%2)+4*tb,4)}, {vr(B+4*s,4)}, {c}')
    Hh = B
    A(f'''
    v_and_b32 v2, 15, v1
    v_lshlrev_b32 v2, 2, v2
    v_add_u32 v3, 64, v2
    v_add_u32 v4, 128, v2
    v_add_u32 v5, 192, v2
    s_nop 4
    ''')
    for k in range(16): A(f'v_mul_f32 v{Hh+k}, v{A1}, v{ACC+k}')
    for k in range(16): A(f'v_fmac_f32_dpp v{Hh+k}, v{ACC+k}, v{A2} {DPP8}')
    for k in range(1, 16):
        A(f'v_fmac_f32 v{Hh+k}, v{LR}, v{Hh+k-1}\ns_nop 0\nv_fmac_f32_dpp v{Hh+k}, v{Hh+k-1}, v{SLI} {DPP8}')
    E0 = X
    for g in range(4): A(f'ds_bpermute_b32 v{E0+g}, v{2+g}, v{Hh+15}')
    A(f'''
    s_lshl_b32 s12, s5, 3
    s_add_u32 s12, s12, s6
    s_mul_i32 s12, s12, 9
    s_add_u32 s12, s12, s7
    s_mul_i32 s13, s12, {H0_UNIT}
    s_add_u32 s13, s13, {H0_OFF}
    v_lshlrev_b32 v6, 4, v1
    ''')
    for k in range(4):
        A(f'buffer_store_dwordx4 {vr(Hh+4*k,4)}, v6, s[44:47], s13 offen offset:{1024*k}')
    A('s_waitcnt lgkmcnt(0)')
    T2, T3, EE = X+4, X+5, X+6
    mapply(A, T2, E0, L16R, SL16I, E0+1)
    mapply(A, T3, T2, L16R, SL16I, E0+2)
    mapply(A, EE, T3, L16R, SL16I, E0+3)
    A(f'''
    v_lshrrev_b32 v7, 4, v1
    v_mov_b32 v8, 0
    v_cmp_eq_u32 vcc, 1, v7
    s_nop 1
    v_cndmask_b32 v8, v8, v{E0}, vcc
    v_cmp_eq_u32 vcc, 2, v7
    s_nop 1
    v_cndmask_b32 v8, v8, v{T2}, vcc
    v_cmp_eq_u32 vcc, 3, v7
    s_nop 1
    v_cndmask_b32 v8, v8, v{T3}, vcc
    v_lshlrev_b32 v6, 2, v1
    s_add_u32 s13, s13, 4096
    buffer_store_dword v8, v6, s[44:47], s13 offen
    s_lshl_b32 s12, s12, 6
    s_add_u32 s12, s12, {E_OFF}
    buffer_store_dword v{EE}, v2, s[44:47], s12 offen
    ''')
    A.lab('L0_END')
    A('s_endpgm')
    return kd(name, 168)

K1_SLOT = 37120; K1_UOFF = 18560; K1_LDS = 4*K1_SLOT
def gen_k1(A):
    name = 'up_kernel'
    khead(A, name)
    XR = 16; WR = 48; NW = 6; TMP = 72; ACC = 96
    A(f'''
    s_cmp_ge_u32 s2, 256
    s_cbranch_scc1 K1_END
    s_load_dwordx4 s[16:19], s[0:1], 8
    s_load_dwordx2 s[20:21], s[0:1], 56
    s_load_dwordx4 s[24:27], s[0:1], 80
    s_load_dwordx2 s[36:37], s[0:1], 120
    v_and_b32 v1, 63, v0
    v_lshrrev_b32 v2, 6, v0
    s_and_b32 s3, s2, 7
    s_lshr_b32 s4, s2, 3
    v_readfirstlane_b32 s7, v2
    s_lshr_b32 s5, s4, 3
    s_lshl_b32 s8, s3, 2
    s_add_u32 s5, s5, s8
    s_and_b32 s6, s4, 7
    s_lshr_b32 s8, s3, 2
    s_lshl_b32 s8, s8, 2
    s_lshr_b32 s9, s4, 3
    s_add_u32 s8, s8, s9
    s_and_b32 s9, s3, 3
    s_lshl_b32 s9, s9, 3
    s_add_u32 s9, s9, s6
    s_lshl_b32 s10, s8, 3
    s_add_u32 s10, s10, s7
    v_lshlrev_b32 v3, 4, v1
    s_waitcnt lgkmcnt(0)
    ''')
    srd(A, 44, 36, 0x10000000)
    srd_off(A, 48, 36, E_OFF, E_BYTES)
    A('s_mul_i32 s11, s9, 288')
    WB = 576*9216
    A(f'''
    s_add_u32 s52, s24, s11
    s_addc_u32 s53, s25, 0
    s_sub_u32 s54, {WB}, s11
    s_mov_b32 s55, 0x20000
    s_add_u32 s56, s26, s11
    s_addc_u32 s57, s27, 0
    s_sub_u32 s58, {WB}, s11
    s_mov_b32 s59, 0x20000
    s_cmp_lt_u32 s7, 2
    s_cselect_b32 s60, s52, s56
    s_cselect_b32 s61, s53, s57
    s_mov_b32 s62, s54
    s_mov_b32 s63, 0x20000
    ''')
    def fix_loads(base, sunit):
        A(f'''
        s_lshl_b32 s12, s5, 3
        s_add_u32 s12, s12, s6
        s_mul_i32 s12, s12, 9
        s_add_u32 s12, s12, {sunit}
        s_mul_i32 s13, s12, {H0_UNIT}
        s_add_u32 s13, s13, {H0_OFF}
        s_mul_i32 s14, s6, 72
        s_lshl_b32 s15, {sunit}, 3
        s_add_u32 s14, s14, s15
        v_and_b32 v4, 7, v1
        v_add_u32 v{base+28}, s14, v4
        v_lshlrev_b32 v4, 1, v{base+28}
        global_load_ushort v{base+25}, v4, s[16:17]
        global_load_ushort v{base+26}, v4, s[18:19]
        global_load_ushort v{base+27}, v4, s[20:21]
        ''')
        A(f'''
        s_lshl_b32 s12, s12, 6
        v_lshrrev_b32 v4, 4, v1
        v_mul_u32_u24 v4, {8*4608}, v4
        v_and_b32 v5, 15, v1
        v_lshl_add_u32 v5, v5, 2, s12
        v_sub_u32 v5, v5, v4
        ''')
        for i in range(8):
            A(f'v_subrev_u32 v5, 4608, v5')
            A(f'buffer_load_dword v{base+17+i}, v5, s[48:51], 0 offen')
        A(f'v_lshlrev_b32 v4, 2, v1')
        for k in range(4):
            A(f'buffer_load_dwordx4 {vr(base+4*k,4)}, v3, s[44:47], s13 offen offset:{1024*k}')
        A(f's_add_u32 s13, s13, 4096\nbuffer_load_dword v{base+16}, v4, s[44:47], s13 offen')
    FA = ACC; FB = ACC+32
    fix_loads(FA, 's7')
    A('s_cmp_lg_u32 s7, 0\ns_cbranch_scc1 K1_NOB\ns_mov_b32 s33, 8')
    fix_loads(FB, 's33')
    A.lab('K1_NOB')
    def piece_off(dst, spiece):
        A(f'''
        s_lshl_b32 s12, {spiece}, 6
        v_add_u32 v4, s12, v1
        v_mul_u32_u24 v5, 3641, v4
        v_lshrrev_b32 v5, 16, v5
        v_mul_u32_u24 v6, 18, v5
        v_sub_u32 v6, v4, v6
        v_mul_u32_u24 v5, 9216, v5
        v_lshl_add_u32 v{dst}, v6, 4, v5
        ''')
    for idx in range(1152): assert (idx*3641) >> 16 == idx//18
    piece_off(8, 's7')
    A('s_add_u32 s13, s7, 8'); piece_off(9, 's13')
    A('s_and_b32 s13, s7, 1\ns_add_u32 s13, s13, 16'); piece_off(10, 's13')
    A(f'''
    s_lshl_b32 s28, s7, 10
    s_lshl_b32 s29, s13, 10
    s_cmp_lt_u32 s7, 2
    s_cselect_b32 s12, 0, {K1_UOFF}
    s_add_u32 s29, s29, s12
    s_mul_i32 s30, s10, {36*1024}
    ''')
    def dma(n):
        slot = (n % 4) * K1_SLOT
        A(f's_mov_b32 s31, {n*64*9216}')
        for (voff, srdn, ldsoff) in ((8, 52, 0), (8, 56, K1_UOFF), (9, 52, 8192), (9, 56, K1_UOFF+8192)):
            A(f's_add_u32 m0, s28, {slot+ldsoff}\ns_nop 0\nbuffer_load_dwordx4 v{voff}, {sr(srdn,4)}, s31 offen lds')
        A(f's_cmp_ge_u32 s7, 4\ns_cbranch_scc1 K1_D{n}')
        A(f's_add_u32 m0, s29, {slot}\ns_nop 0\nbuffer_load_dwordx4 v10, s[60:63], s31 offen lds')
        A.lab(f'K1_D{n}')
    def xload(ks):
        if ks * 1024 < 4096:
            A(f'buffer_load_dwordx4 {vr(XR+4*(ks%8),4)}, v3, s[44:47], s30 offen offset:{ks*1024}')
        else:
            A(f's_add_u32 s32, s30, {ks*1024}\nbuffer_load_dwordx4 {vr(XR+4*(ks%8),4)}, v3, s[44:47], s32 offen')
    dma(0)
    for ks in range(8): xload(ks)
    dma(1); dma(2)
    NLATER = 8 + 12
    A(f'''
    v_bfe_u32 v4, v1, 4, 1
    v_mul_u32_u24 v4, {K1_UOFF}, v4
    v_lshrrev_b32 v5, 5, v1
    v_lshlrev_b32 v5, 3, v5
    v_bfe_u32 v6, v1, 2, 2
    v_add_u32 v5, v5, v6
    v_mul_u32_u24 v5, 288, v5
    v_and_b32 v6, 3, v1
    v_lshl_add_u32 v5, v6, 3, v5
    v_add_u32 v12, v4, v5
    v_add_u32 v13, {K1_SLOT}, v12
    v_add_u32 v14, {2*K1_SLOT}, v12
    v_add_u32 v15, {3*K1_SLOT}, v12
    s_mov_b32 s34, 0
    ''')
    A.lab('K1_FIX')
    A(f's_waitcnt vmcnt({NLATER})')
    t = TMP
    LR, LI, SG = t, t+1, t+2
    PR, PI = t+3, t+4
    QR, QI = t+5, t+6
    L64R, L64I = t+7, t+8
    lam_consts(A, FA+25, FA+26, FA+27, LR, LI, 0, 0, t+9, t+10, t+11, t+12, need_coef=False)
    A(f'v_and_b32 v{SG}, 8, v1\nv_lshlrev_b32 v{SG}, 28, v{SG}')
    csq(A, LR, LI, PR, PI, t+9)
    for _ in range(3): csq(A, PR, PI, PR, PI, t+9)
    A(f'v_mov_b32 v{t+13}, v{PR}\nv_mov_b32 v{t+14}, v{PI}')
    csq(A, PR, PI, PR, PI, t+9)
    cmul(A, PR, PI, t+13, t+14, t+15, t+16)
    A(f'''
    v_lshrrev_b32 v4, 4, v1
    v_mov_b32 v{QR}, 1.0
    v_mov_b32 v{QI}, 0
    v_cmp_eq_u32 vcc, 1, v4
    s_nop 1
    v_cndmask_b32 v{QR}, v{QR}, v{t+13}, vcc
    v_cndmask_b32 v{QI}, v{QI}, v{t+14}, vcc
    v_cmp_eq_u32 vcc, 2, v4
    s_nop 1
    v_cndmask_b32 v{QR}, v{QR}, v{PR}, vcc
    v_cndmask_b32 v{QI}, v{QI}, v{PI}, vcc
    v_cmp_eq_u32 vcc, 3, v4
    s_nop 1
    v_cndmask_b32 v{QR}, v{QR}, v{t+15}, vcc
    v_cndmask_b32 v{QI}, v{QI}, v{t+16}, vcc
    v_xor_b32 v{QI}, v{SG}, v{QI}
    ''')
    csq(A, PR, PI, L64R, L64I, t+9)
    csq(A, L64R, L64I, PR, PI, t+9)
    for _ in range(2): csq(A, PR, PI, PR, PI, t+9)
    A(f'''
    v_xor_b32 v{L64I}, v{SG}, v{L64I}
    v_xor_b32 v{PI}, v{SG}, v{PI}
    v_xor_b32 v{LI}, v{SG}, v{LI}
    ''')
    for i in range(6, -1, -1):
        mapply(A, FA+17+i, FA+17+i+1, L64R, L64I, FA+17+i)
    A(f'''
    v_and_b32 v4, 15, v1
    v_lshlrev_b32 v4, 2, v4
    v_add_u32 v5, 64, v4
    v_add_u32 v6, 128, v4
    v_add_u32 v7, 192, v4
    ''')
    for g in range(4): A(f'ds_bpermute_b32 v{FA+18+g}, v{4+g}, v{FA+17}')
    A('s_waitcnt lgkmcnt(0)')
    for g in (2, 1, 0):
        mapply(A, FA+18+g, FA+18+g+1, PR, PI, FA+18+g)
    mapply(A, FA+16, FA+18, QR, QI, FA+16)
    g0, g1 = FA+16, FA+17
    for k in range(16):
        a, b = (g0, g1) if k % 2 == 0 else (g1, g0)
        mapply(A, b, a, LR, LI, None)
        A(f'v_add_f32 v{FA+k}, v{FA+k}, v{b}')
    for k in range(8):
        A(f'v_cvt_pk_bf16_f32 v{FA+k}, v{FA+2*k}, v{FA+2*k+1}')
    A(f'''
    v_bfe_u32 v4, v1, 3, 1
    v_mul_u32_u24 v4, 576, v4
    v_add_u32 v4, v4, v{FA+28}
    v_lshlrev_b32 v4, 12, v4
    v_lshrrev_b32 v5, 4, v1
    v_lshl_add_u32 v4, v5, 5, v4
    s_lshl_b32 s12, s5, 7
    s_add_u32 s12, s12, {HT_OFF}
    buffer_store_dwordx4 {vr(FA,4)}, v4, s[44:47], s12 offen
    buffer_store_dwordx4 {vr(FA+4,4)}, v4, s[44:47], s12 offen offset:16
    s_cmp_lg_u32 s7, 0
    s_cbranch_scc1 K1_FIXDONE
    s_cmp_lg_u32 s34, 0
    s_cbranch_scc1 K1_FIXDONE
    s_mov_b32 s34, 1
    s_nop 0
    ''')
    for k in range(29): A(f'v_mov_b32 v{FA+k}, v{FB+k}')
    A('s_branch K1_FIX')
    A.lab('K1_FIXDONE')
    seq = [(ks, fb) for ks in range(28) for fb in range(9)] + [(ks, fb) for fb in range(9) for ks in range(28, 36)]
    LOOK = 4
    def wread(n):
        ks, fb = seq[n]
        sl = ks // 4; loc = ks % 4
        ad = 12 + (sl % 4)
        off = loc*16*288 + fb*32
        r = WR + 4*(n % NW)
        A(f'ds_read_b64_tr_b16 {vr(r,2)}, v{ad} offset:{off}')
        A(f'ds_read_b64_tr_b16 {vr(r+2,2)}, v{ad} offset:{off+4*288}')
    vm = []
    def vm_add(tag, n=1): vm.extend([tag]*n)
    vm_add('d0', 4); [vm_add(f'x{k}') for k in range(8)]; vm_add('d1', 4); vm_add('d2', 4); vm_add('st', 2)
    def vm_wait(tag):
        last = max(i for i, t_ in enumerate(vm) if t_ == tag)
        n = len(vm) - 1 - last
        A(f's_waitcnt vmcnt({min(n, 63)})')
    seen_slab = set(); seen_x = set()
    def need_slab(sl):
        if sl in seen_slab: return
        seen_slab.add(sl)
        vm_wait(f'd{sl}')
        A('s_barrier')
        nn = sl + 2
        if sl >= 1 and nn <= 8:
            pend_dma.append(nn)
    pend_dma = []
    K0c = f32(-2.302208198); K1c = f32(-2.302208198*0.044715)
    A(f's_mov_b32 s40, {K0c}\ns_mov_b32 s41, {K1c}\nv_mov_b32 v11, s40')
    A(f's_mul_i32 s42, s10, {288*1024}\ns_mul_i32 s43, s9, {9*1024}\ns_add_u32 s42, s42, s43\ns_add_u32 s42, s42, {HF_OFF}')
    epi = []
    def make_epi(fb):
        a = ACC + 16*fb; t = TMP + (fb % 2) * 12
        out = []
        for half in range(2):
            es = range(4*half, 4*half+4)
            for e in es: out.append(f'v_mul_f32 v{t+e%4}, v{a+e}, v{a+e}')
            for e in es: out.append(f'v_fma_f32 v{t+e%4}, v{t+e%4}, s41, v11')
            for e in es: out.append(f'v_mul_f32 v{t+e%4}, v{t+e%4}, v{a+e}')
            for e in es: out.append(f'v_exp_f32 v{t+e%4}, v{t+e%4}')
            for e in es: out.append(f'v_mul_f32 v{a+e}, v{a+e}, v{a+8+e}')
            for e in es: out.append(f'v_add_f32 v{t+e%4}, 1.0, v{t+e%4}')
            for e in es: out.append(f'v_rcp_f32 v{t+e%4}, v{t+e%4}')
            out.append('s_nop 0')
            for e in es: out.append(f'v_mul_f32 v{a+e}, v{a+e}, v{t+e%4}')
            out.append(f'v_cvt_pk_bf16_f32 v{t+4+2*half}, v{a+4*half}, v{a+4*half+1}')
            out.append(f'v_cvt_pk_bf16_f32 v{t+5+2*half}, v{a+4*half+2}, v{a+4*half+3}')
        if fb*1024 < 4096:
            out.append(f'buffer_store_dwordx4 {vr(t+4,4)}, v3, s[44:47], s42 offen offset:{fb*1024}')
        else:
            out.append(f's_add_u32 s43, s42, {fb*1024}')
            out.append(f'buffer_store_dwordx4 {vr(t+4,4)}, v3, s[44:47], s43 offen')
        return out
    N = len(seq)
    need_slab(0)
    for n in range(LOOK): wread(n)
    for n in range(N):
        ks, fb = seq[n]
        if n + LOOK < N:
            need_slab(seq[n+LOOK][0] // 4)
            wread(n + LOOK)
        if ks not in seen_x:
            seen_x.add(ks); vm_wait(f'x{ks}')
        outstanding = 2 * min(LOOK, N - 1 - n)
        A(f's_waitcnt lgkmcnt({outstanding})')
        c = '0' if ks == 0 else vr(ACC+16*fb, 16)
        A(f'v_mfma_f32_32x32x16_bf16 {vr(ACC+16*fb,16)}, {vr(WR+4*(n%NW),4)}, {vr(XR+4*(ks%8),4)}, {c}')
        if ks < 28 and fb == 8:
            xload(ks + 8); vm_add(f'x{ks+8}')
            if ks % 4 == 3:
                for nn in pend_dma: dma(nn); vm_add(f'd{nn}', 4)
                pend_dma.clear()
        if ks >= 28:
            if ks >= 30:
                for _ in range(13):
                    if epi: A(epi.pop(0))
            if ks == 35:
                assert not epi or True
                while epi: A(epi.pop(0))
                epi = make_epi(fb)
                if fb < 8: epi = ['s_nop 3'] + epi
    A('s_nop 11')
    while epi: A(epi.pop(0))
    A.lab('K1_END')
    A('s_endpgm')
    return kd(name, 240)

K2_LDS = 163840
def gen_k2(A):
    name = 'down_kernel'
    khead(A, name)
    AR = 16; NA = 12; WR = 64; NW = 6; ACC = 96; PT = 192
    A(f'''
    s_cmp_ge_u32 s2, 240
    s_cbranch_scc1 K2_END
    s_load_dwordx4 s[16:19], s[0:1], 40
    s_load_dwordx8 s[20:27], s[0:1], 96
    v_and_b32 v1, 63, v0
    v_lshrrev_b32 v2, 6, v0
    s_and_b32 s3, s2, 7
    s_lshr_b32 s4, s2, 3
    v_readfirstlane_b32 s7, v2
    s_cmp_ge_u32 s4, 24
    s_cbranch_scc1 K2_DEC_SSM
    s_and_b32 s5, s3, 3
    s_mul_i32 s9, s4, 86
    s_lshr_b32 s9, s9, 8
    s_lshr_b32 s6, s3, 2
    s_lshl_b32 s6, s6, 3
    s_add_u32 s6, s6, s9
    s_mul_i32 s9, s9, 3
    s_sub_u32 s8, s4, s9
    s_branch K2_DEC_DONE
    ''')
    A.lab('K2_DEC_SSM')
    A('''
    s_mov_b32 s5, 4
    s_sub_u32 s4, s4, 24
    s_mul_i32 s9, s4, 86
    s_lshr_b32 s9, s9, 8
    s_lshl_b32 s6, s3, 1
    s_add_u32 s6, s6, s9
    s_mul_i32 s9, s9, 3
    s_sub_u32 s8, s4, s9
    ''')
    A.lab('K2_DEC_DONE')
    for j in range(30): assert (j*86) >> 8 == j//3
    A('s_waitcnt lgkmcnt(0)')
    srd(A, 44, 26, 0x10000000)
    srd(A, 48, 22, 4718592)
    srd(A, 52, 24, 256)
    srd(A, 56, 20, 4608*1152)
    srd(A, 60, 16, 576*1152)
    srd(A, 64, 18, 576*1152)
    A(f'''
    s_mul_i32 s10, s6, 3
    s_add_u32 s10, s10, s8
    s_lshl_b32 s11, s6, 2
    s_add_u32 s11, s11, s7
    s_mul_i32 s12, s11, {32*2304}
    s_mul_i32 s13, s8, 768
    s_add_u32 s12, s12, s13
    v_lshrrev_b32 v2, 5, v1
    v_mul_u32_u24 v2, {4*2304}, v2
    v_and_b32 v4, 31, v1
    v_lshl_add_u32 v2, v4, 2, v2
    v_lshlrev_b32 v3, 4, v1
    s_cmp_eq_u32 s5, 4
    s_cbranch_scc1 K2_SSM
    ''')
    SLAB = 24576
    A(f'''
    s_mul_i32 s30, s11, {288*1024}
    s_mul_i32 s13, s5, {72*1024}
    s_add_u32 s30, s30, s13
    s_add_u32 s30, s30, {HF_OFF}
    s_lshl_b32 s13, s5, 7
    v_xor_b32 v4, s13, v3
    ''')
    for idx in range(1536): assert (idx*2731) >> 16 == idx//24
    for i in range(6):
        A(f'''
        s_mul_i32 s13, s7, 384
        s_add_u32 s13, s13, {64*i}
        v_add_u32 v12, s13, v1
        v_mul_u32_u24 v13, 2731, v12
        v_lshrrev_b32 v13, 16, v13
        v_mul_u32_u24 v14, 24, v13
        v_sub_u32 v14, v12, v14
        v_bfe_u32 v15, v13, 1, 1
        v_lshlrev_b32 v15, 2, v15
        v_xor_b32 v14, v14, v15
        v_mul_u32_u24 v13, 1152, v13
        v_lshl_add_u32 v{5+i}, v14, 4, v13
        ''')
    A(f'''
    s_mul_i32 s28, s7, 6144
    s_mul_i32 s31, s5, {1152*1152}
    s_mul_i32 s13, s8, 384
    s_add_u32 s31, s31, s13
    ''')
    def dma(n):
        slot = (n % 6) * SLAB
        A(f's_add_u32 s32, s31, {n*64*1152}')
        for i in range(6):
            A(f's_add_u32 m0, s28, {slot+1024*i}\ns_nop 0\nbuffer_load_dwordx4 v{5+i}, s[56:59], s32 offen lds')
    def aload(s):
        if s < 4: A(f'buffer_load_dwordx4 {vr(AR+4*(s%NA),4)}, v4, s[44:47], s30 offen offset:{s*1024}')
        else: A(f's_add_u32 s33, s30, {s*1024}\nbuffer_load_dwordx4 {vr(AR+4*(s%NA),4)}, v4, s[44:47], s33 offen')
    vm = []
    def vm_add(tag, n=1): vm.extend([tag]*n)
    def vm_wait(tag):
        last = max(i for i, t_ in enumerate(vm) if t_ == tag)
        A(f's_waitcnt vmcnt({min(len(vm)-1-last, 63)})')
    dma(0); vm_add('d0', 6)
    for s in range(4): aload(s); vm_add(f'a{s}')
    dma(1); vm_add('d1', 6)
    for s in range(4, 8): aload(s); vm_add(f'a{s}')
    dma(2); vm_add('d2', 6)
    for s in range(8, 12): aload(s); vm_add(f'a{s}')
    dma(3); vm_add('d3', 6)
    dma(4); vm_add('d4', 6)
    A(f'''
    v_lshrrev_b32 v12, 5, v1
    v_lshlrev_b32 v12, 2, v12
    v_bfe_u32 v13, v1, 2, 2
    v_add_u32 v12, v12, v13
    v_mul_u32_u24 v12, 384, v12
    v_bfe_u32 v13, v1, 4, 1
    v_lshl_add_u32 v12, v13, 5, v12
    v_and_b32 v13, 3, v1
    v_lshl_add_u32 v12, v13, 3, v12
    v_bfe_u32 v13, v1, 3, 1
    v_lshlrev_b32 v13, 6, v13
    v_add_u32 v88, v12, v13
    v_sub_u32 v89, v12, v13
    v_add_u32 v90, {2*SLAB}, v88
    v_add_u32 v91, {2*SLAB}, v89
    v_add_u32 v92, {4*SLAB}, v88
    v_add_u32 v93, {4*SLAB}, v89
    ''')
    seq = [(s, j) for s in range(72) for j in range(6)]
    LOOK = 4
    def wread(n):
        s, j = seq[n]
        sl = s // 4; loc = s % 4; slot = sl % 6
        ad = 88 + 2*(slot // 2) + (j % 2)
        off = (slot % 2)*SLAB + loc*16*384 + j*64
        r = WR + 4*(n % NW)
        A(f'ds_read_b64_tr_b16 {vr(r,2)}, v{ad} offset:{off}')
        A(f'ds_read_b64_tr_b16 {vr(r+2,2)}, v{ad} offset:{off+8*384}')
    seen = set(); pend = []
    def need_slab(sl):
        if sl in seen: return
        seen.add(sl); vm_wait(f'd{sl}'); A('s_barrier')
        nn = sl + 4
        if sl >= 1 and nn <= 17: pend.append(nn)
    N = len(seq)
    need_slab(0)
    for n in range(LOOK): wread(n)
    for n in range(N):
        s, j = seq[n]
        if n + LOOK < N:
            need_slab(seq[n+LOOK][0] // 4); wread(n+LOOK)
        if j == 0: vm_wait(f'a{s}')
        A(f's_waitcnt lgkmcnt({2*min(LOOK, N-1-n)})')
        c = '0' if s == 0 else vr(ACC+16*j, 16)
        A(f'v_mfma_f32_32x32x16_bf16 {vr(ACC+16*j,16)}, {vr(AR+4*(s%NA),4)}, {vr(WR+4*(n%NW),4)}, {c}')
        if j == 5:
            if s + NA < 72: aload(s+NA); vm_add(f'a{s+NA}')
            if s % 4 == 3:
                for nn in pend: dma(nn); vm_add(f'd{nn}', 6)
                pend.clear()
    A(f's_mul_i32 s34, s10, {16*24576}\ns_add_u32 s34, s34, {PART_OFF}\ns_add_u32 s34, s34, s28\ns_nop 7')
    for ap in (1, 2, 3):
        A(f's_xor_b32 s13, s5, {ap}\ns_mul_i32 s13, s13, {4*24576}\ns_add_u32 s13, s13, s34\ns_add_u32 s13, s13, {ap*24576}\ns_add_u32 s14, s13, 4096')
        for j in range(6):
            so, io = ('s13', j*1024) if j < 4 else ('s14', (j-4)*1024)
            A(f'buffer_store_dwordx4 {vr(ACC+16*j+4*ap,4)}, v3, s[44:47], {so} offen offset:{io} sc0 sc1')
    A(f'''
    s_waitcnt vmcnt(0)
    s_barrier
    s_lshl_b32 s13, s10, 2
    v_mov_b32 v12, s13
    v_mov_b32 v13, 1
    s_cmp_lg_u32 s7, 0
    s_cbranch_scc1 K2_WAITB
    s_mov_b64 s[36:37], exec
    s_mov_b64 exec, 1
    buffer_atomic_add v13, v12, s[52:55], 0 offen sc1
    ''')
    A.lab('K2_POLL')
    A('''
    buffer_load_dword v14, v12, s[52:55], 0 offen sc0 sc1
    s_waitcnt vmcnt(0)
    v_readfirstlane_b32 s13, v14
    s_cmp_ge_u32 s13, 5
    s_cbranch_scc1 K2_POLLED
    s_sleep 1
    s_branch K2_POLL
    ''')
    A.lab('K2_POLLED')
    A('s_mov_b64 exec, s[36:37]')
    A.lab('K2_WAITB')
    A(f'''
    s_barrier
    s_mul_i32 s13, s5, {4*24576}
    s_add_u32 s13, s13, s34
    ''')
    def preg(slot, j):
        k = slot*6 + j
        return (AR + 4*k) if k < 12 else (PT + 4*(k-12))
    for slot in range(4):
        A(f's_add_u32 s14, s13, {slot*24576}\ns_add_u32 s15, s14, 4096')
        for j in range(6):
            so, io = ('s14', j*1024) if j < 4 else ('s15', (j-4)*1024)
            A(f'buffer_load_dwordx4 {vr(preg(slot,j),4)}, v3, s[44:47], {so} offen offset:{io} sc0 sc1')
    A(f's_mul_i32 s13, s5, {8*2304}\ns_add_u32 s12, s12, s13')
    A('s_waitcnt vmcnt(0)')
    for j in range(6):
        for e in range(4):
            a = ACC+16*j+e
            A(f'v_add_f32 v{a}, v{a}, v{preg(1,j)+e}\nv_add_f32 v{preg(2,j)+e}, v{preg(2,j)+e}, v{preg(3,j)+e}')
        for e in range(4):
            a = ACC+16*j+e
            A(f'v_add_f32 v{a}, v{a}, v{preg(2,j)+e}')
        for e in range(4):
            a = ACC+16*j+e
            A(f'v_add_f32 v{a}, v{a}, v{preg(0,j)+e}')
    for e in range(4):
        A(f's_add_u32 s13, s12, {e*2304}')
        for j in range(6):
            A(f'buffer_store_dword v{ACC+16*j+e}, v2, s[48:51], s13 offen offset:{j*128}')
    A('s_branch K2_END')
    A.lab('K2_SSM')
    SL2 = 40960; COFF = 16384
    for r in range(16):
        A(f's_add_u32 s13, s12, {((r//4)*8 + r%4)*2304}')
        for j in range(6):
            A(f'buffer_load_dword v{ACC+16*j+r}, v2, s[48:51], s13 offen offset:{j*128}')
        if r % 8 == 7: A('s_waitcnt vmcnt(0)')
    A(f'''
    v_lshrrev_b32 v12, 4, v1
    v_lshlrev_b32 v13, 2, v12
    v_and_b32 v14, 15, v1
    v_xor_b32 v13, v13, v14
    v_lshlrev_b32 v13, 4, v13
    v_lshl_add_u32 v5, v12, 12, v13
    s_lshl_b32 s31, s7, 16
    s_lshl_b32 s13, s6, 8
    s_add_u32 s31, s31, s13
    s_add_u32 s31, s31, {HT_OFF}
    s_lshl_b32 s28, s7, 12
    ''')
    A(f'''
    v_lshrrev_b32 v12, 3, v1
    v_mul_u32_u24 v12, 1152, v12
    v_lshrrev_b32 v13, 4, v1
    v_and_b32 v14, 7, v1
    v_xor_b32 v13, v13, v14
    v_lshl_add_u32 v6, v13, 4, v12
    v_xor_b32 v7, 64, v6
    s_mul_i32 s35, s8, {192*1152}
    s_mul_i32 s13, s7, {48*1152}
    s_add_u32 s35, s35, s13
    s_mul_i32 s29, s7, 6144
    ''')
    def dma2(n):
        slot = (n % 4) * SL2
        for i in range(4):
            A(f's_add_u32 s32, s31, {n*64*4096 + i*4*4096}')
            A(f's_add_u32 m0, s28, {slot+1024*i}\ns_nop 0\nbuffer_load_dwordx4 v5, s[44:47], s32 offen lds')
        sd = 60 if n < 9 else 64
        for i in range(6):
            A(f's_add_u32 s32, s35, {(n%9)*128 + i*8*1152}')
            A(f's_add_u32 m0, s29, {slot+COFF+1024*i}\ns_nop 0\nbuffer_load_dwordx4 v{6+(i%2)}, {sr(sd,4)}, s32 offen lds')
    vm.clear()
    for n in range(3): dma2(n); vm_add(f'd{n}', 10)
    A(f'''
    v_lshrrev_b32 v12, 5, v1
    v_lshlrev_b32 v13, 3, v12
    v_bfe_u32 v14, v1, 2, 2
    v_add_u32 v13, v13, v14
    v_lshlrev_b32 v13, 8, v13
    v_xor_b32 v14, s7, v14
    v_lshl_add_u32 v13, v14, 6, v13
    v_bfe_u32 v14, v1, 4, 1
    v_lshl_add_u32 v13, v14, 5, v13
    v_and_b32 v14, 3, v1
    v_lshl_add_u32 v8, v14, 3, v13
    v_add_u32 v9, {SL2}, v8
    v_add_u32 v10, {2*SL2}, v8
    v_add_u32 v11, {3*SL2}, v8
    v_and_b32 v13, 31, v1
    v_bfe_u32 v14, v1, 1, 3
    v_xor_b32 v14, v14, v12
    v_lshlrev_b32 v14, 4, v14
    v_lshl_add_u32 v13, v13, 7, v14
    v_add_u32 v13, {COFF}, v13
    ''')
    BA = PT
    for sp in range(4):
        A(f'v_xor_b32 v{BA+sp}, {sp*32}, v13')
        for slot in range(1, 4):
            A(f'v_add_u32 v{BA+4*slot+sp}, {slot*SL2}, v{BA+sp}')
    seen.clear(); pend.clear()
    def need2(sl):
        if sl in seen: return
        seen.add(sl); vm_wait(f'd{sl}'); A('s_barrier')
        nn = sl + 2
        if sl >= 1 and nn <= 17: pend.append(nn)
    lg = []
    def rd2(n):
        s, j = seq[n]
        sl = s // 4; loc = s % 4; slot = sl % 4
        if j == 0:
            r = AR + 4*(s % 2)
            A(f'ds_read_b64_tr_b16 {vr(r,2)}, v{8+slot} offset:{loc*16*256}')
            A(f'ds_read_b64_tr_b16 {vr(r+2,2)}, v{8+slot} offset:{loc*16*256+4*256}')
            lg.extend([n, n])
        A(f'ds_read_b128 {vr(WR+4*(n%NW),4)}, v{BA+4*slot+loc} offset:{j*4096}')
        lg.append(n)
    need2(0)
    for n in range(LOOK): rd2(n)
    for n in range(N):
        s, j = seq[n]
        if n + LOOK < N:
            need2(seq[n+LOOK][0] // 4); rd2(n+LOOK)
        A(f's_waitcnt lgkmcnt({sum(1 for t_ in lg if t_ > n)})')
        A(f'v_mfma_f32_32x32x16_bf16 {vr(ACC+16*j,16)}, {vr(AR+4*(s%2),4)}, {vr(WR+4*(n%NW),4)}, {vr(ACC+16*j,16)}')
        if j == 5 and s % 4 == 3:
            for nn in pend: dma2(nn); vm_add(f'd{nn}', 10)
            pend.clear()
    A(f's_mul_i32 s34, s10, {16*24576}\ns_add_u32 s34, s34, {PART_OFF}\ns_add_u32 s34, s34, s29\ns_nop 7')
    for ap in range(4):
        A(f's_add_u32 s13, s34, {ap*4*24576}\ns_add_u32 s14, s13, 4096')
        for j in range(6):
            so, io = ('s13', j*1024) if j < 4 else ('s14', (j-4)*1024)
            A(f'buffer_store_dwordx4 {vr(ACC+16*j+4*ap,4)}, v3, s[44:47], {so} offen offset:{io} sc0 sc1')
    A(f'''
    s_waitcnt vmcnt(0)
    s_barrier
    s_lshl_b32 s13, s10, 2
    v_mov_b32 v12, s13
    v_mov_b32 v13, 1
    s_cmp_lg_u32 s7, 0
    s_cbranch_scc1 K2_END
    s_mov_b64 exec, 1
    buffer_atomic_add v13, v12, s[52:55], 0 offen sc1
    ''')
    A.lab('K2_END')
    A('s_endpgm')
    return kd(name, 240)

def main(path):
    A = Asm()
    hdr = open('parallel_sum__ssm_conv_s5__geglu_ffn__prompt.s.ref').read().split('; Override launch')[0]
    A.raw(hdr.rstrip())
    A.raw(f'; @launch kernel=pre_kernel grid=(256,1,1) block=(576,1,1) lds={L0_LDS}')
    A.raw(f'; @launch kernel=up_kernel grid=(256,1,1) block=(512,1,1) lds={K1_LDS}')
    A.raw(f'; @launch kernel=down_kernel grid=(240,1,1) block=(256,1,1) lds={K2_LDS}')
    A.raw('.amdgcn_target "amdgcn-amd-amdhsa--gfx950"\n.text')
    kds = [gen_l0(A), gen_k1(A), gen_k2(A)]
    A.raw('.section .rodata,"a"')
    for k in kds: A.raw(k)
    open(path, 'w').write('\n'.join(A.L) + '\n')

if __name__ == '__main__':
    main(sys.argv[1] if len(sys.argv) > 1 else 'parallel_sum__ssm_conv_s5__geglu_ffn__prompt.s')
```

```python
import sys, struct
from layout import *

def f32(x): return '0x%08x' % struct.unpack('<I', struct.pack('<f', x))[0]
LOG2E = f32(1.4426950408889634)
INV2PI = f32(0.15915494309189535)

class Asm:
    def __init__(self): self.L = []
    def __call__(self, s):
        for line in s.strip().split('\n'):
            line = line.strip()
            if line: self.L.append('    ' + line)
    def lab(self, s): self.L.append(s + ':')
    def raw(self, s): self.L.append(s)
def vr(a, n): return f'v[{a}:{a+n-1}]'
def sr(a, n): return f's[{a}:{a+n-1}]'

def srd(A, d, base, nbytes):
    A(f's_mov_b32 s{d}, s{base}\ns_mov_b32 s{d+1}, s{base+1}\ns_mov_b32 s{d+2}, {nbytes}\ns_mov_b32 s{d+3}, 0x20000')
def srd_off(A, d, base, off, nbytes):
    A(f's_add_u32 s{d}, s{base}, {off}\ns_addc_u32 s{d+1}, s{base+1}, 0\ns_mov_b32 s{d+2}, {nbytes}\ns_mov_b32 s{d+3}, 0x20000')

def lam_consts(A, lre, lim, ldt, lr, li, cr, ci, t0, t1, t2, t3, need_coef=True):
    A(f'''
    v_lshlrev_b32 v{lre}, 16, v{lre}
    v_lshlrev_b32 v{lim}, 16, v{lim}
    v_lshlrev_b32 v{ldt}, 16, v{ldt}
    v_mul_f32 v{t0}, {LOG2E}, v{ldt}
    v_exp_f32 v{t0}, v{t0}
    s_nop 0
    v_cvt_pk_bf16_f32 v{t0}, v{t0}, v{t0}
    v_lshlrev_b32 v{t0}, 16, v{t0}
    v_mul_f32 v{t1}, v{t0}, v{lre}
    v_mul_f32 v{t2}, v{t0}, v{lim}
    v_mul_f32 v{t1}, {LOG2E}, v{t1}
    v_exp_f32 v{t1}, v{t1}
    v_mul_f32 v{t2}, {INV2PI}, v{t2}
    v_rndne_f32 v{t3}, v{t2}
    v_sub_f32 v{t2}, v{t2}, v{t3}
    v_cos_f32 v{t3}, v{t2}
    v_sin_f32 v{t2}, v{t2}
    s_nop 0
    v_mul_f32 v{lr}, v{t1}, v{t3}
    v_mul_f32 v{li}, v{t1}, v{t2}
    ''')
    if need_coef:
        A(f'''
        v_add_f32 v{t0}, -1.0, v{lr}
        v_mul_f32 v{t1}, v{lre}, v{lre}
        v_fmac_f32 v{t1}, v{lim}, v{lim}
        v_rcp_f32 v{t1}, v{t1}
        v_mul_f32 v{cr}, v{t0}, v{lre}
        v_fmac_f32 v{cr}, v{li}, v{lim}
        v_mul_f32 v{ci}, v{li}, v{lre}
        v_fma_f32 v{ci}, -v{t0}, v{lim}, v{ci}
        v_mul_f32 v{cr}, v{cr}, v{t1}
        v_mul_f32 v{ci}, v{ci}, v{t1}
        ''')
def csq(A, r, i, r2, i2, t):
    A(f'''
    v_mul_f32 v{t}, v{i}, v{i}
    v_mul_f32 v{i2}, v{r}, v{i}
    v_fma_f32 v{r2}, v{r}, v{r}, -v{t}
    v_add_f32 v{i2}, v{i2}, v{i2}
    ''')
def cmul(A, ar, ai, br, bi, r, i):
    A(f'''
    v_mul_f32 v{r}, v{ar}, v{br}
    v_mul_f32 v{i}, v{ar}, v{bi}
    v_fma_f32 v{r}, -v{ai}, v{bi}, v{r}
    v_fmac_f32 v{i}, v{ai}, v{br}
    ''')
DPP8 = 'row_ror:8 row_mask:0xf bank_mask:0xf'
def mapply(A, dst, t, lamr, slami, add):
    if add is None: A(f'v_mul_f32 v{dst}, v{lamr}, v{t}')
    else: A(f'v_fma_f32 v{dst}, v{lamr}, v{t}, v{add}')
    A('s_nop 0')
    A(f'v_fmac_f32_dpp v{dst}, v{t}, v{slami} {DPP8}')

import os
STAMP = int(os.environ.get('STAMP', '0'))
STAMP_OFF = 0x3F00000
class Stamps:
    def __init__(self, A, k): self.A = A; self.k = k; self.n = 0
    def __call__(self, real=False):
        if not STAMP: return
        A = self.A
        A(f'{"s_memrealtime" if real else "s_memtime"} s[{70+2*self.n}:{71+2*self.n}]\ns_waitcnt lgkmcnt(0)')
        self.n += 1
        assert self.n <= 14
    def flush(self, srdws, n=None):
        if not STAMP: return
        A = self.A
        n = self.n if n is None else n
        A(f's_mov_b64 exec, -1\ns_lshl_b32 s98, s2, 4\ns_add_u32 s98, s98, s7\ns_lshl_b32 s98, s98, 6\ns_add_u32 s98, s98, {STAMP_OFF + self.k*0x40000}\nv_mov_b32 v1, 0')
        for i in range(n):
            A(f'v_mov_b32 v2, s{70+2*i}\nbuffer_store_dword v2, v1, s[{srdws}:{srdws+3}], s98 offen offset:{4*i}')

def kd(name, vgpr, sgpr=102, accum=None):
    if accum is None: accum = (vgpr + 3)//4*4
    return f'''.p2align 6
.amdhsa_kernel {name}
  .amdhsa_next_free_vgpr {vgpr}
  .amdhsa_next_free_sgpr {sgpr}
  .amdhsa_accum_offset {accum}
  .amdhsa_group_segment_fixed_size 0
  .amdhsa_kernarg_size 128
  .amdhsa_user_sgpr_count 2
  .amdhsa_user_sgpr_kernarg_segment_ptr 1
  .amdhsa_system_sgpr_workgroup_id_x 1
  .amdhsa_float_denorm_mode_32 3
.end_amdhsa_kernel'''
def khead(A, name):
    A.raw(f'.globl {name}\n.p2align 8\n.type {name},@function\n{name}:')

L0_LDS = 82944
def gen_l0(A):
    name = 'pre_kernel'
    khead(A, name)
    X = 16; B = 48; ST = 120; ACC = 136
    LR, SLI, A1, A2, L16R, SL16I = 152, 153, 154, 155, 156, 157
    DS = 160
    STAT = 73728; MR = 78336
    A(f'''
    s_cmp_ge_u32 s2, 256
    s_cbranch_scc1 L0_END
    s_load_dwordx16 s[16:31], s[0:1], 0
    s_load_dwordx2 s[32:33], s[0:1], 64
    s_load_dwordx2 s[34:35], s[0:1], 104
    s_load_dwordx2 s[36:37], s[0:1], 120
    v_and_b32 v1, 63, v0
    v_lshrrev_b32 v2, 6, v0
    s_and_b32 s3, s2, 7
    s_lshr_b32 s4, s2, 3
    v_readfirstlane_b32 s7, v2
    s_lshr_b32 s5, s4, 3
    s_lshl_b32 s3, s3, 2
    s_add_u32 s5, s5, s3
    s_and_b32 s6, s4, 7
    v_lshrrev_b32 v3, 3, v1
    v_and_b32 v4, 7, v1
    v_mul_u32_u24 v5, 1152, v3
    v_lshl_add_u32 v5, v4, 4, v5
    s_mul_i32 s8, s5, 73728
    s_lshl_b32 s9, s7, 7
    s_add_u32 s8, s8, s9
    s_mul_i32 s10, s6, 72
    s_lshl_b32 s11, s7, 3
    s_add_u32 s10, s10, s11
    v_add_u32 v6, s10, v4
    v_lshlrev_b32 v7, 1, v6
    v_lshl_add_u32 v8, v4, 4, s9
    v_mul_u32_u24 v9, 1152, v6
    v_lshrrev_b32 v2, 4, v1
    v_lshl_add_u32 v9, v2, 4, v9
    v_and_b32 v10, 8, v1
    v_cmp_ne_u32 vcc, 0, v10
    s_waitcnt lgkmcnt(0)
    ''')
    S = Stamps(A, 0); S(True); S()
    srd(A, 40, 16, 2359296)
    srd(A, 44, 36, 0x10000000)
    srd(A, 48, 34, 4718592)
    A(f'''
    global_load_ushort v{ACC}, v7, s[18:19]
    global_load_ushort v{ACC+1}, v7, s[20:21]
    global_load_ushort v{ACC+2}, v7, s[30:31]
    ''')
    for i in range(8):
        A(f'buffer_load_dwordx4 {vr(X+4*i,4)}, v5, s[40:43], s8 offen')
        if i < 7: A('s_add_u32 s8, s8, 9216')
    A(f'global_load_dwordx4 {vr(DS,4)}, v8, s[32:33]')
    A('''
    v_mov_b32 v12, s22
    v_mov_b32 v13, s24
    v_cndmask_b32 v12, v12, v13, vcc
    v_mov_b32 v13, s23
    v_mov_b32 v14, s25
    v_cndmask_b32 v13, v13, v14, vcc
    v_add_co_u32 v12, vcc, v12, v9
    s_nop 1
    v_addc_co_u32 v13, vcc, 0, v13, vcc
    ''')
    for s in range(18):
        A(f'global_load_dwordx4 {vr(B+4*s,4)}, v[12:13], off offset:{64*s}')
    A('s_waitcnt vmcnt(27)'); S()
    t = ACC
    lam_consts(A, t, t+1, t+2, LR, t+3, t+4, t+5, t+6, t+7, t+8, t+9)
    A(f'''
    v_lshlrev_b32 v10, 28, v10
    v_xor_b32 v{SLI}, v10, v{t+3}
    v_add_f32 v{A1}, v{t+4}, v{t+4}
    v_xor_b32 v{A1}, v10, v{A1}
    v_mul_f32 v{A2}, -2.0, v{t+5}
    ''')
    csq(A, LR, t+3, L16R, SL16I, t+6)
    for _ in range(3): csq(A, L16R, SL16I, L16R, SL16I, t+6)
    A(f'v_xor_b32 v{SL16I}, v10, v{SL16I}')
    A('s_mov_b32 s12, 0x3f803f80')
    for i in range(8):
        A(f's_waitcnt vmcnt({26-i})')
        for q in range(4):
            c0 = '0' if q == 0 else f'v{ST+2*i}'
            c1 = '0' if q == 0 else f'v{ST+2*i+1}'
            A(f'v_dot2_f32_bf16 v{ST+2*i}, v{X+4*i+q}, s12, {c0}')
            A(f'v_dot2_f32_bf16 v{ST+2*i+1}, v{X+4*i+q}, v{X+4*i+q}, {c1}')
    A('s_nop 2'); S()
    for pat in ('quad_perm:[1,0,3,2]', 'quad_perm:[2,3,0,1]', 'row_half_mirror'):
        for k in range(16):
            A(f'v_add_f32_dpp v{ST+k}, v{ST+k}, v{ST+k} {pat} row_mask:0xf bank_mask:0xf')
    A(f'''
    s_lshl_b32 s13, s7, 9
    s_add_u32 s14, s13, {STAT}
    v_lshl_add_u32 v11, v3, 3, s14
    s_mov_b64 s[52:53], exec
    s_mov_b32 s54, 0x01010101
    s_mov_b32 s55, 0x01010101
    s_mov_b64 exec, s[54:55]
    ''')
    for i in range(8):
        A(f'ds_write_b64 v11, {vr(ST+2*i,2)} offset:{64*i}')
    A(f'''
    s_mov_b64 exec, s[52:53]
    v_lshlrev_b32 v14, 3, v1
    v_add_u32 v15, {STAT}, v14
    s_waitcnt lgkmcnt(0)
    s_barrier
    ''')
    S()
    for k in range(4):
        A(f'ds_read2st64_b64 {vr(ST+4*k,4)}, v15 offset0:{2*k} offset1:{2*k+1}')
    A(f'ds_read_b64 {vr(ACC,2)}, v15 offset:4096')
    A('s_waitcnt lgkmcnt(0)')
    for k in range(8):
        A(f'v_add_f32 v{ACC}, v{ACC}, v{ST+2*k}')
        A(f'v_add_f32 v{ACC+1}, v{ACC+1}, v{ST+2*k+1}')
    inv = f32(1.0/576.0)
    A(f'''
    v_mul_f32 v{ACC}, {inv}, v{ACC}
    v_mul_f32 v{ACC+1}, {inv}, v{ACC+1}
    v_fma_f32 v{ACC+1}, -v{ACC}, v{ACC}, v{ACC+1}
    v_max_f32 v{ACC+1}, 0, v{ACC+1}
    v_cvt_pk_bf16_f32 v{ACC+2}, v{ACC}, v{ACC+1}
    v_lshlrev_b32 v{ACC}, 16, v{ACC+2}
    v_and_b32 v{ACC+1}, 0xffff0000, v{ACC+2}
    v_add_f32 v{ACC+1}, {f32(1e-5)}, v{ACC+1}
    v_cvt_pk_bf16_f32 v{ACC+1}, v{ACC+1}, v{ACC+1}
    v_lshlrev_b32 v{ACC+1}, 16, v{ACC+1}
    v_sqrt_f32 v{ACC+1}, v{ACC+1}
    s_nop 0
    v_cvt_pk_bf16_f32 v{ACC+1}, v{ACC+1}, v{ACC+1}
    v_lshlrev_b32 v{ACC+1}, 16, v{ACC+1}
    v_rcp_f32 v{ACC+1}, v{ACC+1}
    s_add_u32 s14, s13, {MR}
    v_add_u32 v15, s14, v14
    v_lshl_add_u32 v11, v3, 3, s14
    ds_write_b64 v15, {vr(ACC,2)}
    s_waitcnt lgkmcnt(0)
    ''')
    for i in range(8):
        A(f'ds_read_b64 {vr(ST+2*i,2)}, v11 offset:{64*i}')
    A(f'''
    v_lshrrev_b32 v11, 2, v3
    v_mul_u32_u24 v11, 18, v11
    v_lshrrev_b32 v14, 2, v4
    v_add_u32 v11, v11, v14
    s_lshl_b32 s14, s7, 1
    v_add_u32 v11, s14, v11
    v_lshlrev_b32 v11, 10, v11
    v_and_b32 v14, 3, v4
    v_lshl_add_u32 v11, v14, 8, v11
    v_and_b32 v14, 3, v3
    v_xor_b32 v14, v14, v4
    v_lshl_add_u32 v11, v14, 4, v11
    s_mov_b32 s15, 0xffff0000
    ''')
    T0 = ACC
    for i in range(8):
        A(f's_waitcnt lgkmcnt({7-i})' if i == 0 else f's_waitcnt lgkmcnt({min(15, 7-i+ i)})' if False else '')
        if i == 0: A('s_waitcnt lgkmcnt(0)')
        A(f's_cmp_lg_u32 s6, {i}\ns_cbranch_scc1 L0_S{i}a')
        for q in range(4): A(f'v_mov_b32 v{T0+8+q}, v{X+4*i+q}')
        A.lab(f'L0_S{i}a')
        m = ST+2*i
        for q in range(4):
            x = X+4*i+q; a = T0+2*q
            A(f'v_lshlrev_b32 v{a}, 16, v{x}\nv_and_b32 v{a+1}, s15, v{x}')
        for q in range(4):
            a = T0+2*q
            A(f'v_pk_add_f32 {vr(a,2)}, {vr(a,2)}, {vr(m,2)} op_sel_hi:[1,0] neg_lo:[0,1] neg_hi:[0,1]')
        for q in range(4):
            a = T0+2*q
            A(f'v_cvt_pk_bf16_f32 v{a+1}, v{a}, v{a+1}')
        for q in range(4):
            a = T0+2*q
            A(f'v_lshlrev_b32 v{a}, 16, v{a+1}\nv_and_b32 v{a+1}, s15, v{a+1}')
        for q in range(4):
            a = T0+2*q
            A(f'v_pk_mul_f32 {vr(a,2)}, {vr(a,2)}, {vr(m,2)} op_sel:[0,1] op_sel_hi:[1,1]')
        for q in range(4):
            a = T0+2*q
            A(f'v_cvt_pk_bf16_f32 v{X+4*i+q}, v{a}, v{a+1}')
        xr = ((i >> 1) & 1) * 64 + (i >> 2) * 128
        A(f'v_xor_b32 v14, {xr}, v11')
        A(f'ds_write_b128 v14, {vr(X+4*i,4)} offset:{36864*(i&1)}')
        A(f's_cmp_lg_u32 s6, {i}\ns_cbranch_scc1 L0_S{i}b')
        for q in range(4): A(f'v_mov_b32 v{T0+12+q}, v{X+4*i+q}')
        A.lab(f'L0_S{i}b')
    S()
    A(f'''
    s_lshl_b32 s12, s5, 1
    s_lshr_b32 s13, s6, 2
    s_add_u32 s12, s12, s13
    s_mul_i32 s12, s12, 36
    s_lshl_b32 s13, s7, 2
    s_add_u32 s12, s12, s13
    s_lshl_b32 s12, s12, 10
    s_and_b32 s13, s6, 3
    s_lshl_b32 s13, s13, 7
    s_add_u32 s12, s12, s13
    v_lshlrev_b32 v14, 9, v4
    v_lshl_add_u32 v14, v3, 4, v14
    buffer_store_dwordx4 {vr(T0+12,4)}, v14, s[44:47], s12 offen
    s_waitcnt vmcnt(19)
    ''')
    for q in range(4):
        a = T0+2*q
        A(f'''
        v_lshlrev_b32 v{a}, 16, v{T0+12+q}
        v_and_b32 v{a+1}, s15, v{T0+12+q}
        v_lshlrev_b32 v2, 16, v{DS+q}
        v_and_b32 v15, s15, v{DS+q}
        v_mul_f32 v{a}, v{a}, v2
        v_mul_f32 v{a+1}, v{a+1}, v15
        v_cvt_pk_bf16_f32 v{a+1}, v{a}, v{a+1}
        v_lshlrev_b32 v{a}, 16, v{a+1}
        v_and_b32 v{a+1}, s15, v{a+1}
        v_lshlrev_b32 v2, 16, v{T0+8+q}
        v_and_b32 v15, s15, v{T0+8+q}
        v_add_f32 v{a}, v{a}, v2
        v_add_f32 v{a+1}, v{a+1}, v15
        ''')
    A(f'''
    s_lshl_b32 s12, s5, 3
    s_add_u32 s12, s12, s6
    s_mul_i32 s12, s12, {8*2304}
    s_lshl_b32 s13, s7, 8
    s_add_u32 s12, s12, s13
    v_lshlrev_b32 v14, 1, v5
    buffer_store_dwordx4 {vr(T0,4)}, v14, s[48:51], s12 offen
    buffer_store_dwordx4 {vr(T0+4,4)}, v14, s[48:51], s12 offen offset:16
    ''')
    A(f'''
    v_lshrrev_b32 v2, 4, v1
    v_xor_b32 v6, v1, v2
    v_lshlrev_b32 v6, 4, v6
    v_xor_b32 v7, 64, v6
    v_add_u32 v8, 36864, v6
    v_add_u32 v9, 36864, v7
    s_waitcnt lgkmcnt(0)
    s_barrier
    ''')
    def rd(s):
        for tb in range(4):
            ad = (6 if s % 2 == 0 else 7) + (2 if tb >= 2 else 0)
            A(f'ds_read_b128 {vr(X+16*(s%2)+4*tb,4)}, v{ad} offset:{((tb%2)*18+s)*1024}')
    S()
    rd(0)
    A('s_waitcnt vmcnt(3)'); S()
    for s in range(18):
        if s < 17: rd(s+1)
        A(f's_waitcnt lgkmcnt({4 if s < 17 else 0})')
        for tb in range(4):
            c = '0' if s == 0 else vr(ACC+4*tb, 4)
            A(f'v_mfma_f32_16x16x32_bf16 {vr(ACC+4*tb,4)}, {vr(X+16*(s%2)+4*tb,4)}, {vr(B+4*s,4)}, {c}')
    S()
    Hh = B
    A(f'''
    v_and_b32 v2, 15, v1
    v_lshlrev_b32 v2, 2, v2
    v_add_u32 v3, 64, v2
    v_add_u32 v4, 128, v2
    v_add_u32 v5, 192, v2
    s_nop 4
    ''')
    for k in range(16): A(f'v_mul_f32 v{Hh+k}, v{A1}, v{ACC+k}')
    for k in range(16): A(f'v_fmac_f32_dpp v{Hh+k}, v{ACC+k}, v{A2} {DPP8}')
    for k in range(1, 16):
        A(f'v_fmac_f32 v{Hh+k}, v{LR}, v{Hh+k-1}\ns_nop 0\nv_fmac_f32_dpp v{Hh+k}, v{Hh+k-1}, v{SLI} {DPP8}')
    E0 = X
    for g in range(4): A(f'ds_bpermute_b32 v{E0+g}, v{2+g}, v{Hh+15}')
    A(f'''
    s_lshl_b32 s12, s5, 3
    s_add_u32 s12, s12, s6
    s_mul_i32 s12, s12, 9
    s_add_u32 s12, s12, s7
    s_mul_i32 s13, s12, {H0_UNIT}
    s_add_u32 s13, s13, {H0_OFF}
    v_lshlrev_b32 v6, 4, v1
    ''')
    for k in range(4):
        A(f'buffer_store_dwordx4 {vr(Hh+4*k,4)}, v6, s[44:47], s13 offen offset:{1024*k}')
    A('s_waitcnt lgkmcnt(0)')
    T2, T3, EE = X+4, X+5, X+6
    mapply(A, T2, E0, L16R, SL16I, E0+1)
    mapply(A, T3, T2, L16R, SL16I, E0+2)
    mapply(A, EE, T3, L16R, SL16I, E0+3)
    A(f'''
    v_lshrrev_b32 v7, 4, v1
    v_mov_b32 v8, 0
    v_cmp_eq_u32 vcc, 1, v7
    s_nop 1
    v_cndmask_b32 v8, v8, v{E0}, vcc
    v_cmp_eq_u32 vcc, 2, v7
    s_nop 1
    v_cndmask_b32 v8, v8, v{T2}, vcc
    v_cmp_eq_u32 vcc, 3, v7
    s_nop 1
    v_cndmask_b32 v8, v8, v{T3}, vcc
    v_lshlrev_b32 v6, 2, v1
    s_add_u32 s13, s13, 4096
    buffer_store_dword v8, v6, s[44:47], s13 offen
    s_lshl_b32 s12, s12, 6
    s_add_u32 s12, s12, {E_OFF}
    buffer_store_dword v{EE}, v2, s[44:47], s12 offen
    ''')
    S(); A('s_waitcnt vmcnt(0)' if STAMP else ''); S(); S(True); S.flush(44)
    A.lab('L0_END')
    A('s_endpgm')
    return kd(name, 168)

K1_SLOT = 37120; K1_UOFF = 18560; K1_LDS = 4*K1_SLOT
def gen_k1(A):
    name = 'up_kernel'
    khead(A, name)
    XR = 16; WR = 48; NW = 6; TMP = 72; ACC = 96
    A(f'''
    s_cmp_ge_u32 s2, 256
    s_cbranch_scc1 K1_END
    s_load_dwordx4 s[16:19], s[0:1], 8
    s_load_dwordx2 s[20:21], s[0:1], 56
    s_load_dwordx4 s[24:27], s[0:1], 80
    s_load_dwordx2 s[36:37], s[0:1], 120
    v_and_b32 v1, 63, v0
    v_lshrrev_b32 v2, 6, v0
    s_and_b32 s3, s2, 7
    s_lshr_b32 s4, s2, 3
    v_readfirstlane_b32 s7, v2
    s_lshr_b32 s5, s4, 3
    s_lshl_b32 s8, s3, 2
    s_add_u32 s5, s5, s8
    s_and_b32 s6, s4, 7
    s_lshr_b32 s8, s3, 2
    s_lshl_b32 s8, s8, 2
    s_lshr_b32 s9, s4, 3
    s_add_u32 s8, s8, s9
    s_and_b32 s9, s3, 3
    s_lshl_b32 s9, s9, 3
    s_add_u32 s9, s9, s6
    s_lshl_b32 s10, s8, 3
    s_add_u32 s10, s10, s7
    v_lshlrev_b32 v3, 4, v1
    s_waitcnt lgkmcnt(0)
    ''')
    S = Stamps(A, 1); S(True); S()
    srd(A, 44, 36, 0x10000000)
    srd_off(A, 48, 36, E_OFF, E_BYTES)
    A('s_mul_i32 s11, s9, 288')
    WB = 576*9216
    A(f'''
    s_add_u32 s52, s24, s11
    s_addc_u32 s53, s25, 0
    s_sub_u32 s54, {WB}, s11
    s_mov_b32 s55, 0x20000
    s_add_u32 s56, s26, s11
    s_addc_u32 s57, s27, 0
    s_sub_u32 s58, {WB}, s11
    s_mov_b32 s59, 0x20000
    s_cmp_lt_u32 s7, 2
    s_cselect_b32 s60, s52, s56
    s_cselect_b32 s61, s53, s57
    s_mov_b32 s62, s54
    s_mov_b32 s63, 0x20000
    ''')
    def fix_loads(base, sunit):
        A(f'''
        s_lshl_b32 s12, s5, 3
        s_add_u32 s12, s12, s6
        s_mul_i32 s12, s12, 9
        s_add_u32 s12, s12, {sunit}
        s_mul_i32 s13, s12, {H0_UNIT}
        s_add_u32 s13, s13, {H0_OFF}
        s_mul_i32 s14, s6, 72
        s_lshl_b32 s15, {sunit}, 3
        s_add_u32 s14, s14, s15
        v_and_b32 v4, 7, v1
        v_add_u32 v{base+28}, s14, v4
        v_lshlrev_b32 v4, 1, v{base+28}
        global_load_ushort v{base+25}, v4, s[16:17]
        global_load_ushort v{base+26}, v4, s[18:19]
        global_load_ushort v{base+27}, v4, s[20:21]
        ''')
        A(f'''
        s_lshl_b32 s12, s12, 6
        v_lshrrev_b32 v4, 4, v1
        v_mul_u32_u24 v4, {8*4608}, v4
        v_and_b32 v5, 15, v1
        v_lshl_add_u32 v5, v5, 2, s12
        v_sub_u32 v5, v5, v4
        ''')
        for i in range(8):
            A(f'v_subrev_u32 v5, 4608, v5')
            A(f'buffer_load_dword v{base+17+i}, v5, s[48:51], 0 offen')
        A(f'v_lshlrev_b32 v4, 2, v1')
        for k in range(4):
            A(f'buffer_load_dwordx4 {vr(base+4*k,4)}, v3, s[44:47], s13 offen offset:{1024*k}')
        A(f's_add_u32 s13, s13, 4096\nbuffer_load_dword v{base+16}, v4, s[44:47], s13 offen')
    FA = ACC; FB = ACC+32
    fix_loads(FA, 's7')
    A('s_cmp_lg_u32 s7, 0\ns_cbranch_scc1 K1_NOB\ns_mov_b32 s33, 8')
    fix_loads(FB, 's33')
    A.lab('K1_NOB')
    def piece_off(dst, spiece):
        A(f'''
        s_lshl_b32 s12, {spiece}, 6
        v_add_u32 v4, s12, v1
        v_mul_u32_u24 v5, 3641, v4
        v_lshrrev_b32 v5, 16, v5
        v_mul_u32_u24 v6, 18, v5
        v_sub_u32 v6, v4, v6
        v_mul_u32_u24 v5, 9216, v5
        v_lshl_add_u32 v{dst}, v6, 4, v5
        ''')
    for idx in range(1152): assert (idx*3641) >> 16 == idx//18
    piece_off(8, 's7')
    A('s_add_u32 s13, s7, 8'); piece_off(9, 's13')
    A('s_and_b32 s13, s7, 1\ns_add_u32 s13, s13, 16'); piece_off(10, 's13')
    A(f'''
    s_lshl_b32 s28, s7, 10
    s_lshl_b32 s29, s13, 10
    s_cmp_lt_u32 s7, 2
    s_cselect_b32 s12, 0, {K1_UOFF}
    s_add_u32 s29, s29, s12
    s_mul_i32 s30, s10, {36*1024}
    ''')
    def dma(n):
        slot = (n % 4) * K1_SLOT
        A(f's_mov_b32 s31, {n*64*9216}')
        for (voff, srdn, ldsoff) in ((8, 52, 0), (8, 56, K1_UOFF), (9, 52, 8192), (9, 56, K1_UOFF+8192)):
            A(f's_add_u32 m0, s28, {slot+ldsoff}\ns_nop 0\nbuffer_load_dwordx4 v{voff}, {sr(srdn,4)}, s31 offen lds')
        A(f's_cmp_ge_u32 s7, 4\ns_cbranch_scc1 K1_D{n}')
        A(f's_add_u32 m0, s29, {slot}\ns_nop 0\nbuffer_load_dwordx4 v10, s[60:63], s31 offen lds')
        A.lab(f'K1_D{n}')
    def xload(ks):
        if ks * 1024 < 4096:
            A(f'buffer_load_dwordx4 {vr(XR+4*(ks%8),4)}, v3, s[44:47], s30 offen offset:{ks*1024}')
        else:
            A(f's_add_u32 s32, s30, {ks*1024}\nbuffer_load_dwordx4 {vr(XR+4*(ks%8),4)}, v3, s[44:47], s32 offen')
    dma(0)
    for ks in range(8): xload(ks)
    dma(1); dma(2)
    NLATER = 8 + 12
    A(f'''
    v_bfe_u32 v4, v1, 4, 1
    v_mul_u32_u24 v4, {K1_UOFF}, v4
    v_lshrrev_b32 v5, 5, v1
    v_lshlrev_b32 v5, 3, v5
    v_bfe_u32 v6, v1, 2, 2
    v_add_u32 v5, v5, v6
    v_mul_u32_u24 v5, 288, v5
    v_and_b32 v6, 3, v1
    v_lshl_add_u32 v5, v6, 3, v5
    v_add_u32 v12, v4, v5
    v_add_u32 v13, {K1_SLOT}, v12
    v_add_u32 v14, {2*K1_SLOT}, v12
    v_add_u32 v15, {3*K1_SLOT}, v12
    s_mov_b32 s34, 0
    ''')
    S()
    A.lab('K1_FIX')
    A(f's_waitcnt vmcnt({NLATER})')
    t = TMP
    LR, LI, SG = t, t+1, t+2
    PR, PI = t+3, t+4
    QR, QI = t+5, t+6
    L64R, L64I = t+7, t+8
    lam_consts(A, FA+25, FA+26, FA+27, LR, LI, 0, 0, t+9, t+10, t+11, t+12, need_coef=False)
    A(f'v_and_b32 v{SG}, 8, v1\nv_lshlrev_b32 v{SG}, 28, v{SG}')
    csq(A, LR, LI, PR, PI, t+9)
    for _ in range(3): csq(A, PR, PI, PR, PI, t+9)
    A(f'v_mov_b32 v{t+13}, v{PR}\nv_mov_b32 v{t+14}, v{PI}')
    csq(A, PR, PI, PR, PI, t+9)
    cmul(A, PR, PI, t+13, t+14, t+15, t+16)
    A(f'''
    v_lshrrev_b32 v4, 4, v1
    v_mov_b32 v{QR}, 1.0
    v_mov_b32 v{QI}, 0
    v_cmp_eq_u32 vcc, 1, v4
    s_nop 1
    v_cndmask_b32 v{QR}, v{QR}, v{t+13}, vcc
    v_cndmask_b32 v{QI}, v{QI}, v{t+14}, vcc
    v_cmp_eq_u32 vcc, 2, v4
    s_nop 1
    v_cndmask_b32 v{QR}, v{QR}, v{PR}, vcc
    v_cndmask_b32 v{QI}, v{QI}, v{PI}, vcc
    v_cmp_eq_u32 vcc, 3, v4
    s_nop 1
    v_cndmask_b32 v{QR}, v{QR}, v{t+15}, vcc
    v_cndmask_b32 v{QI}, v{QI}, v{t+16}, vcc
    v_xor_b32 v{QI}, v{SG}, v{QI}
    ''')
    csq(A, PR, PI, L64R, L64I, t+9)
    csq(A, L64R, L64I, PR, PI, t+9)
    for _ in range(2): csq(A, PR, PI, PR, PI, t+9)
    A(f'''
    v_xor_b32 v{L64I}, v{SG}, v{L64I}
    v_xor_b32 v{PI}, v{SG}, v{PI}
    v_xor_b32 v{LI}, v{SG}, v{LI}
    ''')
    for i in range(6, -1, -1):
        mapply(A, FA+17+i, FA+17+i+1, L64R, L64I, FA+17+i)
    A(f'''
    v_and_b32 v4, 15, v1
    v_lshlrev_b32 v4, 2, v4
    v_add_u32 v5, 64, v4
    v_add_u32 v6, 128, v4
    v_add_u32 v7, 192, v4
    ''')
    for g in range(4): A(f'ds_bpermute_b32 v{FA+18+g}, v{4+g}, v{FA+17}')
    A('s_waitcnt lgkmcnt(0)')
    for g in (2, 1, 0):
        mapply(A, FA+18+g, FA+18+g+1, PR, PI, FA+18+g)
    mapply(A, FA+16, FA+18, QR, QI, FA+16)
    g0, g1 = FA+16, FA+17
    for k in range(16):
        a, b = (g0, g1) if k % 2 == 0 else (g1, g0)
        mapply(A, b, a, LR, LI, None)
        A(f'v_add_f32 v{FA+k}, v{FA+k}, v{b}')
    for k in range(8):
        A(f'v_cvt_pk_bf16_f32 v{FA+k}, v{FA+2*k}, v{FA+2*k+1}')
    A(f'''
    v_bfe_u32 v4, v1, 3, 1
    v_mul_u32_u24 v4, 576, v4
    v_add_u32 v4, v4, v{FA+28}
    v_lshlrev_b32 v4, 12, v4
    v_lshrrev_b32 v5, 4, v1
    v_lshl_add_u32 v4, v5, 5, v4
    s_lshl_b32 s12, s5, 7
    s_add_u32 s12, s12, {HT_OFF}
    buffer_store_dwordx4 {vr(FA,4)}, v4, s[44:47], s12 offen
    buffer_store_dwordx4 {vr(FA+4,4)}, v4, s[44:47], s12 offen offset:16
    s_cmp_lg_u32 s7, 0
    s_cbranch_scc1 K1_FIXDONE
    s_cmp_lg_u32 s34, 0
    s_cbranch_scc1 K1_FIXDONE
    s_mov_b32 s34, 1
    s_nop 0
    ''')
    for k in range(29): A(f'v_mov_b32 v{FA+k}, v{FB+k}')
    A('s_branch K1_FIX')
    A.lab('K1_FIXDONE'); S()
    seq = [(ks, fb) for ks in range(28) for fb in range(9)] + [(ks, fb) for fb in range(9) for ks in range(28, 36)]
    LOOK = 4
    def wread(n):
        ks, fb = seq[n]
        sl = ks // 4; loc = ks % 4
        ad = 12 + (sl % 4)
        off = loc*16*288 + fb*32
        r = WR + 4*(n % NW)
        A(f'ds_read_b64_tr_b16 {vr(r,2)}, v{ad} offset:{off}')
        A(f'ds_read_b64_tr_b16 {vr(r+2,2)}, v{ad} offset:{off+4*288}')
    vm = []
    def vm_add(tag, n=1): vm.extend([tag]*n)
    vm_add('d0', 4); [vm_add(f'x{k}') for k in range(8)]; vm_add('d1', 4); vm_add('d2', 4); vm_add('st', 2)
    def vm_wait(tag):
        last = max(i for i, t_ in enumerate(vm) if t_ == tag)
        n = len(vm) - 1 - last
        A(f's_waitcnt vmcnt({min(n, 63)})')
    seen_slab = set(); seen_x = set()
    def need_slab(sl):
        if sl in seen_slab: return
        seen_slab.add(sl)
        vm_wait(f'd{sl}')
        A('s_barrier')
        nn = sl + 2
        if sl >= 1 and nn <= 8:
            pend_dma.append(nn)
    pend_dma = []
    K0c = f32(-2.302208198); K1c = f32(-2.302208198*0.044715)
    A(f's_mov_b32 s40, {K0c}\ns_mov_b32 s41, {K1c}\nv_mov_b32 v11, s40')
    A(f's_mul_i32 s42, s10, {288*1024}\ns_mul_i32 s43, s9, {9*1024}\ns_add_u32 s42, s42, s43\ns_add_u32 s42, s42, {HF_OFF}')
    epi = []
    def make_epi(fb):
        a = ACC + 16*fb; t = TMP + (fb % 2) * 12
        out = []
        for half in range(2):
            es = range(4*half, 4*half+4)
            for e in es: out.append(f'v_mul_f32 v{t+e%4}, v{a+e}, v{a+e}')
            for e in es: out.append(f'v_fma_f32 v{t+e%4}, v{t+e%4}, s41, v11')
            for e in es: out.append(f'v_mul_f32 v{t+e%4}, v{t+e%4}, v{a+e}')
            for e in es: out.append(f'v_exp_f32 v{t+e%4}, v{t+e%4}')
            for e in es: out.append(f'v_mul_f32 v{a+e}, v{a+e}, v{a+8+e}')
            for e in es: out.append(f'v_add_f32 v{t+e%4}, 1.0, v{t+e%4}')
            for e in es: out.append(f'v_rcp_f32 v{t+e%4}, v{t+e%4}')
            out.append('s_nop 0')
            for e in es: out.append(f'v_mul_f32 v{a+e}, v{a+e}, v{t+e%4}')
            out.append(f'v_cvt_pk_bf16_f32 v{t+4+2*half}, v{a+4*half}, v{a+4*half+1}')
            out.append(f'v_cvt_pk_bf16_f32 v{t+5+2*half}, v{a+4*half+2}, v{a+4*half+3}')
        if fb*1024 < 4096:
            out.append(f'buffer_store_dwordx4 {vr(t+4,4)}, v3, s[44:47], s42 offen offset:{fb*1024}')
        else:
            out.append(f's_add_u32 s43, s42, {fb*1024}')
            out.append(f'buffer_store_dwordx4 {vr(t+4,4)}, v3, s[44:47], s43 offen')
        return out
    N = len(seq)
    need_slab(0); S()
    for n in range(LOOK): wread(n)
    for n in range(N):
        ks, fb = seq[n]
        if n in (36, 108, 180, 252): S()
        if n + LOOK < N:
            need_slab(seq[n+LOOK][0] // 4)
            wread(n + LOOK)
        if ks not in seen_x:
            seen_x.add(ks); vm_wait(f'x{ks}')
        outstanding = 2 * min(LOOK, N - 1 - n)
        A(f's_waitcnt lgkmcnt({outstanding})')
        c = '0' if ks == 0 else vr(ACC+16*fb, 16)
        A(f'v_mfma_f32_32x32x16_bf16 {vr(ACC+16*fb,16)}, {vr(WR+4*(n%NW),4)}, {vr(XR+4*(ks%8),4)}, {c}')
        if ks < 28 and fb == 8:
            xload(ks + 8); vm_add(f'x{ks+8}')
            if ks % 4 == 3:
                for nn in pend_dma: dma(nn); vm_add(f'd{nn}', 4)
                pend_dma.clear()
        if ks >= 28:
            if ks >= 30:
                for _ in range(13):
                    if epi: A(epi.pop(0))
            if ks == 35:
                assert not epi or True
                while epi: A(epi.pop(0))
                epi = make_epi(fb)
                if fb < 8: epi = ['s_nop 3'] + epi
    A('s_nop 11')
    while epi: A(epi.pop(0))
    S(); A('s_waitcnt vmcnt(0)' if STAMP else ''); S(); S(True); S.flush(44)
    A.lab('K1_END')
    A('s_endpgm')
    return kd(name, 240)

K2_LDS = 163840
def gen_k2(A):
    name = 'down_kernel'
    khead(A, name)
    AR = 16; NA = 12; WR = 64; NW = 6; ACC = 96; PT = 192
    A(f'''
    s_cmp_ge_u32 s2, 240
    s_cbranch_scc1 K2_END
    s_load_dwordx4 s[16:19], s[0:1], 40
    s_load_dwordx8 s[20:27], s[0:1], 96
    v_and_b32 v1, 63, v0
    v_lshrrev_b32 v2, 6, v0
    s_and_b32 s3, s2, 7
    s_lshr_b32 s4, s2, 3
    v_readfirstlane_b32 s7, v2
    s_cmp_ge_u32 s4, 24
    s_cbranch_scc1 K2_DEC_SSM
    s_and_b32 s5, s3, 3
    s_mul_i32 s9, s4, 86
    s_lshr_b32 s9, s9, 8
    s_lshr_b32 s6, s3, 2
    s_lshl_b32 s6, s6, 3
    s_add_u32 s6, s6, s9
    s_mul_i32 s9, s9, 3
    s_sub_u32 s8, s4, s9
    s_branch K2_DEC_DONE
    ''')
    A.lab('K2_DEC_SSM')
    A('''
    s_mov_b32 s5, 4
    s_sub_u32 s4, s4, 24
    s_mul_i32 s9, s4, 86
    s_lshr_b32 s9, s9, 8
    s_lshl_b32 s6, s3, 1
    s_add_u32 s6, s6, s9
    s_mul_i32 s9, s9, 3
    s_sub_u32 s8, s4, s9
    ''')
    A.lab('K2_DEC_DONE')
    for j in range(30): assert (j*86) >> 8 == j//3
    A('s_waitcnt lgkmcnt(0)')
    S = Stamps(A, 2); S(True); S()
    srd(A, 44, 26, 0x10000000)
    srd(A, 48, 22, 4718592)
    srd(A, 52, 24, 256)
    srd(A, 56, 20, 4608*1152)
    srd(A, 60, 16, 576*1152)
    srd(A, 64, 18, 576*1152)
    A(f'''
    s_mul_i32 s10, s6, 3
    s_add_u32 s10, s10, s8
    s_lshl_b32 s11, s6, 2
    s_add_u32 s11, s11, s7
    s_mul_i32 s12, s11, {32*2304}
    s_mul_i32 s13, s8, 768
    s_add_u32 s12, s12, s13
    v_lshrrev_b32 v2, 5, v1
    v_mul_u32_u24 v2, {4*2304}, v2
    v_and_b32 v4, 31, v1
    v_lshl_add_u32 v2, v4, 2, v2
    v_lshlrev_b32 v3, 4, v1
    s_cmp_eq_u32 s5, 4
    s_cbranch_scc1 K2_SSM
    ''')
    SLAB = 24576
    A(f'''
    s_mul_i32 s30, s11, {288*1024}
    s_mul_i32 s13, s5, {72*1024}
    s_add_u32 s30, s30, s13
    s_add_u32 s30, s30, {HF_OFF}
    s_lshl_b32 s13, s5, 7
    v_xor_b32 v4, s13, v3
    ''')
    for idx in range(1536): assert (idx*2731) >> 16 == idx//24
    for i in range(6):
        A(f'''
        s_mul_i32 s13, s7, 384
        s_add_u32 s13, s13, {64*i}
        v_add_u32 v12, s13, v1
        v_mul_u32_u24 v13, 2731, v12
        v_lshrrev_b32 v13, 16, v13
        v_mul_u32_u24 v14, 24, v13
        v_sub_u32 v14, v12, v14
        v_bfe_u32 v15, v13, 1, 1
        v_lshlrev_b32 v15, 2, v15
        v_xor_b32 v14, v14, v15
        v_mul_u32_u24 v13, 1152, v13
        v_lshl_add_u32 v{5+i}, v14, 4, v13
        ''')
    A(f'''
    s_mul_i32 s28, s7, 6144
    s_mul_i32 s31, s5, {1152*1152}
    s_mul_i32 s13, s8, 384
    s_add_u32 s31, s31, s13
    ''')
    def dma(n):
        slot = (n % 6) * SLAB
        A(f's_add_u32 s32, s31, {n*64*1152}')
        for i in range(6):
            A(f's_add_u32 m0, s28, {slot+1024*i}\ns_nop 0\nbuffer_load_dwordx4 v{5+i}, s[56:59], s32 offen lds')
    def aload(s):
        if s < 4: A(f'buffer_load_dwordx4 {vr(AR+4*(s%NA),4)}, v4, s[44:47], s30 offen offset:{s*1024}')
        else: A(f's_add_u32 s33, s30, {s*1024}\nbuffer_load_dwordx4 {vr(AR+4*(s%NA),4)}, v4, s[44:47], s33 offen')
    vm = []
    def vm_add(tag, n=1): vm.extend([tag]*n)
    def vm_wait(tag):
        last = max(i for i, t_ in enumerate(vm) if t_ == tag)
        A(f's_waitcnt vmcnt({min(len(vm)-1-last, 63)})')
    dma(0); vm_add('d0', 6)
    for s in range(4): aload(s); vm_add(f'a{s}')
    dma(1); vm_add('d1', 6)
    for s in range(4, 8): aload(s); vm_add(f'a{s}')
    dma(2); vm_add('d2', 6)
    for s in range(8, 12): aload(s); vm_add(f'a{s}')
    dma(3); vm_add('d3', 6)
    dma(4); vm_add('d4', 6)
    A(f'''
    v_lshrrev_b32 v12, 5, v1
    v_lshlrev_b32 v12, 2, v12
    v_bfe_u32 v13, v1, 2, 2
    v_add_u32 v12, v12, v13
    v_mul_u32_u24 v12, 384, v12
    v_bfe_u32 v13, v1, 4, 1
    v_lshl_add_u32 v12, v13, 5, v12
    v_and_b32 v13, 3, v1
    v_lshl_add_u32 v12, v13, 3, v12
    v_bfe_u32 v13, v1, 3, 1
    v_lshlrev_b32 v13, 6, v13
    v_add_u32 v88, v12, v13
    v_sub_u32 v89, v12, v13
    v_add_u32 v90, {2*SLAB}, v88
    v_add_u32 v91, {2*SLAB}, v89
    v_add_u32 v92, {4*SLAB}, v88
    v_add_u32 v93, {4*SLAB}, v89
    ''')
    seq = [(s, j) for s in range(72) for j in range(6)]
    LOOK = 4
    def wread(n):
        s, j = seq[n]
        sl = s // 4; loc = s % 4; slot = sl % 6
        ad = 88 + 2*(slot // 2) + (j % 2)
        off = (slot % 2)*SLAB + loc*16*384 + j*64
        r = WR + 4*(n % NW)
        A(f'ds_read_b64_tr_b16 {vr(r,2)}, v{ad} offset:{off}')
        A(f'ds_read_b64_tr_b16 {vr(r+2,2)}, v{ad} offset:{off+8*384}')
    seen = set(); pend = []
    def need_slab(sl):
        if sl in seen: return
        seen.add(sl); vm_wait(f'd{sl}'); A('s_barrier')
        nn = sl + 4
        if sl >= 1 and nn <= 17: pend.append(nn)
    N = len(seq)
    S(); need_slab(0); S()
    for n in range(LOOK): wread(n)
    for n in range(N):
        s, j = seq[n]
        if n in (72, 216): S()
        if n + LOOK < N:
            need_slab(seq[n+LOOK][0] // 4); wread(n+LOOK)
        if j == 0: vm_wait(f'a{s}')
        A(f's_waitcnt lgkmcnt({2*min(LOOK, N-1-n)})')
        c = '0' if s == 0 else vr(ACC+16*j, 16)
        A(f'v_mfma_f32_32x32x16_bf16 {vr(ACC+16*j,16)}, {vr(AR+4*(s%NA),4)}, {vr(WR+4*(n%NW),4)}, {c}')
        if j == 5:
            if s + NA < 72: aload(s+NA); vm_add(f'a{s+NA}')
            if s % 4 == 3:
                for nn in pend: dma(nn); vm_add(f'd{nn}', 6)
                pend.clear()
    S()
    A(f's_mul_i32 s34, s10, {16*24576}\ns_add_u32 s34, s34, {PART_OFF}\ns_add_u32 s34, s34, s28\ns_nop 7')
    for ap in (1, 2, 3):
        A(f's_xor_b32 s13, s5, {ap}\ns_mul_i32 s13, s13, {4*24576}\ns_add_u32 s13, s13, s34\ns_add_u32 s13, s13, {ap*24576}\ns_add_u32 s14, s13, 4096')
        for j in range(6):
            so, io = ('s13', j*1024) if j < 4 else ('s14', (j-4)*1024)
            A(f'buffer_store_dwordx4 {vr(ACC+16*j+4*ap,4)}, v3, s[44:47], {so} offen offset:{io} sc0 sc1')
    A('s_waitcnt vmcnt(0)'); S()
    A(f'''
    s_waitcnt vmcnt(0)
    s_barrier
    s_lshl_b32 s13, s10, 2
    v_mov_b32 v12, s13
    v_mov_b32 v13, 1
    s_cmp_lg_u32 s7, 0
    s_cbranch_scc1 K2_WAITB
    s_mov_b64 s[36:37], exec
    s_mov_b64 exec, 1
    buffer_atomic_add v13, v12, s[52:55], 0 offen sc1
    ''')
    A.lab('K2_POLL')
    A('''
    buffer_load_dword v14, v12, s[52:55], 0 offen sc0 sc1
    s_waitcnt vmcnt(0)
    v_readfirstlane_b32 s13, v14
    s_cmp_ge_u32 s13, 5
    s_cbranch_scc1 K2_POLLED
    s_sleep 1
    s_branch K2_POLL
    ''')
    A.lab('K2_POLLED')
    A('s_mov_b64 exec, s[36:37]')
    A.lab('K2_WAITB')
    A(f'''
    s_barrier
    s_mul_i32 s13, s5, {4*24576}
    s_add_u32 s13, s13, s34
    ''')
    S()
    def preg(slot, j):
        k = slot*6 + j
        return (AR + 4*k) if k < 12 else (PT + 4*(k-12))
    for slot in range(4):
        A(f's_add_u32 s14, s13, {slot*24576}\ns_add_u32 s15, s14, 4096')
        for j in range(6):
            so, io = ('s14', j*1024) if j < 4 else ('s15', (j-4)*1024)
            A(f'buffer_load_dwordx4 {vr(preg(slot,j),4)}, v3, s[44:47], {so} offen offset:{io} sc0 sc1')
    A(f's_mul_i32 s13, s5, {8*2304}\ns_add_u32 s12, s12, s13')
    A('s_waitcnt vmcnt(0)'); S()
    for j in range(6):
        for e in range(4):
            a = ACC+16*j+e
            A(f'v_add_f32 v{a}, v{a}, v{preg(1,j)+e}\nv_add_f32 v{preg(2,j)+e}, v{preg(2,j)+e}, v{preg(3,j)+e}')
        for e in range(4):
            a = ACC+16*j+e
            A(f'v_add_f32 v{a}, v{a}, v{preg(2,j)+e}')
        for e in range(4):
            a = ACC+16*j+e
            A(f'v_add_f32 v{a}, v{a}, v{preg(0,j)+e}')
    for e in range(4):
        A(f's_add_u32 s13, s12, {e*2304}')
        for j in range(6):
            A(f'buffer_store_dword v{ACC+16*j+e}, v2, s[48:51], s13 offen offset:{j*128}')
    A('s_waitcnt vmcnt(0)' if STAMP else ''); S(); S(True); S.flush(44)
    A('s_branch K2_END')
    S.n = 2
    A.lab('K2_SSM')
    SL2 = 40960; COFF = 16384
    for r in range(16):
        A(f's_add_u32 s13, s12, {((r//4)*8 + r%4)*2304}')
        for j in range(6):
            A(f'buffer_load_dword v{ACC+16*j+r}, v2, s[48:51], s13 offen offset:{j*128}')
        if r % 8 == 7: A('s_waitcnt vmcnt(0)')
    A(f'''
    v_lshrrev_b32 v12, 4, v1
    v_lshlrev_b32 v13, 2, v12
    v_and_b32 v14, 15, v1
    v_xor_b32 v13, v13, v14
    v_lshlrev_b32 v13, 4, v13
    v_lshl_add_u32 v5, v12, 12, v13
    s_lshl_b32 s31, s7, 16
    s_lshl_b32 s13, s6, 8
    s_add_u32 s31, s31, s13
    s_add_u32 s31, s31, {HT_OFF}
    s_lshl_b32 s28, s7, 12
    ''')
    A(f'''
    v_lshrrev_b32 v12, 3, v1
    v_mul_u32_u24 v12, 1152, v12
    v_lshrrev_b32 v13, 4, v1
    v_and_b32 v14, 7, v1
    v_xor_b32 v13, v13, v14
    v_lshl_add_u32 v6, v13, 4, v12
    v_xor_b32 v7, 64, v6
    s_mul_i32 s35, s8, {192*1152}
    s_mul_i32 s13, s7, {48*1152}
    s_add_u32 s35, s35, s13
    s_mul_i32 s29, s7, 6144
    ''')
    def dma2(n):
        slot = (n % 4) * SL2
        for i in range(4):
            A(f's_add_u32 s32, s31, {n*64*4096 + i*4*4096}')
            A(f's_add_u32 m0, s28, {slot+1024*i}\ns_nop 0\nbuffer_load_dwordx4 v5, s[44:47], s32 offen lds')
        sd = 60 if n < 9 else 64
        for i in range(6):
            A(f's_add_u32 s32, s35, {(n%9)*128 + i*8*1152}')
            A(f's_add_u32 m0, s29, {slot+COFF+1024*i}\ns_nop 0\nbuffer_load_dwordx4 v{6+(i%2)}, {sr(sd,4)}, s32 offen lds')
    vm.clear()
    for n in range(3): dma2(n); vm_add(f'd{n}', 10)
    A(f'''
    v_lshrrev_b32 v12, 5, v1
    v_lshlrev_b32 v13, 3, v12
    v_bfe_u32 v14, v1, 2, 2
    v_add_u32 v13, v13, v14
    v_lshlrev_b32 v13, 8, v13
    v_xor_b32 v14, s7, v14
    v_lshl_add_u32 v13, v14, 6, v13
    v_bfe_u32 v14, v1, 4, 1
    v_lshl_add_u32 v13, v14, 5, v13
    v_and_b32 v14, 3, v1
    v_lshl_add_u32 v8, v14, 3, v13
    v_add_u32 v9, {SL2}, v8
    v_add_u32 v10, {2*SL2}, v8
    v_add_u32 v11, {3*SL2}, v8
    v_and_b32 v13, 31, v1
    v_bfe_u32 v14, v1, 1, 3
    v_xor_b32 v14, v14, v12
    v_lshlrev_b32 v14, 4, v14
    v_lshl_add_u32 v13, v13, 7, v14
    v_add_u32 v13, {COFF}, v13
    ''')
    BA = PT
    for sp in range(4):
        A(f'v_xor_b32 v{BA+sp}, {sp*32}, v13')
        for slot in range(1, 4):
            A(f'v_add_u32 v{BA+4*slot+sp}, {slot*SL2}, v{BA+sp}')
    seen.clear(); pend.clear()
    def need2(sl):
        if sl in seen: return
        seen.add(sl); vm_wait(f'd{sl}'); A('s_barrier')
        nn = sl + 2
        if sl >= 1 and nn <= 17: pend.append(nn)
    lg = []
    def rd2(n):
        s, j = seq[n]
        sl = s // 4; loc = s % 4; slot = sl % 4
        if j == 0:
            r = AR + 4*(s % 2)
            A(f'ds_read_b64_tr_b16 {vr(r,2)}, v{8+slot} offset:{loc*16*256}')
            A(f'ds_read_b64_tr_b16 {vr(r+2,2)}, v{8+slot} offset:{loc*16*256+4*256}')
            lg.extend([n, n])
        A(f'ds_read_b128 {vr(WR+4*(n%NW),4)}, v{BA+4*slot+loc} offset:{j*4096}')
        lg.append(n)
    S(); need2(0); S()
    for n in range(LOOK): rd2(n)
    for n in range(N):
        s, j = seq[n]
        if n in (72, 216): S()
        if n + LOOK < N:
            need2(seq[n+LOOK][0] // 4); rd2(n+LOOK)
        A(f's_waitcnt lgkmcnt({sum(1 for t_ in lg if t_ > n)})')
        A(f'v_mfma_f32_32x32x16_bf16 {vr(ACC+16*j,16)}, {vr(AR+4*(s%2),4)}, {vr(WR+4*(n%NW),4)}, {vr(ACC+16*j,16)}')
        if j == 5 and s % 4 == 3:
            for nn in pend: dma2(nn); vm_add(f'd{nn}', 10)
            pend.clear()
    S()
    A(f's_mul_i32 s34, s10, {16*24576}\ns_add_u32 s34, s34, {PART_OFF}\ns_add_u32 s34, s34, s29\ns_nop 7')
    for ap in range(4):
        A(f's_add_u32 s13, s34, {ap*4*24576}\ns_add_u32 s14, s13, 4096')
        for j in range(6):
            so, io = ('s13', j*1024) if j < 4 else ('s14', (j-4)*1024)
            A(f'buffer_store_dwordx4 {vr(ACC+16*j+4*ap,4)}, v3, s[44:47], {so} offen offset:{io} sc0 sc1')
    A('s_waitcnt vmcnt(0)'); S(); S(); S(); S(); S(True); S.flush(44)
    A(f'''
    s_waitcnt vmcnt(0)
    s_barrier
    s_lshl_b32 s13, s10, 2
    v_mov_b32 v12, s13
    v_mov_b32 v13, 1
    s_cmp_lg_u32 s7, 0
    s_cbranch_scc1 K2_END
    s_mov_b64 exec, 1
    buffer_atomic_add v13, v12, s[52:55], 0 offen sc1
    ''')
    A.lab('K2_END')
    A('s_endpgm')
    return kd(name, 240)

def main(path):
    A = Asm()
    hdr = open('parallel_sum__ssm_conv_s5__geglu_ffn__prompt.s.ref').read().split('; Override launch')[0]
    A.raw(hdr.rstrip())
    A.raw(f'; @launch kernel=pre_kernel grid=(256,1,1) block=(576,1,1) lds={L0_LDS}')
    A.raw(f'; @launch kernel=up_kernel grid=(256,1,1) block=(512,1,1) lds={K1_LDS}')
    A.raw(f'; @launch kernel=down_kernel grid=(240,1,1) block=(256,1,1) lds={K2_LDS}')
    A.raw('.amdgcn_target "amdgcn-amd-amdhsa--gfx950"\n.text')
    kds = [gen_l0(A), gen_k1(A), gen_k2(A)]
    A.raw('.section .rodata,"a"')
    for k in kds: A.raw(k)
    open(path, 'w').write('\n'.join(A.L) + '\n')

if __name__ == '__main__':
    main(sys.argv[1] if len(sys.argv) > 1 else 'parallel_sum__ssm_conv_s5__geglu_ffn__prompt.s')
```

```python
XN_OFF   = 0
HF_OFF   = 0x0400000
H0_OFF   = 0x1800000
H0_UNIT  = 4096 + 256
E_OFF    = 0x2300000
E_BYTES  = 32*72*16*4
HT_OFF   = 0x2400000
PART_OFF = 0x2A00000
FLAG_OFF = 0x3E00000
FX_OFF   = FLAG_OFF
FE_OFF   = FLAG_OFF + 0x1000
FH_OFF   = FLAG_OFF + 0x2000
FT_OFF   = FLAG_OFF + 0x3000
FP_OFF   = FLAG_OFF + 0x4000
STAMP_OFF = 0x3F00000
STAT_OFF = 0x3D00000
EL_OFF   = 0x2380000
```

```python
import sys, struct, os
from layout import *
from gen_v1 import f32, LOG2E, INV2PI, Asm, vr, sr, srd, srd_off, lam_consts, csq, cmul, DPP8, mapply

STAMP = int(os.environ.get('STAMP', '0'))
A = Asm()
NAME = 'parallel_sum__ssm_conv_s5__geglu_ffn__prompt_kernel'

class VM:
    def __init__(self): self.q = []; self.ever = set()
    def add(self, tag, n=1): self.q += [tag]*n; self.ever.add(tag)
    def wait(self, *tags):
        for t in tags: assert t in self.ever, t
        idx = [i for i, t in enumerate(self.q) if t in tags]
        if not idx: return
        last = max(idx); n = len(self.q) - 1 - last
        if n <= 63: A(f's_waitcnt vmcnt({n})')
        self.q = self.q[last+1:]
    def count_after(self, tag):
        idx = [i for i, t in enumerate(self.q) if t == tag]
        return len(self.q) - 1 - max(idx)
vm = VM()
nstamp = [0]
def S(real=False):
    if not STAMP: return
    A(f'{"s_memrealtime" if real else "s_memtime"} s[84:85]\ns_waitcnt lgkmcnt(0)\ns_mov_b32 s{86+nstamp[0]}, s84')
    nstamp[0] += 1
    assert nstamp[0] <= 16
def Sflush():
    if not STAMP: return
    A(f's_mov_b64 exec, -1\ns_lshl_b32 s84, s2, 3\ns_add_u32 s84, s84, s7\ns_lshl_b32 s84, s84, 6\ns_add_u32 s84, s84, {STAMP_OFF}\nv_mov_b32 v1, 0')
    for i in range(16):
        A(f'v_mov_b32 v2, s{86+i}\nbuffer_store_dword v2, v1, s[48:51], s84 offen offset:{4*i}')
uid = [0]
def newlab(p):
    uid[0] += 1; return f'{p}_{uid[0]}'

WS = 's[48:51]'; OUT = 's[52:55]'; DBG = 's[72:75]'
TAG = 's15'
cold = []
def poll_issue(vdst, vaddr, soff, tag):
    A(f'buffer_load_dword v{vdst}, v{vaddr}, {WS}, {soff} offen sc1'); vm.add(tag)
def poll_check(vdst, vaddr, soff, tag):
    vm.wait(tag)
    slow = newlab('SLOW'); back = newlab('BACK')
    A(f'v_cmp_ne_u32 vcc, {TAG}, v{vdst}\ns_cbranch_vccnz {slow}')
    A.lab(back)
    cold.append(f'''{slow}:
    s_sub_u32 s23, s23, 1
    s_cbranch_scc1 {back}
    s_sleep 1
    buffer_load_dword v{vdst}, v{vaddr}, {WS}, {soff} offen sc1
    s_waitcnt vmcnt(0)
    v_cmp_ne_u32 vcc, {TAG}, v{vdst}
    s_cbranch_vccnz {slow}
    s_branch {back}''')
def flag_store(wave, soff, vtmp, vzero_needed=True):
    sk = newlab('NOFLAG')
    A(f'''
    s_cmp_lg_u32 s7, {wave}
    s_cbranch_scc1 {sk}
    v_mov_b32 v{vtmp}, {TAG}
    s_mov_b64 exec, 1
    buffer_store_dword v{vtmp}, off, {WS}, {soff} sc1
    s_mov_b64 exec, -1
    ''')
    A.lab(sk)
def dma(voff, srdn, soff, m0expr, imm=0, sc1=False):
    A(f'{m0expr}\ns_nop 0\nbuffer_load_dwordx4 v{voff}, {srdn}, {soff} offen{" offset:%d" % imm if imm else ""}{" sc1" if sc1 else ""} lds')

UREG = 73856
A2_B = [16384, 90240, 34816, 108672]
A2_X = [53248, 127104, 61440, 135296]
TB = 143488
EX_T = 147584
EX_B = EX_T + 8192
EX_S = EX_B + 2048
EX_R = 69632
G2U = 18560
K2S = 40960

def prologue():
    A(f'''
    s_cmp_ge_u32 s2, 256
    s_cbranch_scc1 K_END
    s_load_dwordx16 s[16:31], s[0:1], 0
    s_load_dwordx2 s[32:33], s[0:1], 64
    s_load_dwordx8 s[36:43], s[0:1], 80
    s_load_dwordx4 s[44:47], s[0:1], 112
    v_and_b32 v1, 63, v0
    v_lshrrev_b32 v2, 6, v0
    s_and_b32 s3, s2, 7
    s_lshr_b32 s4, s2, 3
    v_readfirstlane_b32 s7, v2
    s_lshr_b32 s5, s4, 3
    s_lshl_b32 s8, s3, 2
    s_add_u32 s5, s5, s8
    s_and_b32 s6, s4, 7
    s_lshr_b32 s8, s3, 2
    s_lshl_b32 s8, s8, 2
    s_lshr_b32 s9, s4, 3
    s_add_u32 s8, s8, s9
    s_and_b32 s9, s3, 3
    s_lshl_b32 s9, s9, 3
    s_add_u32 s9, s9, s6
    s_lshl_b32 s10, s8, 3
    s_add_u32 s10, s10, s7
    v_lshlrev_b32 v3, 4, v1
    v_lshrrev_b32 v4, 3, v1
    v_and_b32 v5, 7, v1
    v_add_u32 v6, 1024, v3
    v_cmp_gt_u32 vcc, 8, v1
    v_mov_b32 v7, 0x3ffffff0
    s_lshl_b32 s11, s5, 3
    s_add_u32 s11, s11, s6
    v_cndmask_b32 v6, v7, v6, vcc
    s_lshl_b32 s12, s11, 3
    s_add_u32 s12, s12, s7
    s_mul_i32 s13, s12, 1152
    s_waitcnt lgkmcnt(0)
    ''')
    S(True); S()
    srd(A, 56, 16, 2359296)
    srd(A, 72, 44, 256)
    srd(A, 48, 46, 0x10000000)
    srd(A, 76, 32, 1152)
    A(f'''
    s_or_b32 s14, s2, s7
    s_cmp_lg_u32 s14, 0
    s_cbranch_scc1 NOTAG
    s_memrealtime s[84:85]
    s_waitcnt lgkmcnt(0)
    s_mul_i32 s14, s84, 0x9E3779B1
    s_or_b32 s14, s14, 1
    v_mov_b32 v8, s14
    s_mov_b64 exec, 1
    buffer_store_dword v8, off, {DBG}, 0 sc1
    s_mov_b64 exec, -1
    ''')
    A.lab('NOTAG')
    A(f'''
    buffer_load_dwordx4 v[16:19], v3, s[56:59], s13 offen
    buffer_load_dwordx4 v[20:23], v6, s[56:59], s13 offen
    buffer_load_dwordx4 v[24:27], v3, s[76:79], 0 offen
    buffer_load_dwordx4 v[28:31], v6, s[76:79], 0 offen
    ''')
    vm.add('xr', 2); vm.add('dr', 2)
    srd(A, 52, 42, 4718592)
    srd(A, 60, 22, 663552)
    srd(A, 64, 24, 663552)
    A('''
    s_cmp_eq_u32 s7, 0
    s_cselect_b32 s68, s22, s24
    s_cselect_b32 s69, s23, s25
    s_mov_b32 s70, 663552
    s_mov_b32 s71, 0x20000
    s_mov_b32 s23, 100000
    ''')

def get_tag():
    vm.wait('tag')
    slow = newlab('TAGSLOW'); back = newlab('TAGBACK')
    A(f'v_readfirstlane_b32 {TAG}, v15\ns_cmp_eq_u32 {TAG}, 0\ns_cbranch_scc1 {slow}')
    A.lab(back)
    cold.append(f'''{slow}:
    s_sub_u32 s23, s23, 1
    s_cbranch_scc1 {back}
    s_sleep 1
    buffer_load_dword v15, off, {DBG}, 0 sc1
    s_waitcnt vmcnt(0)
    v_readfirstlane_b32 {TAG}, v15
    s_cmp_eq_u32 {TAG}, 0
    s_cbranch_scc1 {slow}
    s_branch {back}''')

def phase_a():
    A(f'''
    v_mul_u32_u24 v8, 1152, v4
    v_bfe_u32 v9, v4, 1, 1
    s_and_b32 s14, s7, 6
    v_xor_b32 v9, s14, v9
    v_xor_b32 v9, v9, v5
    v_lshl_add_u32 v9, v9, 4, v8
    v_lshrrev_b32 v10, 1, v4
    v_xor_b32 v10, v10, v5
    v_lshl_add_u32 v10, v10, 4, v8
    v_xor_b32 v11, 64, v10
    s_lshl_b32 s14, s7, 6
    s_and_b32 s14, s14, 64
    v_xor_b32 v12, s14, v10
    s_lshl_b32 s14, s5, 3
    s_add_u32 s14, s14, s7
    s_mul_i32 s34, s14, {8*1152}
    s_mul_i32 s14, s6, 9
    s_add_u32 s35, s14, s7
    s_mul_i32 s35, s35, {8*1152}
    s_add_u32 s80, s14, 8
    s_mul_i32 s80, s80, {8*1152}
    s_lshl_b32 s81, s7, 10
    s_lshl_b32 s82, s7, 11
    ''')
    def a2_dma(n):
        r = (n + 3) % 4
        sk = newlab('A2X')
        A(f's_cmp_ge_u32 s7, 2\ns_cbranch_scc1 {sk}\ns_add_u32 s14, s80, {128*n}')
        dma(12, 's[68:71]', 's14', f's_add_u32 m0, s81, {A2_B[r]+16384}')
        A.lab(sk)
        A(f's_add_u32 s14, s34, {128*n}')
        dma(9, 's[56:59]', 's14', f's_add_u32 m0, s81, {A2_X[r]}')
        A(f's_add_u32 s14, s35, {128*n}')
        dma(10, 's[60:63]', 's14', f's_add_u32 m0, s82, {A2_B[r]}')
        dma(11, 's[64:67]', 's14', f's_add_u32 m0, s82, {A2_B[r]+1024}')
        vm.add(f'a{n}', 3)
    a2_dma(0)
    A(f'''
    s_mul_i32 s14, s6, 72
    v_add_u32 v102, s14, v5
    s_lshl_b32 s14, s7, 3
    v_add_u32 v103, 64, v102
    v_add_u32 v102, s14, v102
    v_lshlrev_b32 v13, 1, v102
    v_lshlrev_b32 v14, 1, v103
    global_load_ushort v96, v13, s[18:19]
    global_load_ushort v97, v13, s[20:21]
    global_load_ushort v98, v13, s[30:31]
    global_load_ushort v99, v14, s[18:19]
    global_load_ushort v100, v14, s[20:21]
    global_load_ushort v101, v14, s[30:31]
    ''')
    vm.add('par', 6)
    a2_dma(1); a2_dma(2)
    k1_setup()
    A(f'buffer_load_dword v15, off, {DBG}, 0 sc1'); vm.add('tag')
    k1_dma(0, 0); k1_dma(0, 1)
    A('s_mov_b32 s14, 0x3f803f80')
    vm.wait('xr')
    for q in range(8):
        c0 = '0' if q == 0 else 'v32'; c1 = '0' if q == 0 else 'v33'
        A(f'v_dot2_f32_bf16 v32, v{16+q}, s14, {c0}\nv_dot2_f32_bf16 v33, v{16+q}, v{16+q}, {c1}')
    A('s_nop 2')
    for pat in ('quad_perm:[1,0,3,2] row_mask:0xf', 'quad_perm:[2,3,0,1] row_mask:0xf', 'row_half_mirror row_mask:0xf', 'row_mirror row_mask:0xf',
                'row_bcast:15 row_mask:0xa', 'row_bcast:31 row_mask:0xc'):
        A(f'v_add_f32_dpp v32, v32, v32 {pat} bank_mask:0xf\nv_add_f32_dpp v33, v33, v33 {pat} bank_mask:0xf\ns_nop 0')
    inv = f32(1.0/576.0)
    A(f'''
    v_readlane_b32 s14, v32, 63
    v_readlane_b32 s83, v33, 63
    s_nop 1
    v_mov_b32 v32, s14
    v_mov_b32 v33, s83
    ''')
    ln_stats(32, 34)
    A('s_mov_b32 s83, 0xffff0000')
    for h in range(2):
        T0 = 36
        for q in range(4):
            x = 16+4*h+q; a = T0+2*q
            A(f'v_lshlrev_b32 v{a}, 16, v{x}\nv_and_b32 v{a+1}, s83, v{x}')
        for q in range(4):
            a = T0+2*q; A(f'v_pk_add_f32 {vr(a,2)}, {vr(a,2)}, v[32:33] op_sel_hi:[1,0] neg_lo:[0,1] neg_hi:[0,1]')
        for q in range(4):
            a = T0+2*q; A(f'v_cvt_pk_bf16_f32 v{a+1}, v{a}, v{a+1}')
        for q in range(4):
            a = T0+2*q; A(f'v_lshlrev_b32 v{a}, 16, v{a+1}\nv_and_b32 v{a+1}, s83, v{a+1}')
        for q in range(4):
            a = T0+2*q; A(f'v_pk_mul_f32 {vr(a,2)}, {vr(a,2)}, v[32:33] op_sel:[0,1] op_sel_hi:[1,1]')
        for q in range(4):
            a = T0+2*q; A(f'v_cvt_pk_bf16_f32 v{44+4*h+q}, v{a}, v{a+1}')
    A(f'''
    s_lshl_b32 s14, s7, 4
    s_add_u32 s14, s14, {TB}
    v_lshl_add_u32 v13, v1, 7, s14
    ds_write_b128 v13, v[44:47]
    s_mov_b64 exec, 0xff
    ds_write_b128 v13, v[48:51] offset:8192
    s_mov_b64 exec, -1
    s_waitcnt lgkmcnt(0)
    s_barrier
    ''')
    S()
    A(f'''
    s_cmp_lg_u32 s7, 6
    s_cbranch_scc1 NOXN
    v_add_u32 v13, {TB}, v3
    ''')
    for b in range(9): A(f'ds_read_b128 {vr(112+4*b,4)}, v13 offset:{1024*b}')
    A(f'''
    s_lshr_b32 s14, s11, 2
    s_mul_i32 s14, s14, 36864
    s_and_b32 s83, s6, 3
    s_lshl_b32 s83, s83, 7
    s_add_u32 s14, s14, s83
    v_lshlrev_b32 v13, 9, v4
    v_lshl_add_u32 v13, v5, 4, v13
    ''')
    for b in range(9):
        A(f's_waitcnt lgkmcnt({8-b})\nbuffer_store_dwordx4 {vr(112+4*b,4)}, v13, {WS}, s14 offen sc1\ns_add_u32 s14, s14, 4096')
    A('s_mov_b32 s83, 0xffff0000')
    A.lab('NOXN')
    vm.wait('dr')
    A('s_lshl_b32 s13, s13, 1\nv_lshlrev_b32 v13, 1, v3\nv_lshlrev_b32 v14, 1, v6')
    for h in range(2):
        T0 = 52 + 8*h
        for q in range(4):
            a = T0+2*q
            A(f'''
            v_lshlrev_b32 v{a}, 16, v{44+4*h+q}
            v_and_b32 v{a+1}, s83, v{44+4*h+q}
            v_lshlrev_b32 v34, 16, v{24+4*h+q}
            v_and_b32 v35, s83, v{24+4*h+q}
            v_pk_mul_f32 {vr(a,2)}, {vr(a,2)}, v[34:35]
            v_cvt_pk_bf16_f32 v{a+1}, v{a}, v{a+1}
            v_lshlrev_b32 v{a}, 16, v{a+1}
            v_and_b32 v{a+1}, s83, v{a+1}
            v_lshlrev_b32 v34, 16, v{16+4*h+q}
            v_and_b32 v35, s83, v{16+4*h+q}
            v_pk_add_f32 {vr(a,2)}, {vr(a,2)}, v[34:35]
            ''')
        A(f'buffer_store_dwordx4 {vr(T0,4)}, v{13+h}, {OUT}, s13 offen sc1\nbuffer_store_dwordx4 {vr(T0+4,4)}, v{13+h}, {OUT}, s13 offen offset:16 sc1')
        vm.add('bs', 2)
    vm.wait('par')
    unit_consts(96)
    A(f'''
    v_and_b32 v13, 15, v1
    v_lshrrev_b32 v14, 4, v1
    v_bfe_u32 v2, v1, 1, 3
    v_xor_b32 v2, v2, v14
    v_lshlrev_b32 v2, 4, v2
    v_lshl_add_u32 v6, v13, 7, v2
    v_bfe_u32 v14, v1, 2, 2
    v_lshlrev_b32 v14, 11, v14
    v_and_b32 v13, 3, v1
    v_lshl_add_u32 v14, v13, 7, v14
    v_add_u32 v7, v14, v2
    s_lshr_b32 s14, s7, 2
    s_lshl_b32 s14, s14, 6
    v_xor_b32 v8, s14, v6
    v_xor_b32 v2, s14, v7
    s_and_b32 s14, s7, 3
    s_lshl_b32 s14, s14, 9
    v_add_u32 v2, s14, v2
    v_add_u32 v6, s82, v6
    v_mov_b32 v104, 0x3f803f80
    v_mov_b32 v105, 0x3f803f80
    v_mov_b32 v106, 0x3f803f80
    v_mov_b32 v107, 0x3f803f80
    s_mov_b32 s83, 0x3f803f80
    ''')
    A(f'v_lshlrev_b32 v95, 2, v1\nv_and_b32 v95, 127, v95')
    for n in range(9):
        r = (n + 3) % 4
        vm.wait(f'a{n}')
        if n == 2: get_tag()
        A('s_barrier')
        if n + 3 <= 8: a2_dma(n + 3)
        if n == 7: k1_dma(0, 2); k1_dma(0, 3)
        if n == 2:
            sk = newlab('NOFX')
            A(f's_cmp_lg_u32 s7, 6\ns_cbranch_scc1 {sk}\ns_waitcnt vmcnt({vm.count_after("bs") + 4})\ns_lshl_b32 s14, s11, 2\ns_add_u32 s14, s14, {FX_OFF}')
            A(f'v_mov_b32 v13, {TAG}\ns_mov_b64 exec, 1\nbuffer_store_dword v13, off, {WS}, s14 sc1\ns_mov_b64 exec, -1')
            A.lab(sk)
        if n == 7:
            A(f's_lshl_b32 s76, s8, 7\ns_add_u32 s76, s76, {FX_OFF}')
            poll_issue(94, 95, 's76', 'pfx')
        A(f'''
        v_add_u32 v13, {A2_X[r]}, v7
        v_add_u32 v14, {A2_B[r]}, v6
        v_add_u32 v108, {A2_X[r]}, v2
        v_add_u32 v109, {A2_B[r]+16384}, v8
        v_xor_b32 v110, 64, v13
        v_xor_b32 v111, 64, v14
        ''')
        A('ds_read_b128 v[48:51], v14')
        for t in range(4): A(f'ds_read_b128 {vr(16+4*t,4)}, v13 offset:{512*t}')
        A('ds_read_b128 v[52:55], v111')
        for t in range(4): A(f'ds_read_b128 {vr(32+4*t,4)}, v110 offset:{512*t}')
        A('ds_read_b128 v[56:59], v108\nds_read_b128 v[60:63], v109')
        z = (n == 0)
        def c(rg): return '0' if z else vr(rg, 4)
        A(f's_waitcnt lgkmcnt(11)\nv_mfma_f32_16x16x32_bf16 v[80:83], v[104:107], v[48:51], {c(80)}')
        for t in range(4):
            A(f's_waitcnt lgkmcnt({10-t})\nv_mfma_f32_16x16x32_bf16 {vr(64+4*t,4)}, {vr(16+4*t,4)}, v[48:51], {c(64+4*t)}')
        A(f's_waitcnt lgkmcnt(6)\nv_mfma_f32_16x16x32_bf16 v[80:83], v[104:107], v[52:55], v[80:83]')
        for t in range(4):
            A(f's_waitcnt lgkmcnt({5-t})\nv_mfma_f32_16x16x32_bf16 {vr(64+4*t,4)}, {vr(32+4*t,4)}, v[52:55], {vr(64+4*t,4)}')
        A(f's_waitcnt lgkmcnt(0)\nv_mfma_f32_16x16x32_bf16 v[84:87], v[56:59], v[60:63], {c(84)}')
        A(f'v_mfma_f32_16x16x32_bf16 v[88:91], v[104:107], v[60:63], {c(88)}')
        for q in range(4):
            c0 = '0' if (z and q == 0) else 'v92'; c1 = '0' if (z and q == 0) else 'v93'
            A(f'v_dot2_f32_bf16 v92, v{56+q}, s83, {c0}\nv_dot2_f32_bf16 v93, v{56+q}, v{56+q}, {c1}')
    S()
    A(f'''
    v_bfe_u32 v13, v1, 2, 2
    v_lshlrev_b32 v13, 10, v13
    v_and_b32 v14, 3, v1
    v_lshl_add_u32 v13, v14, 6, v13
    v_lshrrev_b32 v14, 4, v1
    v_lshl_add_u32 v13, v14, 3, v13
    s_and_b32 s14, s7, 3
    s_lshl_b32 s14, s14, 8
    s_lshr_b32 s77, s7, 2
    s_lshl_b32 s77, s77, 5
    s_add_u32 s14, s14, s77
    s_add_u32 s14, s14, {EX_S}
    v_add_u32 v13, s14, v13
    s_add_u32 s14, s81, {EX_T}
    v_add_u32 v14, s14, v3
    s_lshl_b32 s14, s7, 8
    s_add_u32 s14, s14, {EX_B}
    v_lshl_add_u32 v108, v1, 2, s14
    ds_write_b64 v13, v[92:93]
    ds_write_b128 v14, v[84:87]
    ds_write_b32 v108, v88
    v_lshlrev_b32 v13, 6, v1
    v_add_u32 v13, {EX_S}, v13
    s_waitcnt lgkmcnt(0)
    s_barrier
    ''')
    for k in range(4): A(f'ds_read_b128 {vr(16+4*k,4)}, v13 offset:{16*k}')
    poll_check(94, 95, 's76', 'pfx')
    for ks in range(0, 8): k1_xload(ks)
    k1_dma(0, 4)
    for ks in range(8, 12): k1_xload(ks)
    k1_dma(0, 5); k1_dma(0, 6)
    A('s_waitcnt lgkmcnt(0)')
    for k in range(1, 8): A(f'v_pk_add_f32 v[16:17], v[16:17], {vr(16+2*k,2)}')
    ln_stats(16, 18)
    A(f'''
    v_mul_f32 v16, -v16, v17
    s_lshl_b32 s14, s7, 9
    s_add_u32 s14, s14, {EX_R}
    v_lshl_add_u32 v13, v1, 3, s14
    ds_write_b64 v13, v[16:17]
    v_lshrrev_b32 v14, 4, v1
    v_lshl_add_u32 v13, v14, 7, s14
    s_waitcnt lgkmcnt(0)
    ''')
    for k in range(8): A(f'ds_read_b128 {vr(16+4*k,4)}, v13 offset:{16*k}')
    A(f'''
    v_and_b32 v108, 15, v1
    v_lshlrev_b32 v108, 2, v108
    v_add_u32 v109, 64, v108
    v_add_u32 v110, 128, v108
    v_add_u32 v111, 192, v108
    s_mul_i32 s12, s11, 9
    s_add_u32 s12, s12, s7
    s_mov_b32 s77, 0
    s_waitcnt lgkmcnt(0)
    ''')
    A.lab('UNIT_FIN')
    LR, SLI, A1, A2c, L16R, SL16I = CONSTS
    U = 64; Hh = 48
    for k in range(16): A(f'v_mul_f32 v{U+k}, v{17+2*k}, v{U+k}')
    for k in range(16): A(f'v_fmac_f32 v{U+k}, v{16+2*k}, v80')
    for k in range(16): A(f'v_mul_f32 v{Hh+k}, v{A1}, v{U+k}')
    for k in range(16): A(f'v_fmac_f32_dpp v{Hh+k}, v{U+k}, v{A2c} {DPP8}')
    for k in range(1, 16):
        A(f'v_fmac_f32 v{Hh+k}, v{LR}, v{Hh+k-1}\ns_nop 0\nv_fmac_f32_dpp v{Hh+k}, v{Hh+k-1}, v{SLI} {DPP8}')
    E0 = 84
    for g in range(4): A(f'ds_bpermute_b32 v{E0+g}, v{108+g}, v{Hh+15}')
    A(f's_mul_i32 s13, s12, {H0_UNIT}\ns_add_u32 s13, s13, {H0_OFF}')
    for k in range(4): A(f'buffer_store_dwordx4 {vr(Hh+4*k,4)}, v3, {WS}, s13 offen offset:{1024*k}')
    A('s_waitcnt lgkmcnt(0)')
    T2, T3, EE = 88, 89, 90
    mapply(A, T2, E0, L16R, SL16I, E0+1)
    mapply(A, T3, T2, L16R, SL16I, E0+2)
    mapply(A, EE, T3, L16R, SL16I, E0+3)
    A(f'''
    v_lshrrev_b32 v13, 4, v1
    v_mov_b32 v14, 0
    v_cmp_eq_u32 vcc, 1, v13
    s_nop 1
    v_cndmask_b32 v14, v14, v{E0}, vcc
    v_cmp_eq_u32 vcc, 2, v13
    s_nop 1
    v_cndmask_b32 v14, v14, v{T2}, vcc
    v_cmp_eq_u32 vcc, 3, v13
    s_nop 1
    v_cndmask_b32 v14, v14, v{T3}, vcc
    v_lshlrev_b32 v13, 2, v1
    s_add_u32 s13, s13, 4096
    buffer_store_dword v14, v13, {WS}, s13 offen
    s_lshl_b32 s13, s12, 6
    s_add_u32 s13, s13, {E_OFF}
    buffer_store_dword v{EE}, v108, {WS}, s13 offen sc1
    s_cmp_lg_u32 s7, 7
    s_cbranch_scc1 UNIT_DONE
    s_cmp_lg_u32 s77, 0
    s_cbranch_scc1 UNIT_DONE
    s_mov_b32 s77, 1
    s_add_u32 s12, s12, 1
    v_add_u32 v13, {EX_T}, v3
    v_lshlrev_b32 v14, 2, v1
    v_add_u32 v14, {EX_B}, v14
    ''')
    for t in range(4):
        A(f'ds_read_b128 {vr(U+4*t,4)}, v13 offset:{1024*t}\nds_read_b128 {vr(Hh+4*t,4)}, v13 offset:{1024*(t+4)}')
    A('ds_read_b32 v80, v14\nds_read_b32 v81, v14 offset:1024')
    unit_consts(99)
    A('s_waitcnt lgkmcnt(0)')
    for k in range(16): A(f'v_add_f32 v{U+k}, v{U+k}, v{Hh+k}')
    A('v_add_f32 v80, v80, v81\ns_branch UNIT_FIN')
    A.lab('UNIT_DONE')
    vm.add('h0', 5); vm.add('est', 1)
    S()

CONSTS = (96, 97, 98, 102, 103, 15)
def ln_stats(r, t):
    inv = f32(1.0/576.0)
    A(f'''
    v_mul_f32 v{r}, {inv}, v{r}
    v_mul_f32 v{r+1}, {inv}, v{r+1}
    v_fma_f32 v{r+1}, -v{r}, v{r}, v{r+1}
    v_max_f32 v{r+1}, 0, v{r+1}
    v_cvt_pk_bf16_f32 v{t}, v{r}, v{r+1}
    v_lshlrev_b32 v{r}, 16, v{t}
    v_and_b32 v{r+1}, 0xffff0000, v{t}
    v_add_f32 v{r+1}, {f32(1e-5)}, v{r+1}
    v_cvt_pk_bf16_f32 v{r+1}, v{r+1}, v{r+1}
    v_lshlrev_b32 v{r+1}, 16, v{r+1}
    v_sqrt_f32 v{r+1}, v{r+1}
    s_nop 0
    v_cvt_pk_bf16_f32 v{r+1}, v{r+1}, v{r+1}
    v_lshlrev_b32 v{r+1}, 16, v{r+1}
    v_rcp_f32 v{r+1}, v{r+1}
    s_nop 0
    ''')
CONSTS = (248, 249, 250, 251, 252, 253)
def unit_consts(p):
    LR, SLI, A1, A2c, L16R, SL16I = CONSTS
    t = 236
    lam_consts(A, p, p+1, p+2, LR, t, t+1, t+2, t+3, t+4, t+5, t+6)
    A(f'''
    v_and_b32 v{t+7}, 8, v1
    v_lshlrev_b32 v{t+7}, 28, v{t+7}
    v_xor_b32 v{SLI}, v{t+7}, v{t}
    v_add_f32 v{A1}, v{t+1}, v{t+1}
    v_xor_b32 v{A1}, v{t+7}, v{A1}
    v_mul_f32 v{A2c}, -2.0, v{t+2}
    ''')
    csq(A, LR, t, L16R, SL16I, t+3)
    for _ in range(3): csq(A, L16R, SL16I, L16R, SL16I, t+3)
    A(f'v_xor_b32 v{SL16I}, v{t+7}, v{SL16I}')

XR = 112; ACC = 48; WR = 24; NW = 6; TMP = 16
WGS = 's[16:19]'
def k1_setup():
    A(f'''
    s_lshr_b32 s14, s9, 2
    s_mul_i32 s14, s14, 1152
    s_add_u32 s24, s36, s14
    s_addc_u32 s25, s37, 0
    s_sub_u32 s26, {576*9216}, s14
    s_mov_b32 s27, 0x20000
    s_add_u32 s36, s38, s14
    s_addc_u32 s37, s39, 0
    s_mov_b32 s38, s26
    s_mov_b32 s39, 0x20000
    s_and_b32 s14, s9, 3
    s_lshl_b32 s78, s14, 8
    s_mul_i32 s79, s7, {8*9216}
    s_add_u32 s78, s78, s79
    s_lshl_b32 s79, s14, 5
    s_add_u32 s79, s79, 1024
    s_mul_i32 s40, s10, 36864
    v_bfe_u32 v0, v1, 1, 3
    v_mul_u32_u24 v0, 9216, v0
    v_lshrrev_b32 v13, 4, v1
    v_lshl_add_u32 v0, v13, 5, v0
    v_and_b32 v13, 1, v1
    v_lshl_add_u32 v0, v13, 4, v0
    ''')
def k1_dma(g, n):
    A(f's_add_u32 s14, s78, {n*64*9216 + g*128}')
    dma(0, 's[24:27]', 's14', f's_add_u32 m0, s81, {8192*n}')
    dma(0, 's[36:39]', 's14', f's_add_u32 m0, s81, {UREG+8192*n}')
    vm.add(f'w{g}_{n}', 2)
def k1_xload(ks):
    if ks < 4: A(f'buffer_load_dwordx4 {vr(XR+4*ks,4)}, v3, {WS}, s40 offen offset:{ks*1024} sc1')
    else: A(f's_add_u32 s14, s40, {ks*1024}\nbuffer_load_dwordx4 {vr(XR+4*ks,4)}, v3, {WS}, s14 offen sc1')
    vm.add(f'x{ks}')
def k1_dma_g2(part):
    sd = 's[24:27]' if part == 0 else 's[36:39]'
    base = 0 if part == 0 else G2U
    sk = newlab('G2X')
    A(f's_cmp_ge_u32 s7, 2\ns_cbranch_scc1 {sk}\ns_add_u32 s14, s41, {16*32*9216}')
    dma(4, sd, 's14', f's_add_u32 m0, s81, {base+16384}')
    A.lab(sk)
    for i in range(2):
        A(f's_add_u32 s14, s41, {i*8*32*9216}')
        dma(4, sd, 's14', f's_add_u32 m0, s81, {base+8192*i}')
    vm.add(f'g2_{part}', 2)

def phase_k1():
    KS1 = 24; HD = 4; LOOK = 4
    seq = [(ks, fb) for ks in range(KS1) for fb in range(4)]
    seq += [(ks, fb) for ks in range(KS1, 36) for fb in (0, 1)]
    seq += [(ks, fb) for ks in range(KS1, 36) for fb in (2, 3)]
    seq += [(ks, 4) for ks in range(HD)] + [(ks, 5) for ks in range(HD)] + [(ks, fb) for ks in range(HD, 36) for fb in (4, 5)]
    seq += [(ks, fb) for ks in range(36) for fb in (6, 7)]
    seq += [(ks, 8) for ks in range(36)]
    N = len(seq)
    P2, P3, P4, P5, P6 = 96, 120, 144, 216, 288
    A(f'''
    v_bfe_u32 v13, v1, 4, 1
    v_lshrrev_b32 v14, 5, v1
    v_and_b32 v2, 15, v1
    v_lshlrev_b32 v2, 3, v2
    v_mul_u32_u24 v5, {UREG}, v13
    v_lshl_add_u32 v5, v14, 10, v5
    v_add_u32 v5, v5, v2
    v_add_u32 v6, 36864, v5
    v_mul_u32_u24 v7, {G2U}, v13
    v_lshl_add_u32 v7, v14, 8, v7
    v_add_u32 v7, v7, v2
    v_lshrrev_b32 v4, 1, v1
    v_mul_u32_u24 v4, 9216, v4
    v_and_b32 v13, 1, v1
    v_lshl_add_u32 v4, v13, 4, v4
    s_mul_i32 s41, s7, {32*9216}
    s_add_u32 s41, s41, s79
    s_mov_b32 s42, {f32(-2.302208198*0.044715)}
    v_mov_b32 v11, {f32(-2.302208198)}
    s_lshr_b32 s14, s9, 2
    s_mul_i32 s14, s14, 9
    s_and_b32 s13, s9, 3
    s_lshl_b32 s34, s13, 1
    s_add_u32 s34, s34, s14
    s_lshl_b32 s34, s34, 12
    s_mul_i32 s43, s10, 294912
    s_add_u32 s43, s43, {HF_OFF}
    s_add_u32 s14, s14, 8
    s_lshl_b32 s14, s14, 12
    s_lshl_b32 s13, s13, 10
    s_add_u32 s14, s14, s13
    s_add_u32 s35, s43, s14
    s_add_u32 s43, s43, s34
    s_lshl_b32 s34, s8, 5
    s_add_u32 s34, s34, s9
    s_lshl_b32 s34, s34, 2
    s_add_u32 s34, s34, {FH_OFF}
    ''')
    def wread(m):
        ks, fb = seq[m]
        r = WR + 4*(m % NW)
        if fb < 8:
            ad = 5 if ks < 18 else 6
            off = (ks % 18)*2048 + (fb % 4)*256
        else:
            ad = 7; off = ks*512
        A(f'ds_read_b64_tr_b16 {vr(r,2)}, v{ad} offset:{off}\nds_read_b64_tr_b16 {vr(r+2,2)}, v{ad} offset:{off+128}')
    def make_epi(fb):
        a = ACC + 16*(fb % 4); t = TMP
        out = []
        for half in range(2):
            es = range(4*half, 4*half+4)
            for e in es: out.append(f'v_mul_f32 v{t+e%4}, v{a+e}, v{a+e}')
            for e in es: out.append(f'v_fma_f32 v{t+e%4}, v{t+e%4}, s42, v11')
            for e in es: out.append(f'v_mul_f32 v{t+e%4}, v{t+e%4}, v{a+e}')
            for e in es: out.append(f'v_exp_f32 v{t+e%4}, v{t+e%4}')
            for e in es: out.append(f'v_mul_f32 v{a+e}, v{a+e}, v{a+8+e}')
            for e in es: out.append(f'v_add_f32 v{t+e%4}, 1.0, v{t+e%4}')
            for e in es: out.append(f'v_rcp_f32 v{t+e%4}, v{t+e%4}')
            out.append('s_nop 0')
            for e in es: out.append(f'v_mul_f32 v{a+e}, v{a+e}, v{t+e%4}')
            out.append(f'v_cvt_pk_bf16_f32 v{t+4+2*half}, v{a+4*half}, v{a+4*half+1}')
            out.append(f'v_cvt_pk_bf16_f32 v{t+5+2*half}, v{a+4*half+2}, v{a+4*half+3}')
        out.append(('free', fb))
        if fb < 4: out.append(('st', fb, f'buffer_store_dwordx4 {vr(t+4,4)}, v3, {WS}, s43 offen offset:{fb*1024} sc1'))
        elif fb < 8: out.append(('st', fb, f's_add_u32 s14, s43, 4096\nbuffer_store_dwordx4 {vr(t+4,4)}, v3, {WS}, s14 offen offset:{(fb-4)*1024} sc1'))
        else: out.append(('st', fb, f'buffer_store_dwordx4 {vr(t+4,4)}, v3, {WS}, s35 offen sc1'))
        return out
    bg = []
    busy = set()
    def emit_bg(k, n):
        while k > 0 and bg and bg[0][0] <= n:
            it = bg.pop(0)[1]
            if isinstance(it, tuple):
                if it[0] == 'free': busy.discard(it[1] % 4)
                else: A(it[2]); vm.add(f'h{it[1]}'); k -= 1
            else: A(it); k -= 1
    def flagH(g): return lambda: (A(f's_add_u32 s14, s34, {1024*g}'), flag_store(0, 's14', 2))
    def flagE(): A(f's_lshl_b32 s14, s6, 5\ns_add_u32 s14, s14, s5\ns_lshl_b32 s14, s14, 2\ns_add_u32 s14, s14, {FE_OFF}'); flag_store(1, 's14', 2)
    sync = {
        0:   (['w0_0'], [lambda: k1_dma(0, 7), lambda: k1_dma(0, 8)]),
        16:  (['w0_1'], []),
        32:  (['w0_2'], []),
        48:  (['w0_3'], []),
        64:  (['w0_4', 'est'], [flagE]),
        80:  (['w0_5'], []),
        96:  (['w0_6'], [lambda: k1_dma(1, 0), lambda: k1_dma(1, 1), lambda: k1_dma(1, 2)]),
        104: (['w0_7', 'w0_8'], [lambda: k1_dma(1, 3), lambda: k1_dma(1, 4), lambda: k1_dma(1, 5)]),
        144: (['w1_0', 'w1_1', 'w1_2'], []),
        152: ([], [lambda: k1_dma(1, 6), lambda: k1_dma(1, 7), lambda: k1_dma(1, 8)]),
        168: (['w1_3', 'w1_4', 'w1_5'], []),
        192: (['w1_6', 'w1_7', 'w1_8', 'h3'], [flagH(0)]),
        P5+28: ([], [lambda: k1_dma_g2(0)]),
        P5+44: ([], [lambda: k1_dma_g2(1)]),
        P6:  (['g2_0', 'g2_1'], []),
        P6+4: ([], [k2_prefetch]),
    }
    def do_sync(m):
        if m in sync:
            tags, acts = sync[m]
            vm.wait(*tags); A('s_barrier')
            for f in acts: f()
    seen_x = set()
    do_sync(0)
    S()
    for m in range(LOOK): wread(m)
    for n in range(N):
        ks, fb = seq[n]
        if n in (P4, P6): S()
        if n == P5 + 50: k2_setup()
        if n + LOOK < N:
            do_sync(n + LOOK); wread(n + LOOK)
        if ks not in seen_x:
            seen_x.add(ks); vm.wait(f'x{ks}')
        first = (ks == 0)
        if first: assert (fb % 4) not in busy, (n, fb)
        A(f's_waitcnt lgkmcnt({2*min(LOOK, N-1-n)})')
        a = ACC + 16*(fb % 4)
        A(f'v_mfma_f32_32x32x16_bf16 {vr(a,16)}, {vr(WR+4*(n%NW),4)}, {vr(XR+4*ks,4)}, {"0" if first else vr(a,16)}')
        if n < P2 and fb == 3 and ks + 12 < 36: k1_xload(ks + 12)
        if ks == 35:
            busy.add(fb % 4)
            bg.extend((n + 4, it) for it in make_epi(fb))
        rate = 6 if n < P4 + 2*HD else (3 if n < P6 else 5)
        emit_bg(rate, n)
    S()
    fix_loads(FA, 's7')
    A('s_cmp_lg_u32 s7, 7\ns_cbranch_scc1 FIX_NOB\ns_mov_b32 s77, 8')
    fix_loads(FB, 's77', count=False)
    A.lab('FIX_NOB')
    emit_bg(10**9, 10**9)

FA = 112; FB = 144; FT_ = 176
def fix_loads(base, sunit, count=True):
    A(f'''
    s_mul_i32 s12, s11, 9
    s_add_u32 s12, s12, {sunit}
    s_mul_i32 s13, s12, {H0_UNIT}
    s_add_u32 s13, s13, {H0_OFF}
    s_mul_i32 s14, s6, 72
    v_and_b32 v2, 7, v1
    v_add_u32 v{base+28}, s14, v2
    s_lshl_b32 s14, {sunit}, 3
    v_add_u32 v{base+28}, s14, v{base+28}
    v_lshlrev_b32 v2, 1, v{base+28}
    global_load_ushort v{base+25}, v2, s[18:19]
    global_load_ushort v{base+26}, v2, s[20:21]
    global_load_ushort v{base+27}, v2, s[30:31]
    s_lshl_b32 s12, s12, 6
    v_lshrrev_b32 v2, 4, v1
    v_mul_u32_u24 v2, {8*4608}, v2
    v_and_b32 v{base+29}, 15, v1
    v_lshl_add_u32 v{base+29}, v{base+29}, 2, s12
    v_sub_u32 v{base+29}, v{base+29}, v2
    ''')
    for i in range(8):
        A(f'v_subrev_u32 v{base+29}, 4608, v{base+29}\nbuffer_load_dword v{base+17+i}, v{base+29}, s[60:63], 0 offen sc1')
    A('v_lshlrev_b32 v2, 2, v1')
    for k in range(4): A(f'buffer_load_dwordx4 {vr(base+4*k,4)}, v3, {WS}, s13 offen offset:{1024*k}')
    A(f's_add_u32 s13, s13, 4096\nbuffer_load_dword v{base+16}, v2, {WS}, s13 offen')
    if count: vm.add('fx', 16)
def fixup():
    A('s_mov_b32 s77, 0')
    vm.wait('fx')
    A.lab('FIX')
    t = FT_
    LR, LI, SG = t, t+1, t+2
    PR, PI = t+3, t+4; QR, QI = t+5, t+6; L64R, L64I = t+7, t+8
    lam_consts(A, FA+25, FA+26, FA+27, LR, LI, 0, 0, t+9, t+10, t+11, t+12, need_coef=False)
    A(f'v_and_b32 v{SG}, 8, v1\nv_lshlrev_b32 v{SG}, 28, v{SG}')
    csq(A, LR, LI, PR, PI, t+9)
    for _ in range(3): csq(A, PR, PI, PR, PI, t+9)
    A(f'v_mov_b32 v{t+13}, v{PR}\nv_mov_b32 v{t+14}, v{PI}')
    csq(A, PR, PI, PR, PI, t+9)
    cmul(A, PR, PI, t+13, t+14, t+15, t+16)
    A(f'''
    v_lshrrev_b32 v2, 4, v1
    v_mov_b32 v{QR}, 1.0
    v_mov_b32 v{QI}, 0
    v_cmp_eq_u32 vcc, 1, v2
    s_nop 1
    v_cndmask_b32 v{QR}, v{QR}, v{t+13}, vcc
    v_cndmask_b32 v{QI}, v{QI}, v{t+14}, vcc
    v_cmp_eq_u32 vcc, 2, v2
    s_nop 1
    v_cndmask_b32 v{QR}, v{QR}, v{PR}, vcc
    v_cndmask_b32 v{QI}, v{QI}, v{PI}, vcc
    v_cmp_eq_u32 vcc, 3, v2
    s_nop 1
    v_cndmask_b32 v{QR}, v{QR}, v{t+15}, vcc
    v_cndmask_b32 v{QI}, v{QI}, v{t+16}, vcc
    v_xor_b32 v{QI}, v{SG}, v{QI}
    ''')
    csq(A, PR, PI, L64R, L64I, t+9)
    csq(A, L64R, L64I, PR, PI, t+9)
    for _ in range(2): csq(A, PR, PI, PR, PI, t+9)
    A(f'v_xor_b32 v{L64I}, v{SG}, v{L64I}\nv_xor_b32 v{PI}, v{SG}, v{PI}\nv_xor_b32 v{LI}, v{SG}, v{LI}')
    for i in range(6, -1, -1): mapply(A, FA+17+i, FA+17+i+1, L64R, L64I, FA+17+i)
    A(f'''
    v_and_b32 v{t+17}, 15, v1
    v_lshlrev_b32 v{t+17}, 2, v{t+17}
    v_add_u32 v{t+18}, 64, v{t+17}
    v_add_u32 v{t+19}, 128, v{t+17}
    v_add_u32 v{t+20}, 192, v{t+17}
    ''')
    for g in range(4): A(f'ds_bpermute_b32 v{FA+18+g}, v{t+17+g}, v{FA+17}')
    A('s_waitcnt lgkmcnt(0)')
    for g in (2, 1, 0): mapply(A, FA+18+g, FA+18+g+1, PR, PI, FA+18+g)
    mapply(A, FA+16, FA+18, QR, QI, FA+16)
    g0, g1 = FA+16, FA+17
    for k in range(16):
        a, b = (g0, g1) if k % 2 == 0 else (g1, g0)
        mapply(A, b, a, LR, LI, None)
        A(f'v_add_f32 v{FA+k}, v{FA+k}, v{b}')
    for k in range(8): A(f'v_cvt_pk_bf16_f32 v{FA+k}, v{FA+2*k}, v{FA+2*k+1}')
    A(f'''
    v_bfe_u32 v2, v1, 3, 1
    v_mul_u32_u24 v2, 576, v2
    v_add_u32 v2, v2, v{FA+28}
    v_lshlrev_b32 v2, 12, v2
    v_lshrrev_b32 v{t+9}, 4, v1
    v_lshl_add_u32 v2, v{t+9}, 5, v2
    s_lshl_b32 s12, s5, 7
    s_add_u32 s12, s12, {HT_OFF}
    buffer_store_dwordx4 {vr(FA,4)}, v2, {WS}, s12 offen sc1
    buffer_store_dwordx4 {vr(FA+4,4)}, v2, {WS}, s12 offen offset:16 sc1
    s_cmp_lg_u32 s7, 7
    s_cbranch_scc1 FIX_DONE
    s_cmp_lg_u32 s77, 0
    s_cbranch_scc1 FIX_DONE
    s_mov_b32 s77, 1
    s_waitcnt vmcnt(2)
    ''')
    for k in range(29): A(f'v_mov_b32 v{FA+k}, v{FB+k}')
    A('s_branch FIX')
    A.lab('FIX_DONE')
    vm.add('ht', 2)

def k2_setup():
    A(f'''
    s_load_dwordx4 s[68:71], s[0:1], 40
    s_load_dwordx2 s[56:57], s[0:1], 96
    s_load_dwordx2 s[60:61], s[0:1], 120
    s_mul_i32 s14, s3, 30
    s_add_u32 s14, s14, s4
    s_mul_i32 s44, s14, 1366
    s_lshr_b32 s44, s44, 16
    s_mul_i32 s13, s44, 48
    s_sub_u32 s47, s14, s13
    s_mul_i32 s45, s47, 86
    s_lshr_b32 s45, s45, 8
    s_mul_i32 s13, s45, 3
    s_sub_u32 s46, s47, s13
    s_lshl_b32 s14, s45, 2
    s_lshr_b32 s13, s7, 1
    s_add_u32 s14, s14, s13
    s_mul_i32 s76, s14, 294912
    s_and_b32 s13, s7, 1
    s_lshl_b32 s13, s13, 11
    s_add_u32 s76, s76, s13
    s_add_u32 s76, s76, {HF_OFF}
    s_mul_i32 s83, s7, 3072
    s_add_u32 s83, s83, 16384
    s_mul_i32 s80, s46, 384
    s_lshr_b32 s14, s45, 1
    s_lshl_b32 s32, s14, 7
    s_add_u32 s32, s32, {FH_OFF}
    s_waitcnt lgkmcnt(0)
    s_mov_b32 s58, {4608*1152}
    s_mov_b32 s59, 0x20000
    s_add_u32 s60, s60, {E_OFF}
    s_addc_u32 s61, s61, 0
    s_mov_b32 s62, {E_BYTES}
    s_mov_b32 s63, 0x20000
    v_lshlrev_b32 v15, 2, v1
    v_and_b32 v15, 127, v15
    ''')
    for i in range(3):
        A(f'''
        s_mul_i32 s13, s7, 192
        s_add_u32 s13, s13, {64*i}
        v_add_u32 v12, s13, v1
        v_mul_u32_u24 v13, 2731, v12
        v_lshrrev_b32 v13, 16, v13
        v_mul_u32_u24 v14, 24, v13
        v_sub_u32 v14, v12, v14
        v_bfe_u32 v12, v13, 1, 1
        v_lshlrev_b32 v12, 2, v12
        v_xor_b32 v14, v14, v12
        v_mul_u32_u24 v13, 1152, v13
        v_lshl_add_u32 v{8+i}, v14, 4, v13
        ''')
    poll_issue(12, 15, 's32', 'pg0')
    A(f's_lshl_b32 s33, s6, 7\ns_add_u32 s33, s33, {FE_OFF}')
    poll_issue(13, 15, 's33', 'pfe')
for n_ in range(240): assert (n_*1366) >> 16 == n_//48
for n_ in range(48): assert (n_*86) >> 8 == n_//3
def k2_dma_ffn(n):
    slot = ((n + 1) % 4) * K2S
    if 5*n + 4 < 64:
        A(f'''
        s_add_u32 s14, s44, {5*n}
        s_lshr_b32 s13, s14, 5
        s_and_b32 s14, s14, 31
        s_lshr_b32 s12, s14, 2
        s_lshl_b32 s14, s14, 1
        s_add_u32 s14, s14, s12
        s_add_u32 s14, s14, s13
        ''')
    elif 5*n >= 64:
        A(f's_add_u32 s14, s44, {5*n-64}\ns_mul_i32 s14, s14, 9\ns_add_u32 s14, s14, 8')
    else:
        A(f'''
        s_add_u32 s14, s44, {5*n-32}
        s_lshr_b32 s12, s14, 2
        s_lshl_b32 s14, s14, 1
        s_add_u32 s14, s14, s12
        s_add_u32 s14, s14, 1
        s_cmp_eq_u32 s44, 4
        s_cselect_b32 s14, 8, s14
        ''')
    A(f's_lshl_b32 s13, s14, 12\ns_add_u32 s13, s13, s76\ns_mul_i32 s14, s14, {64*1152}\ns_add_u32 s14, s14, s80')
    for i in range(3): dma(8+i, 's[56:59]', 's14', f's_add_u32 m0, s83, {slot+1024*i}')
    dma(3, WS, 's13', f's_add_u32 m0, s82, {slot}', sc1=True)
    A(f'buffer_load_dwordx4 v3, {WS}, s13 offen offset:1024 sc1 lds')
    vm.add(f'k{n}', 5)
def k2_dma_ssm(n, m):
    slot = ((n + 1) % 4) * K2S
    A(f'''
    s_add_u32 s14, s28, {5*m}
    s_lshl_b32 s13, s14, 18
    s_add_u32 s13, s13, s29
    s_cmp_lt_u32 s14, 9
    s_cselect_b32 s64, s68, s70
    s_cselect_b32 s65, s69, s71
    s_cselect_b32 s12, 0, 9
    s_sub_u32 s14, s14, s12
    s_lshl_b32 s14, s14, 7
    s_add_u32 s14, s14, s30
    ''')
    for i in range(3):
        dma(101 + (i % 2), 's[64:67]', 's14', f's_add_u32 m0, s83, {slot+1024*i}')
        if i < 2: A(f's_add_u32 s14, s14, {8*1152}')
    dma(100, WS, 's13', f's_add_u32 m0, s82, {slot}', sc1=True)
    A(f's_add_u32 s13, s13, 16384')
    dma(100, WS, 's13', f's_add_u32 m0, s82, {slot+1024}', sc1=True)
    vm.add(f'k{n}', 5)
def k2_prefetch():
    poll_check(13, 15, 's33', 'pfe')
    poll_check(12, 15, 's32', 'pg0')
    for n in range(3): k2_dma_ffn(n)

def phase_k2():
    ACC2 = 48; AF = 16; BF = 24
    A(f'''
    s_and_b32 s14, s44, 3
    s_lshl_b32 s14, s14, 7
    v_xor_b32 v96, s14, v3
    s_and_b32 s13, s7, 3
    s_lshl_b32 s12, s13, 12
    v_add_u32 v96, s12, v96
    v_add_u32 v97, {2*K2S}, v96
    v_lshrrev_b32 v12, 5, v1
    v_lshlrev_b32 v13, 2, v12
    v_bfe_u32 v14, v1, 2, 2
    v_add_u32 v13, v13, v14
    v_mul_u32_u24 v13, 384, v13
    v_bfe_u32 v14, v1, 4, 1
    v_lshl_add_u32 v13, v14, 5, v13
    v_and_b32 v14, 3, v1
    v_lshl_add_u32 v13, v14, 3, v13
    v_add_u32 v13, 16384, v13
    v_bfe_u32 v14, v1, 3, 1
    s_lshr_b32 s12, s7, 2
    s_mul_i32 s12, s12, 3
    ''')
    for jj in range(3):
        A(f's_add_u32 s14, s12, {jj}\nv_xor_b32 v2, s14, v14\nv_lshl_add_u32 v{104+jj}, v2, 6, v13\nv_add_u32 v{107+jj}, {2*K2S}, v{104+jj}')
    A(f'''
    v_lshrrev_b32 v13, 4, v1
    v_lshlrev_b32 v14, 2, v13
    v_and_b32 v2, 15, v1
    v_xor_b32 v14, v14, v2
    v_lshlrev_b32 v14, 4, v14
    v_lshl_add_u32 v100, v13, 12, v14
    v_lshrrev_b32 v14, 3, v1
    v_mul_u32_u24 v14, 1152, v14
    v_and_b32 v2, 7, v1
    v_xor_b32 v2, v2, v13
    v_lshl_add_u32 v101, v2, 4, v14
    s_and_b32 s14, s7, 1
    s_lshl_b32 s14, s14, 6
    v_xor_b32 v101, s14, v101
    v_xor_b32 v102, 64, v101
    s_add_u32 s28, s44, 3
    s_cmp_ge_u32 s28, 5
    s_cselect_b32 s14, 5, 0
    s_sub_u32 s28, s28, s14
    s_lshl_b32 s29, s7, 15
    s_lshl_b32 s14, s45, 8
    s_add_u32 s29, s29, s14
    s_add_u32 s29, s29, {HT_OFF}
    s_mul_i32 s30, s46, 192
    s_mul_i32 s14, s7, 24
    s_add_u32 s30, s30, s14
    s_mul_i32 s30, s30, 1152
    s_mov_b32 s66, 663552
    s_mov_b32 s67, 0x20000
    s_mov_b32 s64, s68
    s_mov_b32 s65, s69
    v_lshlrev_b32 v13, 3, v12
    v_bfe_u32 v14, v1, 2, 2
    v_add_u32 v13, v13, v14
    v_lshlrev_b32 v13, 8, v13
    v_xor_b32 v14, s13, v14
    v_lshl_add_u32 v13, v14, 6, v13
    v_bfe_u32 v14, v1, 4, 1
    v_lshlrev_b32 v14, 5, v14
    v_and_b32 v2, 3, v1
    v_lshl_add_u32 v14, v2, 3, v14
    s_and_b32 s14, s44, 3
    s_lshl_b32 s14, s14, 4
    v_xor_b32 v14, s14, v14
    v_add_u32 v98, v13, v14
    v_add_u32 v99, {2*K2S}, v98
    v_and_b32 v13, 31, v1
    v_bfe_u32 v14, v1, 1, 3
    v_xor_b32 v14, v14, v12
    v_lshlrev_b32 v14, 4, v14
    v_lshl_add_u32 v13, v13, 7, v14
    s_lshl_b32 s14, s12, 12
    s_add_u32 s14, s14, 16384
    v_add_u32 v13, s14, v13
    ''')
    for sp in range(4):
        A(f'v_xor_b32 v{112+sp}, {32*sp}, v13\nv_add_u32 v{116+sp}, {2*K2S}, v{112+sp}')
    A(f'''
    s_lshl_b32 s14, s45, 2
    s_add_u32 s14, s14, s13
    s_lshl_b32 s14, s14, 2
    s_add_u32 s14, s14, s44
    s_mul_i32 s31, s14, {8*2304}
    s_mul_i32 s14, s46, 768
    s_add_u32 s31, s31, s14
    s_lshl_b32 s14, s12, 7
    s_add_u32 s31, s31, s14
    v_mul_u32_u24 v103, {4*2304}, v12
    v_and_b32 v2, 31, v1
    v_lshl_add_u32 v103, v2, 2, v103
    s_lshl_b32 s33, s45, 6
    s_add_u32 s33, s33, {FT_OFF}
    v_and_b32 v110, 63, v15
    s_add_u32 s78, s32, 1024
    s_add_u32 s79, s32, 2048
    ''')
    def body_ffn(n):
        slot = (n + 1) % 4
        hi = slot // 2; so = (slot % 2) * K2S
        ops = [(s, jj) for s in range(4) for jj in range(3)]
        lg = []
        def rd(i):
            s, jj = ops[i]
            if jj == 0:
                A(f'ds_read_b128 {vr(AF+4*(s%2),4)}, v{96+hi} offset:{so+1024*s}'); lg.append(i)
            r = BF + 4*(i % 6)
            off = so + s*16*384
            A(f'ds_read_b64_tr_b16 {vr(r,2)}, v{104+3*hi+jj} offset:{off}\nds_read_b64_tr_b16 {vr(r+2,2)}, v{104+3*hi+jj} offset:{off+8*384}')
            lg.extend([i, i])
        LK = 3
        for i in range(LK): rd(i)
        for i in range(12):
            s, jj = ops[i]
            if i + LK < 12: rd(i + LK)
            A(f's_waitcnt lgkmcnt({sum(1 for t in lg if t > i)})')
            a = ACC2 + 16*jj
            A(f'v_mfma_f32_32x32x16_bf16 {vr(a,16)}, {vr(AF+4*(s%2),4)}, {vr(BF+4*(i%6),4)}, {"0" if (n == 0 and s == 0) else vr(a,16)}')
    def body_ssm(n):
        slot = (n + 1) % 4
        hi = slot // 2; so = (slot % 2) * K2S
        ops = [(s, jj) for s in range(4) for jj in range(3)]
        lg = []
        def rd(i):
            s, jj = ops[i]
            if jj == 0:
                r = AF + 4*(s % 2)
                A(f'ds_read_b64_tr_b16 {vr(r,2)}, v{98+hi} offset:{so+4096*s}\nds_read_b64_tr_b16 {vr(r+2,2)}, v{98+hi} offset:{so+4096*s+1024}')
                lg.extend([i, i])
            A(f'ds_read_b128 {vr(BF+4*(i%6),4)}, v{112+4*hi+s} offset:{so+4096*jj}'); lg.append(i)
        LK = 3
        for i in range(LK): rd(i)
        for i in range(12):
            s, jj = ops[i]
            if i + LK < 12: rd(i + LK)
            A(f's_waitcnt lgkmcnt({sum(1 for t in lg if t > i)})')
            a = ACC2 + 16*jj
            A(f'v_mfma_f32_32x32x16_bf16 {vr(a,16)}, {vr(AF+4*(s%2),4)}, {vr(BF+4*(i%6),4)}, {vr(a,16)}')
    def either(f_lt2, f_ge2):
        l1 = newlab('QGE'); l2 = newlab('QJ')
        A(f's_cmp_ge_u32 s44, 2\ns_cbranch_scc1 {l1}')
        q0 = list(vm.q); f_lt2(); q1 = list(vm.q)
        A(f's_branch {l2}'); A.lab(l1)
        vm.q = q0; f_ge2(); assert vm.q == q1
        A.lab(l2)
    def late_flags():
        A(f's_add_u32 s14, s34, 2048'); flag_store(1, 's14', 2)
        A(f's_lshl_b32 s14, s11, 2\ns_add_u32 s14, s14, {FT_OFF}'); flag_store(2, 's14', 2)
    vm.wait('h7', 'k0')
    A('s_barrier')
    A(f's_add_u32 s14, s34, 1024'); flag_store(0, 's14', 2)
    A('s_cmp_lt_u32 s4, 30\ns_cbranch_scc1 K2_GO\ns_waitcnt vmcnt(0)\ns_barrier')
    late_flags()
    A('s_branch K_FIN')
    A.lab('K2_GO')
    S()
    for n in range(18):
        if n > 0:
            vm.wait(f'k{n}')
            if n == 2: vm.wait('h8', 'ht')
            A('s_barrier')
            if n == 2: late_flags()
        nn = n + 3
        if nn == 6: poll_check(12, 15, 's78', 'pg1')
        if nn == 12: poll_check(12, 15, 's79', 'pg2')
        if nn == 14: poll_check(13, 110, 's33', 'pft')
        if nn <= 13: k2_dma_ffn(nn)
        elif nn == 14: either(lambda: k2_dma_ffn(14), lambda: k2_dma_ssm(14, 3))
        elif nn <= 17: k2_dma_ssm(nn, nn - 15)
        if n == 1: poll_issue(12, 15, 's78', 'pg1')
        if n == 7: poll_issue(12, 15, 's79', 'pg2')
        if n == 9: poll_issue(13, 110, 's33', 'pft')
        if n == 15:
            for e in range(4):
                A(f's_add_u32 s14, s31, {e*2304}')
                for jj in range(3): A(f'buffer_load_dword v{120+4*jj+e}, v103, {OUT}, s14 offen offset:{128*jj} sc1')
            vm.add('base', 12)
        if n <= 13: body_ffn(n)
        elif n == 14: either(lambda: body_ffn(14), lambda: body_ssm(14))
        else: body_ssm(n)
        if n == 8: S()
    S()
    A(f'''
    s_mul_i32 s35, s47, {16*12288}
    s_mul_i32 s14, s7, 1536
    s_add_u32 s35, s35, s14
    s_add_u32 s35, s35, {PART_OFF}
    v_lshlrev_b32 v2, 3, v1
    s_and_b32 s12, s44, 3
    s_cmp_eq_u32 s44, 4
    s_cselect_b32 s41, 0, 12288
    s_nop 3
    ''')
    def pub(ap):
        r = 136 + 8*ap
        for jj in range(3):
            a = ACC2 + 16*jj + 4*ap
            A(f'v_cvt_pk_bf16_f32 v{r+2*jj}, v{a}, v{a+1}\nv_cvt_pk_bf16_f32 v{r+2*jj+1}, v{a+2}, v{a+3}')
        A(f's_xor_b32 s14, s12, {ap}\ns_mul_i32 s14, s14, {4*12288}\ns_add_u32 s14, s14, s35\ns_mul_i32 s13, s41, {ap}\ns_add_u32 s14, s14, s13')
        A(f'buffer_store_dwordx4 {vr(r,4)}, v3, {WS}, s14 offen sc1\nbuffer_store_dwordx2 {vr(r+4,2)}, v2, {WS}, s14 offen offset:1024 sc1')
    for ap in (1, 2, 3): pub(ap)
    A('s_cmp_lg_u32 s44, 4\ns_cbranch_scc1 NOPUB0')
    pub(0)
    A.lab('NOPUB0')
    A(f'''
    s_lshl_b32 s33, s47, 7
    s_add_u32 s33, s33, {FP_OFF}
    s_lshl_b32 s14, s44, 2
    s_add_u32 s14, s14, s33
    v_min_u32 v110, 4, v1
    v_lshlrev_b32 v110, 2, v110
    s_waitcnt vmcnt(0)
    s_barrier
    ''')
    vm.q = []
    flag_store(0, 's14', 12)
    S()
    A('s_cmp_eq_u32 s44, 4\ns_cbranch_scc1 K_FIN')
    poll_issue(13, 110, 's33', 'pp'); poll_check(13, 110, 's33', 'pp')
    S()
    A(f's_mul_i32 s14, s44, {4*12288}\ns_add_u32 s14, s14, s35')
    for sl in range(4):
        r = 136 + 8*sl
        A(f'buffer_load_dwordx4 {vr(r,4)}, v3, {WS}, s14 offen sc1\nbuffer_load_dwordx2 {vr(r+4,2)}, v2, {WS}, s14 offen offset:1024 sc1')
        if sl < 3: A('s_add_u32 s14, s14, 12288')
    A('s_mov_b32 s13, 0xffff0000')
    for jj in range(3):
        for e in range(4): A(f'v_add_f32 v{ACC2+16*jj+e}, v{ACC2+16*jj+e}, v{120+4*jj+e}')
    for sl in range(4):
        A(f's_waitcnt vmcnt({2*(3-sl)})')
        r = 136 + 8*sl
        for jj in range(3):
            for h in range(2):
                a = ACC2 + 16*jj + 2*h; p = r + 2*jj + h
                A(f'v_lshlrev_b32 v12, 16, v{p}\nv_and_b32 v13, s13, v{p}\nv_pk_add_f32 {vr(a,2)}, {vr(a,2)}, v[12:13]')
    for e in range(4):
        A(f's_add_u32 s14, s31, {e*2304}')
        for jj in range(3): A(f'buffer_store_dword v{ACC2+16*jj+e}, v103, {OUT}, s14 offen offset:{128*jj}')
    A.lab('K_FIN')
    if STAMP:
        A('s_waitcnt vmcnt(0)'); nstamp[0] = 14; S(); S(True); Sflush()

def main(path):
    hdr = open('parallel_sum__ssm_conv_s5__geglu_ffn__prompt.s.ref').read().split('; Override launch')[0]
    A.raw(hdr.rstrip())
    A.raw('; @launch grid=(256,1,1) block=(512,1,1) lds=163840')
    A.raw('.amdgcn_target "amdgcn-amd-amdhsa--gfx950"\n.text')
    A.raw(f'.globl {NAME}\n.p2align 8\n.type {NAME},@function\n{NAME}:')
    if STAMP:
        for i in range(16): A(f's_mov_b32 s{86+i}, 0')
    prologue(); phase_a(); phase_k1(); fixup(); phase_k2()
    A.lab('K_END')
    A('s_endpgm')
    for c in cold: A.raw(c)
    A.raw(f'''.section .rodata,"a"
.p2align 6
.amdhsa_kernel {NAME}
  .amdhsa_next_free_vgpr 256
  .amdhsa_next_free_sgpr 102
  .amdhsa_accum_offset 256
  .amdhsa_group_segment_fixed_size 0
  .amdhsa_kernarg_size 128
  .amdhsa_user_sgpr_count 2
  .amdhsa_user_sgpr_kernarg_segment_ptr 1
  .amdhsa_system_sgpr_workgroup_id_x 1
  .amdhsa_float_denorm_mode_32 3
.end_amdhsa_kernel''')
    open(path, 'w').write('\n'.join(A.L) + '\n')

if __name__ == '__main__':
    main(sys.argv[1] if len(sys.argv) > 1 else 'k2.s')
```

```python
import sys, struct, os
from layout import *
from gen_v1 import f32, LOG2E, INV2PI, Asm, vr, sr, srd, srd_off, lam_consts, csq, cmul, DPP8, mapply

STAMP = int(os.environ.get('STAMP', '0'))
LSC = ' sc1' if int(os.environ.get('LSC', '0')) else ''
ZOOM = os.environ.get('ZOOM', '')
A = Asm()
NAME = 'parallel_sum__ssm_conv_s5__geglu_ffn__prompt_kernel'

class VM:
    def __init__(self): self.q = []; self.ever = set()
    def add(self, tag, n=1): self.q += [tag]*n; self.ever.add(tag)
    def wait(self, *tags):
        for t in tags: assert t in self.ever, t
        idx = [i for i, t in enumerate(self.q) if t in tags]
        if not idx: return
        last = max(idx); n = len(self.q) - 1 - last
        if n <= 63: A(f's_waitcnt vmcnt({n})')
        self.q = self.q[last+1:]
    def count_after(self, tag):
        idx = [i for i, t in enumerate(self.q) if t == tag]
        return len(self.q) - 1 - max(idx)
vm = VM()
nstamp = [0]
def S(real=False, z='', force=False):
    if not STAMP: return
    if not (real or force) and z != ZOOM: return
    A(f'{"s_memrealtime" if real else "s_memtime"} s[84:85]\ns_waitcnt lgkmcnt(0)\ns_mov_b32 s{86+nstamp[0]}, s84')
    nstamp[0] += 1
    assert nstamp[0] <= 16
def Sflush():
    if not STAMP: return
    A(f's_mov_b64 exec, -1\ns_lshl_b32 s84, s2, 3\ns_add_u32 s84, s84, s7\ns_lshl_b32 s84, s84, 6\ns_add_u32 s84, s84, {STAMP_OFF}\nv_mov_b32 v1, 0')
    for i in range(16):
        A(f'v_mov_b32 v2, s{86+i}\nbuffer_store_dword v2, v1, s[48:51], s84 offen offset:{4*i}')
uid = [0]
def newlab(p):
    uid[0] += 1; return f'{p}_{uid[0]}'

WS = 's[48:51]'; OUT = 's[52:55]'; DBG = 's[72:75]'
TAG = 's15'
cold = []
def poll_issue(vdst, vaddr, soff, tag):
    A(f'buffer_load_dword v{vdst}, v{vaddr}, {WS}, {soff} offen sc1'); vm.add(tag)
def poll_check(vdst, vaddr, soff, tag):
    vm.wait(tag)
    slow = newlab('SLOW'); back = newlab('BACK')
    A(f'v_cmp_ne_u32 vcc, {TAG}, v{vdst}\ns_cbranch_vccnz {slow}')
    A.lab(back)
    cold.append(f'''{slow}:
    s_sub_u32 s23, s23, 1
    s_cbranch_scc1 {back}
    s_sleep 1
    buffer_load_dword v{vdst}, v{vaddr}, {WS}, {soff} offen sc1
    s_waitcnt vmcnt(0)
    v_cmp_ne_u32 vcc, {TAG}, v{vdst}
    s_cbranch_vccnz {slow}
    s_branch {back}''')
def flag_store(wave, soff, vtmp, vzero_needed=True):
    sk = newlab('NOFLAG')
    A(f'''
    s_cmp_lg_u32 s7, {wave}
    s_cbranch_scc1 {sk}
    v_mov_b32 v{vtmp}, {TAG}
    s_mov_b64 exec, 1
    buffer_store_dword v{vtmp}, off, {WS}, {soff} sc1
    s_mov_b64 exec, -1
    ''')
    A.lab(sk)
def dma(voff, srdn, soff, m0expr, imm=0, sc1=False):
    A(f'{m0expr}\ns_nop 0\nbuffer_load_dwordx4 v{voff}, {srdn}, {soff} offen{" offset:%d" % imm if imm else ""}{" sc1" if sc1 else ""} lds')

UREG = 73856
A2_B = [16384, 90240, 34816, 108672]
A2_X = [53248, 127104, 61440, 135296]
TB = 143488
EX_T = 147584
EX_B = EX_T + 8192
EX_S = EX_B + 2048
EX_R = 69632
G2U = 18560
K2S = 40960

def prologue():
    A(f'''
    s_cmp_ge_u32 s2, 256
    s_cbranch_scc1 K_END
    s_load_dwordx16 s[16:31], s[0:1], 0
    s_load_dwordx2 s[32:33], s[0:1], 64
    s_load_dwordx8 s[36:43], s[0:1], 80
    s_load_dwordx4 s[44:47], s[0:1], 112
    v_and_b32 v1, 63, v0
    v_lshrrev_b32 v2, 6, v0
    s_and_b32 s3, s2, 7
    s_lshr_b32 s4, s2, 3
    v_readfirstlane_b32 s7, v2
    s_lshr_b32 s5, s4, 3
    s_lshl_b32 s8, s3, 2
    s_add_u32 s5, s5, s8
    s_and_b32 s6, s4, 7
    s_lshr_b32 s8, s3, 2
    s_lshl_b32 s8, s8, 2
    s_lshr_b32 s9, s4, 3
    s_add_u32 s8, s8, s9
    s_and_b32 s9, s3, 3
    s_lshl_b32 s9, s9, 3
    s_add_u32 s9, s9, s6
    s_lshl_b32 s10, s8, 3
    s_add_u32 s10, s10, s7
    v_lshlrev_b32 v3, 4, v1
    v_lshrrev_b32 v4, 3, v1
    v_and_b32 v5, 7, v1
    v_add_u32 v6, 1024, v3
    v_cmp_gt_u32 vcc, 8, v1
    v_mov_b32 v7, 0x3ffffff0
    s_lshl_b32 s11, s5, 3
    s_add_u32 s11, s11, s6
    v_cndmask_b32 v6, v7, v6, vcc
    s_lshl_b32 s12, s11, 3
    s_add_u32 s12, s12, s7
    s_mul_i32 s13, s12, 1152
    s_waitcnt lgkmcnt(0)
    ''')
    S(True); S(force=True)
    srd(A, 56, 16, 2359296)
    srd(A, 72, 44, 256)
    srd(A, 48, 46, 0x10000000)
    srd(A, 76, 32, 1152)
    A(f'''
    s_or_b32 s14, s2, s7
    s_cmp_lg_u32 s14, 0
    s_cbranch_scc1 NOTAG
    s_memrealtime s[84:85]
    s_waitcnt lgkmcnt(0)
    s_mul_i32 s14, s84, 0x9E3779B1
    s_or_b32 s14, s14, 1
    v_mov_b32 v8, s14
    s_mov_b64 exec, 1
    buffer_store_dword v8, off, {DBG}, 0 sc1
    s_mov_b64 exec, -1
    ''')
    A.lab('NOTAG')
    A(f'''
    buffer_load_dwordx4 v[16:19], v3, s[56:59], s13 offen
    buffer_load_dwordx4 v[20:23], v6, s[56:59], s13 offen
    buffer_load_dwordx4 v[24:27], v3, s[76:79], 0 offen
    buffer_load_dwordx4 v[28:31], v6, s[76:79], 0 offen
    ''')
    vm.add('xr', 2); vm.add('dr', 2)
    srd(A, 52, 42, 4718592)
    srd(A, 60, 22, 663552)
    srd(A, 64, 24, 663552)
    A('''
    s_cmp_eq_u32 s7, 0
    s_cselect_b32 s68, s22, s24
    s_cselect_b32 s69, s23, s25
    s_mov_b32 s70, 663552
    s_mov_b32 s71, 0x20000
    s_mov_b32 s23, 100000
    ''')

def get_tag():
    vm.wait('tag')
    slow = newlab('TAGSLOW'); back = newlab('TAGBACK')
    A(f'v_readfirstlane_b32 {TAG}, v15\ns_cmp_eq_u32 {TAG}, 0\ns_cbranch_scc1 {slow}')
    A.lab(back)
    cold.append(f'''{slow}:
    s_sub_u32 s23, s23, 1
    s_cbranch_scc1 {back}
    s_sleep 1
    buffer_load_dword v15, off, {DBG}, 0 sc1
    s_waitcnt vmcnt(0)
    v_readfirstlane_b32 {TAG}, v15
    s_cmp_eq_u32 {TAG}, 0
    s_cbranch_scc1 {slow}
    s_branch {back}''')

def phase_a():
    A(f'''
    v_mul_u32_u24 v8, 1152, v4
    v_bfe_u32 v9, v4, 1, 1
    s_and_b32 s14, s7, 6
    v_xor_b32 v9, s14, v9
    v_xor_b32 v9, v9, v5
    v_lshl_add_u32 v9, v9, 4, v8
    v_lshrrev_b32 v10, 1, v4
    v_xor_b32 v10, v10, v5
    v_lshl_add_u32 v10, v10, 4, v8
    v_xor_b32 v11, 64, v10
    s_lshl_b32 s14, s7, 6
    s_and_b32 s14, s14, 64
    v_xor_b32 v12, s14, v10
    s_lshl_b32 s14, s5, 3
    s_add_u32 s14, s14, s7
    s_mul_i32 s34, s14, {8*1152}
    s_mul_i32 s14, s6, 9
    s_add_u32 s35, s14, s7
    s_mul_i32 s35, s35, {8*1152}
    s_add_u32 s80, s14, 8
    s_mul_i32 s80, s80, {8*1152}
    s_lshl_b32 s81, s7, 10
    s_lshl_b32 s82, s7, 11
    ''')
    def a2_dma(n):
        r = (n + 3) % 4
        sk = newlab('A2X')
        A(f's_cmp_ge_u32 s7, 2\ns_cbranch_scc1 {sk}\ns_add_u32 s14, s80, {128*n}')
        dma(12, 's[68:71]', 's14', f's_add_u32 m0, s81, {A2_B[r]+16384}')
        A.lab(sk)
        A(f's_add_u32 s14, s34, {128*n}')
        dma(9, 's[56:59]', 's14', f's_add_u32 m0, s81, {A2_X[r]}')
        A(f's_add_u32 s14, s35, {128*n}')
        dma(10, 's[60:63]', 's14', f's_add_u32 m0, s82, {A2_B[r]}')
        dma(11, 's[64:67]', 's14', f's_add_u32 m0, s82, {A2_B[r]+1024}')
        vm.add(f'a{n}', 3)
    a2_dma(0)
    A(f'''
    s_mul_i32 s14, s6, 72
    v_add_u32 v102, s14, v5
    s_lshl_b32 s14, s7, 3
    v_add_u32 v103, 64, v102
    v_add_u32 v102, s14, v102
    v_lshlrev_b32 v13, 1, v102
    v_lshlrev_b32 v14, 1, v103
    global_load_ushort v96, v13, s[18:19]
    global_load_ushort v97, v13, s[20:21]
    global_load_ushort v98, v13, s[30:31]
    global_load_ushort v99, v14, s[18:19]
    global_load_ushort v100, v14, s[20:21]
    global_load_ushort v101, v14, s[30:31]
    ''')
    vm.add('par', 6)
    a2_dma(1); a2_dma(2)
    k1_setup()
    A(f'buffer_load_dword v15, off, {DBG}, 0 sc1'); vm.add('tag')
    k1_dma(0, 0); k1_dma(0, 1)
    A('s_mov_b32 s14, 0x3f803f80')
    S(z='a2'); vm.wait('xr'); S(z='a2')
    for q in range(8):
        c0 = '0' if q == 0 else 'v32'; c1 = '0' if q == 0 else 'v33'
        A(f'v_dot2_f32_bf16 v32, v{16+q}, s14, {c0}\nv_dot2_f32_bf16 v33, v{16+q}, v{16+q}, {c1}')
    A('s_nop 2')
    for pat in ('quad_perm:[1,0,3,2] row_mask:0xf', 'quad_perm:[2,3,0,1] row_mask:0xf', 'row_half_mirror row_mask:0xf', 'row_mirror row_mask:0xf',
                'row_bcast:15 row_mask:0xa', 'row_bcast:31 row_mask:0xc'):
        A(f'v_add_f32_dpp v32, v32, v32 {pat} bank_mask:0xf\nv_add_f32_dpp v33, v33, v33 {pat} bank_mask:0xf\ns_nop 0')
    inv = f32(1.0/576.0)
    A(f'''
    v_readlane_b32 s14, v32, 63
    v_readlane_b32 s83, v33, 63
    s_nop 1
    v_mov_b32 v32, s14
    v_mov_b32 v33, s83
    ''')
    ln_stats(32, 34)
    A('s_mov_b32 s83, 0xffff0000')
    for h in range(2):
        T0 = 36
        for q in range(4):
            x = 16+4*h+q; a = T0+2*q
            A(f'v_lshlrev_b32 v{a}, 16, v{x}\nv_and_b32 v{a+1}, s83, v{x}')
        for q in range(4):
            a = T0+2*q; A(f'v_pk_add_f32 {vr(a,2)}, {vr(a,2)}, v[32:33] op_sel_hi:[1,0] neg_lo:[0,1] neg_hi:[0,1]')
        for q in range(4):
            a = T0+2*q; A(f'v_cvt_pk_bf16_f32 v{a+1}, v{a}, v{a+1}')
        for q in range(4):
            a = T0+2*q; A(f'v_lshlrev_b32 v{a}, 16, v{a+1}\nv_and_b32 v{a+1}, s83, v{a+1}')
        for q in range(4):
            a = T0+2*q; A(f'v_pk_mul_f32 {vr(a,2)}, {vr(a,2)}, v[32:33] op_sel:[0,1] op_sel_hi:[1,1]')
        for q in range(4):
            a = T0+2*q; A(f'v_cvt_pk_bf16_f32 v{44+4*h+q}, v{a}, v{a+1}')
    A(f'''
    s_lshl_b32 s14, s7, 4
    s_add_u32 s14, s14, {TB}
    v_lshl_add_u32 v13, v1, 7, s14
    ds_write_b128 v13, v[44:47]
    s_mov_b64 exec, 0xff
    ds_write_b128 v13, v[48:51] offset:8192
    s_mov_b64 exec, -1
    s_waitcnt lgkmcnt(0)
    s_barrier
    ''')
    S()
    A(f'''
    s_cmp_lg_u32 s7, 6
    s_cbranch_scc1 NOXN
    v_add_u32 v13, {TB}, v3
    ''')
    for b in range(9): A(f'ds_read_b128 {vr(112+4*b,4)}, v13 offset:{1024*b}')
    A(f'''
    s_lshr_b32 s14, s11, 2
    s_mul_i32 s14, s14, 36864
    s_and_b32 s83, s6, 3
    s_lshl_b32 s83, s83, 7
    s_add_u32 s14, s14, s83
    v_lshlrev_b32 v13, 9, v4
    v_lshl_add_u32 v13, v5, 4, v13
    ''')
    for b in range(9):
        A(f's_waitcnt lgkmcnt({8-b})\nbuffer_store_dwordx4 {vr(112+4*b,4)}, v13, {WS}, s14 offen sc1\ns_add_u32 s14, s14, 4096')
    A('s_mov_b32 s83, 0xffff0000')
    A.lab('NOXN')
    vm.wait('dr')
    A('s_lshl_b32 s13, s13, 1\nv_lshlrev_b32 v13, 1, v3\nv_lshlrev_b32 v14, 1, v6')
    for h in range(2):
        T0 = 52 + 8*h
        for q in range(4):
            a = T0+2*q
            A(f'''
            v_lshlrev_b32 v{a}, 16, v{44+4*h+q}
            v_and_b32 v{a+1}, s83, v{44+4*h+q}
            v_lshlrev_b32 v34, 16, v{24+4*h+q}
            v_and_b32 v35, s83, v{24+4*h+q}
            v_pk_mul_f32 {vr(a,2)}, {vr(a,2)}, v[34:35]
            v_cvt_pk_bf16_f32 v{a+1}, v{a}, v{a+1}
            v_lshlrev_b32 v{a}, 16, v{a+1}
            v_and_b32 v{a+1}, s83, v{a+1}
            v_lshlrev_b32 v34, 16, v{16+4*h+q}
            v_and_b32 v35, s83, v{16+4*h+q}
            v_pk_add_f32 {vr(a,2)}, {vr(a,2)}, v[34:35]
            ''')
        A(f'buffer_store_dwordx4 {vr(T0,4)}, v{13+h}, {OUT}, s13 offen sc1\nbuffer_store_dwordx4 {vr(T0+4,4)}, v{13+h}, {OUT}, s13 offen offset:16 sc1')
        vm.add('bs', 2)
    vm.wait('par')
    unit_consts(96)
    A(f'''
    v_and_b32 v13, 15, v1
    v_lshrrev_b32 v14, 4, v1
    v_bfe_u32 v2, v1, 1, 3
    v_xor_b32 v2, v2, v14
    v_lshlrev_b32 v2, 4, v2
    v_lshl_add_u32 v6, v13, 7, v2
    v_bfe_u32 v14, v1, 2, 2
    v_lshlrev_b32 v14, 11, v14
    v_and_b32 v13, 3, v1
    v_lshl_add_u32 v14, v13, 7, v14
    v_add_u32 v7, v14, v2
    s_lshr_b32 s14, s7, 2
    s_lshl_b32 s14, s14, 6
    v_xor_b32 v8, s14, v6
    v_xor_b32 v2, s14, v7
    s_and_b32 s14, s7, 3
    s_lshl_b32 s14, s14, 9
    v_add_u32 v2, s14, v2
    v_add_u32 v6, s82, v6
    v_mov_b32 v104, 0x3f803f80
    v_mov_b32 v105, 0x3f803f80
    v_mov_b32 v106, 0x3f803f80
    v_mov_b32 v107, 0x3f803f80
    s_mov_b32 s83, 0x3f803f80
    ''')
    A(f'v_lshlrev_b32 v95, 2, v1\nv_and_b32 v95, 127, v95')
    for n in range(9):
        r = (n + 3) % 4
        vm.wait(f'a{n}')
        if n == 2: get_tag()
        A('s_barrier')
        S(z='a2')
        if n + 3 <= 8: a2_dma(n + 3)
        if n == 7: k1_dma(0, 2); k1_dma(0, 3)
        if n == 2:
            sk = newlab('NOFX')
            A(f's_cmp_lg_u32 s7, 6\ns_cbranch_scc1 {sk}\ns_waitcnt vmcnt({vm.count_after("bs") + 4})\ns_lshl_b32 s14, s11, 2\ns_add_u32 s14, s14, {FX_OFF}')
            A(f'v_mov_b32 v13, {TAG}\ns_mov_b64 exec, 1\nbuffer_store_dword v13, off, {WS}, s14 sc1\ns_mov_b64 exec, -1')
            A.lab(sk)
        if n == 7:
            A(f's_lshl_b32 s76, s8, 7\ns_add_u32 s76, s76, {FX_OFF}')
            poll_issue(94, 95, 's76', 'pfx')
        A(f'''
        v_add_u32 v13, {A2_X[r]}, v7
        v_add_u32 v14, {A2_B[r]}, v6
        v_add_u32 v108, {A2_X[r]}, v2
        v_add_u32 v109, {A2_B[r]+16384}, v8
        v_xor_b32 v110, 64, v13
        v_xor_b32 v111, 64, v14
        ''')
        A('ds_read_b128 v[48:51], v14')
        for t in range(4): A(f'ds_read_b128 {vr(16+4*t,4)}, v13 offset:{512*t}')
        A('ds_read_b128 v[52:55], v111')
        for t in range(4): A(f'ds_read_b128 {vr(32+4*t,4)}, v110 offset:{512*t}')
        A('ds_read_b128 v[56:59], v108\nds_read_b128 v[60:63], v109')
        z = (n == 0)
        def c(rg): return '0' if z else vr(rg, 4)
        A(f's_waitcnt lgkmcnt(11)\nv_mfma_f32_16x16x32_bf16 v[80:83], v[104:107], v[48:51], {c(80)}')
        for t in range(4):
            A(f's_waitcnt lgkmcnt({10-t})\nv_mfma_f32_16x16x32_bf16 {vr(64+4*t,4)}, {vr(16+4*t,4)}, v[48:51], {c(64+4*t)}')
        A(f's_waitcnt lgkmcnt(6)\nv_mfma_f32_16x16x32_bf16 v[80:83], v[104:107], v[52:55], v[80:83]')
        for t in range(4):
            A(f's_waitcnt lgkmcnt({5-t})\nv_mfma_f32_16x16x32_bf16 {vr(64+4*t,4)}, {vr(32+4*t,4)}, v[52:55], {vr(64+4*t,4)}')
        A(f's_waitcnt lgkmcnt(0)\nv_mfma_f32_16x16x32_bf16 v[84:87], v[56:59], v[60:63], {c(84)}')
        A(f'v_mfma_f32_16x16x32_bf16 v[88:91], v[104:107], v[60:63], {c(88)}')
        for q in range(4):
            c0 = '0' if (z and q == 0) else 'v92'; c1 = '0' if (z and q == 0) else 'v93'
            A(f'v_dot2_f32_bf16 v92, v{56+q}, s83, {c0}\nv_dot2_f32_bf16 v93, v{56+q}, v{56+q}, {c1}')
    S()
    S(z='a2')
    A(f'''
    v_bfe_u32 v13, v1, 2, 2
    v_lshlrev_b32 v13, 10, v13
    v_and_b32 v14, 3, v1
    v_lshl_add_u32 v13, v14, 6, v13
    v_lshrrev_b32 v14, 4, v1
    v_lshl_add_u32 v13, v14, 3, v13
    s_and_b32 s14, s7, 3
    s_lshl_b32 s14, s14, 8
    s_lshr_b32 s77, s7, 2
    s_lshl_b32 s77, s77, 5
    s_add_u32 s14, s14, s77
    s_add_u32 s14, s14, {EX_S}
    v_add_u32 v13, s14, v13
    s_add_u32 s14, s81, {EX_T}
    v_add_u32 v14, s14, v3
    s_lshl_b32 s14, s7, 8
    s_add_u32 s14, s14, {EX_B}
    v_lshl_add_u32 v108, v1, 2, s14
    ds_write_b64 v13, v[92:93]
    ds_write_b128 v14, v[84:87]
    ds_write_b32 v108, v88
    v_lshlrev_b32 v13, 6, v1
    v_add_u32 v13, {EX_S}, v13
    s_waitcnt lgkmcnt(0)
    s_barrier
    ''')
    for k in range(4): A(f'ds_read_b128 {vr(16+4*k,4)}, v13 offset:{16*k}')
    S(z='a3')
    poll_check(94, 95, 's76', 'pfx')
    S(z='a3')
    for ks in range(0, 8): k1_xload(ks)
    k1_dma(0, 4)
    for ks in range(8, 12): k1_xload(ks)
    k1_dma(0, 5); k1_dma(0, 6)
    S(z='a3')
    A('s_waitcnt lgkmcnt(0)')
    for k in range(1, 8): A(f'v_pk_add_f32 v[16:17], v[16:17], {vr(16+2*k,2)}')
    ln_stats(16, 18)
    A(f'''
    v_mul_f32 v16, -v16, v17
    s_lshl_b32 s14, s7, 9
    s_add_u32 s14, s14, {EX_R}
    v_lshl_add_u32 v13, v1, 3, s14
    ds_write_b64 v13, v[16:17]
    v_lshrrev_b32 v14, 4, v1
    v_lshl_add_u32 v13, v14, 7, s14
    s_waitcnt lgkmcnt(0)
    ''')
    for k in range(8): A(f'ds_read_b128 {vr(16+4*k,4)}, v13 offset:{16*k}')
    A(f'''
    v_and_b32 v108, 15, v1
    v_lshlrev_b32 v108, 2, v108
    v_add_u32 v109, 64, v108
    v_add_u32 v110, 128, v108
    v_add_u32 v111, 192, v108
    s_mul_i32 s12, s11, 9
    s_add_u32 s12, s12, s7
    s_mov_b32 s77, 0
    s_waitcnt lgkmcnt(0)
    ''')
    S(z='a3')
    A.lab('UNIT_FIN')
    LR, SLI, A1, A2c, L16R, SL16I = CONSTS
    U = 64; Hh = 48
    for k in range(16): A(f'v_mul_f32 v{U+k}, v{17+2*k}, v{U+k}')
    for k in range(16): A(f'v_fmac_f32 v{U+k}, v{16+2*k}, v80')
    for k in range(16): A(f'v_mul_f32 v{Hh+k}, v{A1}, v{U+k}')
    for k in range(16): A(f'v_fmac_f32_dpp v{Hh+k}, v{U+k}, v{A2c} {DPP8}')
    for k in range(1, 16):
        A(f'v_fmac_f32 v{Hh+k}, v{LR}, v{Hh+k-1}\ns_nop 0\nv_fmac_f32_dpp v{Hh+k}, v{Hh+k-1}, v{SLI} {DPP8}')
    E0 = 84
    for g in range(4): A(f'ds_bpermute_b32 v{E0+g}, v{108+g}, v{Hh+15}')
    A(f's_mul_i32 s13, s12, {H0_UNIT}\ns_add_u32 s13, s13, {H0_OFF}')
    for k in range(4): A(f'buffer_store_dwordx4 {vr(Hh+4*k,4)}, v3, {WS}, s13 offen offset:{1024*k}')
    A('s_waitcnt lgkmcnt(0)')
    T2, T3, EE = 88, 89, 90
    mapply(A, T2, E0, L16R, SL16I, E0+1)
    mapply(A, T3, T2, L16R, SL16I, E0+2)
    mapply(A, EE, T3, L16R, SL16I, E0+3)
    A(f'''
    v_lshrrev_b32 v13, 4, v1
    v_mov_b32 v14, 0
    v_cmp_eq_u32 vcc, 1, v13
    s_nop 1
    v_cndmask_b32 v14, v14, v{E0}, vcc
    v_cmp_eq_u32 vcc, 2, v13
    s_nop 1
    v_cndmask_b32 v14, v14, v{T2}, vcc
    v_cmp_eq_u32 vcc, 3, v13
    s_nop 1
    v_cndmask_b32 v14, v14, v{T3}, vcc
    v_lshlrev_b32 v13, 2, v1
    s_add_u32 s13, s13, 4096
    buffer_store_dword v14, v13, {WS}, s13 offen
    s_lshl_b32 s13, s12, 6
    s_add_u32 s13, s13, {E_OFF}
    buffer_store_dword v{EE}, v108, {WS}, s13 offen sc1
    s_cmp_lg_u32 s7, 7
    s_cbranch_scc1 UNIT_DONE
    s_cmp_lg_u32 s77, 0
    s_cbranch_scc1 UNIT_DONE
    s_mov_b32 s77, 1
    s_add_u32 s12, s12, 1
    v_add_u32 v13, {EX_T}, v3
    v_lshlrev_b32 v14, 2, v1
    v_add_u32 v14, {EX_B}, v14
    ''')
    for t in range(4):
        A(f'ds_read_b128 {vr(U+4*t,4)}, v13 offset:{1024*t}\nds_read_b128 {vr(Hh+4*t,4)}, v13 offset:{1024*(t+4)}')
    A('ds_read_b32 v80, v14\nds_read_b32 v81, v14 offset:1024')
    unit_consts(99)
    A('s_waitcnt lgkmcnt(0)')
    for k in range(16): A(f'v_add_f32 v{U+k}, v{U+k}, v{Hh+k}')
    A('v_add_f32 v80, v80, v81\ns_branch UNIT_FIN')
    A.lab('UNIT_DONE')
    vm.add('h0', 5); vm.add('est', 1)
    S(z='a3')
    S()

CONSTS = (96, 97, 98, 102, 103, 15)
def ln_stats(r, t):
    inv = f32(1.0/576.0)
    A(f'''
    v_mul_f32 v{r}, {inv}, v{r}
    v_mul_f32 v{r+1}, {inv}, v{r+1}
    v_fma_f32 v{r+1}, -v{r}, v{r}, v{r+1}
    v_max_f32 v{r+1}, 0, v{r+1}
    v_cvt_pk_bf16_f32 v{t}, v{r}, v{r+1}
    v_lshlrev_b32 v{r}, 16, v{t}
    v_and_b32 v{r+1}, 0xffff0000, v{t}
    v_add_f32 v{r+1}, {f32(1e-5)}, v{r+1}
    v_cvt_pk_bf16_f32 v{r+1}, v{r+1}, v{r+1}
    v_lshlrev_b32 v{r+1}, 16, v{r+1}
    v_sqrt_f32 v{r+1}, v{r+1}
    s_nop 0
    v_cvt_pk_bf16_f32 v{r+1}, v{r+1}, v{r+1}
    v_lshlrev_b32 v{r+1}, 16, v{r+1}
    v_rcp_f32 v{r+1}, v{r+1}
    s_nop 0
    ''')
CONSTS = (248, 249, 250, 251, 252, 253)
def unit_consts(p):
    LR, SLI, A1, A2c, L16R, SL16I = CONSTS
    t = 236
    lam_consts(A, p, p+1, p+2, LR, t, t+1, t+2, t+3, t+4, t+5, t+6)
    A(f'''
    v_and_b32 v{t+7}, 8, v1
    v_lshlrev_b32 v{t+7}, 28, v{t+7}
    v_xor_b32 v{SLI}, v{t+7}, v{t}
    v_add_f32 v{A1}, v{t+1}, v{t+1}
    v_xor_b32 v{A1}, v{t+7}, v{A1}
    v_mul_f32 v{A2c}, -2.0, v{t+2}
    ''')
    csq(A, LR, t, L16R, SL16I, t+3)
    for _ in range(3): csq(A, L16R, SL16I, L16R, SL16I, t+3)
    A(f'v_xor_b32 v{SL16I}, v{t+7}, v{SL16I}')

XR = 112; ACC = 48; WR = 24; NW = 6; TMP = 16
WGS = 's[16:19]'
def k1_setup():
    A(f'''
    s_lshr_b32 s14, s9, 2
    s_mul_i32 s14, s14, 1152
    s_add_u32 s24, s36, s14
    s_addc_u32 s25, s37, 0
    s_sub_u32 s26, {576*9216}, s14
    s_mov_b32 s27, 0x20000
    s_add_u32 s36, s38, s14
    s_addc_u32 s37, s39, 0
    s_mov_b32 s38, s26
    s_mov_b32 s39, 0x20000
    s_and_b32 s14, s9, 3
    s_lshl_b32 s78, s14, 8
    s_mul_i32 s79, s7, {8*9216}
    s_add_u32 s78, s78, s79
    s_lshl_b32 s79, s14, 5
    s_add_u32 s79, s79, 1024
    s_mul_i32 s40, s10, 36864
    v_bfe_u32 v0, v1, 1, 3
    v_mul_u32_u24 v0, 9216, v0
    v_lshrrev_b32 v13, 4, v1
    v_lshl_add_u32 v0, v13, 5, v0
    v_and_b32 v13, 1, v1
    v_lshl_add_u32 v0, v13, 4, v0
    ''')
def k1_dma(g, n):
    A(f's_add_u32 s14, s78, {n*64*9216 + g*128}')
    dma(0, 's[24:27]', 's14', f's_add_u32 m0, s81, {8192*n}')
    dma(0, 's[36:39]', 's14', f's_add_u32 m0, s81, {UREG+8192*n}')
    vm.add(f'w{g}_{n}', 2)
def k1_xload(ks):
    if ks < 4: A(f'buffer_load_dwordx4 {vr(XR+4*ks,4)}, v3, {WS}, s40 offen offset:{ks*1024}{LSC}')
    else: A(f's_add_u32 s14, s40, {ks*1024}\nbuffer_load_dwordx4 {vr(XR+4*ks,4)}, v3, {WS}, s14 offen{LSC}')
    vm.add(f'x{ks}')
def k1_dma_g2(part):
    sd = 's[24:27]' if part == 0 else 's[36:39]'
    base = 0 if part == 0 else G2U
    sk = newlab('G2X')
    A(f's_cmp_ge_u32 s7, 2\ns_cbranch_scc1 {sk}\ns_add_u32 s14, s41, {16*32*9216}')
    dma(4, sd, 's14', f's_add_u32 m0, s81, {base+16384}')
    A.lab(sk)
    for i in range(2):
        A(f's_add_u32 s14, s41, {i*8*32*9216}')
        dma(4, sd, 's14', f's_add_u32 m0, s81, {base+8192*i}')
    vm.add(f'g2_{part}', 2)

def phase_k1():
    KS1 = 24; HD = 4; LOOK = 4
    seq = [(ks, fb) for ks in range(KS1) for fb in range(4)]
    seq += [(ks, fb) for ks in range(KS1, 36) for fb in (0, 1)]
    seq += [(ks, fb) for ks in range(KS1, 36) for fb in (2, 3)]
    seq += [(ks, 4) for ks in range(HD)] + [(ks, 5) for ks in range(HD)] + [(ks, fb) for ks in range(HD, 36) for fb in (4, 5)]
    seq += [(ks, fb) for ks in range(36) for fb in (6, 7)]
    seq += [(ks, 8) for ks in range(36)]
    N = len(seq)
    P2, P3, P4, P5, P6 = 96, 120, 144, 216, 288
    A(f'''
    v_bfe_u32 v13, v1, 4, 1
    v_lshrrev_b32 v14, 5, v1
    v_and_b32 v2, 15, v1
    v_lshlrev_b32 v2, 3, v2
    v_mul_u32_u24 v5, {UREG}, v13
    v_lshl_add_u32 v5, v14, 10, v5
    v_add_u32 v5, v5, v2
    v_add_u32 v6, 36864, v5
    v_mul_u32_u24 v7, {G2U}, v13
    v_lshl_add_u32 v7, v14, 8, v7
    v_add_u32 v7, v7, v2
    v_lshrrev_b32 v4, 1, v1
    v_mul_u32_u24 v4, 9216, v4
    v_and_b32 v13, 1, v1
    v_lshl_add_u32 v4, v13, 4, v4
    s_mul_i32 s41, s7, {32*9216}
    s_add_u32 s41, s41, s79
    s_mov_b32 s42, {f32(-2.302208198*0.044715)}
    v_mov_b32 v11, {f32(-2.302208198)}
    s_lshr_b32 s14, s9, 2
    s_mul_i32 s14, s14, 9
    s_and_b32 s13, s9, 3
    s_lshl_b32 s34, s13, 1
    s_add_u32 s34, s34, s14
    s_lshl_b32 s34, s34, 12
    s_mul_i32 s43, s10, 294912
    s_add_u32 s43, s43, {HF_OFF}
    s_add_u32 s14, s14, 8
    s_lshl_b32 s14, s14, 12
    s_lshl_b32 s13, s13, 10
    s_add_u32 s14, s14, s13
    s_add_u32 s35, s43, s14
    s_add_u32 s43, s43, s34
    s_lshl_b32 s34, s8, 5
    s_add_u32 s34, s34, s9
    s_lshl_b32 s34, s34, 2
    s_add_u32 s34, s34, {FH_OFF}
    ''')
    def wread(m):
        ks, fb = seq[m]
        r = WR + 4*(m % NW)
        if fb < 8:
            ad = 5 if ks < 18 else 6
            off = (ks % 18)*2048 + (fb % 4)*256
        else:
            ad = 7; off = ks*512
        A(f'ds_read_b64_tr_b16 {vr(r,2)}, v{ad} offset:{off}\nds_read_b64_tr_b16 {vr(r+2,2)}, v{ad} offset:{off+128}')
    def make_epi(fb):
        a = ACC + 16*(fb % 4); t = TMP
        out = []
        for half in range(2):
            es = range(4*half, 4*half+4)
            for e in es: out.append(f'v_mul_f32 v{t+e%4}, v{a+e}, v{a+e}')
            for e in es: out.append(f'v_fma_f32 v{t+e%4}, v{t+e%4}, s42, v11')
            for e in es: out.append(f'v_mul_f32 v{t+e%4}, v{t+e%4}, v{a+e}')
            for e in es: out.append(f'v_exp_f32 v{t+e%4}, v{t+e%4}')
            for e in es: out.append(f'v_mul_f32 v{a+e}, v{a+e}, v{a+8+e}')
            for e in es: out.append(f'v_add_f32 v{t+e%4}, 1.0, v{t+e%4}')
            for e in es: out.append(f'v_rcp_f32 v{t+e%4}, v{t+e%4}')
            out.append('s_nop 0')
            for e in es: out.append(f'v_mul_f32 v{a+e}, v{a+e}, v{t+e%4}')
            out.append(f'v_cvt_pk_bf16_f32 v{t+4+2*half}, v{a+4*half}, v{a+4*half+1}')
            out.append(f'v_cvt_pk_bf16_f32 v{t+5+2*half}, v{a+4*half+2}, v{a+4*half+3}')
        out.append(('free', fb))
        if fb < 4: out.append(('st', fb, f'buffer_store_dwordx4 {vr(t+4,4)}, v3, {WS}, s43 offen offset:{fb*1024} sc1'))
        elif fb < 8: out.append(('st', fb, f's_add_u32 s14, s43, 4096\nbuffer_store_dwordx4 {vr(t+4,4)}, v3, {WS}, s14 offen offset:{(fb-4)*1024} sc1'))
        else: out.append(('st', fb, f'buffer_store_dwordx4 {vr(t+4,4)}, v3, {WS}, s35 offen sc1'))
        return out
    bg = []
    busy = set()
    def emit_bg(k, n):
        while k > 0 and bg and bg[0][0] <= n:
            it = bg.pop(0)[1]
            if isinstance(it, tuple):
                if it[0] == 'free': busy.discard(it[1] % 4)
                else: A(it[2]); vm.add(f'h{it[1]}'); k -= 1
            else: A(it); k -= 1
    def flagH(g): return lambda: (A(f's_add_u32 s14, s34, {1024*g}'), flag_store(0, 's14', 2))
    def flagE(): A(f's_lshl_b32 s14, s6, 5\ns_add_u32 s14, s14, s5\ns_lshl_b32 s14, s14, 2\ns_add_u32 s14, s14, {FE_OFF}'); flag_store(1, 's14', 2)
    sync = {
        0:   (['w0_0'], [lambda: k1_dma(0, 7), lambda: k1_dma(0, 8)]),
        16:  (['w0_1'], []),
        32:  (['w0_2'], []),
        48:  (['w0_3'], []),
        64:  (['w0_4', 'est'], [flagE]),
        80:  (['w0_5'], []),
        96:  (['w0_6'], [lambda: k1_dma(1, 0), lambda: k1_dma(1, 1), lambda: k1_dma(1, 2)]),
        104: (['w0_7', 'w0_8'], [lambda: k1_dma(1, 3), lambda: k1_dma(1, 4), lambda: k1_dma(1, 5)]),
        144: (['w1_0', 'w1_1', 'w1_2'], []),
        152: ([], [lambda: k1_dma(1, 6), lambda: k1_dma(1, 7), lambda: k1_dma(1, 8)]),
        168: (['w1_3', 'w1_4', 'w1_5'], []),
        192: (['w1_6', 'w1_7', 'w1_8', 'h3'], [flagH(0)]),
        P5+28: ([], [lambda: k1_dma_g2(0)]),
        P5+44: ([], [lambda: k1_dma_g2(1)]),
        P6:  (['g2_0', 'g2_1'], []),
        P6+4: ([], [k2_prefetch]),
    }
    def do_sync(m):
        if m in sync:
            tags, acts = sync[m]
            vm.wait(*tags); A('s_barrier')
            for f in acts: f()
    seen_x = set()
    do_sync(0)
    S()
    for m in range(LOOK): wread(m)
    for n in range(N):
        ks, fb = seq[n]
        if n in (P4, P6): S()
        if n % 32 == 0: S(z='k1')
        if n == P5 + 50: k2_setup()
        if n + LOOK < N:
            do_sync(n + LOOK); wread(n + LOOK)
        if ks not in seen_x:
            seen_x.add(ks); vm.wait(f'x{ks}')
        first = (ks == 0)
        if first: assert (fb % 4) not in busy, (n, fb)
        A(f's_waitcnt lgkmcnt({2*min(LOOK, N-1-n)})')
        a = ACC + 16*(fb % 4)
        A(f'v_mfma_f32_32x32x16_bf16 {vr(a,16)}, {vr(WR+4*(n%NW),4)}, {vr(XR+4*ks,4)}, {"0" if first else vr(a,16)}')
        if n < P2 and fb == 3 and ks + 12 < 36: k1_xload(ks + 12)
        if ks == 35:
            busy.add(fb % 4)
            bg.extend((n + 4, it) for it in make_epi(fb))
        rate = 6 if n < P4 + 2*HD else (3 if n < P6 else 5)
        emit_bg(rate, n)
    S()
    S(z='fx')
    fix_loads(FA, 's7')
    A('s_cmp_lg_u32 s7, 7\ns_cbranch_scc1 FIX_NOB\ns_mov_b32 s77, 8')
    fix_loads(FB, 's77', count=False)
    A.lab('FIX_NOB')
    S(z='fx')
    emit_bg(10**9, 10**9)
    S(z='fx')

FA = 112; FB = 144; FT_ = 176
def fix_loads(base, sunit, count=True):
    A(f'''
    s_mul_i32 s12, s11, 9
    s_add_u32 s12, s12, {sunit}
    s_mul_i32 s13, s12, {H0_UNIT}
    s_add_u32 s13, s13, {H0_OFF}
    s_mul_i32 s14, s6, 72
    v_and_b32 v2, 7, v1
    v_add_u32 v{base+28}, s14, v2
    s_lshl_b32 s14, {sunit}, 3
    v_add_u32 v{base+28}, s14, v{base+28}
    v_lshlrev_b32 v2, 1, v{base+28}
    global_load_ushort v{base+25}, v2, s[18:19]
    global_load_ushort v{base+26}, v2, s[20:21]
    global_load_ushort v{base+27}, v2, s[30:31]
    s_lshl_b32 s12, s12, 6
    v_lshrrev_b32 v2, 4, v1
    v_mul_u32_u24 v2, {8*4608}, v2
    v_and_b32 v{base+29}, 15, v1
    v_lshl_add_u32 v{base+29}, v{base+29}, 2, s12
    v_sub_u32 v{base+29}, v{base+29}, v2
    ''')
    for i in range(8):
        A(f'v_subrev_u32 v{base+29}, 4608, v{base+29}\nbuffer_load_dword v{base+17+i}, v{base+29}, s[60:63], 0 offen sc1')
    A('v_lshlrev_b32 v2, 2, v1')
    for k in range(4): A(f'buffer_load_dwordx4 {vr(base+4*k,4)}, v3, {WS}, s13 offen offset:{1024*k}')
    A(f's_add_u32 s13, s13, 4096\nbuffer_load_dword v{base+16}, v2, {WS}, s13 offen')
    if count: vm.add('fx', 16)
def fixup():
    A('s_mov_b32 s77, 0')
    vm.wait('fx')
    S(z='fx')
    A.lab('FIX')
    t = FT_
    LR, LI, SG = t, t+1, t+2
    PR, PI = t+3, t+4; QR, QI = t+5, t+6; L64R, L64I = t+7, t+8
    lam_consts(A, FA+25, FA+26, FA+27, LR, LI, 0, 0, t+9, t+10, t+11, t+12, need_coef=False)
    A(f'v_and_b32 v{SG}, 8, v1\nv_lshlrev_b32 v{SG}, 28, v{SG}')
    csq(A, LR, LI, PR, PI, t+9)
    for _ in range(3): csq(A, PR, PI, PR, PI, t+9)
    A(f'v_mov_b32 v{t+13}, v{PR}\nv_mov_b32 v{t+14}, v{PI}')
    csq(A, PR, PI, PR, PI, t+9)
    cmul(A, PR, PI, t+13, t+14, t+15, t+16)
    A(f'''
    v_lshrrev_b32 v2, 4, v1
    v_mov_b32 v{QR}, 1.0
    v_mov_b32 v{QI}, 0
    v_cmp_eq_u32 vcc, 1, v2
    s_nop 1
    v_cndmask_b32 v{QR}, v{QR}, v{t+13}, vcc
    v_cndmask_b32 v{QI}, v{QI}, v{t+14}, vcc
    v_cmp_eq_u32 vcc, 2, v2
    s_nop 1
    v_cndmask_b32 v{QR}, v{QR}, v{PR}, vcc
    v_cndmask_b32 v{QI}, v{QI}, v{PI}, vcc
    v_cmp_eq_u32 vcc, 3, v2
    s_nop 1
    v_cndmask_b32 v{QR}, v{QR}, v{t+15}, vcc
    v_cndmask_b32 v{QI}, v{QI}, v{t+16}, vcc
    v_xor_b32 v{QI}, v{SG}, v{QI}
    ''')
    csq(A, PR, PI, L64R, L64I, t+9)
    csq(A, L64R, L64I, PR, PI, t+9)
    for _ in range(2): csq(A, PR, PI, PR, PI, t+9)
    A(f'v_xor_b32 v{L64I}, v{SG}, v{L64I}\nv_xor_b32 v{PI}, v{SG}, v{PI}\nv_xor_b32 v{LI}, v{SG}, v{LI}')
    for i in range(6, -1, -1): mapply(A, FA+17+i, FA+17+i+1, L64R, L64I, FA+17+i)
    A(f'''
    v_and_b32 v{t+17}, 15, v1
    v_lshlrev_b32 v{t+17}, 2, v{t+17}
    v_add_u32 v{t+18}, 64, v{t+17}
    v_add_u32 v{t+19}, 128, v{t+17}
    v_add_u32 v{t+20}, 192, v{t+17}
    ''')
    for g in range(4): A(f'ds_bpermute_b32 v{FA+18+g}, v{t+17+g}, v{FA+17}')
    A('s_waitcnt lgkmcnt(0)')
    for g in (2, 1, 0): mapply(A, FA+18+g, FA+18+g+1, PR, PI, FA+18+g)
    mapply(A, FA+16, FA+18, QR, QI, FA+16)
    g0, g1 = FA+16, FA+17
    for k in range(16):
        a, b = (g0, g1) if k % 2 == 0 else (g1, g0)
        mapply(A, b, a, LR, LI, None)
        A(f'v_add_f32 v{FA+k}, v{FA+k}, v{b}')
    for k in range(8): A(f'v_cvt_pk_bf16_f32 v{FA+k}, v{FA+2*k}, v{FA+2*k+1}')
    A(f'''
    v_bfe_u32 v2, v1, 3, 1
    v_mul_u32_u24 v2, 576, v2
    v_add_u32 v2, v2, v{FA+28}
    v_lshlrev_b32 v2, 12, v2
    v_lshrrev_b32 v{t+9}, 4, v1
    v_lshl_add_u32 v2, v{t+9}, 5, v2
    s_lshl_b32 s12, s5, 7
    s_add_u32 s12, s12, {HT_OFF}
    buffer_store_dwordx4 {vr(FA,4)}, v2, {WS}, s12 offen sc1
    buffer_store_dwordx4 {vr(FA+4,4)}, v2, {WS}, s12 offen offset:16 sc1
    s_cmp_lg_u32 s7, 7
    s_cbranch_scc1 FIX_DONE
    s_cmp_lg_u32 s77, 0
    s_cbranch_scc1 FIX_DONE
    s_mov_b32 s77, 1
    s_waitcnt vmcnt(2)
    ''')
    for k in range(29): A(f'v_mov_b32 v{FA+k}, v{FB+k}')
    A('s_branch FIX')
    A.lab('FIX_DONE')
    vm.add('ht', 2)
    S(z='fx')

def k2_setup():
    A(f'''
    s_load_dwordx4 s[68:71], s[0:1], 40
    s_load_dwordx2 s[56:57], s[0:1], 96
    s_load_dwordx2 s[60:61], s[0:1], 120
    s_mul_i32 s14, s3, 30
    s_add_u32 s14, s14, s4
    s_mul_i32 s44, s14, 1366
    s_lshr_b32 s44, s44, 16
    s_mul_i32 s13, s44, 48
    s_sub_u32 s47, s14, s13
    s_mul_i32 s45, s47, 86
    s_lshr_b32 s45, s45, 8
    s_mul_i32 s13, s45, 3
    s_sub_u32 s46, s47, s13
    s_lshl_b32 s14, s45, 2
    s_lshr_b32 s13, s7, 1
    s_add_u32 s14, s14, s13
    s_mul_i32 s76, s14, 294912
    s_and_b32 s13, s7, 1
    s_lshl_b32 s13, s13, 11
    s_add_u32 s76, s76, s13
    s_add_u32 s76, s76, {HF_OFF}
    s_mul_i32 s83, s7, 3072
    s_add_u32 s83, s83, 16384
    s_mul_i32 s80, s46, 384
    s_lshr_b32 s14, s45, 1
    s_lshl_b32 s32, s14, 7
    s_add_u32 s32, s32, {FH_OFF}
    s_waitcnt lgkmcnt(0)
    s_mov_b32 s58, {4608*1152}
    s_mov_b32 s59, 0x20000
    s_add_u32 s60, s60, {E_OFF}
    s_addc_u32 s61, s61, 0
    s_mov_b32 s62, {E_BYTES}
    s_mov_b32 s63, 0x20000
    v_lshlrev_b32 v15, 2, v1
    v_and_b32 v15, 127, v15
    ''')
    for i in range(3):
        A(f'''
        s_mul_i32 s13, s7, 192
        s_add_u32 s13, s13, {64*i}
        v_add_u32 v12, s13, v1
        v_mul_u32_u24 v13, 2731, v12
        v_lshrrev_b32 v13, 16, v13
        v_mul_u32_u24 v14, 24, v13
        v_sub_u32 v14, v12, v14
        v_bfe_u32 v12, v13, 1, 1
        v_lshlrev_b32 v12, 2, v12
        v_xor_b32 v14, v14, v12
        v_mul_u32_u24 v13, 1152, v13
        v_lshl_add_u32 v{8+i}, v14, 4, v13
        ''')
    poll_issue(12, 15, 's32', 'pg0')
    A(f's_lshl_b32 s33, s6, 7\ns_add_u32 s33, s33, {FE_OFF}')
    poll_issue(13, 15, 's33', 'pfe')
for n_ in range(240): assert (n_*1366) >> 16 == n_//48
for n_ in range(48): assert (n_*86) >> 8 == n_//3
def k2_dma_ffn(n):
    slot = ((n + 1) % 4) * K2S
    if 5*n + 4 < 64:
        A(f'''
        s_add_u32 s14, s44, {5*n}
        s_lshr_b32 s13, s14, 5
        s_and_b32 s14, s14, 31
        s_lshr_b32 s12, s14, 2
        s_lshl_b32 s14, s14, 1
        s_add_u32 s14, s14, s12
        s_add_u32 s14, s14, s13
        ''')
    elif 5*n >= 64:
        A(f's_add_u32 s14, s44, {5*n-64}\ns_mul_i32 s14, s14, 9\ns_add_u32 s14, s14, 8')
    else:
        A(f'''
        s_add_u32 s14, s44, {5*n-32}
        s_lshr_b32 s12, s14, 2
        s_lshl_b32 s14, s14, 1
        s_add_u32 s14, s14, s12
        s_add_u32 s14, s14, 1
        s_cmp_eq_u32 s44, 4
        s_cselect_b32 s14, 8, s14
        ''')
    A(f's_lshl_b32 s13, s14, 12\ns_add_u32 s13, s13, s76\ns_mul_i32 s14, s14, {64*1152}\ns_add_u32 s14, s14, s80')
    for i in range(3): dma(8+i, 's[56:59]', 's14', f's_add_u32 m0, s83, {slot+1024*i}')
    dma(3, WS, 's13', f's_add_u32 m0, s82, {slot}', sc1=bool(LSC))
    A(f'buffer_load_dwordx4 v3, {WS}, s13 offen offset:1024{LSC} lds')
    vm.add(f'k{n}', 5)
def k2_dma_ssm(n, m):
    slot = ((n + 1) % 4) * K2S
    A(f'''
    s_add_u32 s14, s28, {5*m}
    s_lshl_b32 s13, s14, 18
    s_add_u32 s13, s13, s29
    s_cmp_lt_u32 s14, 9
    s_cselect_b32 s64, s68, s70
    s_cselect_b32 s65, s69, s71
    s_cselect_b32 s12, 0, 9
    s_sub_u32 s14, s14, s12
    s_lshl_b32 s14, s14, 7
    s_add_u32 s14, s14, s30
    ''')
    for i in range(3):
        dma(101 + (i % 2), 's[64:67]', 's14', f's_add_u32 m0, s83, {slot+1024*i}')
        if i < 2: A(f's_add_u32 s14, s14, {8*1152}')
    dma(100, WS, 's13', f's_add_u32 m0, s82, {slot}', sc1=bool(LSC))
    A(f's_add_u32 s13, s13, 16384')
    dma(100, WS, 's13', f's_add_u32 m0, s82, {slot+1024}', sc1=bool(LSC))
    vm.add(f'k{n}', 5)
def k2_prefetch():
    poll_check(13, 15, 's33', 'pfe')
    poll_check(12, 15, 's32', 'pg0')
    for n in range(3): k2_dma_ffn(n)

def phase_k2():
    ACC2 = 48; AF = 16; BF = 24
    A(f'''
    s_and_b32 s14, s44, 3
    s_lshl_b32 s14, s14, 7
    v_xor_b32 v96, s14, v3
    s_and_b32 s13, s7, 3
    s_lshl_b32 s12, s13, 12
    v_add_u32 v96, s12, v96
    v_add_u32 v97, {2*K2S}, v96
    v_lshrrev_b32 v12, 5, v1
    v_lshlrev_b32 v13, 2, v12
    v_bfe_u32 v14, v1, 2, 2
    v_add_u32 v13, v13, v14
    v_mul_u32_u24 v13, 384, v13
    v_bfe_u32 v14, v1, 4, 1
    v_lshl_add_u32 v13, v14, 5, v13
    v_and_b32 v14, 3, v1
    v_lshl_add_u32 v13, v14, 3, v13
    v_add_u32 v13, 16384, v13
    v_bfe_u32 v14, v1, 3, 1
    s_lshr_b32 s12, s7, 2
    s_mul_i32 s12, s12, 3
    ''')
    for jj in range(3):
        A(f's_add_u32 s14, s12, {jj}\nv_xor_b32 v2, s14, v14\nv_lshl_add_u32 v{104+jj}, v2, 6, v13\nv_add_u32 v{107+jj}, {2*K2S}, v{104+jj}')
    A(f'''
    v_lshrrev_b32 v13, 4, v1
    v_lshlrev_b32 v14, 2, v13
    v_and_b32 v2, 15, v1
    v_xor_b32 v14, v14, v2
    v_lshlrev_b32 v14, 4, v14
    v_lshl_add_u32 v100, v13, 12, v14
    v_lshrrev_b32 v14, 3, v1
    v_mul_u32_u24 v14, 1152, v14
    v_and_b32 v2, 7, v1
    v_xor_b32 v2, v2, v13
    v_lshl_add_u32 v101, v2, 4, v14
    s_and_b32 s14, s7, 1
    s_lshl_b32 s14, s14, 6
    v_xor_b32 v101, s14, v101
    v_xor_b32 v102, 64, v101
    s_add_u32 s28, s44, 3
    s_cmp_ge_u32 s28, 5
    s_cselect_b32 s14, 5, 0
    s_sub_u32 s28, s28, s14
    s_lshl_b32 s29, s7, 15
    s_lshl_b32 s14, s45, 8
    s_add_u32 s29, s29, s14
    s_add_u32 s29, s29, {HT_OFF}
    s_mul_i32 s30, s46, 192
    s_mul_i32 s14, s7, 24
    s_add_u32 s30, s30, s14
    s_mul_i32 s30, s30, 1152
    s_mov_b32 s66, 663552
    s_mov_b32 s67, 0x20000
    s_mov_b32 s64, s68
    s_mov_b32 s65, s69
    v_lshlrev_b32 v13, 3, v12
    v_bfe_u32 v14, v1, 2, 2
    v_add_u32 v13, v13, v14
    v_lshlrev_b32 v13, 8, v13
    v_xor_b32 v14, s13, v14
    v_lshl_add_u32 v13, v14, 6, v13
    v_bfe_u32 v14, v1, 4, 1
    v_lshlrev_b32 v14, 5, v14
    v_and_b32 v2, 3, v1
    v_lshl_add_u32 v14, v2, 3, v14
    s_and_b32 s14, s44, 3
    s_lshl_b32 s14, s14, 4
    v_xor_b32 v14, s14, v14
    v_add_u32 v98, v13, v14
    v_add_u32 v99, {2*K2S}, v98
    v_and_b32 v13, 31, v1
    v_bfe_u32 v14, v1, 1, 3
    v_xor_b32 v14, v14, v12
    v_lshlrev_b32 v14, 4, v14
    v_lshl_add_u32 v13, v13, 7, v14
    s_lshl_b32 s14, s12, 12
    s_add_u32 s14, s14, 16384
    v_add_u32 v13, s14, v13
    ''')
    for sp in range(4):
        A(f'v_xor_b32 v{112+sp}, {32*sp}, v13\nv_add_u32 v{116+sp}, {2*K2S}, v{112+sp}')
    A(f'''
    s_lshl_b32 s14, s45, 2
    s_add_u32 s14, s14, s13
    s_lshl_b32 s14, s14, 2
    s_add_u32 s14, s14, s44
    s_mul_i32 s31, s14, {8*2304}
    s_mul_i32 s14, s46, 768
    s_add_u32 s31, s31, s14
    s_lshl_b32 s14, s12, 7
    s_add_u32 s31, s31, s14
    v_mul_u32_u24 v103, {4*2304}, v12
    v_and_b32 v2, 31, v1
    v_lshl_add_u32 v103, v2, 2, v103
    s_lshl_b32 s33, s45, 6
    s_add_u32 s33, s33, {FT_OFF}
    v_and_b32 v110, 63, v15
    s_add_u32 s78, s32, 1024
    s_add_u32 s79, s32, 2048
    ''')
    def body_ffn(n):
        slot = (n + 1) % 4
        hi = slot // 2; so = (slot % 2) * K2S
        ops = [(s, jj) for s in range(4) for jj in range(3)]
        lg = []
        def rd(i):
            s, jj = ops[i]
            if jj == 0:
                A(f'ds_read_b128 {vr(AF+4*(s%2),4)}, v{96+hi} offset:{so+1024*s}'); lg.append(i)
            r = BF + 4*(i % 6)
            off = so + s*16*384
            A(f'ds_read_b64_tr_b16 {vr(r,2)}, v{104+3*hi+jj} offset:{off}\nds_read_b64_tr_b16 {vr(r+2,2)}, v{104+3*hi+jj} offset:{off+8*384}')
            lg.extend([i, i])
        LK = 3
        for i in range(LK): rd(i)
        for i in range(12):
            s, jj = ops[i]
            if i + LK < 12: rd(i + LK)
            A(f's_waitcnt lgkmcnt({sum(1 for t in lg if t > i)})')
            a = ACC2 + 16*jj
            A(f'v_mfma_f32_32x32x16_bf16 {vr(a,16)}, {vr(AF+4*(s%2),4)}, {vr(BF+4*(i%6),4)}, {"0" if (n == 0 and s == 0) else vr(a,16)}')
    def body_ssm(n):
        slot = (n + 1) % 4
        hi = slot // 2; so = (slot % 2) * K2S
        ops = [(s, jj) for s in range(4) for jj in range(3)]
        lg = []
        def rd(i):
            s, jj = ops[i]
            if jj == 0:
                r = AF + 4*(s % 2)
                A(f'ds_read_b64_tr_b16 {vr(r,2)}, v{98+hi} offset:{so+4096*s}\nds_read_b64_tr_b16 {vr(r+2,2)}, v{98+hi} offset:{so+4096*s+1024}')
                lg.extend([i, i])
            A(f'ds_read_b128 {vr(BF+4*(i%6),4)}, v{112+4*hi+s} offset:{so+4096*jj}'); lg.append(i)
        LK = 3
        for i in range(LK): rd(i)
        for i in range(12):
            s, jj = ops[i]
            if i + LK < 12: rd(i + LK)
            A(f's_waitcnt lgkmcnt({sum(1 for t in lg if t > i)})')
            a = ACC2 + 16*jj
            A(f'v_mfma_f32_32x32x16_bf16 {vr(a,16)}, {vr(AF+4*(s%2),4)}, {vr(BF+4*(i%6),4)}, {vr(a,16)}')
    def either(f_lt2, f_ge2):
        l1 = newlab('QGE'); l2 = newlab('QJ')
        A(f's_cmp_ge_u32 s44, 2\ns_cbranch_scc1 {l1}')
        q0 = list(vm.q); f_lt2(); q1 = list(vm.q)
        A(f's_branch {l2}'); A.lab(l1)
        vm.q = q0; f_ge2(); assert vm.q == q1
        A.lab(l2)
    def late_flags():
        A(f's_add_u32 s14, s34, 2048'); flag_store(1, 's14', 2)
        A(f's_lshl_b32 s14, s11, 2\ns_add_u32 s14, s14, {FT_OFF}'); flag_store(2, 's14', 2)
    S(z='fx')
    vm.wait('h7', 'k0')
    A('s_barrier')
    S(z='fx'); S(z='k2')
    A(f's_add_u32 s14, s34, 1024'); flag_store(0, 's14', 2)
    A('s_cmp_lt_u32 s4, 30\ns_cbranch_scc1 K2_GO\ns_waitcnt vmcnt(0)\ns_barrier')
    late_flags()
    A('s_branch K_FIN')
    A.lab('K2_GO')
    S()
    for n in range(18):
        if n > 0:
            vm.wait(f'k{n}')
            if n == 2: vm.wait('h8', 'ht')
            A('s_barrier')
            if n == 2: late_flags()
        nn = n + 3
        if nn == 6: poll_check(12, 15, 's78', 'pg1')
        if nn == 12: poll_check(12, 15, 's79', 'pg2')
        if nn == 14: poll_check(13, 110, 's33', 'pft')
        if nn <= 13: k2_dma_ffn(nn)
        elif nn == 14: either(lambda: k2_dma_ffn(14), lambda: k2_dma_ssm(14, 3))
        elif nn <= 17: k2_dma_ssm(nn, nn - 15)
        if n == 1: poll_issue(12, 15, 's78', 'pg1')
        if n == 7: poll_issue(12, 15, 's79', 'pg2')
        if n == 9: poll_issue(13, 110, 's33', 'pft')
        if n == 15:
            for e in range(4):
                A(f's_add_u32 s14, s31, {e*2304}')
                for jj in range(3): A(f'buffer_load_dword v{120+4*jj+e}, v103, {OUT}, s14 offen offset:{128*jj} sc1')
            vm.add('base', 12)
        if n <= 13: body_ffn(n)
        elif n == 14: either(lambda: body_ffn(14), lambda: body_ssm(14))
        else: body_ssm(n)
        if n == 8: S()
        if n % 2 == 1: S(z='k2')
    S()
    A(f'''
    s_mul_i32 s35, s47, {16*12288}
    s_mul_i32 s14, s7, 1536
    s_add_u32 s35, s35, s14
    s_add_u32 s35, s35, {PART_OFF}
    v_lshlrev_b32 v2, 3, v1
    s_and_b32 s12, s44, 3
    s_cmp_eq_u32 s44, 4
    s_cselect_b32 s41, 0, 12288
    s_nop 3
    ''')
    def pub(ap):
        r = 136 + 8*ap
        for jj in range(3):
            a = ACC2 + 16*jj + 4*ap
            A(f'v_cvt_pk_bf16_f32 v{r+2*jj}, v{a}, v{a+1}\nv_cvt_pk_bf16_f32 v{r+2*jj+1}, v{a+2}, v{a+3}')
        A(f's_xor_b32 s14, s12, {ap}\ns_mul_i32 s14, s14, {4*12288}\ns_add_u32 s14, s14, s35\ns_mul_i32 s13, s41, {ap}\ns_add_u32 s14, s14, s13')
        A(f'buffer_store_dwordx4 {vr(r,4)}, v3, {WS}, s14 offen sc1\nbuffer_store_dwordx2 {vr(r+4,2)}, v2, {WS}, s14 offen offset:1024 sc1')
    for ap in (1, 2, 3): pub(ap)
    A('s_cmp_lg_u32 s44, 4\ns_cbranch_scc1 NOPUB0')
    pub(0)
    A.lab('NOPUB0')
    A(f'''
    s_lshl_b32 s33, s47, 7
    s_add_u32 s33, s33, {FP_OFF}
    s_lshl_b32 s14, s44, 2
    s_add_u32 s14, s14, s33
    v_min_u32 v110, 4, v1
    v_lshlrev_b32 v110, 2, v110
    s_waitcnt vmcnt(0)
    s_barrier
    ''')
    vm.q = []
    flag_store(0, 's14', 12)
    S()
    A('s_cmp_eq_u32 s44, 4\ns_cbranch_scc1 K_FIN')
    poll_issue(13, 110, 's33', 'pp'); poll_check(13, 110, 's33', 'pp')
    S()
    A(f's_mul_i32 s14, s44, {4*12288}\ns_add_u32 s14, s14, s35')
    for sl in range(4):
        r = 136 + 8*sl
        A(f'buffer_load_dwordx4 {vr(r,4)}, v3, {WS}, s14 offen sc1\nbuffer_load_dwordx2 {vr(r+4,2)}, v2, {WS}, s14 offen offset:1024 sc1')
        if sl < 3: A('s_add_u32 s14, s14, 12288')
    A('s_mov_b32 s13, 0xffff0000')
    for jj in range(3):
        for e in range(4): A(f'v_add_f32 v{ACC2+16*jj+e}, v{ACC2+16*jj+e}, v{120+4*jj+e}')
    for sl in range(4):
        A(f's_waitcnt vmcnt({2*(3-sl)})')
        r = 136 + 8*sl
        for jj in range(3):
            for h in range(2):
                a = ACC2 + 16*jj + 2*h; p = r + 2*jj + h
                A(f'v_lshlrev_b32 v12, 16, v{p}\nv_and_b32 v13, s13, v{p}\nv_pk_add_f32 {vr(a,2)}, {vr(a,2)}, v[12:13]')
    for e in range(4):
        A(f's_add_u32 s14, s31, {e*2304}')
        for jj in range(3): A(f'buffer_store_dword v{ACC2+16*jj+e}, v103, {OUT}, s14 offen offset:{128*jj}')
    A.lab('K_FIN')
    if STAMP:
        A('s_waitcnt vmcnt(0)'); nstamp[0] = 14; S(force=True); S(True); Sflush()

def main(path):
    hdr = open('parallel_sum__ssm_conv_s5__geglu_ffn__prompt.s.ref').read().split('; Override launch')[0]
    A.raw(hdr.rstrip())
    A.raw('; @launch grid=(256,1,1) block=(512,1,1) lds=163840')
    A.raw('.amdgcn_target "amdgcn-amd-amdhsa--gfx950"\n.text')
    A.raw(f'.globl {NAME}\n.p2align 8\n.type {NAME},@function\n{NAME}:')
    if STAMP:
        for i in range(16): A(f's_mov_b32 s{86+i}, 0')
    prologue(); phase_a(); phase_k1(); fixup(); phase_k2()
    A.lab('K_END')
    A('s_endpgm')
    for c in cold: A.raw(c)
    A.raw(f'''.section .rodata,"a"
.p2align 6
.amdhsa_kernel {NAME}
  .amdhsa_next_free_vgpr 256
  .amdhsa_next_free_sgpr 102
  .amdhsa_accum_offset 256
  .amdhsa_group_segment_fixed_size 0
  .amdhsa_kernarg_size 128
  .amdhsa_user_sgpr_count 2
  .amdhsa_user_sgpr_kernarg_segment_ptr 1
  .amdhsa_system_sgpr_workgroup_id_x 1
  .amdhsa_float_denorm_mode_32 3
.end_amdhsa_kernel''')
    open(path, 'w').write('\n'.join(A.L) + '\n')

if __name__ == '__main__':
    main(sys.argv[1] if len(sys.argv) > 1 else 'k2.s')
```

```python
import sys, struct, os
from layout import *
from gen_v1 import f32, LOG2E, INV2PI, Asm, vr, sr, srd, lam_consts, csq, cmul, DPP8, mapply

STAMP = int(os.environ.get('STAMP', '0'))
LSC = ' sc1' if int(os.environ.get('LSC', '1')) else ''
ZOOM = os.environ.get('ZOOM', '')
def P(name, d): return int(os.environ.get(name, d))
A = Asm()
NAME = 'parallel_sum__ssm_conv_s5__geglu_ffn__prompt_kernel'

class Cnt:
    def __init__(self, name, mx): self.q = []; self.ever = set(); self.name = name; self.mx = mx
    def add(self, tag, n=1): self.q += [tag]*n; self.ever.add(tag)
    def wait(self, *tags):
        for t in tags: assert t in self.ever, t
        idx = [i for i, t in enumerate(self.q) if t in tags]
        if not idx: return
        last = max(idx); n = len(self.q) - 1 - last
        if n > self.mx:
            if self.name == 'vmcnt': self.q = self.q[last+1:]; return
            n = self.mx; last = len(self.q) - 1 - n
        A(f's_waitcnt {self.name}({n})')
        self.q = self.q[last+1:]
    def drain(self):
        A(f's_waitcnt {self.name}(0)'); self.q = []
vm = Cnt('vmcnt', 63); lg = Cnt('lgkmcnt', 15)
nstamp = [0]
def S(real=False, z='', force=False):
    if not STAMP: return
    if not (real or force) and z != ZOOM: return
    A(f'{"s_memrealtime" if real else "s_memtime"} s[84:85]\ns_waitcnt lgkmcnt(0)\ns_mov_b32 s{86+nstamp[0]}, s84')
    nstamp[0] += 1
    assert nstamp[0] <= 16
def Sflush():
    A(f's_mov_b64 exec, -1\ns_lshl_b32 s84, s2, 3\ns_add_u32 s84, s84, s7\ns_lshl_b32 s84, s84, 6\ns_add_u32 s84, s84, {STAMP_OFF}\nv_mov_b32 v1, 0')
    for i in range(16):
        A(f'v_mov_b32 v2, s{86+i}\nbuffer_store_dword v2, v1, s[48:51], s84 offen offset:{4*i}')
uid = [0]
def newlab(p):
    uid[0] += 1; return f'{p}_{uid[0]}'

WS = 's[48:51]'; OUT = 's[52:55]'; DBG = 's[72:75]'
TAG = 's15'
cold = []
def poll_issue(vdst, vaddr, soff, tag):
    A(f'buffer_load_dword v{vdst}, v{vaddr}, {WS}, {soff} offen sc1'); vm.add(tag)
def poll_check(vdst, vaddr, soff, tag):
    vm.wait(tag)
    slow = newlab('SLOW'); back = newlab('BACK')
    A(f'v_cmp_ne_u32 vcc, {TAG}, v{vdst}\ns_cbranch_vccnz {slow}')
    A.lab(back)
    cold.append(f'''{slow}:
    s_sub_u32 s23, s23, 1
    s_cbranch_scc1 {back}
    s_sleep 1
    buffer_load_dword v{vdst}, v{vaddr}, {WS}, {soff} offen sc1
    s_waitcnt vmcnt(0)
    v_cmp_ne_u32 vcc, {TAG}, v{vdst}
    s_cbranch_vccnz {slow}
    s_branch {back}''')
def flag_store(wave, spre, vtmp):
    sk = newlab('NOFLAG')
    A(f's_cmp_lg_u32 s7, {wave}\ns_cbranch_scc1 {sk}\n{spre}\nv_mov_b32 v{vtmp}, {TAG}\ns_mov_b64 exec, 1\nbuffer_store_dword v{vtmp}, off, {WS}, s14 sc1\ns_mov_b64 exec, -1')
    A.lab(sk)
def dma_txt(voff, srdn, soff, m0expr, imm=0, sc=''):
    return f'{m0expr}\ns_nop 0\nbuffer_load_dwordx4 v{voff}, {srdn}, {soff} offen{" offset:%d" % imm if imm else ""}{sc} lds'

def capture(f, group=1):
    n0 = len(A.L); f(); out = A.L[n0:]; del A.L[n0:]
    return [l.strip() for l in out]

class BG:
    def __init__(self): self.v = []; self.m = []
    def push_v(self, items, ready=0): self.v += [(ready, it) for it in items]
    def push_m(self, text, tag, n=1, ready=0): self.m.append((ready, text, tag, n))
    def emit_v(self, k, now=10**9):
        while k > 0 and self.v and self.v[0][0] <= now:
            it = self.v.pop(0)[1]
            if isinstance(it, str): A(it); k -= it.count('\n') + 1
            elif it[0] == 'vm': A(it[1]); vm.add(it[2], it[3]); k -= 2
            elif it[0] == 'ds': A(it[1]); lg.add(it[2]); k -= 1
            elif it[0] == 'lgw': lg.wait(it[1])
            elif it[0] == 'vmw': self.flush_m(it[1]); vm.wait(it[1])
            elif it[0] == 'call': it[1]()
    def emit_m(self, k=1, now=10**9):
        while k > 0 and self.m and self.m[0][0] <= now:
            _, text, tag, n = self.m.pop(0)
            if callable(text): text()
            else:
                for part in text.split('@@'):
                    if part.startswith('LAB '): A.lab(part[4:])
                    else: A(part)
            if n: vm.add(tag, n)
            k -= 1
    def flush_m(self, *tags):
        while any(t[2] in tags for t in self.m): self.emit_m(1)
bg = BG()
def valu_with_vmem(lines, every=8):
    for i, l in enumerate(lines):
        if l.endswith(':'): A.lab(l[:-1])
        else: A(l)
        if i % every == every - 1 and not l.startswith('v_cmp') and not l.startswith('s_nop') and not l.startswith('s_'): bg.emit_m(1)

UREG = 73760
A2_B = [16384, 90144, 34816, 108672]
A2_X = [53248, 127104, 61440, 135296]
TB = 147584
EX_T = 147584; EX_B = EX_T + 8192; EX_S = EX_B + 2048; EX_R = 69632
G2U = 18560
K2S = 40960
XR = 112; ACC = 48; WR = 24; NW = 6; TMP = 16
CONSTS = (244, 245, 246, 247, 248, 249)

def ln_stats(r, t):
    inv = f32(1.0/576.0)
    A(f'''
    v_mul_f32 v{r}, {inv}, v{r}
    v_mul_f32 v{r+1}, {inv}, v{r+1}
    v_fma_f32 v{r+1}, -v{r}, v{r}, v{r+1}
    v_max_f32 v{r+1}, 0, v{r+1}
    v_cvt_pk_bf16_f32 v{t}, v{r}, v{r+1}
    v_lshlrev_b32 v{r}, 16, v{t}
    v_and_b32 v{r+1}, 0xffff0000, v{t}
    v_add_f32 v{r+1}, {f32(1e-5)}, v{r+1}
    v_cvt_pk_bf16_f32 v{r+1}, v{r+1}, v{r+1}
    v_lshlrev_b32 v{r+1}, 16, v{r+1}
    v_sqrt_f32 v{r+1}, v{r+1}
    s_nop 0
    v_cvt_pk_bf16_f32 v{r+1}, v{r+1}, v{r+1}
    v_lshlrev_b32 v{r+1}, 16, v{r+1}
    v_rcp_f32 v{r+1}, v{r+1}
    s_nop 0
    ''')
def unit_consts(p, t=232):
    LR, SLI, A1, A2c, L16R, SL16I = CONSTS
    lam_consts(A, p, p+1, p+2, LR, t, t+1, t+2, t+3, t+4, t+5, t+6)
    A(f'''
    v_and_b32 v{t+7}, 8, v1
    v_lshlrev_b32 v{t+7}, 28, v{t+7}
    v_xor_b32 v{SLI}, v{t+7}, v{t}
    v_add_f32 v{A1}, v{t+1}, v{t+1}
    v_xor_b32 v{A1}, v{t+7}, v{A1}
    v_mul_f32 v{A2c}, -2.0, v{t+2}
    ''')
    csq(A, LR, t, L16R, SL16I, t+3)
    for _ in range(3): csq(A, L16R, SL16I, L16R, SL16I, t+3)
    A(f'v_xor_b32 v{SL16I}, v{t+7}, v{SL16I}')
def get_tag():
    vm.wait('tag')
    slow = newlab('TAGSLOW'); back = newlab('TAGBACK')
    A(f'v_readfirstlane_b32 {TAG}, v15\ns_cmp_eq_u32 {TAG}, 0\ns_cbranch_scc1 {slow}')
    A.lab(back)
    cold.append(f'''{slow}:
    s_sub_u32 s23, s23, 1
    s_cbranch_scc1 {back}
    s_sleep 1
    buffer_load_dword v15, off, {DBG}, 0 sc1
    s_waitcnt vmcnt(0)
    v_readfirstlane_b32 {TAG}, v15
    s_cmp_eq_u32 {TAG}, 0
    s_cbranch_scc1 {slow}
    s_branch {back}''')

def k1_dma(g, n, ready=0):
    pre = f's_add_u32 s12, s32, {n*64*9216 + g*128}\n'
    bg.push_m(pre + dma_txt(0, 's[24:27]', 's12', f's_add_u32 m0, s81, {8192*n}'), f'w{g}_{n}', 1, ready)
    bg.push_m(pre + dma_txt(0, 's[36:39]', 's12', f's_add_u32 m0, s81, {UREG+8192*n}'), f'w{g}_{n}', 1, ready)
def k1_xload(ks, ready=0):
    if ks < 4: t = f'buffer_load_dwordx4 {vr(XR+4*ks,4)}, v3, {WS}, s40 offen offset:{ks*1024}{LSC}'
    else: t = f's_add_u32 s12, s40, {ks*1024}\nbuffer_load_dwordx4 {vr(XR+4*ks,4)}, v3, {WS}, s12 offen{LSC}'
    bg.push_m(t, f'x{ks}', 1, ready)
def k1_dma_g2(part, ready=0):
    sd = 's[24:27]' if part == 0 else 's[36:39]'
    base = 0 if part == 0 else G2U
    sk = newlab('G2X')
    bg.push_m(f's_cmp_ge_u32 s7, 2\ns_cbranch_scc1 {sk}\ns_add_u32 s12, s41, {16*32*9216}\n' + dma_txt(4, sd, 's12', f's_add_u32 m0, s81, {base+16384}') + f'@@LAB {sk}', f'g2_{part}', 0, ready)
    for i in range(2):
        bg.push_m(f's_add_u32 s12, s41, {i*8*32*9216}\n' + dma_txt(4, sd, 's12', f's_add_u32 m0, s81, {base+8192*i}'), f'g2_{part}', 1, ready)


XS = [16384, 90144, 24576, 98336, 32768, 106528, 40960, 114720, 49152]
B8L = 122912; STG = 57344
U = 208; CR = 224; XA = 224; BS8 = 228; STT = 232; ONES = 236; BS = 240; PAR = 250
scan_items = []
def phase_a():
    A(f"""
    s_cmp_ge_u32 s2, 256
    s_cbranch_scc1 K_END
    s_load_dwordx16 s[16:31], s[0:1], 0
    s_load_dwordx8 s[36:43], s[0:1], 80
    s_load_dwordx4 s[44:47], s[0:1], 112
    v_and_b32 v1, 63, v0
    v_lshrrev_b32 v2, 6, v0
    s_and_b32 s3, s2, 7
    s_lshr_b32 s4, s2, 3
    v_readfirstlane_b32 s7, v2
    s_lshr_b32 s5, s4, 3
    s_lshl_b32 s8, s3, 2
    s_add_u32 s5, s5, s8
    s_and_b32 s6, s4, 7
    s_lshr_b32 s8, s3, 2
    s_lshl_b32 s8, s8, 2
    s_lshr_b32 s9, s4, 3
    s_add_u32 s8, s8, s9
    s_and_b32 s9, s3, 3
    s_lshl_b32 s9, s9, 3
    s_add_u32 s9, s9, s6
    s_lshl_b32 s10, s8, 3
    s_add_u32 s10, s10, s7
    v_lshlrev_b32 v3, 4, v1
    v_lshrrev_b32 v4, 3, v1
    v_and_b32 v5, 7, v1
    v_add_u32 v6, 1024, v3
    v_cmp_gt_u32 vcc, 8, v1
    v_mov_b32 v7, 0x3ffffff0
    s_lshl_b32 s11, s5, 3
    s_add_u32 s11, s11, s6
    v_cndmask_b32 v6, v7, v6, vcc
    s_lshl_b32 s33, s11, 3
    s_add_u32 s33, s33, s7
    s_mul_i32 s13, s33, 1152
    v_mul_u32_u24 v8, 1152, v4
    v_bfe_u32 v9, v4, 1, 1
    s_and_b32 s14, s7, 6
    v_xor_b32 v9, s14, v9
    v_xor_b32 v9, v9, v5
    v_lshl_add_u32 v9, v9, 4, v8
    v_lshrrev_b32 v10, 1, v4
    v_xor_b32 v10, v10, v5
    v_lshl_add_u32 v10, v10, 4, v8
    v_xor_b32 v11, 64, v10
    s_lshl_b32 s14, s7, 6
    s_and_b32 s14, s14, 64
    v_xor_b32 v12, s14, v10
    s_lshl_b32 s14, s5, 3
    s_add_u32 s14, s14, s7
    s_mul_i32 s34, s14, {8*1152}
    s_lshl_b32 s14, s6, 3
    s_add_u32 s35, s14, s7
    s_mul_i32 s35, s35, {8*1152}
    s_add_u32 s80, s6, 64
    s_mul_i32 s80, s80, {8*1152}
    s_lshr_b32 s14, s7, 1
    s_lshl_b32 s14, s14, 7
    s_add_u32 s80, s80, s14
    s_lshl_b32 s81, s7, 10
    s_lshl_b32 s82, s7, 11
    s_waitcnt lgkmcnt(0)
    """)
    S(True); S(force=True)
    XRW = 80; XNR = 88; MR_ = 96; T0 = 100
    srd(A, 56, 16, 2359296)
    A(f'buffer_load_dwordx4 {vr(XRW,4)}, v3, s[56:59], s13 offen\nbuffer_load_dwordx4 {vr(XRW+4,4)}, v6, s[56:59], s13 offen')
    vm.add('xr', 2)
    srd(A, 60, 22, 663552); srd(A, 64, 24, 663552)
    A("""
    s_and_b32 s14, s7, 1
    s_cselect_b32 s68, s24, s22
    s_cselect_b32 s69, s25, s23
    s_mov_b32 s70, 663552
    s_mov_b32 s71, 0x20000
    s_mov_b32 s23, 100000
    """)
    def bsg(n): return 112 + 8*n if n < 8 else 88
    def b8(i):
        t = f's_add_u32 s12, s80, {512*i}\n' + dma_txt(12, 's[68:71]', 's12', f's_add_u32 m0, s81, {B8L+8192*i}')
        if i < 2: bg.push_m(t, f'b8_{i}', 1)
        else:
            sk = newlab('B8X'); bg.push_m(f's_cmp_ge_u32 s7, 2\ns_cbranch_scc1 {sk}\n' + t + f'@@LAB {sk}', 'b8_2', 0)
    def a2q(n):
        bg.push_m(f's_add_u32 s12, s34, {128*n}\n' + dma_txt(9, 's[56:59]', 's12', f's_add_u32 m0, s81, {XS[n]}'), f'ax{n}', 1)
        bg.push_m(f'buffer_load_dwordx4 {vr(bsg(n),4)}, v10, s[60:63], s35 offen offset:{128*n}', f'ab{n}', 1, 2 if n == 8 else 0)
        bg.push_m(f'buffer_load_dwordx4 {vr(bsg(n)+4,4)}, v11, s[64:67], s35 offen offset:{128*n}', f'ab{n}', 1)
    a2q(0); b8(0); a2q(1)
    bg.emit_m(4)
    srd(A, 72, 44, 256)
    A(f"""
    s_or_b32 s14, s2, s7
    s_cmp_lg_u32 s14, 0
    s_cbranch_scc1 NOTAG
    s_memrealtime s[84:85]
    s_waitcnt lgkmcnt(0)
    s_mul_i32 s14, s84, 0x9E3779B1
    s_or_b32 s14, s14, 1
    v_mov_b32 v8, s14
    s_mov_b64 exec, 1
    buffer_store_dword v8, off, {DBG}, 0 sc1
    s_mov_b64 exec, -1
    """)
    A.lab('NOTAG')
    srd(A, 48, 46, 0x10000000); srd(A, 52, 42, 4718592)
    U1 = 224; BS1 = 240
    AD = 196
    def setup():
        A(f"""
        v_and_b32 v13, 15, v1
        v_lshrrev_b32 v14, 4, v1
        v_bfe_u32 v2, v1, 1, 3
        v_xor_b32 v2, v2, v14
        v_lshlrev_b32 v2, 4, v2
        v_lshl_add_u32 v8, v13, 7, v2
        v_bfe_u32 v14, v1, 2, 2
        v_lshlrev_b32 v14, 11, v14
        v_and_b32 v13, 3, v1
        v_lshl_add_u32 v14, v13, 7, v14
        v_add_u32 v{AD}, v14, v2
        v_xor_b32 v{AD+1}, 64, v{AD}
        v_add_u32 v{AD+2}, 90144, v{AD}
        v_add_u32 v{AD+3}, 90144, v{AD+1}
        s_lshr_b32 s14, s7, 2
        s_lshl_b32 s14, s14, 6
        v_xor_b32 v{AD+8}, s14, v8
        v_add_u32 v{AD+8}, {B8L}, v{AD+8}
        v_xor_b32 v{AD+4}, s14, v{AD}
        s_and_b32 s14, s7, 3
        s_lshl_b32 s14, s14, 9
        v_add_u32 v{AD+4}, s14, v{AD+4}
        v_add_u32 v{AD+5}, 90144, v{AD+4}
        s_add_u32 s14, s82, {STG}
        v_add_u32 v192, s14, v8
        v_xor_b32 v193, 64, v192
        v_add_u32 v194, s14, v3
        v_mov_b32 v{ONES}, 0x3f803f80
        v_mov_b32 v{ONES+1}, 0x3f803f80
        v_mov_b32 v{ONES+2}, 0x3f803f80
        v_mov_b32 v{ONES+3}, 0x3f803f80
        s_mov_b32 s83, 0x3f803f80
        s_lshl_b32 s14, s6, 3
        v_add_u32 v14, s14, v5
        v_add_u32 v14, 512, v14
        s_add_u32 s14, s14, s7
        s_lshl_b32 s14, s14, 3
        v_add_u32 v13, s14, v5
        v_lshlrev_b32 v108, 1, v13
        v_lshlrev_b32 v109, 1, v14
        s_lshr_b32 s14, s9, 2
        s_mul_i32 s14, s14, 1152
        s_cmp_lt_u32 s2, 128
        s_cselect_b32 s76, s36, s38
        s_cselect_b32 s77, s37, s39
        s_mov_b32 s78, {576*9216}
        s_mov_b32 s79, 0x20000
        s_add_u32 s24, s36, s14
        s_addc_u32 s25, s37, 0
        s_sub_u32 s26, {576*9216}, s14
        s_mov_b32 s27, 0x20000
        s_add_u32 s36, s38, s14
        s_addc_u32 s37, s39, 0
        s_mov_b32 s38, s26
        s_mov_b32 s39, 0x20000
        s_and_b32 s14, s9, 3
        s_lshl_b32 s32, s14, 8
        s_mul_i32 s41, s7, {8*9216}
        s_add_u32 s32, s32, s41
        s_mul_i32 s40, s10, 36864
        v_bfe_u32 v0, v1, 2, 3
        v_mul_u32_u24 v0, 9216, v0
        v_lshrrev_b32 v13, 5, v1
        v_lshl_add_u32 v0, v13, 6, v0
        v_and_b32 v13, 3, v1
        v_lshl_add_u32 v0, v13, 4, v0
        v_lshlrev_b32 v110, 7, v1
        v_min_u32 v110, {41*128}, v110
        s_and_b32 s14, s2, 127
        s_lshl_b32 s14, s14, 3
        s_add_u32 s14, s14, s7
        s_mul_i32 s41, s14, 5184
        s_and_b32 s41, s41, 0xffffff80
        s_lshl_b32 s14, s7, 4
        s_add_u32 s14, s14, {TB}
        v_lshl_add_u32 v{AD+6}, v1, 7, s14
        s_add_u32 s14, s81, {TB}
        v_add_u32 v{AD+7}, s14, v3
        v_lshlrev_b32 v{AD+9}, 9, v4
        v_lshl_add_u32 v{AD+9}, v5, 4, v{AD+9}
        s_lshr_b32 s42, s11, 2
        s_mul_i32 s42, s42, 36864
        s_and_b32 s14, s6, 3
        s_lshl_b32 s14, s14, 7
        s_add_u32 s42, s42, s14
        s_lshl_b32 s14, s7, 12
        s_add_u32 s42, s42, s14
        s_lshl_b32 s43, s33, 3
        s_add_u32 s43, s43, {STAT_OFF}
        v_lshlrev_b32 v17, 2, v1
        v_and_b32 v17, 127, v17
        s_lshl_b32 s33, s8, 7
        s_add_u32 s33, s33, {FX_OFF}
        """)
    a2q(2); a2q(3)
    valu_with_vmem(capture(setup), every=P('A0EVERY', 10))
    b8(1)
    bg.push_m(f'global_load_ushort v{PAR}, v108, s[18:19]\nglobal_load_ushort v{PAR+1}, v108, s[20:21]\nglobal_load_ushort v{PAR+2}, v108, s[30:31]', 'par', 3)
    bg.push_m(f'global_load_ushort v{PAR+3}, v109, s[18:19]\nglobal_load_ushort v{PAR+4}, v109, s[20:21]\nglobal_load_ushort v{PAR+5}, v109, s[30:31]', 'par', 3)
    bg.push_m(f'buffer_load_dword v15, off, {DBG}, 0 sc1', 'tag', 1)
    a2q(4); a2q(5); a2q(6); a2q(7); b8(2); a2q(8)
    k1_dma(0, 0); k1_dma(0, 1)
    if P('TOUCH', 1): bg.push_m('buffer_load_dword v111, v110, s[76:79], s41 offen', 'touch', 1)
    def a1():
        for q in range(8):
            c0 = '0' if q == 0 else f'v{MR_}'; c1 = '0' if q == 0 else f'v{MR_+1}'
            A(f'v_dot2_f32_bf16 v{MR_}, v{XRW+q}, s83, {c0}\nv_dot2_f32_bf16 v{MR_+1}, v{XRW+q}, v{XRW+q}, {c1}')
        A('s_nop 2')
        for pat in ('quad_perm:[1,0,3,2] row_mask:0xf', 'quad_perm:[2,3,0,1] row_mask:0xf', 'row_half_mirror row_mask:0xf', 'row_mirror row_mask:0xf',
                    'row_bcast:15 row_mask:0xa', 'row_bcast:31 row_mask:0xc'):
            A(f'v_add_f32_dpp v{MR_}, v{MR_}, v{MR_} {pat} bank_mask:0xf\nv_add_f32_dpp v{MR_+1}, v{MR_+1}, v{MR_+1} {pat} bank_mask:0xf\ns_nop 0')
        A(f'v_readlane_b32 s44, v{MR_}, 63\nv_readlane_b32 s45, v{MR_+1}, 63\ns_nop 1\nv_mov_b32 v{MR_}, s44\nv_mov_b32 v{MR_+1}, s45')
        ln_stats(MR_, MR_+2)
        A(f's_mov_b32 s44, 0xffff0000\nv_sub_f32 v18, 0, v{MR_}\nv_sub_f32 v19, 0, v{MR_}\nv_mov_b32 v20, v{MR_+1}\nv_mov_b32 v21, v{MR_+1}')
        for h in range(2):
            for q in range(4):
                x = XRW+4*h+q; a = T0+2*q
                A(f'v_lshlrev_b32 v{a}, 16, v{x}\nv_and_b32 v{a+1}, s44, v{x}')
            for q in range(4):
                a = T0+2*q; A(f'v_pk_add_f32 {vr(a,2)}, {vr(a,2)}, v[18:19]')
            for q in range(4):
                a = T0+2*q; A(f'v_cvt_pk_bf16_f32 v{a+1}, v{a}, v{a+1}')
            for q in range(4):
                a = T0+2*q; A(f'v_lshlrev_b32 v{a}, 16, v{a+1}\nv_and_b32 v{a+1}, s44, v{a+1}')
            for q in range(4):
                a = T0+2*q; A(f'v_pk_mul_f32 {vr(a,2)}, {vr(a,2)}, v[20:21]')
            for q in range(4):
                a = T0+2*q; A(f'v_cvt_pk_bf16_f32 v{XNR+4*h+q}, v{a}, v{a+1}')
    vm.wait('xr'); S(z='a2')
    a1l = capture(a1)
    NPRE = P('A1PRE', 1000); TBN = P('TBN', 0); FLN = P('FLN', 4)
    valu_with_vmem(a1l[:NPRE], every=P('A1EVERY', 12))
    it = a1l[NPRE:]
    it.append(('ds', f'ds_write_b128 v{AD+6}, {vr(XNR,4)}', 'tbw'))
    it.append(('ds', f's_mov_b64 exec, 0xff\nds_write_b128 v{AD+6}, {vr(XNR+4,4)} offset:8192\ns_mov_b64 exec, -1', 'tbw'))
    it.append(('vm', f's_mov_b64 exec, 1\nbuffer_store_dwordx2 {vr(MR_,2)}, off, {WS}, s43 sc1\ns_mov_b64 exec, -1', 'xn', 1))
    bg.push_v(it)
    E = 72
    def reads(sg):
        n = sg // 2; sp = sg % 2; F = 24 + 16*(sg % 3)
        xo = XS[n] if n % 2 == 0 else XS[n] - 90144
        for t in range(4): A(f'ds_read_b128 {vr(F+4*t,4)}, v{AD+2*(n%2)+sp} offset:{xo+512*t}')
        lg.add(f'r{sg}', 4)
    def ereads(n):
        xo = XS[n] if n % 2 == 0 else XS[n] - 90144
        A(f'ds_read_b128 {vr(E,4)}, v{AD+4+(n%2)} offset:{xo}\nds_read_b128 {vr(E+4,4)}, v{AD+8} offset:{2048*n}'); lg.add(f'e{n}', 2)
    def bswap(n):
        bg.flush_m(f'ab{n}'); vm.wait(f'ab{n}')
        Fb = 176 + 8*(n % 2)
        A(f'ds_write_b128 v194, {vr(bsg(n),4)}\nds_write_b128 v194, {vr(bsg(n)+4,4)} offset:1024')
        A(f'ds_read_b128 {vr(Fb,4)}, v192\nds_read_b128 {vr(Fb+4,4)}, v193'); lg.add(f'b{n}', 4)
    def xn_out():
        sk = newlab('NOXN8')
        A(f'ds_read_b128 {vr(XRW,4)}, v{AD+7}'); lg.add('tbr')
        A(f's_cmp_lg_u32 s7, 0\ns_cbranch_scc1 {sk}\nds_read_b128 {vr(XRW+4,4)}, v{AD+7} offset:8192\ns_add_u32 s12, s42, 32768\ns_waitcnt lgkmcnt(0)\nbuffer_store_dwordx4 {vr(XRW+4,4)}, v{AD+9}, {WS}, s12 offen sc1')
        A.lab(sk)
        bg.push_v([('lgw', 'tbr'), ('vm', f'buffer_store_dwordx4 {vr(XRW,4)}, v{AD+9}, {WS}, s42 offen sc1', 'xn', 1)])
        bg.push_v([('vmw', 'par')] + capture(lambda: unit_consts(PAR, T0)), 7)
    if TBN == 0: bg.emit_v(10**9); lg.wait('tbw')
    bg.flush_m('ax0', 'ax1', 'b8_0'); vm.wait('ax0', 'ax1', 'b8_0')
    A('s_barrier'); S(); S(z='a2')
    if TBN == 0: xn_out()
    bswap(0); reads(0); reads(1)
    VG = P('A2VG', 2); PXS = P('PXS', 15)
    for sg in range(18):
        n = sg // 2; sp = sg % 2; F = 24 + 16*(sg % 3)
        if sg < 16:
            n1 = (sg + 2) // 2
            if (sg + 2) % 4 == 0:
                tags = [f'ax{n1}'] + ([f'ax{n1+1}'] if n1 < 8 else []) + (['b8_1'] if n1 == 4 else [])
                if n1 == TBN: bg.emit_v(10**9); lg.wait('tbw')
                bg.flush_m(*tags, 'b8_2' if n1 == 8 else 'zz'); vm.wait(*tags)
                if n1 == FLN: bg.flush_m('tag'); vm.wait('xn'); get_tag()
                A('s_barrier'); S(z='a2')
                if n1 == TBN: xn_out()
                if n1 == FLN: flag_store(6, f's_lshl_b32 s14, s11, 2\ns_add_u32 s14, s14, {FX_OFF}', 13)
                if n1 >= 4: k1_dma(0, n1 // 2)
            reads(sg + 2)
        if sp == 0: ereads(n)
        lg.wait(f'r{sg}')
        z = (sg == 0)
        if sp == 0: lg.wait(f'b{n}')
        def c(rg, zz=z): return '0' if zz else vr(rg, 4)
        UU = U; BB = BS; BF_ = 176 + 8*(n % 2) + 4*sp
        ms = [f'v_mfma_f32_16x16x32_bf16 {vr(UU+4*t,4)}, {vr(F+4*t,4)}, {vr(BF_,4)}, {c(UU+4*t)}' for t in range(4)]
        ms += [f'v_mfma_f32_16x16x32_bf16 {vr(BB,4)}, {vr(ONES,4)}, {vr(BF_,4)}, {c(BB)}']
        if sp == 1:
            lg.wait(f'e{n}')
            ms += [f'v_mfma_f32_16x16x32_bf16 {vr(XA,4)}, {vr(E,4)}, {vr(E+4,4)}, {c(XA, sg == 1)}', f'v_mfma_f32_16x16x32_bf16 {vr(BS8,4)}, {vr(ONES,4)}, {vr(E+4,4)}, {c(BS8, sg == 1)}']
        for i, m in enumerate(ms):
            A(m)
            if sp == 1 and i < 4:
                c0 = '0' if (sg == 1 and i == 0) else f'v{STT}'; c1 = '0' if (sg == 1 and i == 0) else f'v{STT+1}'
                A(f'v_dot2_f32_bf16 v{STT}, v{E+i}, s83, {c0}\nv_dot2_f32_bf16 v{STT+1}, v{E+i}, v{E+i}, {c1}')
            elif not (sp == 1 and i == 4): bg.emit_v(P('A2R', 4) if sg < 6 else 3, sg)
            if sp == 0 and i == 4 and n < 8: bswap(n + 1)
            if i % VG == VG - 1: bg.emit_m(1, sg)
        if sg == PXS: bg.m.insert(0, (0, lambda: poll_issue(16, 17, 's33', 'pfx'), 'pfx', 0))
        if sg == PXS + 2:
            bg.flush_m('pfx'); poll_check(16, 17, 's33', 'pfx')
            for ks in range(16): k1_xload(ks, 2*(ks//2) - 1)
    bg.emit_v(10**9)
    S(); S(z='a2')
    A(f"""
    v_bfe_u32 v13, v1, 2, 2
    v_lshlrev_b32 v13, 10, v13
    v_and_b32 v14, 3, v1
    v_lshl_add_u32 v13, v14, 6, v13
    v_lshrrev_b32 v14, 4, v1
    v_lshl_add_u32 v13, v14, 3, v13
    s_and_b32 s14, s7, 3
    s_lshl_b32 s14, s14, 8
    s_lshr_b32 s13, s7, 2
    s_lshl_b32 s13, s13, 5
    s_add_u32 s14, s14, s13
    s_add_u32 s14, s14, {EX_S}
    v_add_u32 v13, s14, v13
    s_add_u32 s14, s81, {EX_T}
    v_add_u32 v14, s14, v3
    s_lshl_b32 s14, s7, 8
    s_add_u32 s14, s14, {EX_B}
    v_lshl_add_u32 v2, v1, 2, s14
    ds_write_b64 v13, {vr(STT,2)}
    ds_write_b128 v14, {vr(XA,4)}
    ds_write_b32 v2, v{BS8}
    v_lshlrev_b32 v13, 6, v1
    v_add_u32 v13, {EX_S}, v13
    """)
    bg.flush_m('w0_0', 'w0_1', 'touch'); vm.wait('w0_0', 'w0_1'); vm.wait('touch') if P('TOUCH', 1) else None
    A('s_waitcnt lgkmcnt(0)\ns_barrier'); lg.q = []
    S(z='a3')
    for k in range(4): A(f'ds_read_b128 {vr(CR+4*k,4)}, v13 offset:{16*k}'); lg.add('st1')
    k1_dma(0, 5); k1_dma(0, 6)
    bg.m = [(0,) + tuple(t[1:]) for t in bg.m]
    bg.emit_m(2)
    LR, SLI, A1, A2c, L16R, SL16I = CONSTS
    E0 = 16; T2, T3, EE = 20, 21, 15; W0, W1, W2 = 241, 242, 243; TA, TB_ = 22, 23
    def st2():
        for k in range(1, 8): A(f'v_pk_add_f32 {vr(CR,2)}, {vr(CR,2)}, {vr(CR+2*k,2)}')
        ln_stats(CR, CR+2)
        A(f"""
        v_mul_f32 v{CR}, -v{CR}, v{CR+1}
        s_lshl_b32 s44, s7, 9
        s_add_u32 s44, s44, {EX_R}
        v_lshl_add_u32 v{W0}, v1, 3, s44
        v_lshrrev_b32 v{W1}, 4, v1
        v_lshl_add_u32 v{W2}, v{W1}, 7, s44
        """)
    def fin_items(tg, sc):
        it = []
        for hf in range(2):
            it += [('ds', f'ds_read_b128 {vr(CR+4*k,4)}, v{W2} offset:{64*hf+16*k}', f'{tg}cr{hf}') for k in range(4)]
            if hf == 0 and tg == '':
                it += capture(lambda: A("""
                v_and_b32 v8, 15, v1
                v_lshlrev_b32 v8, 2, v8
                v_add_u32 v9, 64, v8
                v_add_u32 v10, 128, v8
                v_add_u32 v12, 192, v8
                s_mul_i32 s83, s11, 9
                s_add_u32 s83, s83, s7
                """))
            it.append(('lgw', f'{tg}cr{hf}'))
            it += [f'v_mul_f32 v{U+8*hf+k}, v{CR+1+2*k}, v{U+8*hf+k}' for k in range(8)]
            it += [f'v_fmac_f32 v{U+8*hf+k}, v{CR+2*k}, v{BS}' for k in range(8)]
        tt = (TA, TB_)
        it += [f'v_mul_f32 v{tt[0]}, v{A1}, v{U}', f'v_fmac_f32_dpp v{tt[0]}, v{U}, v{A2c} {DPP8}',
               f'v_mul_f32 v{tt[1]}, v{A1}, v{U+1}', f'v_fmac_f32_dpp v{tt[1]}, v{U+1}, v{A2c} {DPP8}', f'v_mov_b32 v{U}, v{tt[0]}']
        for k in range(1, 16):
            t_ = tt[k % 2]; o_ = tt[(k+1) % 2]
            it.append(f'v_fma_f32 v{U+k}, v{LR}, v{U+k-1}, v{t_}')
            if k < 15: it.append(f'v_mul_f32 v{o_}, v{A1}, v{U+k+1}')
            else: it.append('s_nop 0')
            it.append(f'v_fmac_f32_dpp v{U+k}, v{U+k-1}, v{SLI} {DPP8}')
            if k < 15: it.append(f'v_fmac_f32_dpp v{o_}, v{U+k+1}, v{A2c} {DPP8}')
        it += [('ds', f'ds_bpermute_b32 v{E0+g}, v{(8,9,10,12)[g]}, v{U+15}', tg+'bp') for g in range(4)]
        it.append(f's_mul_i32 s45, s83, {H0_UNIT}\ns_add_u32 s45, s45, {H0_OFF}')
        it += [('vm', f'buffer_store_dwordx4 {vr(U+4*k,4)}, v3, {WS}, s45 offen offset:{1024*k}{sc}', tg+'h0', 1) for k in range(4)]
        it.append(('lgw', tg+'bp'))
        ee = EE if tg == '' else 14
        def part2():
            mapply(A, T2, E0, L16R, SL16I, E0+1); mapply(A, T3, T2, L16R, SL16I, E0+2); mapply(A, ee, T3, L16R, SL16I, E0+3)
            A(f'v_mov_b32 v{W0}, 0')
        it += capture(part2)
        for k, r in enumerate((E0, T2, T3)): it.append(f'v_cmp_eq_u32 vcc, {k+1}, v{W1}\ns_nop 1\nv_cndmask_b32 v{W0}, v{W0}, v{r}, vcc')
        it.append(('vm', f'v_lshlrev_b32 v{E0}, 2, v1\ns_add_u32 s12, s45, 4096\nbuffer_store_dword v{W0}, v{E0}, {WS}, s12 offen{sc}', tg+'h0', 1))
        return it
    it = [('lgw', 'st1')] + capture(st2)
    it.append(('ds', f'ds_write_b64 v{W0}, {vr(CR,2)}', 'crw'))
    it += fin_items('', '')
    def unit8():
        sv = (list(vm.q), list(bg.v))
        A(f"""
        s_cmp_lg_u32 s7, 7
        s_cbranch_scc1 UNIT_DONE
        s_add_u32 s83, s83, 1
        v_add_u32 v{W0}, {EX_T}, v3
        v_lshlrev_b32 v{E0}, 2, v1
        v_add_u32 v{E0}, {EX_B}, v{E0}
        """)
        for t in range(4):
            A(f'ds_read_b128 {vr(U+4*t,4)}, v{W0} offset:{1024*t}\nds_read_b128 {vr(CR+4*t,4)}, v{W0} offset:{1024*(t+4)}')
        A(f'ds_read_b32 v{BS}, v{E0}\nds_read_b32 v{W0}, v{E0} offset:1024')
        unit_consts(PAR+3, 16)
        A('s_waitcnt lgkmcnt(0)')
        for k in range(16): A(f'v_add_f32 v{U+k}, v{U+k}, v{CR+k}')
        A(f'v_add_f32 v{BS}, v{BS}, v{W0}')
        lq = list(lg.q); lg.q = []
        bg.v = []; bg.push_v(fin_items('u8', ' sc1')); bg.emit_v(10**9)
        A('s_sub_u32 s83, s83, 1')
        A.lab('UNIT_DONE')
        lg.q = lq; vm.q, bg.v = sv
    if not P('NOU8', 0): it.append(('call', unit8))
    if P('NOSCAN', 0): it = [x for x in it if not isinstance(x, str) or x.startswith('s_') or 'v_lshl' in x or 'v_and_b32 v8' in x or 'v_add_u32' in x or 'v_lshr' in x]
    it.append(('call', lambda: scan_done.append(1)))
    scan_items.extend(it)
    S(); S(z='a3')
scan_done = []

FA = 168; FT_ = 199
def phase_k1():
    KS1 = P('KS1', 24); HD = 4; LOOK = 4
    seq = [(ks, fb) for ks in range(KS1) for fb in range(4)]
    seq += [(ks, fb) for fb in range(4) for ks in range(KS1, 36)]
    seq += [(ks, fb) for fb in (4, 5) for ks in range(24)] + [(ks, fb) for fb in (4, 5) for ks in range(24, 36)]
    seq += [(ks, fb) for fb in (6, 7) for ks in range(24)] + [(ks, fb) for fb in (6, 7) for ks in range(24, 36)]
    seq += [(ks, 8) for ks in range(36)]
    N = len(seq)
    P2 = 4*KS1; P3 = P2 + 2*(36-KS1); P4, P5, P6 = 144, 216, 288
    A(f'''
    v_bfe_u32 v13, v1, 4, 1
    v_lshrrev_b32 v14, 5, v1
    v_and_b32 v2, 15, v1
    v_lshlrev_b32 v2, 3, v2
    v_mul_u32_u24 v5, {UREG}, v13
    v_lshl_add_u32 v5, v14, 10, v5
    v_add_u32 v5, v5, v2
    v_and_b32 v6, 12, v1
    v_lshl_add_u32 v5, v6, 3, v5
    v_add_u32 v6, 36864, v5
    ''')
    A(f'v_mul_u32_u24 v7, {G2U}, v13\nv_lshl_add_u32 v7, v14, 8, v7\nv_add_u32 v7, v7, v2')
    setup2 = capture(lambda: A(f'''
    v_lshrrev_b32 v4, 1, v1
    v_mul_u32_u24 v4, 9216, v4
    v_and_b32 v13, 1, v1
    v_lshl_add_u32 v4, v13, 4, v4
    s_mul_i32 s41, s7, {32*9216}
    s_and_b32 s13, s9, 3
    s_lshl_b32 s13, s13, 5
    s_add_u32 s41, s41, s13
    s_add_u32 s41, s41, 1024
    s_mov_b32 s42, {f32(-2.302208198*0.044715)}
    v_mov_b32 v11, {f32(-2.302208198)}
    s_lshr_b32 s14, s9, 2
    s_mul_i32 s14, s14, 9
    s_and_b32 s13, s9, 3
    s_lshl_b32 s34, s13, 1
    s_add_u32 s34, s34, s14
    s_lshl_b32 s34, s34, 12
    s_mul_i32 s43, s10, 294912
    s_add_u32 s43, s43, {HF_OFF}
    s_add_u32 s14, s14, 8
    s_lshl_b32 s14, s14, 12
    s_lshl_b32 s13, s13, 10
    s_add_u32 s14, s14, s13
    s_add_u32 s35, s43, s14
    s_add_u32 s43, s43, s34
    s_lshl_b32 s34, s8, 5
    s_add_u32 s34, s34, s9
    s_lshl_b32 s34, s34, 2
    s_add_u32 s34, s34, {FH_OFF}
    '''))
    bg.push_v(scan_items); bg.push_v(setup2)
    for k in range(16, 24): k1_xload(k)
    def wread(m):
        ks, fb = seq[m]
        r = WR + 4*(m % NW)
        if fb < 8: ad = 5 if ks < 18 else 6; off = (ks % 18)*2048 + ((fb % 4) >> 1)*512 + (fb & 1)*32; o2 = 256
        else: ad = 7; off = ks*512; o2 = 128
        A(f'ds_read_b64_tr_b16 {vr(r,2)}, v{ad} offset:{off}\nds_read_b64_tr_b16 {vr(r+2,2)}, v{ad} offset:{off+o2}')
        lg.add(f'm{m}', 2)
    busy = set()
    def make_epi(fb):
        a = ACC + 16*(fb % 4); t = TMP
        out = []
        for half in range(2):
            es = range(4*half, 4*half+4)
            for e in es: out.append(f'v_mul_f32 v{t+e%4}, v{a+e}, v{a+e}')
            for e in es: out.append(f'v_fma_f32 v{t+e%4}, v{t+e%4}, s42, v11')
            for e in es: out.append(f'v_mul_f32 v{t+e%4}, v{t+e%4}, v{a+e}')
            for e in es: out.append(f'v_exp_f32 v{t+e%4}, v{t+e%4}')
            for e in es: out.append(f'v_mul_f32 v{a+e}, v{a+e}, v{a+8+e}')
            for e in es: out.append(f'v_add_f32 v{t+e%4}, 1.0, v{t+e%4}')
            for e in es: out.append(f'v_rcp_f32 v{t+e%4}, v{t+e%4}')
            out.append('s_nop 0')
            for e in es: out.append(f'v_mul_f32 v{a+e}, v{a+e}, v{t+e%4}')
            out.append(f'v_cvt_pk_bf16_f32 v{t+4+2*half}, v{a+4*half}, v{a+4*half+1}')
            out.append(f'v_cvt_pk_bf16_f32 v{t+5+2*half}, v{a+4*half+2}, v{a+4*half+3}')
        out.append(('call', lambda: busy.discard(fb % 4)))
        if fb < 4: st = f'buffer_store_dwordx4 {vr(t+4,4)}, v3, {WS}, s43 offen offset:{fb*1024} sc1'
        elif fb < 8: st = f's_add_u32 s12, s43, 4096\nbuffer_store_dwordx4 {vr(t+4,4)}, v3, {WS}, s12 offen offset:{(fb-4)*1024} sc1'
        else: st = f'buffer_store_dwordx4 {vr(t+4,4)}, v3, {WS}, s35 offen sc1'
        out.append(('vm', st, f'h{fb}', 1))
        return out
    def flagH(g): return lambda: flag_store(0, f's_add_u32 s14, s34, {1024*g}', 2)
    def flagE(): flag_store(1, f's_lshl_b32 s14, s6, 5\ns_add_u32 s14, s14, s5\ns_lshl_b32 s14, s14, 2\ns_add_u32 s14, s14, {FE_OFF}', 2)
    def xl(a, b): return lambda: [k1_xload(k) for k in range(a, b)]
    def wd(g, *ns): return lambda: [k1_dma(g, n) for n in ns]
    assert KS1 == 24
    def chk_scan(): assert scan_done
    def estore():
        sk = newlab('E8')
        bg.push_m(f's_lshl_b32 s12, s83, 6\ns_add_u32 s12, s12, {E_OFF}\ns_cmp_lg_u32 s7, 7\ns_cbranch_scc1 {sk}\nbuffer_store_dword v14, v8, {WS}, s12 offen offset:64 sc1@@LAB {sk}@@buffer_store_dword v15, v8, {WS}, s12 offen sc1', 'est', 1)
    def touch2():
        if not P('TOUCH', 1): return
        bg.push_m(f'''s_load_dwordx2 s[76:77], s[0:1], 96
        v_lshlrev_b32 v13, 7, v1
        v_min_u32 v13, {21*128}, v13
        s_lshl_b32 s12, s2, 3
        s_add_u32 s12, s12, s7
        s_mul_i32 s12, s12, 2592
        s_and_b32 s12, s12, 0xffffff80
        s_mov_b32 s78, {4608*1152}
        s_mov_b32 s79, 0x20000
        s_waitcnt lgkmcnt(0)
        buffer_load_dword v9, v13, s[76:79], s12 offen''', 'touch2', 1)
    sync = {
        32:  (['w0_2', 'w0_3'], [wd(0, 7)]),
        64:  (['w0_4', 'w0_5'], [chk_scan, xl(24, 28), wd(0, 8), xl(28, 36), wd(1, 0, 1, 2)]),
        96:  (['w0_6', 'w0_7'], [wd(1, 3, 4)]),
        104: (['w0_8'], [wd(1, 5), estore, touch2]),
        144: (['w1_0', 'w1_1', 'w1_2', 'w1_3', 'w1_4', 'w1_5'], [wd(1, 6, 7)]),
        150: ([], [wd(1, 8)]),
        192: (['w1_6', 'w1_7', 'w1_8', 'est'], [flagE]),
        P5+20: (['h3'], [flagH(0)]),
        P5+40: ([], [lambda: k1_dma_g2(0)]),
        P5+48: ([], [lambda: k1_dma_g2(1)]),
        P6:  (['g2_0', 'g2_1'], []),
        P6+4: (['h5'], [flagH(1), k2_prefetch]),
    }
    def do_sync(m):
        if m in sync:
            tags, acts = sync[m]
            bg.flush_m(*tags); vm.wait(*tags); A('s_barrier')
            for f in acts: f()
    seen_x = set()
    S()
    for m in range(LOOK): wread(m)
    for n in range(N):
        ks, fb = seq[n]
        if n in (P4, P6): S()
        if n % 32 == 0: S(z='k1')
        if n == P5 + 56: k2_setup()
        if n + LOOK < N:
            do_sync(n + LOOK); wread(n + LOOK)
        if ks not in seen_x:
            seen_x.add(ks); bg.flush_m(f'x{ks}'); vm.wait(f'x{ks}')
        first = (ks == 0)
        if first: assert (fb % 4) not in busy, (n, fb)
        lg.wait(f'm{n}')
        a = ACC + 16*(fb % 4)
        A(f'v_mfma_f32_32x32x16_bf16 {vr(a,16)}, {vr(WR+4*(n%NW),4)}, {vr(XR+4*ks,4)}, {"0" if first else vr(a,16)}')
        if ks == 35:
            busy.add(fb % 4); bg.push_v(make_epi(fb), n + 4)
        if n == P6 + 22: fix_loads('s11', 's7')
        gap = P('G1', 2) if n < P2 else (P('G2', 2) if n < P6 else 1)
        if n % gap == gap - 1: bg.emit_m(1, n)
        rate = P('R0', 5) if n < 64 else (P('R1', 3) if n < P6 else P('P6RATE', 4))
        bg.emit_v(rate, n)
    assert not bg.m
    while busy - {0}: bg.emit_v(4)
    S(); S(z='fx')

def fix_loads(swg, sunit, base=None):
    base = FA if base is None else base
    pcalc = f's_lshl_b32 s12, s12, 3\ns_add_u32 s12, s12, {sunit}\ns_lshl_b32 s12, s12, 3' if sunit == 's7' else 's_lshl_b32 s12, s12, 3\ns_add_u32 s12, s12, 512'
    pre = f'''s_mul_i32 s16, {swg}, 9
    s_add_u32 s16, s16, {sunit}
    s_mul_i32 s17, s16, {H0_UNIT}
    s_add_u32 s17, s17, {H0_OFF}
    s_and_b32 s12, {swg}, 7
    {pcalc}
    v_and_b32 v{base+30}, 7, v1
    v_add_u32 v{base+28}, s12, v{base+30}
    v_lshlrev_b32 v{base+30}, 1, v{base+28}
    s_lshr_b32 s22, {swg}, 3
    s_lshl_b32 s22, s22, 7
    s_add_u32 s22, s22, {HT_OFF}
    global_load_ushort v{base+25}, v{base+30}, s[18:19]
    global_load_ushort v{base+26}, v{base+30}, s[20:21]
    global_load_ushort v{base+27}, v{base+30}, s[30:31]'''
    bg.push_m(pre, 'fx', 3)
    pre2 = f'''s_lshl_b32 s16, s16, 6
    v_lshrrev_b32 v{base+30}, 4, v1
    v_mul_u32_u24 v{base+30}, {8*4608}, v{base+30}
    v_and_b32 v{base+29}, 15, v1
    v_lshl_add_u32 v{base+29}, v{base+29}, 2, s16
    v_sub_u32 v{base+29}, v{base+29}, v{base+30}
    '''
    for i in range(0, 8, 2):
        t = pre2 if i == 0 else ''
        for k in (i, i+1): t += f'v_subrev_u32 v{base+29}, 4608, v{base+29}\nbuffer_load_dword v{base+17+k}, v{base+29}, s[60:63], 0 offen sc1\n'
        bg.push_m(t, 'fx', 2)
    for k in range(4): bg.push_m(f'buffer_load_dwordx4 {vr(base+4*k,4)}, v3, {WS}, s17 offen offset:{1024*k} sc1', 'fx', 1)
    bg.push_m(f'v_lshlrev_b32 v{base+30}, 2, v1\ns_add_u32 s12, s17, 4096\nbuffer_load_dword v{base+16}, v{base+30}, {WS}, s12 offen sc1', 'fx', 1)
def fix_items():
    t = FT_
    LR, LI, SG = t, t+1, t+2
    PR, PI = t+3, t+4; QR, QI = t+5, t+6; L64R, L64I = t+7, t+8
    it = [('vmw', 'fx')]
    def p1():
        lam_consts(A, FA+25, FA+26, FA+27, LR, LI, 0, 0, t+9, t+10, t+11, t+12, need_coef=False)
        A(f'v_and_b32 v{SG}, 8, v1\nv_lshlrev_b32 v{SG}, 28, v{SG}')
        csq(A, LR, LI, t+23, t+24, t+9)
        csq(A, t+23, t+24, PR, PI, t+9)
        A(f'v_xor_b32 v{t+24}, v{SG}, v{t+24}')
        for _ in range(2): csq(A, PR, PI, PR, PI, t+9)
        A(f'v_mov_b32 v{t+13}, v{PR}\nv_mov_b32 v{t+14}, v{PI}')
        csq(A, PR, PI, PR, PI, t+9)
        cmul(A, PR, PI, t+13, t+14, t+15, t+16)
        A(f'v_lshrrev_b32 v{t+21}, 4, v1\nv_mov_b32 v{QR}, 1.0\nv_mov_b32 v{QI}, 0')
    it += capture(p1)
    for k, (a, b) in enumerate(((t+13, t+14), (PR, PI), (t+15, t+16))):
        it.append(f'v_cmp_eq_u32 vcc, {k+1}, v{t+21}\ns_nop 1\nv_cndmask_b32 v{QR}, v{QR}, v{a}, vcc\nv_cndmask_b32 v{QI}, v{QI}, v{b}, vcc')
    def p2():
        A(f'v_xor_b32 v{QI}, v{SG}, v{QI}')
        csq(A, PR, PI, L64R, L64I, t+9)
        csq(A, L64R, L64I, PR, PI, t+9)
        for _ in range(2): csq(A, PR, PI, PR, PI, t+9)
        A(f'v_xor_b32 v{L64I}, v{SG}, v{L64I}\nv_xor_b32 v{PI}, v{SG}, v{PI}\nv_xor_b32 v{LI}, v{SG}, v{LI}')
        for i in range(6, -1, -1): mapply(A, FA+17+i, FA+17+i+1, L64R, L64I, FA+17+i)
        A(f'''
        v_and_b32 v{t+17}, 15, v1
        v_lshlrev_b32 v{t+17}, 2, v{t+17}
        v_add_u32 v{t+18}, 64, v{t+17}
        v_add_u32 v{t+19}, 128, v{t+17}
        v_add_u32 v{t+20}, 192, v{t+17}
        ''')
    it += capture(p2)
    u = newlab('bp')
    for g in range(4): it.append(('ds', f'ds_bpermute_b32 v{FA+18+g}, v{t+17+g}, v{FA+17}', u))
    it += capture(lambda: A(f'''
    v_bfe_u32 v{t+22}, v1, 3, 1
    v_mul_u32_u24 v{t+22}, 576, v{t+22}
    v_add_u32 v{t+22}, v{t+22}, v{FA+28}
    v_lshlrev_b32 v{t+22}, 12, v{t+22}
    v_lshl_add_u32 v{t+22}, v{t+21}, 5, v{t+22}
    '''))
    it.append(('lgw', u))
    def p3():
        for g in (2, 1, 0): mapply(A, FA+18+g, FA+18+g+1, PR, PI, FA+18+g)
        mapply(A, FA+16, FA+18, QR, QI, FA+16)
        G = [FA+17, FA+18, FA+19, FA+20]
        mapply(A, G[0], FA+16, LR, LI, None)
        mapply(A, G[1], FA+16, t+23, t+24, None)
        for k in range(0, 16, 2):
            a0, a1, b0, b1 = (G[0], G[1], G[2], G[3]) if k % 4 == 0 else (G[2], G[3], G[0], G[1])
            A(f'v_add_f32 v{FA+k}, v{FA+k}, v{a0}')
            if k < 14: A(f'v_mul_f32 v{b0}, v{t+23}, v{a0}\nv_mul_f32 v{b1}, v{t+23}, v{a1}')
            A(f'v_add_f32 v{FA+k+1}, v{FA+k+1}, v{a1}')
            if k < 14: A(f'v_fmac_f32_dpp v{b0}, v{a0}, v{t+24} {DPP8}\nv_fmac_f32_dpp v{b1}, v{a1}, v{t+24} {DPP8}')
        for k in range(8): A(f'v_cvt_pk_bf16_f32 v{FA+k}, v{FA+2*k}, v{FA+2*k+1}')
    it += capture(p3)
    it.append(('vm', f'buffer_store_dwordx4 {vr(FA,4)}, v{t+22}, {WS}, s22 offen sc1\nbuffer_store_dwordx4 {vr(FA+4,4)}, v{t+22}, {WS}, s22 offen offset:16 sc1', 'ht', 2))
    return it

def k2_setup():
    A(f'''
    s_load_dwordx4 s[68:71], s[0:1], 40
    s_load_dwordx2 s[56:57], s[0:1], 96
    s_load_dwordx2 s[60:61], s[0:1], 120
    s_mul_i32 s14, s3, 30
    s_add_u32 s14, s14, s4
    s_mul_i32 s44, s14, 1366
    s_lshr_b32 s44, s44, 16
    s_mul_i32 s13, s44, 48
    s_sub_u32 s47, s14, s13
    s_mul_i32 s45, s47, 86
    s_lshr_b32 s45, s45, 8
    s_mul_i32 s13, s45, 3
    s_sub_u32 s46, s47, s13
    s_lshl_b32 s14, s45, 2
    s_lshr_b32 s13, s7, 1
    s_add_u32 s14, s14, s13
    s_mul_i32 s76, s14, 294912
    s_and_b32 s9, s7, 1
    s_lshr_b32 s10, s7, 2
    s_add_u32 s76, s76, {HF_OFF}
    s_mul_i32 s83, s7, 3072
    s_add_u32 s83, s83, 16384
    s_mul_i32 s80, s46, 384
    s_lshr_b32 s14, s45, 1
    s_lshl_b32 s32, s14, 7
    s_add_u32 s32, s32, {FH_OFF}
    s_waitcnt lgkmcnt(0)
    s_mov_b32 s58, {4608*1152}
    s_mov_b32 s59, 0x20000
    s_add_u32 s60, s60, {E_OFF}
    s_addc_u32 s61, s61, 0
    s_mov_b32 s62, {E_BYTES}
    s_mov_b32 s63, 0x20000
    v_lshlrev_b32 v15, 2, v1
    v_and_b32 v15, 127, v15
    s_lshl_b32 s33, s6, 7
    s_add_u32 s33, s33, {FE_OFF}
    ''')
    lg.q = []
    for i in range(3):
        A(f'''
        s_and_b32 s13, s7, 3
        s_mul_i32 s13, s13, 192
        s_add_u32 s13, s13, {64*i}
        v_add_u32 v12, s13, v1
        v_mul_u32_u24 v13, 2731, v12
        v_lshrrev_b32 v13, 16, v13
        v_mul_u32_u24 v14, 24, v13
        v_sub_u32 v14, v12, v14
        v_bfe_u32 v12, v13, 1, 1
        v_lshlrev_b32 v12, 2, v12
        v_xor_b32 v14, v14, v12
        v_mul_u32_u24 v13, 1152, v13
        v_lshl_add_u32 v{8+i}, v14, 4, v13
        ''')
    poll_issue(12, 15, 's32', 'pg0')
    poll_issue(13, 15, 's33', 'pfe')
for n_ in range(240): assert (n_*1366) >> 16 == n_//48
for n_ in range(48): assert (n_*86) >> 8 == n_//3
def k2_dma_ffn(n):
    slot = ((n + 1) % 4) * K2S
    def g0(dst, sel):
        return f'''s_add_u32 {dst}, s44, {5*n}
        s_lshr_b32 s12, {dst}, 2
        s_lshl_b32 {dst}, {dst}, 1
        s_add_u32 {dst}, {dst}, s12
        s_lshl_b32 {dst}, {dst}, 1
        s_add_u32 {dst}, {dst}, {sel}
        '''
    def g1(dst, sel):
        return f'''s_add_u32 {dst}, s44, {5*n-32}
        s_lshr_b32 s13, {dst}, 4
        s_and_b32 {dst}, {dst}, 15
        s_lshl_b32 {dst}, {dst}, 1
        s_add_u32 {dst}, {dst}, {sel}
        s_lshr_b32 s12, {dst}, 2
        s_lshl_b32 {dst}, {dst}, 1
        s_add_u32 {dst}, {dst}, s12
        s_lshl_b32 {dst}, {dst}, 1
        s_add_u32 {dst}, {dst}, s13
        s_add_u32 {dst}, {dst}, 2
        '''
    def g2(dst, sel):
        return f's_add_u32 {dst}, s44, {5*n-64}\ns_mul_i32 {dst}, {dst}, 18\ns_add_u32 {dst}, {dst}, 16\ns_add_u32 {dst}, {dst}, {sel}\n'
    def calc(dst, sel):
        lo, hi = 5*n, 5*n + 4
        if hi < 32: return g0(dst, sel)
        if lo >= 32 and hi < 64: return g1(dst, sel)
        if lo >= 64: return g2(dst, sel)
        f1, f2, th = (g0, g1, 32 - lo) if lo < 32 else (g1, g2, 64 - lo)
        return f1('s14', sel) + f2(dst, sel) + f's_cmp_lt_u32 s44, {th}\ns_cselect_b32 {dst}, s14, {dst}\n'
    preW = calc('s73', 's10') + f's_mul_i32 s73, s73, {32*1152}\ns_add_u32 s73, s73, s80\n'
    preH = calc('s72', 's9') + 's_lshl_b32 s72, s72, 11\ns_add_u32 s72, s72, s76\n'
    for i in range(3): bg.push_m((preW if i == 0 else '') + dma_txt(8+i, 's[56:59]', 's73', f's_add_u32 m0, s83, {slot+1024*i}'), f'k{n}', 1)
    bg.push_m(preH + dma_txt(3, WS, 's72', f's_add_u32 m0, s82, {slot}', sc=LSC), f'k{n}', 1)
    bg.push_m(dma_txt(3, WS, 's72', f's_add_u32 m0, s82, {slot}', imm=1024, sc=LSC), f'k{n}', 1)
def k2_dma_ssm(n, m):
    slot = ((n + 1) % 4) * K2S
    e0 = {14: -2, 15: 3, 16: 9, 17: 14}[n]
    sp = 's_cmp_eq_u32 s44, 3\ns_cselect_b32 s73, 8, s73\ns_min_u32 s73, s73, 17\n' if n == 17 else ''
    pre = f'''s_add_i32 s73, s44, {e0}
    {sp}
    s_lshl_b32 s72, s73, 18
    s_add_u32 s72, s72, s29
    s_cmp_lt_u32 s73, 9
    s_cselect_b32 s64, s68, s70
    s_cselect_b32 s65, s69, s71
    s_cselect_b32 s12, 0, 9
    s_sub_u32 s73, s73, s12
    s_lshl_b32 s73, s73, 7
    s_add_u32 s73, s73, s74
    '''
    for i in range(3):
        bg.push_m((pre if i == 0 else '') + f's_add_u32 s12, s73, {i*8*1152}\n' + dma_txt(5 + (i % 2), 's[64:67]', 's12', f's_add_u32 m0, s83, {slot+1024*i}'), f'k{n}', 1)
    bg.push_m(dma_txt(4, WS, 's72', f's_add_u32 m0, s82, {slot}', sc=LSC), f'k{n}', 1)
    bg.push_m('s_add_u32 s12, s72, 16384\n' + dma_txt(4, WS, 's12', f's_add_u32 m0, s82, {slot+1024}', sc=LSC), f'k{n}', 1)
def k2_prefetch():
    poll_check(13, 15, 's33', 'pfe')
    poll_check(12, 15, 's32', 'pg0')
    for n in range(3): k2_dma_ffn(n)

def phase_k2():
    ACC2 = 64; AF = 24; BF = 32
    BR = [32, 36, 40, 44, 128, 132]
    RA, RB, SA, SB = 224, 226, 232, 234
    VH, VC, VO, VF = 100+142, 243, 245, 246
    A(f'''
    s_and_b32 s14, s44, 3
    s_lshl_b32 s14, s14, 7
    v_xor_b32 v{RA}, s14, v3
    s_and_b32 s13, s7, 3
    s_lshl_b32 s12, s13, 12
    v_add_u32 v{RA}, s12, v{RA}
    v_add_u32 v{RA+1}, {2*K2S}, v{RA}
    v_lshrrev_b32 v12, 5, v1
    v_lshlrev_b32 v13, 2, v12
    v_bfe_u32 v14, v1, 2, 2
    v_add_u32 v13, v13, v14
    v_mul_u32_u24 v13, 384, v13
    v_bfe_u32 v14, v1, 4, 1
    v_lshl_add_u32 v13, v14, 5, v13
    v_and_b32 v14, 3, v1
    v_lshl_add_u32 v13, v14, 3, v13
    v_add_u32 v13, 16384, v13
    v_bfe_u32 v14, v1, 3, 1
    s_lshr_b32 s77, s7, 2
    s_mul_i32 s77, s77, 3
    ''')
    for jj in range(3):
        A(f's_add_u32 s14, s77, {jj}\nv_xor_b32 v2, s14, v14\nv_lshl_add_u32 v{RB+jj}, v2, 6, v13\nv_add_u32 v{RB+3+jj}, {2*K2S}, v{RB+jj}')
    def setup2():
        A(f'''
        v_lshrrev_b32 v252, 5, v1
        v_lshrrev_b32 v253, 4, v1
        v_lshlrev_b32 v254, 2, v253
        v_and_b32 v255, 15, v1
        v_xor_b32 v254, v254, v255
        v_lshlrev_b32 v254, 4, v254
        v_lshl_add_u32 v4, v253, 12, v254
        v_lshrrev_b32 v254, 3, v1
        v_mul_u32_u24 v254, 1152, v254
        v_and_b32 v255, 7, v1
        v_xor_b32 v255, v255, v253
        v_lshl_add_u32 v5, v255, 4, v254
        s_and_b32 s75, s7, 1
        s_lshl_b32 s75, s75, 6
        v_xor_b32 v5, s75, v5
        v_xor_b32 v6, 64, v5
        s_lshl_b32 s29, s7, 15
        s_lshl_b32 s75, s45, 8
        s_add_u32 s29, s29, s75
        s_add_u32 s29, s29, {HT_OFF}
        s_mul_i32 s74, s46, 192
        s_mul_i32 s75, s7, 24
        s_add_u32 s74, s74, s75
        s_mul_i32 s74, s74, 1152
        s_mov_b32 s66, 663552
        s_mov_b32 s67, 0x20000
        s_mov_b32 s64, s68
        s_mov_b32 s65, s69
        v_lshlrev_b32 v253, 3, v252
        v_bfe_u32 v254, v1, 2, 2
        v_add_u32 v253, v253, v254
        v_lshlrev_b32 v253, 8, v253
        s_and_b32 s75, s7, 3
        v_xor_b32 v254, s75, v254
        v_lshl_add_u32 v253, v254, 6, v253
        v_bfe_u32 v254, v1, 4, 1
        v_lshlrev_b32 v254, 5, v254
        v_and_b32 v255, 3, v1
        v_lshl_add_u32 v254, v255, 3, v254
        s_and_b32 s75, s44, 3
        s_lshl_b32 s75, s75, 4
        v_xor_b32 v254, s75, v254
        v_add_u32 v{SA}, v253, v254
        v_add_u32 v{SA+1}, {2*K2S}, v{SA}
        v_and_b32 v253, 31, v1
        v_bfe_u32 v254, v1, 1, 3
        v_xor_b32 v254, v254, v252
        v_lshlrev_b32 v254, 4, v254
        v_lshl_add_u32 v253, v253, 7, v254
        s_lshl_b32 s75, s77, 12
        s_add_u32 s75, s75, 16384
        v_add_u32 v253, s75, v253
        ''')
        for sp in range(4): A(f'v_xor_b32 v{SB+sp}, {32*sp}, v253\nv_add_u32 v{SB+4+sp}, {2*K2S}, v{SB+sp}')
        A(f'''
        s_lshl_b32 s75, s45, 2
        s_and_b32 s31, s7, 3
        s_add_u32 s75, s75, s31
        s_lshl_b32 s75, s75, 2
        s_and_b32 s31, s44, 3
        s_add_u32 s75, s75, s31
        s_lshl_b32 s30, s75, 6
        s_add_u32 s30, s30, {STAT_OFF}
        s_mul_i32 s31, s75, {8*2304}
        s_mul_i32 s75, s46, 768
        s_add_u32 s31, s31, s75
        s_lshl_b32 s75, s77, 7
        s_add_u32 s31, s31, s75
        v_mul_u32_u24 v7, {4*2304}, v252
        v_and_b32 v255, 31, v1
        v_lshl_add_u32 v7, v255, 2, v7
        s_lshl_b32 s33, s45, 7
        s_add_u32 s33, s33, {FT_OFF}
        s_add_u32 s28, s33, 64
        v_and_b32 v242, 63, v15
        ''')
    global k2_dma_ssm
    def late_flags():
        flag_store(1, 's_add_u32 s14, s34, 3072', 2)
    def ft_flag():
        flag_store(2, f's_lshr_b32 s14, s11, 4\ns_lshl_b32 s14, s14, 7\ns_and_b32 s12, s11, 15\ns_lshl_b32 s12, s12, 2\ns_add_u32 s14, s14, s12\ns_add_u32 s14, s14, {FT_OFF}', 2)
    S(z='fx')
    bg.flush_m('k0')
    vm.wait('k0')
    A('s_barrier')
    A('s_cmp_lt_u32 s4, 30\ns_cbranch_scc1 K2_GO')
    sv = (list(vm.q), list(lg.q), list(bg.v), list(bg.m))
    A(f'v_lshlrev_b32 v14, 2, v1')
    for k in range(4):
        A(f's_mov_b32 s{24+k}, {FE_OFF+256*k}'); poll_issue(24+k, 14, f's{24+k}', f'pall{k}')
    bg.emit_m(1000); bg.emit_v(10**9)
    vm.wait('h7'); A('s_barrier'); flag_store(0, 's_add_u32 s14, s34, 2048', 2)
    bg.push_v(fix_items()); bg.emit_v(10**9)
    for k in range(4): poll_check(24+k, 14, f's{24+k}', f'pall{k}')
    A('''
    s_lshl_b32 s75, s3, 1
    s_add_u32 s75, s75, s4
    s_sub_u32 s75, s75, 30
    s_lshl_b32 s75, s75, 3
    s_add_u32 s75, s75, s7
    s_lshl_b32 s75, s75, 1
    s_add_u32 s73, s75, 1
    s_mov_b32 s74, 8
    ''')
    fix_loads('s75', 's74'); fix_loads('s73', 's74', 112); bg.emit_m(1000)
    vm.wait('h8', 'ht'); A('s_barrier')
    late_flags(); ft_flag()
    A.lab('IDLE_LOOP')
    bg.push_v(fix_items()); bg.emit_v(10**9)
    A('s_cmp_eq_u32 s74, 0\ns_cbranch_scc1 IDLE_DONE\ns_mov_b32 s74, 0\ns_nop 0')
    for k in range(29): A(f'v_mov_b32 v{FA+k}, v{112+k}')
    A('s_branch IDLE_LOOP')
    A.lab('IDLE_DONE')
    A(f'''
    s_lshr_b32 s14, s75, 4
    s_lshl_b32 s14, s14, 7
    s_and_b32 s12, s75, 15
    s_lshl_b32 s12, s12, 2
    s_add_u32 s14, s14, s12
    s_add_u32 s14, s14, {FT_OFF+64}
    v_mov_b32 v12, {TAG}
    v_mov_b32 v13, {TAG}
    s_mov_b64 exec, 1
    s_waitcnt vmcnt(0)
    buffer_store_dwordx2 v[12:13], off, {WS}, s14 sc1
    s_mov_b64 exec, -1
    s_branch K_FIN
    ''')
    vm.q, lg.q, bg.v, bg.m = sv
    A.lab('K2_GO')
    S(); S(z='k2'); S(z='fx')
    bg.v = [(0, it) for _, it in bg.v]
    fi = fix_items()
    if P('NOFIX', 0): fi = [x for x in fi if not isinstance(x, str) or 'v{}'.format(FT_+22) in x or 'v{},'.format(FT_+21) in x or 'v_add_u32' in x or 'v_and_b32' in x or 'v_lshl' in x]
    bg.push_v(fi); bg.push_v(capture(setup2))
    LK = 3
    def slab_ops(n, typ): return [(n, typ, s, jj) for s in range(4) for jj in range(3)]
    def rd(i, op):
        n, typ, s, jj = op
        slot = (n + 1) % 4; hi = slot // 2; so = (slot % 2) * K2S
        ra = AF + 4*(s % 2); r = BR[i % 6]
        if typ == 'f':
            if jj == 0: A(f'ds_read_b128 {vr(ra,4)}, v{RA+hi} offset:{so+1024*s}'); lg.add(f'q{i}')
            off = so + s*16*384
            A(f'ds_read_b64_tr_b16 {vr(r,2)}, v{RB+3*hi+jj} offset:{off}\nds_read_b64_tr_b16 {vr(r+2,2)}, v{RB+3*hi+jj} offset:{off+8*384}'); lg.add(f'q{i}', 2)
        else:
            if jj == 0:
                A(f'ds_read_b64_tr_b16 {vr(ra,2)}, v{SA+hi} offset:{so+4096*s}\nds_read_b64_tr_b16 {vr(ra+2,2)}, v{SA+hi} offset:{so+4096*s+1024}'); lg.add(f'q{i}', 2)
            A(f'ds_read_b128 {vr(r,4)}, v{SB+4*hi+s} offset:{so+4096*jj}'); lg.add(f'q{i}')
    def run(ops, i0, i1, variant):
        N = len(ops)
        for i in range(i0, i1):
            n, typ, s, jj = ops[i]
            j = i + LK
            if j < N:
                if j % 12 == 0: ksync(j // 12, variant)
                rd(j, ops[j])
            lg.wait(f'q{i}')
            a = ACC2 + 16*jj
            A(f'v_mfma_f32_32x32x16_bf16 {vr(a,16)}, {vr(AF+4*(s%2),4)}, {vr(BR[i%6],4)}, {"0" if (n == 0 and s == 0) else vr(a,16)}')
            if i % 2 == 1: bg.emit_m(1)
            bg.emit_v(P('K2RATE', 4), i)
            if i % 24 == 23: S(z='k2')
            if i == 9*12 - 1: S()
    def ksync(n, variant):
        bg.flush_m(f'k{n}'); vm.wait(f'k{n}')
        if n == 2: vm.wait('h7')
        if n == 5: vm.wait('h8')
        if n == 8: vm.wait('ht')
        A('s_barrier')
        if n == 2: flag_store(0, 's_add_u32 s14, s34, 2048', 2)
        if n == 5: late_flags()
        if n == 8: ft_flag()
        nn = n + 2
        if nn == 6: poll_check(12, 15, 's78', 'pg1')
        if nn == 9: poll_check(12, 15, 's79', 'pg1b')
        if nn == 12: poll_check(12, 15, 's8', 'pg2')
        if nn == 14: poll_check(13, 242, 's33', 'pft')
        if nn == 17:
            sk = newlab('NOF8'); vm.wait('pft8')
            A(f's_cmp_lt_u32 s44, 3\ns_cbranch_scc1 {sk}'); poll_check(13, 242, 's28', 'pft8'); A.lab(sk)
        if nn == 3: pass
        elif nn <= 13 or (nn == 14 and variant == 0): k2_dma_ffn(nn)
        elif nn == 14: k2_dma_ssm(14, 3)
        elif nn <= 17: k2_dma_ssm(nn, nn - 15)
        def pq(*args): bg.m.insert(0, (0, lambda: poll_issue(*args), args[3], 0))
        if n == 3: pq(12, 15, 's78', 'pg1')
        if n == 6: pq(12, 15, 's79', 'pg1b')
        if n == 9: pq(12, 15, 's8', 'pg2')
        if n == 11: assert not bg.v, len(bg.v); pq(13, 242, 's33', 'pft')
        if n == 14: pq(13, 242, 's28', 'pft8')
        if n == 13:
            bg.push_m(f'''s_load_dwordx2 s[24:25], s[0:1], 0
            s_load_dwordx2 s[26:27], s[0:1], 64
            v_add_u32 v176, s31, v7
            v_lshrrev_b32 v176, 1, v176
            v_and_b32 v177, 31, v1
            s_mul_i32 s12, s46, 6
            s_add_u32 s12, s12, s77
            s_lshl_b32 s12, s12, 6
            v_lshl_add_u32 v177, v177, 1, s12
            v_lshrrev_b32 v178, 5, v1
            v_lshlrev_b32 v178, 5, v178
            s_waitcnt lgkmcnt(0)
            buffer_load_dwordx4 v[168:171], v178, {WS}, s30 offen sc1
            buffer_load_dwordx4 v[172:175], v178, {WS}, s30 offen offset:16 sc1''', 'base', 2)
            bg.push_m('\n'.join(f'global_load_ushort v{124+jj}, v177, s[26:27] offset:{64*jj}' for jj in range(3)), 'base', 3)
        if n in (14, 15):
            for e in (2*(n-14), 2*(n-14)+1):
                bg.push_m('\n'.join(f'global_load_ushort v{112+4*jj+e}, v176, s[24:25] offset:{1152*e+64*jj}' for jj in range(3)), 'base', 3)
        if n == 16:
            it = [('vmw', 'base'), 's_mov_b32 s13, 0xffff0000']
            for jj in range(3): it.append(f'v_lshlrev_b32 v{124+jj}, 16, v{124+jj}')
            for jj in range(3):
                for e in (0, 2):
                    a0 = 112+4*jj+e; a1 = a0+1; m0, r0, m1, r1 = 168+2*e, 169+2*e, 170+2*e, 171+2*e
                    un = ['v_cvt_pk_bf16_f32 v181, v180, v181', 'v_lshlrev_b32 v180, 16, v181', 'v_and_b32 v181, s13, v181']
                    it += [f'v_lshlrev_b32 v{a0}, 16, v{a0}', f'v_lshlrev_b32 v{a1}, 16, v{a1}', f'v_sub_f32 v180, v{a0}, v{m0}', f'v_sub_f32 v181, v{a1}, v{m1}'] + un
                    it += [f'v_mul_f32 v180, v180, v{r0}', f'v_mul_f32 v181, v181, v{r1}'] + un
                    it += [f'v_mul_f32 v180, v180, v{124+jj}', f'v_mul_f32 v181, v181, v{124+jj}'] + un
                    it += [f'v_add_f32 v{a0}, v{a0}, v180', f'v_add_f32 v{a1}, v{a1}, v181']
            bg.push_v(it, 16*12 + 4)
    ops0 = sum([slab_ops(n, 'f' if n <= 14 else 's') for n in range(18)], [])
    ops1 = sum([slab_ops(n, 'f' if n <= 13 else 's') for n in range(18)], [])
    A('s_add_u32 s78, s32, 1024\ns_add_u32 s79, s32, 2048\ns_add_u32 s8, s32, 3072')
    k2_dma_ffn(3)
    for i in range(LK): rd(i, ops0[i])
    SPLIT = 12*12 - LK
    run(ops0, 0, SPLIT, 0)
    A('s_cmp_ge_u32 s44, 2\ns_cbranch_scc1 K2_V1')
    sv = (list(vm.q), list(lg.q), list(bg.v), list(bg.m)); ns = nstamp[0]
    run(ops0, SPLIT, 216, 0); bg.emit_m(100); rest = list(bg.v); bg.v = []
    A('s_branch K2_J'); A.lab('K2_V1')
    vm.q, lg.q, bg.v, bg.m = sv; nstamp[0] = ns
    run(ops1, SPLIT, 216, 1); bg.emit_m(100); assert rest == bg.v; bg.v = []
    A.lab('K2_J')
    S()
    A(f'''
    s_mul_i32 s35, s47, {16*12288}
    s_mul_i32 s14, s7, 1536
    s_add_u32 s35, s35, s14
    s_add_u32 s35, s35, {PART_OFF}
    v_lshlrev_b32 v2, 3, v1
    s_and_b32 s12, s44, 3
    s_cmp_eq_u32 s44, 4
    s_cselect_b32 s41, 0, 12288
    s_nop 3
    ''')
    def pub(ap):
        r = 136 + 8*ap
        for jj in range(3):
            a = ACC2 + 16*jj + 4*ap
            A(f'v_cvt_pk_bf16_f32 v{r+2*jj}, v{a}, v{a+1}\nv_cvt_pk_bf16_f32 v{r+2*jj+1}, v{a+2}, v{a+3}')
        A(f's_xor_b32 s14, s12, {ap}\ns_mul_i32 s14, s14, {4*12288}\ns_add_u32 s14, s14, s35\ns_mul_i32 s13, s41, {ap}\ns_add_u32 s14, s14, s13')
        A(f'buffer_store_dwordx4 {vr(r,4)}, v3, {WS}, s14 offen sc1\nbuffer_store_dwordx2 {vr(r+4,2)}, v2, {WS}, s14 offen offset:1024 sc1')
    for ap in (1, 2, 3): pub(ap)
    A('s_cmp_lg_u32 s44, 4\ns_cbranch_scc1 NOPUB0')
    pub(0)
    A.lab('NOPUB0')
    A(f'''
    s_lshl_b32 s33, s47, 7
    s_add_u32 s33, s33, {FP_OFF}
    v_min_u32 v14, 4, v1
    v_lshlrev_b32 v14, 2, v14
    s_waitcnt vmcnt(0)
    s_barrier
    ''')
    vm.q = []
    flag_store(0, 's_lshl_b32 s14, s44, 2\ns_add_u32 s14, s14, s33', 12)
    S()
    A('s_cmp_eq_u32 s44, 4\ns_cbranch_scc1 K_FIN')
    poll_issue(13, 14, 's33', 'pp')
    A('s_mov_b32 s13, 0xffff0000')
    bg.v = rest; bg.emit_v(10**9)
    for jj in range(3):
        for e in range(4): A(f'v_add_f32 v{ACC2+16*jj+e}, v{ACC2+16*jj+e}, v{112+4*jj+e}')
    A(f's_mul_i32 s14, s44, {4*12288}\ns_add_u32 s14, s14, s35')
    poll_check(13, 14, 's33', 'pp')
    S()
    for sl in range(4):
        r = 136 + 8*sl
        A(f'buffer_load_dwordx4 {vr(r,4)}, v3, {WS}, s14 offen sc1\nbuffer_load_dwordx2 {vr(r+4,2)}, v2, {WS}, s14 offen offset:1024 sc1')
        if sl < 3: A('s_add_u32 s14, s14, 12288')
    for sl in range(4):
        A(f's_waitcnt vmcnt({2*(3-sl)})')
        r = 136 + 8*sl
        for jj in range(3):
            for h in range(2):
                a = ACC2 + 16*jj + 2*h; p = r + 2*jj + h
                A(f'v_lshlrev_b32 v12, 16, v{p}\nv_and_b32 v13, s13, v{p}\nv_pk_add_f32 {vr(a,2)}, {vr(a,2)}, v[12:13]')
    for e in range(4):
        A(f's_add_u32 s14, s31, {e*2304}')
        for jj in range(3): A(f'buffer_store_dword v{ACC2+16*jj+e}, v7, {OUT}, s14 offen offset:{128*jj}')
    A.lab('K_FIN')
    if STAMP:
        A('s_waitcnt vmcnt(0)'); nstamp[0] = 14; S(force=True); S(True); Sflush()

def main(path):
    hdr = open('parallel_sum__ssm_conv_s5__geglu_ffn__prompt.s.ref').read().split('; Override launch')[0]
    A.raw(hdr.rstrip())
    A.raw('; @launch grid=(256,1,1) block=(512,1,1) lds=163840')
    A.raw('.amdgcn_target "amdgcn-amd-amdhsa--gfx950"\n.text')
    A.raw(f'.globl {NAME}\n.p2align 8\n.type {NAME},@function\n{NAME}:')
    if STAMP:
        for i in range(16): A(f's_mov_b32 s{86+i}, 0')
    phase_a(); phase_k1(); phase_k2()
    A.lab('K_END')
    A('s_endpgm')
    for c in cold: A.raw(c)
    A.raw(f'''.section .rodata,"a"
.p2align 6
.amdhsa_kernel {NAME}
  .amdhsa_next_free_vgpr 256
  .amdhsa_next_free_sgpr 102
  .amdhsa_accum_offset 256
  .amdhsa_group_segment_fixed_size 0
  .amdhsa_kernarg_size 128
  .amdhsa_user_sgpr_count 2
  .amdhsa_user_sgpr_kernarg_segment_ptr 1
  .amdhsa_system_sgpr_workgroup_id_x 1
  .amdhsa_float_denorm_mode_32 3
.end_amdhsa_kernel''')
    open(path, 'w').write('\n'.join(A.L) + '\n')

if __name__ == '__main__':
    main(sys.argv[1] if len(sys.argv) > 1 else 'k3.s')
```

```python
import sys, struct, os
from layout import *
from gen_v1 import f32, LOG2E, INV2PI, Asm, vr, sr, srd, lam_consts, csq, cmul, DPP8, mapply

STAMP = int(os.environ.get('STAMP', '0'))
LSC = ' sc1' if int(os.environ.get('LSC', '1')) else ''
ZOOM = os.environ.get('ZOOM', '')
def P(name, d): return int(os.environ.get(name, d))
A = Asm()
NAME = 'parallel_sum__ssm_conv_s5__geglu_ffn__prompt_kernel'

class Cnt:
    def __init__(self, name, mx): self.q = []; self.ever = set(); self.name = name; self.mx = mx
    def add(self, tag, n=1): self.q += [tag]*n; self.ever.add(tag)
    def wait(self, *tags):
        for t in tags: assert t in self.ever, t
        idx = [i for i, t in enumerate(self.q) if t in tags]
        if not idx: return
        last = max(idx); n = len(self.q) - 1 - last
        if n > self.mx:
            if self.name == 'vmcnt': self.q = self.q[last+1:]; return
            n = self.mx; last = len(self.q) - 1 - n
        A(f's_waitcnt {self.name}({n})')
        self.q = self.q[last+1:]
    def drain(self):
        A(f's_waitcnt {self.name}(0)'); self.q = []
vm = Cnt('vmcnt', 63); lg = Cnt('lgkmcnt', 15)
nstamp = [0]
def S(real=False, z='', force=False):
    if not STAMP: return
    if not (real or force) and z != ZOOM: return
    A(f'{"s_memrealtime" if real else "s_memtime"} s[84:85]\ns_waitcnt lgkmcnt(0)\ns_mov_b32 s{86+nstamp[0]}, s84')
    nstamp[0] += 1
    assert nstamp[0] <= 16
def Sflush():
    A(f's_mov_b64 exec, -1\ns_lshl_b32 s84, s2, 3\ns_add_u32 s84, s84, s7\ns_lshl_b32 s84, s84, 6\ns_add_u32 s84, s84, {STAMP_OFF}\nv_mov_b32 v1, 0')
    for i in range(16):
        A(f'v_mov_b32 v2, s{86+i}\nbuffer_store_dword v2, v1, s[48:51], s84 offen offset:{4*i}')
uid = [0]
def newlab(p):
    uid[0] += 1; return f'{p}_{uid[0]}'

WS = 's[48:51]'; OUT = 's[52:55]'; DBG = 's[72:75]'
TAG = 's15'
cold = []
def poll_issue(vdst, vaddr, soff, tag):
    A(f'buffer_load_dword v{vdst}, v{vaddr}, {WS}, {soff} offen sc1'); vm.add(tag)
def poll_check(vdst, vaddr, soff, tag):
    vm.wait(tag)
    slow = newlab('SLOW'); back = newlab('BACK')
    A(f'v_cmp_ne_u32 vcc, {TAG}, v{vdst}\ns_cbranch_vccnz {slow}')
    A.lab(back)
    cold.append(f'''{slow}:
    s_sub_u32 s23, s23, 1
    s_cbranch_scc1 {back}
    s_sleep 1
    buffer_load_dword v{vdst}, v{vaddr}, {WS}, {soff} offen sc1
    s_waitcnt vmcnt(0)
    v_cmp_ne_u32 vcc, {TAG}, v{vdst}
    s_cbranch_vccnz {slow}
    s_branch {back}''')
def flag_store(wave, spre, vtmp):
    sk = newlab('NOFLAG')
    A(f's_cmp_lg_u32 s7, {wave}\ns_cbranch_scc1 {sk}\n{spre}\nv_mov_b32 v{vtmp}, {TAG}\ns_mov_b64 exec, 1\nbuffer_store_dword v{vtmp}, off, {WS}, s14 sc1\ns_mov_b64 exec, -1')
    A.lab(sk)
def dma_txt(voff, srdn, soff, m0expr, imm=0, sc=''):
    return f'{m0expr}\ns_nop 0\nbuffer_load_dwordx4 v{voff}, {srdn}, {soff} offen{" offset:%d" % imm if imm else ""}{sc} lds'

def capture(f, group=1):
    n0 = len(A.L); f(); out = A.L[n0:]; del A.L[n0:]
    return [l.strip() for l in out]

class BG:
    def __init__(self): self.v = []; self.m = []
    def push_v(self, items, ready=0): self.v += [(ready, it) for it in items]
    def push_m(self, text, tag, n=1, ready=0): self.m.append((ready, text, tag, n))
    def emit_v(self, k, now=10**9):
        while k > 0 and self.v and self.v[0][0] <= now:
            it = self.v.pop(0)[1]
            if isinstance(it, str): A(it); k -= it.count('\n') + 1
            elif it[0] == 'vm': A(it[1]); vm.add(it[2], it[3]); k -= 2
            elif it[0] == 'ds': A(it[1]); lg.add(it[2]); k -= 1
            elif it[0] == 'lgw': lg.wait(it[1])
            elif it[0] == 'vmw': self.flush_m(it[1]); vm.wait(it[1])
            elif it[0] == 'call': it[1]()
    def emit_m(self, k=1, now=10**9):
        while k > 0 and self.m and self.m[0][0] <= now:
            _, text, tag, n = self.m.pop(0)
            if callable(text): text()
            else:
                for part in text.split('@@'):
                    if part.startswith('LAB '): A.lab(part[4:])
                    else: A(part)
            if n: vm.add(tag, n)
            k -= 1
    def flush_m(self, *tags):
        while any(t[2] in tags for t in self.m): self.emit_m(1)
bg = BG()
def valu_with_vmem(lines, every=8):
    for i, l in enumerate(lines):
        if l.endswith(':'): A.lab(l[:-1])
        else: A(l)
        if i % every == every - 1 and not l.startswith('v_cmp') and not l.startswith('s_nop') and not l.startswith('s_'): bg.emit_m(1)

UREG = 73760
A2_B = [16384, 90144, 34816, 108672]
A2_X = [53248, 127104, 61440, 135296]
TB = 147584
EX_T = 147584; EX_B = EX_T + 8192; EX_S = EX_B + 2048; EX_R = 69632
G2U = 18560
K2S = 40960
XR = 112; ACC = 48; WR = 24; NW = 6; TMP = 16
CONSTS = (244, 245, 246, 247, 248, 249)

def ln_stats(r, t):
    inv = f32(1.0/576.0)
    A(f'''
    v_mul_f32 v{r}, {inv}, v{r}
    v_mul_f32 v{r+1}, {inv}, v{r+1}
    v_fma_f32 v{r+1}, -v{r}, v{r}, v{r+1}
    v_max_f32 v{r+1}, 0, v{r+1}
    v_cvt_pk_bf16_f32 v{t}, v{r}, v{r+1}
    v_lshlrev_b32 v{r}, 16, v{t}
    v_and_b32 v{r+1}, 0xffff0000, v{t}
    v_add_f32 v{r+1}, {f32(1e-5)}, v{r+1}
    v_cvt_pk_bf16_f32 v{r+1}, v{r+1}, v{r+1}
    v_lshlrev_b32 v{r+1}, 16, v{r+1}
    v_sqrt_f32 v{r+1}, v{r+1}
    s_nop 0
    v_cvt_pk_bf16_f32 v{r+1}, v{r+1}, v{r+1}
    v_lshlrev_b32 v{r+1}, 16, v{r+1}
    v_rcp_f32 v{r+1}, v{r+1}
    s_nop 0
    ''')
def unit_consts(p, t=232):
    LR, SLI, A1, A2c, L16R, SL16I = CONSTS
    lam_consts(A, p, p+1, p+2, LR, t, t+1, t+2, t+3, t+4, t+5, t+6)
    A(f'''
    v_and_b32 v{t+7}, 8, v1
    v_lshlrev_b32 v{t+7}, 28, v{t+7}
    v_xor_b32 v{SLI}, v{t+7}, v{t}
    v_add_f32 v{A1}, v{t+1}, v{t+1}
    v_xor_b32 v{A1}, v{t+7}, v{A1}
    v_mul_f32 v{A2c}, -2.0, v{t+2}
    ''')
    csq(A, LR, t, L16R, SL16I, t+3)
    for _ in range(3): csq(A, L16R, SL16I, L16R, SL16I, t+3)
    A(f'v_xor_b32 v{SL16I}, v{t+7}, v{SL16I}')
def get_tag():
    vm.wait('tag')
    slow = newlab('TAGSLOW'); back = newlab('TAGBACK')
    A(f'v_readfirstlane_b32 {TAG}, v15\ns_cmp_eq_u32 {TAG}, 0\ns_cbranch_scc1 {slow}')
    A.lab(back)
    cold.append(f'''{slow}:
    s_sub_u32 s23, s23, 1
    s_cbranch_scc1 {back}
    s_sleep 1
    buffer_load_dword v15, off, {DBG}, 0 sc1
    s_waitcnt vmcnt(0)
    v_readfirstlane_b32 {TAG}, v15
    s_cmp_eq_u32 {TAG}, 0
    s_cbranch_scc1 {slow}
    s_branch {back}''')

def k1_dma(g, n, ready=0):
    pre = f's_add_u32 s12, s32, {n*64*9216 + g*128}\n'
    bg.push_m(pre + dma_txt(0, 's[24:27]', 's12', f's_add_u32 m0, s81, {8192*n}'), f'w{g}_{n}', 1, ready)
    bg.push_m(pre + dma_txt(0, 's[36:39]', 's12', f's_add_u32 m0, s81, {UREG+8192*n}'), f'w{g}_{n}', 1, ready)
def k1_xload(ks, ready=0):
    if ks < 4: t = f'buffer_load_dwordx4 {vr(XR+4*ks,4)}, v3, {WS}, s40 offen offset:{ks*1024}{LSC}'
    else: t = f's_add_u32 s12, s40, {ks*1024}\nbuffer_load_dwordx4 {vr(XR+4*ks,4)}, v3, {WS}, s12 offen{LSC}'
    bg.push_m(t, f'x{ks}', 1, ready)
def k1_dma_g2(part, ready=0):
    sd = 's[24:27]' if part == 0 else 's[36:39]'
    base = 0 if part == 0 else G2U
    sk = newlab('G2X')
    bg.push_m(f's_cmp_ge_u32 s7, 2\ns_cbranch_scc1 {sk}\ns_add_u32 s12, s41, {16*32*9216}\n' + dma_txt(4, sd, 's12', f's_add_u32 m0, s81, {base+16384}') + f'@@LAB {sk}', f'g2_{part}', 0, ready)
    for i in range(2):
        bg.push_m(f's_add_u32 s12, s41, {i*8*32*9216}\n' + dma_txt(4, sd, 's12', f's_add_u32 m0, s81, {base+8192*i}'), f'g2_{part}', 1, ready)


XS = [16384, 90144, 24576, 98336, 32768, 106528, 40960, 114720, 49152]
B8L = 122912; STG = 57344
U = 208; CR = 224; XA = 224; BS8 = 228; STT = 232; ONES = 236; BS = 240; PAR = 250
scan_items = []
def phase_a():
    A(f"""
    s_cmp_ge_u32 s2, 256
    s_cbranch_scc1 K_END
    s_load_dwordx16 s[16:31], s[0:1], 0
    s_load_dwordx8 s[36:43], s[0:1], 80
    s_load_dwordx4 s[44:47], s[0:1], 112
    v_and_b32 v1, 63, v0
    v_lshrrev_b32 v2, 6, v0
    s_and_b32 s3, s2, 7
    s_lshr_b32 s4, s2, 3
    v_readfirstlane_b32 s7, v2
    s_lshr_b32 s5, s4, 3
    s_lshl_b32 s8, s3, 2
    s_add_u32 s5, s5, s8
    s_and_b32 s6, s4, 7
    s_lshr_b32 s8, s3, 2
    s_lshl_b32 s8, s8, 2
    s_lshr_b32 s9, s4, 3
    s_add_u32 s8, s8, s9
    s_and_b32 s9, s3, 3
    s_lshl_b32 s9, s9, 3
    s_add_u32 s9, s9, s6
    s_lshl_b32 s10, s8, 3
    s_add_u32 s10, s10, s7
    v_lshlrev_b32 v3, 4, v1
    v_lshrrev_b32 v4, 3, v1
    v_and_b32 v5, 7, v1
    v_add_u32 v6, 1024, v3
    v_cmp_gt_u32 vcc, 8, v1
    v_mov_b32 v7, 0x3ffffff0
    s_lshl_b32 s11, s5, 3
    s_add_u32 s11, s11, s6
    v_cndmask_b32 v6, v7, v6, vcc
    s_lshl_b32 s33, s11, 3
    s_add_u32 s33, s33, s7
    s_mul_i32 s13, s33, 1152
    v_mul_u32_u24 v8, 1152, v4
    v_bfe_u32 v9, v4, 1, 1
    s_and_b32 s14, s7, 6
    v_xor_b32 v9, s14, v9
    v_xor_b32 v9, v9, v5
    v_lshl_add_u32 v9, v9, 4, v8
    v_lshrrev_b32 v10, 1, v4
    v_xor_b32 v10, v10, v5
    v_lshl_add_u32 v10, v10, 4, v8
    v_xor_b32 v11, 64, v10
    s_lshl_b32 s14, s7, 6
    s_and_b32 s14, s14, 64
    v_xor_b32 v12, s14, v10
    s_lshl_b32 s14, s5, 3
    s_add_u32 s14, s14, s7
    s_mul_i32 s34, s14, {8*1152}
    s_lshl_b32 s14, s6, 3
    s_add_u32 s35, s14, s7
    s_mul_i32 s35, s35, {8*1152}
    s_add_u32 s80, s6, 64
    s_mul_i32 s80, s80, {8*1152}
    s_lshr_b32 s14, s7, 1
    s_lshl_b32 s14, s14, 7
    s_add_u32 s80, s80, s14
    s_lshl_b32 s81, s7, 10
    s_lshl_b32 s82, s7, 11
    s_waitcnt lgkmcnt(0)
    """)
    S(True); S(force=True)
    if P('PRIO', 0): A(f"s_cmp_{'ge' if P('PRIO',0)==1 else 'lt'}_u32 s7, 4\ns_cbranch_scc0 NOPRIO\ns_setprio 1"); A.lab('NOPRIO')
    XRW = 80; XNR = 88; MR_ = 96; T0 = 100
    srd(A, 56, 16, 2359296)
    A(f'buffer_load_dwordx4 {vr(XRW,4)}, v3, s[56:59], s13 offen\nbuffer_load_dwordx4 {vr(XRW+4,4)}, v6, s[56:59], s13 offen')
    vm.add('xr', 2)
    srd(A, 60, 22, 663552); srd(A, 64, 24, 663552)
    A("""
    s_and_b32 s14, s7, 1
    s_cselect_b32 s68, s24, s22
    s_cselect_b32 s69, s25, s23
    s_mov_b32 s70, 663552
    s_mov_b32 s71, 0x20000
    s_mov_b32 s23, 100000
    """)
    def bsg(n): return 112 + 8*n if n < 8 else 88
    def b8(i):
        t = f's_add_u32 s12, s80, {512*i}\n' + dma_txt(12, 's[68:71]', 's12', f's_add_u32 m0, s81, {B8L+8192*i}')
        if i < 2: bg.push_m(t, f'b8_{i}', 1)
        else:
            sk = newlab('B8X'); bg.push_m(f's_cmp_ge_u32 s7, 2\ns_cbranch_scc1 {sk}\n' + t + f'@@LAB {sk}', 'b8_2', 0)
    def a2q(n):
        bg.push_m(f's_add_u32 s12, s34, {128*n}\n' + dma_txt(9, 's[56:59]', 's12', f's_add_u32 m0, s81, {XS[n]}'), f'ax{n}', 1)
        bg.push_m(f'buffer_load_dwordx4 {vr(bsg(n),4)}, v10, s[60:63], s35 offen offset:{128*n}', f'ab{n}', 1, 2 if n == 8 else 0)
        bg.push_m(f'buffer_load_dwordx4 {vr(bsg(n)+4,4)}, v11, s[64:67], s35 offen offset:{128*n}', f'ab{n}', 1)
    a2q(0); b8(0); a2q(1)
    bg.emit_m(4)
    if P('CPF', 1):
        A(f"""
        s_cmp_lg_u32 s7, 5
        s_cbranch_scc1 NOCPF
        s_getpc_b64 s[76:77]
        """)
        A.lab('PCREF')
        A(f"""
        s_and_b32 s76, s76, 0xffffff80
        s_mov_b32 s78, K_LAST-PCREF
        s_mov_b32 s79, 0x20000
        s_lshl_b32 s14, s4, 11
        v_lshlrev_b32 v13, 7, v1
        s_mov_b64 exec, 0xffff
        buffer_load_dword v111, v13, s[76:79], s14 offen
        s_mov_b64 exec, -1
        """)
        A.lab('NOCPF')
    srd(A, 72, 44, 256)
    A(f"""
    s_or_b32 s14, s2, s7
    s_cmp_lg_u32 s14, 0
    s_cbranch_scc1 NOTAG
    s_memrealtime s[84:85]
    s_waitcnt lgkmcnt(0)
    s_mul_i32 s14, s84, 0x9E3779B1
    s_or_b32 s14, s14, 1
    v_mov_b32 v8, s14
    s_mov_b64 exec, 1
    buffer_store_dword v8, off, {DBG}, 0 sc1
    s_mov_b64 exec, -1
    """)
    A.lab('NOTAG')
    srd(A, 48, 46, 0x10000000); srd(A, 52, 42, 4718592)
    U1 = 224; BS1 = 240
    AD = 196
    def setup():
        A(f"""
        v_and_b32 v13, 15, v1
        v_lshrrev_b32 v14, 4, v1
        v_bfe_u32 v2, v1, 1, 3
        v_xor_b32 v2, v2, v14
        v_lshlrev_b32 v2, 4, v2
        v_lshl_add_u32 v8, v13, 7, v2
        v_bfe_u32 v14, v1, 2, 2
        v_lshlrev_b32 v14, 11, v14
        v_and_b32 v13, 3, v1
        v_lshl_add_u32 v14, v13, 7, v14
        v_add_u32 v{AD}, v14, v2
        v_xor_b32 v{AD+1}, 64, v{AD}
        v_add_u32 v{AD+2}, 90144, v{AD}
        v_add_u32 v{AD+3}, 90144, v{AD+1}
        s_lshr_b32 s14, s7, 2
        s_lshl_b32 s14, s14, 6
        v_xor_b32 v{AD+8}, s14, v8
        v_add_u32 v{AD+8}, {B8L}, v{AD+8}
        v_xor_b32 v{AD+4}, s14, v{AD}
        s_and_b32 s14, s7, 3
        s_lshl_b32 s14, s14, 9
        v_add_u32 v{AD+4}, s14, v{AD+4}
        v_add_u32 v{AD+5}, 90144, v{AD+4}
        s_add_u32 s14, s82, {STG}
        v_add_u32 v192, s14, v8
        v_xor_b32 v193, 64, v192
        v_add_u32 v194, s14, v3
        v_mov_b32 v{ONES}, 0x3f803f80
        v_mov_b32 v{ONES+1}, 0x3f803f80
        v_mov_b32 v{ONES+2}, 0x3f803f80
        v_mov_b32 v{ONES+3}, 0x3f803f80
        s_mov_b32 s83, 0x3f803f80
        s_lshl_b32 s14, s6, 3
        v_add_u32 v14, s14, v5
        v_add_u32 v14, 512, v14
        s_add_u32 s14, s14, s7
        s_lshl_b32 s14, s14, 3
        v_add_u32 v13, s14, v5
        v_lshlrev_b32 v108, 1, v13
        v_lshlrev_b32 v109, 1, v14
        s_lshr_b32 s14, s9, 2
        s_mul_i32 s14, s14, 1152
        s_cmp_lt_u32 s2, 128
        s_cselect_b32 s76, s36, s38
        s_cselect_b32 s77, s37, s39
        s_mov_b32 s78, {576*9216}
        s_mov_b32 s79, 0x20000
        s_add_u32 s24, s36, s14
        s_addc_u32 s25, s37, 0
        s_sub_u32 s26, {576*9216}, s14
        s_mov_b32 s27, 0x20000
        s_add_u32 s36, s38, s14
        s_addc_u32 s37, s39, 0
        s_mov_b32 s38, s26
        s_mov_b32 s39, 0x20000
        s_and_b32 s14, s9, 3
        s_lshl_b32 s32, s14, 8
        s_mul_i32 s41, s7, {8*9216}
        s_add_u32 s32, s32, s41
        s_mul_i32 s40, s10, 36864
        v_bfe_u32 v0, v1, 2, 3
        v_mul_u32_u24 v0, 9216, v0
        v_lshrrev_b32 v13, 5, v1
        v_lshl_add_u32 v0, v13, 6, v0
        v_and_b32 v13, 3, v1
        v_lshl_add_u32 v0, v13, 4, v0
        v_lshlrev_b32 v110, 7, v1
        v_min_u32 v110, {41*128}, v110
        s_and_b32 s14, s2, 127
        s_lshl_b32 s14, s14, 3
        s_add_u32 s14, s14, s7
        s_mul_i32 s41, s14, 5184
        s_and_b32 s41, s41, 0xffffff80
        s_lshl_b32 s14, s7, 4
        s_add_u32 s14, s14, {TB}
        v_lshl_add_u32 v{AD+6}, v1, 7, s14
        s_add_u32 s14, s81, {TB}
        v_add_u32 v{AD+7}, s14, v3
        v_lshlrev_b32 v{AD+9}, 9, v4
        v_lshl_add_u32 v{AD+9}, v5, 4, v{AD+9}
        s_lshr_b32 s42, s11, 2
        s_mul_i32 s42, s42, 36864
        s_and_b32 s14, s6, 3
        s_lshl_b32 s14, s14, 7
        s_add_u32 s42, s42, s14
        s_lshl_b32 s14, s7, 12
        s_add_u32 s42, s42, s14
        s_lshl_b32 s43, s33, 3
        s_add_u32 s43, s43, {STAT_OFF}
        v_lshlrev_b32 v17, 2, v1
        v_and_b32 v16, 31, v17
        v_and_b32 v17, 127, v17
        s_lshl_b32 s14, s8, 7
        v_add_u32 v17, s14, v17
        s_lshl_b32 s14, s5, 5
        v_add_u32 v16, s14, v16
        v_cmp_lt_u32 vcc, 31, v1
        s_mov_b32 s33, {FX_OFF}
        s_nop 0
        v_cndmask_b32 v17, v17, v16, vcc
        """)
    a2q(2); a2q(3)
    valu_with_vmem(capture(setup), every=P('A0EVERY', 10))
    b8(1)
    bg.push_m(f'global_load_ushort v{PAR}, v108, s[18:19]\nglobal_load_ushort v{PAR+1}, v108, s[20:21]\nglobal_load_ushort v{PAR+2}, v108, s[30:31]', 'par', 3)
    bg.push_m(f'global_load_ushort v{PAR+3}, v109, s[18:19]\nglobal_load_ushort v{PAR+4}, v109, s[20:21]\nglobal_load_ushort v{PAR+5}, v109, s[30:31]', 'par', 3)
    bg.push_m(f'buffer_load_dword v15, off, {DBG}, 0 sc1', 'tag', 1)
    a2q(4); a2q(5); a2q(6); a2q(7); b8(2); a2q(8)
    k1_dma(0, 0); k1_dma(0, 1)
    if P('TOUCH', 1) == 1: bg.push_m('buffer_load_dword v111, v110, s[76:79], s41 offen', 'touch', 1)
    if P('TOUCH', 1) == 2: bg.m.insert(0, (0, 'buffer_load_dword v111, v110, s[76:79], s41 offen', 'touch', 1))
    def a1():
        for q in range(8):
            c0 = '0' if q == 0 else f'v{MR_}'; c1 = '0' if q == 0 else f'v{MR_+1}'
            A(f'v_dot2_f32_bf16 v{MR_}, v{XRW+q}, s83, {c0}\nv_dot2_f32_bf16 v{MR_+1}, v{XRW+q}, v{XRW+q}, {c1}')
        A('s_nop 2')
        for pat in ('quad_perm:[1,0,3,2] row_mask:0xf', 'quad_perm:[2,3,0,1] row_mask:0xf', 'row_half_mirror row_mask:0xf', 'row_mirror row_mask:0xf',
                    'row_bcast:15 row_mask:0xa', 'row_bcast:31 row_mask:0xc'):
            A(f'v_add_f32_dpp v{MR_}, v{MR_}, v{MR_} {pat} bank_mask:0xf\nv_add_f32_dpp v{MR_+1}, v{MR_+1}, v{MR_+1} {pat} bank_mask:0xf\ns_nop 0')
        A(f'v_readlane_b32 s44, v{MR_}, 63\nv_readlane_b32 s45, v{MR_+1}, 63\ns_nop 1\nv_mov_b32 v{MR_}, s44\nv_mov_b32 v{MR_+1}, s45')
        ln_stats(MR_, MR_+2)
        A(f's_mov_b32 s44, 0xffff0000\nv_sub_f32 v18, 0, v{MR_}\nv_sub_f32 v19, 0, v{MR_}\nv_mov_b32 v20, v{MR_+1}\nv_mov_b32 v21, v{MR_+1}')
        for h in range(2):
            for q in range(4):
                x = XRW+4*h+q; a = T0+2*q
                A(f'v_lshlrev_b32 v{a}, 16, v{x}\nv_and_b32 v{a+1}, s44, v{x}')
            for q in range(4):
                a = T0+2*q; A(f'v_pk_add_f32 {vr(a,2)}, {vr(a,2)}, v[18:19]')
            for q in range(4):
                a = T0+2*q; A(f'v_cvt_pk_bf16_f32 v{a+1}, v{a}, v{a+1}')
            for q in range(4):
                a = T0+2*q; A(f'v_lshlrev_b32 v{a}, 16, v{a+1}\nv_and_b32 v{a+1}, s44, v{a+1}')
            for q in range(4):
                a = T0+2*q; A(f'v_pk_mul_f32 {vr(a,2)}, {vr(a,2)}, v[20:21]')
            for q in range(4):
                a = T0+2*q; A(f'v_cvt_pk_bf16_f32 v{XNR+4*h+q}, v{a}, v{a+1}')
    vm.wait('xr'); S(z='a2')
    a1l = capture(a1)
    NPRE = P('A1PRE', 1000); TBN = P('TBN', 0); FLN = P('FLN', 4)
    valu_with_vmem(a1l[:NPRE], every=P('A1EVERY', 12))
    it = a1l[NPRE:]
    it.append(('ds', f'ds_write_b128 v{AD+6}, {vr(XNR,4)}', 'tbw'))
    it.append(('ds', f's_mov_b64 exec, 0xff\nds_write_b128 v{AD+6}, {vr(XNR+4,4)} offset:8192\ns_mov_b64 exec, -1', 'tbw'))
    it.append(('vm', f's_mov_b64 exec, 1\nbuffer_store_dwordx2 {vr(MR_,2)}, off, {WS}, s43 sc1\ns_mov_b64 exec, -1', 'xn', 1))
    bg.push_v(it)
    E = 72
    def reads(sg):
        n = sg // 2; sp = sg % 2; F = 24 + 16*(sg % 3)
        xo = XS[n] if n % 2 == 0 else XS[n] - 90144
        for t in range(4): A(f'ds_read_b128 {vr(F+4*t,4)}, v{AD+2*(n%2)+sp} offset:{xo+512*t}')
        lg.add(f'r{sg}', 4)
    def ereads(n):
        xo = XS[n] if n % 2 == 0 else XS[n] - 90144
        A(f'ds_read_b128 {vr(E,4)}, v{AD+4+(n%2)} offset:{xo}\nds_read_b128 {vr(E+4,4)}, v{AD+8} offset:{2048*n}'); lg.add(f'e{n}', 2)
    def bswap(n):
        bg.flush_m(f'ab{n}'); vm.wait(f'ab{n}')
        Fb = 176 + 8*(n % 2)
        A(f'ds_write_b128 v194, {vr(bsg(n),4)}\nds_write_b128 v194, {vr(bsg(n)+4,4)} offset:1024')
        A(f'ds_read_b128 {vr(Fb,4)}, v192\nds_read_b128 {vr(Fb+4,4)}, v193'); lg.add(f'b{n}', 4)
    def xn_out():
        sk = newlab('NOXN8')
        A(f'ds_read_b128 {vr(XRW,4)}, v{AD+7}'); lg.add('tbr')
        A(f's_cmp_lg_u32 s7, 0\ns_cbranch_scc1 {sk}\nds_read_b128 {vr(XRW+4,4)}, v{AD+7} offset:8192\ns_add_u32 s12, s42, 32768\ns_waitcnt lgkmcnt(0)\nbuffer_store_dwordx4 {vr(XRW+4,4)}, v{AD+9}, {WS}, s12 offen sc1')
        A.lab(sk)
        bg.push_v([('lgw', 'tbr'), ('vm', f'buffer_store_dwordx4 {vr(XRW,4)}, v{AD+9}, {WS}, s42 offen sc1', 'xn', 1)])
        bg.push_v([('vmw', 'par')] + capture(lambda: unit_consts(PAR, T0)), 7)
    if TBN == 0: bg.emit_v(10**9); lg.wait('tbw')
    bg.flush_m('ax0', 'ax1', 'b8_0'); vm.wait('ax0', 'ax1', 'b8_0')
    A('s_barrier'); S(); S(z='a2')
    if TBN == 0: xn_out()
    bswap(0); reads(0); reads(1)
    VG = P('A2VG', 2); PXS = P('PXS', 15)
    for sg in range(18):
        n = sg // 2; sp = sg % 2; F = 24 + 16*(sg % 3)
        if sg < 16:
            n1 = (sg + 2) // 2
            if (sg + 2) % 4 == 0:
                tags = [f'ax{n1}'] + ([f'ax{n1+1}'] if n1 < 8 else []) + (['b8_1'] if n1 == 4 else [])
                if n1 == TBN: bg.emit_v(10**9); lg.wait('tbw')
                bg.flush_m(*tags, 'b8_2' if n1 == 8 else 'zz'); vm.wait(*tags)
                if n1 == FLN: bg.flush_m('tag'); vm.wait('xn'); get_tag()
                A('s_barrier'); S(z='a2')
                if n1 == TBN: xn_out()
                if n1 == FLN: flag_store(6, f's_lshl_b32 s14, s11, 2\ns_add_u32 s14, s14, {FX_OFF}', 13)
                if n1 >= 4: k1_dma(0, n1 // 2)
            reads(sg + 2)
        if sp == 0: ereads(n)
        lg.wait(f'r{sg}')
        z = (sg == 0)
        if sp == 0: lg.wait(f'b{n}')
        def c(rg, zz=z): return '0' if zz else vr(rg, 4)
        UU = U; BB = BS; BF_ = 176 + 8*(n % 2) + 4*sp
        ms = [f'v_mfma_f32_16x16x32_bf16 {vr(UU+4*t,4)}, {vr(F+4*t,4)}, {vr(BF_,4)}, {c(UU+4*t)}' for t in range(4)]
        ms += [f'v_mfma_f32_16x16x32_bf16 {vr(BB,4)}, {vr(ONES,4)}, {vr(BF_,4)}, {c(BB)}']
        if sp == 1:
            lg.wait(f'e{n}')
            ms += [f'v_mfma_f32_16x16x32_bf16 {vr(XA,4)}, {vr(E,4)}, {vr(E+4,4)}, {c(XA, sg == 1)}', f'v_mfma_f32_16x16x32_bf16 {vr(BS8,4)}, {vr(ONES,4)}, {vr(E+4,4)}, {c(BS8, sg == 1)}']
        for i, m in enumerate(ms):
            A(m)
            bg.emit_v(2, sg)
            if sp == 0 and i == 4 and n < 8: bswap(n + 1)
            if i % VG == VG - 1: bg.emit_m(1, sg)
        if sg == PXS: bg.m.insert(0, (0, lambda: poll_issue(16, 17, 's33', 'pfx'), 'pfx', 0))
        if sg == PXS + 2:
            bg.flush_m('pfx'); poll_check(16, 17, 's33', 'pfx')
            A(f'v_lshlrev_b32 v22, 3, v1\ns_lshl_b32 s12, s5, 9\ns_add_u32 s12, s12, {STAT_OFF}\nbuffer_load_dwordx2 v[18:19], v22, {WS}, s12 offen sc1'); vm.add('stl')
            for ks in range(16): k1_xload(ks, 2*(ks//2) - 1)
    bg.emit_v(10**9)
    S(); S(z='a2')
    A(f"""
    s_nop 3
    s_add_u32 s14, s81, {EX_T}
    v_add_u32 v14, s14, v3
    s_lshl_b32 s14, s7, 8
    s_add_u32 s14, s14, {EX_B}
    v_lshl_add_u32 v2, v1, 2, s14
    ds_write_b128 v14, {vr(XA,4)}
    ds_write_b32 v2, v{BS8}
    """)
    bg.flush_m('w0_0', 'w0_1', 'touch'); vm.wait('w0_0', 'w0_1'); vm.wait('touch') if P('TOUCH', 1) in (1, 2) else None
    A('s_waitcnt lgkmcnt(0)\ns_barrier'); lg.q = []
    S(z='a3')
    k1_dma(0, 5); k1_dma(0, 6)
    bg.m = [(0,) + tuple(t[1:]) for t in bg.m]
    bg.emit_m(2)
    LR, SLI, A1, A2c, L16R, SL16I = CONSTS
    E0 = 16; T2, T3, EE = 20, 21, 15; W0, W1, W2 = 241, 242, 243; TA, TB_ = 22, 23
    def st2():
        A(f"""
        v_mul_f32 v18, -v18, v19
        s_lshl_b32 s44, s7, 9
        s_add_u32 s44, s44, {EX_R}
        v_lshl_add_u32 v{W0}, v1, 3, s44
        v_lshrrev_b32 v{W1}, 4, v1
        v_lshl_add_u32 v{W2}, v{W1}, 7, s44
        """)
    def fin_items(tg, sc):
        it = []
        for hf in range(2):
            it += [('ds', f'ds_read_b128 {vr(CR+4*k,4)}, v{W2} offset:{64*hf+16*k}', f'{tg}cr{hf}') for k in range(4)]
            if hf == 0 and tg == '':
                it += capture(lambda: A("""
                v_and_b32 v8, 15, v1
                v_lshlrev_b32 v8, 2, v8
                v_add_u32 v9, 64, v8
                v_add_u32 v10, 128, v8
                v_add_u32 v12, 192, v8
                s_mul_i32 s83, s11, 9
                s_add_u32 s83, s83, s7
                """))
            it.append(('lgw', f'{tg}cr{hf}'))
            it += [f'v_mul_f32 v{U+8*hf+k}, v{CR+1+2*k}, v{U+8*hf+k}' for k in range(8)]
            it += [f'v_fmac_f32 v{U+8*hf+k}, v{CR+2*k}, v{BS}' for k in range(8)]
        tt = (TA, TB_)
        it += [f'v_mul_f32 v{tt[0]}, v{A1}, v{U}', f'v_fmac_f32_dpp v{tt[0]}, v{U}, v{A2c} {DPP8}',
               f'v_mul_f32 v{tt[1]}, v{A1}, v{U+1}', f'v_fmac_f32_dpp v{tt[1]}, v{U+1}, v{A2c} {DPP8}', f'v_mov_b32 v{U}, v{tt[0]}']
        for k in range(1, 16):
            t_ = tt[k % 2]; o_ = tt[(k+1) % 2]
            it.append(f'v_fma_f32 v{U+k}, v{LR}, v{U+k-1}, v{t_}')
            if k < 15: it.append(f'v_mul_f32 v{o_}, v{A1}, v{U+k+1}')
            else: it.append('s_nop 0')
            it.append(f'v_fmac_f32_dpp v{U+k}, v{U+k-1}, v{SLI} {DPP8}')
            if k < 15: it.append(f'v_fmac_f32_dpp v{o_}, v{U+k+1}, v{A2c} {DPP8}')
        it += [('ds', f'ds_bpermute_b32 v{E0+g}, v{(8,9,10,12)[g]}, v{U+15}', tg+'bp') for g in range(4)]
        it.append(f's_mul_i32 s45, s83, {H0_UNIT}\ns_add_u32 s45, s45, {H0_OFF}')
        it += [('vm', f'buffer_store_dwordx4 {vr(U+4*k,4)}, v3, {WS}, s45 offen offset:{1024*k}{sc}', tg+'h0', 1) for k in range(4)]
        it.append(('lgw', tg+'bp'))
        ee = EE if tg == '' else 14
        def part2():
            mapply(A, T2, E0, L16R, SL16I, E0+1); mapply(A, T3, T2, L16R, SL16I, E0+2); mapply(A, ee, T3, L16R, SL16I, E0+3)
            A(f'v_mov_b32 v{W0}, 0')
        it += capture(part2)
        for k, r in enumerate((E0, T2, T3)): it.append(f'v_cmp_eq_u32 vcc, {k+1}, v{W1}\ns_nop 1\nv_cndmask_b32 v{W0}, v{W0}, v{r}, vcc')
        it.append(('vm', f'v_lshlrev_b32 v{E0}, 2, v1\ns_add_u32 s12, s45, 4096\nbuffer_store_dword v{W0}, v{E0}, {WS}, s12 offen{sc}', tg+'h0', 1))
        return it
    it = [('vmw', 'stl')] + capture(st2)
    it.append(('ds', f'ds_write_b64 v{W0}, v[18:19]', 'crw'))
    it += fin_items('', '')
    def unit8():
        sv = (list(vm.q), list(bg.v))
        A(f"""
        s_cmp_lg_u32 s7, 7
        s_cbranch_scc1 UNIT_DONE
        s_add_u32 s83, s83, 1
        v_add_u32 v{W0}, {EX_T}, v3
        v_lshlrev_b32 v{E0}, 2, v1
        v_add_u32 v{E0}, {EX_B}, v{E0}
        """)
        for t in range(4):
            A(f'ds_read_b128 {vr(U+4*t,4)}, v{W0} offset:{1024*t}\nds_read_b128 {vr(CR+4*t,4)}, v{W0} offset:{1024*(t+4)}')
        A(f'ds_read_b32 v{BS}, v{E0}\nds_read_b32 v{W0}, v{E0} offset:1024')
        unit_consts(PAR+3, 16)
        A('s_waitcnt lgkmcnt(0)')
        for k in range(16): A(f'v_add_f32 v{U+k}, v{U+k}, v{CR+k}')
        A(f'v_add_f32 v{BS}, v{BS}, v{W0}')
        lq = list(lg.q); lg.q = []
        bg.v = []; bg.push_v(fin_items('u8', ' sc1')); bg.emit_v(10**9)
        A('s_sub_u32 s83, s83, 1')
        A.lab('UNIT_DONE')
        lg.q = lq; vm.q, bg.v = sv
    if not P('NOU8', 0): it.append(('call', unit8))
    if P('NOSCAN', 0): it = [x for x in it if not isinstance(x, str) or x.startswith('s_') or 'v_lshl' in x or 'v_and_b32 v8' in x or 'v_add_u32' in x or 'v_lshr' in x]
    it.append(('call', lambda: scan_done.append(1)))
    scan_items.extend(it)
    S(); S(z='a3')
scan_done = []

FA = 168; FT_ = 199
def phase_k1():
    KS1 = P('KS1', 24); HD = 4; LOOK = 4
    seq = [(ks, fb) for ks in range(KS1) for fb in range(4)]
    seq += [(ks, fb) for fb in range(4) for ks in range(KS1, 36)]
    seq += [(ks, fb) for fb in (4, 5) for ks in range(24)] + [(ks, fb) for fb in (4, 5) for ks in range(24, 36)]
    seq += [(ks, fb) for fb in (6, 7) for ks in range(24)] + [(ks, fb) for fb in (6, 7) for ks in range(24, 36)]
    seq += [(ks, 8) for ks in range(36)]
    N = len(seq)
    P2 = 4*KS1; P3 = P2 + 2*(36-KS1); P4, P5, P6 = 144, 216, 288
    A(f'''
    v_bfe_u32 v13, v1, 4, 1
    v_lshrrev_b32 v14, 5, v1
    v_and_b32 v2, 15, v1
    v_lshlrev_b32 v2, 3, v2
    v_mul_u32_u24 v5, {UREG}, v13
    v_lshl_add_u32 v5, v14, 10, v5
    v_add_u32 v5, v5, v2
    v_and_b32 v6, 12, v1
    v_lshl_add_u32 v5, v6, 3, v5
    v_add_u32 v6, 36864, v5
    ''')
    A(f'v_mul_u32_u24 v7, {G2U}, v13\nv_lshl_add_u32 v7, v14, 8, v7\nv_add_u32 v7, v7, v2')
    setup2 = capture(lambda: A(f'''
    v_lshrrev_b32 v4, 1, v1
    v_mul_u32_u24 v4, 9216, v4
    v_and_b32 v13, 1, v1
    v_lshl_add_u32 v4, v13, 4, v4
    s_mul_i32 s41, s7, {32*9216}
    s_and_b32 s13, s9, 3
    s_lshl_b32 s13, s13, 5
    s_add_u32 s41, s41, s13
    s_add_u32 s41, s41, 1024
    s_mov_b32 s42, {f32(-2.302208198*0.044715)}
    v_mov_b32 v11, {f32(-2.302208198)}
    s_lshr_b32 s14, s9, 2
    s_mul_i32 s14, s14, 9
    s_and_b32 s13, s9, 3
    s_lshl_b32 s34, s13, 1
    s_add_u32 s34, s34, s14
    s_lshl_b32 s34, s34, 12
    s_mul_i32 s43, s10, 294912
    s_add_u32 s43, s43, {HF_OFF}
    s_add_u32 s14, s14, 8
    s_lshl_b32 s14, s14, 12
    s_lshl_b32 s13, s13, 10
    s_add_u32 s14, s14, s13
    s_add_u32 s35, s43, s14
    s_add_u32 s43, s43, s34
    s_lshl_b32 s34, s8, 5
    s_add_u32 s34, s34, s9
    s_lshl_b32 s34, s34, 2
    s_add_u32 s34, s34, {FH_OFF}
    '''))
    bg.push_v(scan_items); bg.push_v(setup2)
    for k in range(16, 24): k1_xload(k)
    if P('TOUCH', 1) == 3: A('v_mov_b32 v13, v110\ns_mov_b32 s46, s41'); bg.push_m('buffer_load_dword v2, v13, s[76:79], s46 offen', 'touch', 1)
    def wread(m):
        ks, fb = seq[m]
        r = WR + 4*(m % NW)
        if fb < 8: ad = 5 if ks < 18 else 6; off = (ks % 18)*2048 + ((fb % 4) >> 1)*512 + (fb & 1)*32; o2 = 256
        else: ad = 7; off = ks*512; o2 = 128
        A(f'ds_read_b64_tr_b16 {vr(r,2)}, v{ad} offset:{off}\nds_read_b64_tr_b16 {vr(r+2,2)}, v{ad} offset:{off+o2}')
        lg.add(f'm{m}', 2)
    busy = set()
    def make_epi(fb):
        a = ACC + 16*(fb % 4); t = TMP
        out = []
        for half in range(2):
            es = range(4*half, 4*half+4)
            for e in es: out.append(f'v_mul_f32 v{t+e%4}, v{a+e}, v{a+e}')
            for e in es: out.append(f'v_fma_f32 v{t+e%4}, v{t+e%4}, s42, v11')
            for e in es: out.append(f'v_mul_f32 v{t+e%4}, v{t+e%4}, v{a+e}')
            for e in es: out.append(f'v_exp_f32 v{t+e%4}, v{t+e%4}')
            for e in es: out.append(f'v_mul_f32 v{a+e}, v{a+e}, v{a+8+e}')
            for e in es: out.append(f'v_add_f32 v{t+e%4}, 1.0, v{t+e%4}')
            for e in es: out.append(f'v_rcp_f32 v{t+e%4}, v{t+e%4}')
            out.append('s_nop 0')
            for e in es: out.append(f'v_mul_f32 v{a+e}, v{a+e}, v{t+e%4}')
            out.append(f'v_cvt_pk_bf16_f32 v{t+4+2*half}, v{a+4*half}, v{a+4*half+1}')
            out.append(f'v_cvt_pk_bf16_f32 v{t+5+2*half}, v{a+4*half+2}, v{a+4*half+3}')
        out.append(('call', lambda: busy.discard(fb % 4)))
        if fb < 4: st = f'buffer_store_dwordx4 {vr(t+4,4)}, v3, {WS}, s43 offen offset:{fb*1024} sc1'
        elif fb < 8: st = f's_add_u32 s12, s43, 4096\nbuffer_store_dwordx4 {vr(t+4,4)}, v3, {WS}, s12 offen offset:{(fb-4)*1024} sc1'
        else: st = f'buffer_store_dwordx4 {vr(t+4,4)}, v3, {WS}, s35 offen sc1'
        out.append(('vm', st, f'h{fb}', 1))
        return out
    def flagH(g): return lambda: flag_store(0, f's_add_u32 s14, s34, {1024*g}', 2)
    def flagE(): flag_store(1, f's_lshl_b32 s14, s6, 5\ns_add_u32 s14, s14, s5\ns_lshl_b32 s14, s14, 2\ns_add_u32 s14, s14, {FE_OFF}', 2)
    def xl(a, b): return lambda: [k1_xload(k) for k in range(a, b)]
    def wd(g, *ns): return lambda: [k1_dma(g, n) for n in ns]
    assert KS1 == 24
    def chk_scan(): assert scan_done
    def estore():
        sk = newlab('E8')
        bg.push_m(f's_lshl_b32 s12, s83, 6\ns_add_u32 s12, s12, {E_OFF}\ns_cmp_lg_u32 s7, 7\ns_cbranch_scc1 {sk}\nbuffer_store_dword v14, v8, {WS}, s12 offen offset:64 sc1@@LAB {sk}@@buffer_store_dword v15, v8, {WS}, s12 offen sc1', 'est', 1)
    def touch2():
        if not P('TOUCH', 1): return
        bg.push_m(f'''s_load_dwordx2 s[76:77], s[0:1], 96
        v_lshlrev_b32 v13, 7, v1
        v_min_u32 v13, {21*128}, v13
        s_lshl_b32 s12, s2, 3
        s_add_u32 s12, s12, s7
        s_mul_i32 s12, s12, 2592
        s_and_b32 s12, s12, 0xffffff80
        s_mov_b32 s78, {4608*1152}
        s_mov_b32 s79, 0x20000
        s_waitcnt lgkmcnt(0)
        buffer_load_dword v9, v13, s[76:79], s12 offen''', 'touch2', 1)
        bg.push_m(f'''s_lshr_b32 s12, s2, 7
        s_lshl_b32 s12, s12, 3
        s_add_u32 s76, s0, s12
        s_addc_u32 s77, s1, 0
        s_load_dwordx2 s[76:77], s[76:77], 40
        v_min_u32 v13, {6*128}, v13
        s_and_b32 s12, s2, 127
        s_lshl_b32 s12, s12, 3
        s_add_u32 s12, s12, s7
        s_mul_i32 s12, s12, 648
        s_and_b32 s12, s12, 0xffffff80
        s_mov_b32 s78, 663552
        s_waitcnt lgkmcnt(0)
        buffer_load_dword v10, v13, s[76:79], s12 offen''', 'touch2', 1)
    sync = {
        32:  (['w0_2', 'w0_3'], [wd(0, 7)]),
        64:  (['w0_4', 'w0_5'], [chk_scan, xl(24, 28), wd(0, 8), xl(28, 36), wd(1, 0, 1, 2)]),
        96:  (['w0_6', 'w0_7'], [wd(1, 3, 4)]),
        104: (['w0_8'], [wd(1, 5), estore, touch2]),
        144: (['w1_0', 'w1_1', 'w1_2', 'w1_3', 'w1_4', 'w1_5'], [wd(1, 6, 7)]),
        150: ([], [wd(1, 8)]),
        192: (['w1_6', 'w1_7', 'w1_8', 'est'], [flagE]),
        P5+20: (['h3'], [flagH(0)]),
        P5+40: ([], [lambda: k1_dma_g2(0)]),
        P5+48: ([], [lambda: k1_dma_g2(1)]),
        P6:  (['g2_0', 'g2_1'], []),
        P6+4: (['h5'], [flagH(1), k2_prefetch]),
    }
    def do_sync(m):
        if m in sync:
            tags, acts = sync[m]
            bg.flush_m(*tags); vm.wait(*tags); A('s_barrier')
            for f in acts: f()
    seen_x = set()
    S()
    for m in range(LOOK): wread(m)
    for n in range(N):
        ks, fb = seq[n]
        if n in (P4, P6): S()
        if n % 32 == 0: S(z='k1')
        if n == P5 + 56: k2_setup()
        if n + LOOK < N:
            do_sync(n + LOOK); wread(n + LOOK)
        if ks not in seen_x:
            seen_x.add(ks); bg.flush_m(f'x{ks}'); vm.wait(f'x{ks}')
        first = (ks == 0)
        if first: assert (fb % 4) not in busy, (n, fb)
        lg.wait(f'm{n}')
        a = ACC + 16*(fb % 4)
        A(f'v_mfma_f32_32x32x16_bf16 {vr(a,16)}, {vr(WR+4*(n%NW),4)}, {vr(XR+4*ks,4)}, {"0" if first else vr(a,16)}')
        if ks == 35:
            busy.add(fb % 4); bg.push_v(make_epi(fb), n + 4)
        if n == P6 + 22: fix_loads('s11', 's7')
        gap = P('G1', 2) if n < P2 else (P('G2', 2) if n < P6 else 1)
        if n % gap == gap - 1: bg.emit_m(1, n)
        rate = P('R0', 5) if n < 64 else (P('R1', 3) if n < P6 else P('P6RATE', 4))
        bg.emit_v(rate, n)
    assert not bg.m
    while busy - {0}: bg.emit_v(4)
    S(); S(z='fx')

def fix_loads(swg, sunit, base=None, sht='s22'):
    base = FA if base is None else base
    pcalc = f's_lshl_b32 s12, s12, 3\ns_add_u32 s12, s12, {sunit}\ns_lshl_b32 s12, s12, 3' if sunit == 's7' else 's_lshl_b32 s12, s12, 3\ns_add_u32 s12, s12, 512'
    pre = f'''s_mul_i32 s16, {swg}, 9
    s_add_u32 s16, s16, {sunit}
    s_mul_i32 s17, s16, {H0_UNIT}
    s_add_u32 s17, s17, {H0_OFF}
    s_and_b32 s12, {swg}, 7
    {pcalc}
    v_and_b32 v{base+30}, 7, v1
    v_add_u32 v{base+28}, s12, v{base+30}
    v_lshlrev_b32 v{base+30}, 1, v{base+28}
    s_lshr_b32 {sht}, {swg}, 3
    s_mul_i32 {sht}, {sht}, {72*2048}
    s_lshl_b32 s12, s12, 8
    s_add_u32 {sht}, {sht}, s12
    s_add_u32 {sht}, {sht}, {HT_OFF}
    global_load_ushort v{base+25}, v{base+30}, s[18:19]
    global_load_ushort v{base+26}, v{base+30}, s[20:21]
    global_load_ushort v{base+27}, v{base+30}, s[30:31]'''
    bg.push_m(pre, 'fx', 3)
    pre2 = f'''s_lshl_b32 s16, s16, 6
    v_lshrrev_b32 v{base+30}, 4, v1
    v_mul_u32_u24 v{base+30}, {8*4608}, v{base+30}
    v_and_b32 v{base+29}, 15, v1
    v_lshl_add_u32 v{base+29}, v{base+29}, 2, s16
    v_sub_u32 v{base+29}, v{base+29}, v{base+30}
    '''
    for i in range(0, 8, 2):
        t = pre2 if i == 0 else ''
        for k in (i, i+1): t += f'v_subrev_u32 v{base+29}, 4608, v{base+29}\nbuffer_load_dword v{base+17+k}, v{base+29}, s[60:63], 0 offen sc1\n'
        bg.push_m(t, 'fx', 2)
    for k in range(4): bg.push_m(f'buffer_load_dwordx4 {vr(base+4*k,4)}, v3, {WS}, s17 offen offset:{1024*k} sc1', 'fx', 1)
    bg.push_m(f'v_lshlrev_b32 v{base+30}, 2, v1\ns_add_u32 s12, s17, 4096\nbuffer_load_dword v{base+16}, v{base+30}, {WS}, s12 offen sc1', 'fx', 1)
def fix_items():
    t = FT_
    LR, LI, SG = t, t+1, t+2
    PR, PI = t+3, t+4; QR, QI = t+5, t+6; L64R, L64I = t+7, t+8
    it = [('vmw', 'fx')]
    def p1():
        lam_consts(A, FA+25, FA+26, FA+27, LR, LI, 0, 0, t+9, t+10, t+11, t+12, need_coef=False)
        A(f'v_and_b32 v{SG}, 8, v1\nv_lshlrev_b32 v{SG}, 28, v{SG}')
        csq(A, LR, LI, t+23, t+24, t+9)
        csq(A, t+23, t+24, PR, PI, t+9)
        A(f'v_xor_b32 v{t+24}, v{SG}, v{t+24}')
        for _ in range(2): csq(A, PR, PI, PR, PI, t+9)
        A(f'v_mov_b32 v{t+13}, v{PR}\nv_mov_b32 v{t+14}, v{PI}')
        csq(A, PR, PI, PR, PI, t+9)
        cmul(A, PR, PI, t+13, t+14, t+15, t+16)
        A(f'v_lshrrev_b32 v{t+21}, 4, v1\nv_mov_b32 v{QR}, 1.0\nv_mov_b32 v{QI}, 0')
    it += capture(p1)
    for k, (a, b) in enumerate(((t+13, t+14), (PR, PI), (t+15, t+16))):
        it.append(f'v_cmp_eq_u32 vcc, {k+1}, v{t+21}\ns_nop 1\nv_cndmask_b32 v{QR}, v{QR}, v{a}, vcc\nv_cndmask_b32 v{QI}, v{QI}, v{b}, vcc')
    def p2():
        A(f'v_xor_b32 v{QI}, v{SG}, v{QI}')
        csq(A, PR, PI, L64R, L64I, t+9)
        csq(A, L64R, L64I, PR, PI, t+9)
        for _ in range(2): csq(A, PR, PI, PR, PI, t+9)
        A(f'v_xor_b32 v{L64I}, v{SG}, v{L64I}\nv_xor_b32 v{PI}, v{SG}, v{PI}\nv_xor_b32 v{LI}, v{SG}, v{LI}')
        for i in range(6, -1, -1): mapply(A, FA+17+i, FA+17+i+1, L64R, L64I, FA+17+i)
        A(f'''
        v_and_b32 v{t+17}, 15, v1
        v_lshlrev_b32 v{t+17}, 2, v{t+17}
        v_add_u32 v{t+18}, 64, v{t+17}
        v_add_u32 v{t+19}, 128, v{t+17}
        v_add_u32 v{t+20}, 192, v{t+17}
        ''')
    it += capture(p2)
    u = newlab('bp')
    for g in range(4): it.append(('ds', f'ds_bpermute_b32 v{FA+18+g}, v{t+17+g}, v{FA+17}', u))
    it.append(('lgw', u))
    def p3():
        for g in (2, 1, 0): mapply(A, FA+18+g, FA+18+g+1, PR, PI, FA+18+g)
        mapply(A, FA+16, FA+18, QR, QI, FA+16)
        G = [FA+17, FA+18, FA+19, FA+20]
        mapply(A, G[0], FA+16, LR, LI, None)
        mapply(A, G[1], FA+16, t+23, t+24, None)
        for k in range(0, 16, 2):
            a0, a1, b0, b1 = (G[0], G[1], G[2], G[3]) if k % 4 == 0 else (G[2], G[3], G[0], G[1])
            A(f'v_add_f32 v{FA+k}, v{FA+k}, v{a0}')
            if k < 14: A(f'v_mul_f32 v{b0}, v{t+23}, v{a0}\nv_mul_f32 v{b1}, v{t+23}, v{a1}')
            A(f'v_add_f32 v{FA+k+1}, v{FA+k+1}, v{a1}')
            if k < 14: A(f'v_fmac_f32_dpp v{b0}, v{a0}, v{t+24} {DPP8}\nv_fmac_f32_dpp v{b1}, v{a1}, v{t+24} {DPP8}')
        for k in range(8): A(f'v_cvt_pk_bf16_f32 v{FA+k}, v{FA+2*k}, v{FA+2*k+1}')
    it += capture(p3)
    it.append(('vm', f'buffer_store_dwordx4 {vr(FA,4)}, v3, {WS}, s22 offen sc1\nbuffer_store_dwordx4 {vr(FA+4,4)}, v3, {WS}, s22 offen offset:1024 sc1', 'ht', 2))
    return it

def k2_setup():
    A(f'''
    s_load_dwordx4 s[68:71], s[0:1], 40
    s_load_dwordx2 s[56:57], s[0:1], 96
    s_load_dwordx2 s[60:61], s[0:1], 120
    s_mul_i32 s14, s3, 30
    s_add_u32 s14, s14, s4
    s_mul_i32 s44, s14, 1366
    s_lshr_b32 s44, s44, 16
    s_mul_i32 s13, s44, 48
    s_sub_u32 s47, s14, s13
    s_mul_i32 s45, s47, 86
    s_lshr_b32 s45, s45, 8
    s_mul_i32 s13, s45, 3
    s_sub_u32 s46, s47, s13
    s_lshl_b32 s14, s45, 2
    s_lshr_b32 s13, s7, 1
    s_add_u32 s14, s14, s13
    s_mul_i32 s76, s14, 294912
    s_and_b32 s9, s7, 1
    s_lshr_b32 s10, s7, 2
    s_add_u32 s76, s76, {HF_OFF}
    s_mul_i32 s83, s7, 3072
    s_add_u32 s83, s83, 16384
    s_mul_i32 s80, s46, 384
    s_lshr_b32 s14, s45, 1
    s_lshl_b32 s32, s14, 7
    s_add_u32 s32, s32, {FH_OFF}
    s_waitcnt lgkmcnt(0)
    s_mov_b32 s58, {4608*1152}
    s_mov_b32 s59, 0x20000
    s_add_u32 s60, s60, {E_OFF}
    s_addc_u32 s61, s61, 0
    s_mov_b32 s62, {E_BYTES}
    s_mov_b32 s63, 0x20000
    v_lshlrev_b32 v15, 2, v1
    v_and_b32 v15, 127, v15
    s_lshl_b32 s33, s6, 7
    s_add_u32 s33, s33, {FE_OFF}
    ''')
    lg.q = []
    for i in range(3):
        A(f'''
        s_and_b32 s13, s7, 3
        s_mul_i32 s13, s13, 192
        s_add_u32 s13, s13, {64*i}
        v_add_u32 v12, s13, v1
        v_mul_u32_u24 v13, 2731, v12
        v_lshrrev_b32 v13, 16, v13
        v_mul_u32_u24 v14, 24, v13
        v_sub_u32 v14, v12, v14
        v_bfe_u32 v12, v13, 1, 1
        v_lshlrev_b32 v12, 2, v12
        v_xor_b32 v14, v14, v12
        v_mul_u32_u24 v13, 1152, v13
        v_lshl_add_u32 v{8+i}, v14, 4, v13
        ''')
    poll_issue(12, 15, 's32', 'pg0')
    poll_issue(13, 15, 's33', 'pfe')
for n_ in range(240): assert (n_*1366) >> 16 == n_//48
for n_ in range(48): assert (n_*86) >> 8 == n_//3
def k2_dma_ffn(n):
    slot = ((n + 1) % 4) * K2S
    def g0(dst, sel):
        return f'''s_add_u32 {dst}, s44, {5*n}
        s_lshr_b32 s12, {dst}, 2
        s_lshl_b32 {dst}, {dst}, 1
        s_add_u32 {dst}, {dst}, s12
        s_lshl_b32 {dst}, {dst}, 1
        s_add_u32 {dst}, {dst}, {sel}
        '''
    def g1(dst, sel):
        return f'''s_add_u32 {dst}, s44, {5*n-32}
        s_lshr_b32 s13, {dst}, 4
        s_and_b32 {dst}, {dst}, 15
        s_lshl_b32 {dst}, {dst}, 1
        s_add_u32 {dst}, {dst}, {sel}
        s_lshr_b32 s12, {dst}, 2
        s_lshl_b32 {dst}, {dst}, 1
        s_add_u32 {dst}, {dst}, s12
        s_lshl_b32 {dst}, {dst}, 1
        s_add_u32 {dst}, {dst}, s13
        s_add_u32 {dst}, {dst}, 2
        '''
    def g2(dst, sel):
        return f's_add_u32 {dst}, s44, {5*n-64}\ns_mul_i32 {dst}, {dst}, 18\ns_add_u32 {dst}, {dst}, 16\ns_add_u32 {dst}, {dst}, {sel}\n'
    def calc(dst, sel):
        lo, hi = 5*n, 5*n + 4
        if hi < 32: return g0(dst, sel)
        if lo >= 32 and hi < 64: return g1(dst, sel)
        if lo >= 64: return g2(dst, sel)
        f1, f2, th = (g0, g1, 32 - lo) if lo < 32 else (g1, g2, 64 - lo)
        return f1('s14', sel) + f2(dst, sel) + f's_cmp_lt_u32 s44, {th}\ns_cselect_b32 {dst}, s14, {dst}\n'
    preW = calc('s73', 's10') + f's_mul_i32 s73, s73, {32*1152}\ns_add_u32 s73, s73, s80\n'
    preH = calc('s72', 's9') + 's_lshl_b32 s72, s72, 11\ns_add_u32 s72, s72, s76\n'
    for i in range(3): bg.push_m((preW if i == 0 else '') + dma_txt(8+i, 's[56:59]', 's73', f's_add_u32 m0, s83, {slot+1024*i}'), f'k{n}', 1)
    bg.push_m(preH + dma_txt(3, WS, 's72', f's_add_u32 m0, s82, {slot}', sc=LSC), f'k{n}', 1)
    bg.push_m(dma_txt(3, WS, 's72', f's_add_u32 m0, s82, {slot}', imm=1024, sc=LSC), f'k{n}', 1)
def k2_dma_ssm(n, m):
    slot = ((n + 1) % 4) * K2S
    e0 = {14: -2, 15: 3, 16: 9, 17: 14}[n]
    sp = 's_cmp_eq_u32 s44, 3\ns_cselect_b32 s73, 8, s73\ns_min_u32 s73, s73, 17\n' if n == 17 else ''
    pre = f'''s_add_i32 s73, s44, {e0}
    {sp}
    s_cmp_lt_u32 s73, 9
    s_cselect_b32 s64, s68, s70
    s_cselect_b32 s65, s69, s71
    s_cselect_b32 s72, 0, 128
    s_cselect_b32 s12, 0, 9
    s_sub_u32 s73, s73, s12
    s_add_u32 s72, s72, s29
    s_lshl_b32 s12, s73, 14
    s_add_u32 s72, s72, s12
    s_lshl_b32 s73, s73, 7
    s_add_u32 s73, s73, s74
    '''
    for i in range(3):
        bg.push_m((pre if i == 0 else '') + f's_add_u32 s12, s73, {i*8*1152}\n' + dma_txt(5 + (i % 2), 's[64:67]', 's12', f's_add_u32 m0, s83, {slot+1024*i}'), f'k{n}', 1)
    bg.push_m(dma_txt(4, WS, 's72', f's_add_u32 m0, s82, {slot}', sc=LSC), f'k{n}', 1)
    bg.push_m(f's_add_u32 s12, s72, {72*2048}\n' + dma_txt(4, WS, 's12', f's_add_u32 m0, s82, {slot+1024}', sc=LSC), f'k{n}', 1)
def k2_prefetch():
    poll_check(13, 15, 's33', 'pfe')
    poll_check(12, 15, 's32', 'pg0')
    for n in range(3): k2_dma_ffn(n)

def phase_k2():
    ACC2 = 64; AF = 24; BF = 32
    BR = [32, 36, 40, 44, 128, 132]
    RA, RB, SA, SB = 224, 226, 232, 234
    VH, VC, VO, VF = 100+142, 243, 245, 246
    A(f'''
    s_and_b32 s14, s44, 3
    s_lshl_b32 s14, s14, 7
    v_xor_b32 v{RA}, s14, v3
    s_and_b32 s13, s7, 3
    s_lshl_b32 s12, s13, 12
    v_add_u32 v{RA}, s12, v{RA}
    v_add_u32 v{RA+1}, {2*K2S}, v{RA}
    v_lshrrev_b32 v12, 5, v1
    v_lshlrev_b32 v13, 2, v12
    v_bfe_u32 v14, v1, 2, 2
    v_add_u32 v13, v13, v14
    v_mul_u32_u24 v13, 384, v13
    v_bfe_u32 v14, v1, 4, 1
    v_lshl_add_u32 v13, v14, 5, v13
    v_and_b32 v14, 3, v1
    v_lshl_add_u32 v13, v14, 3, v13
    v_add_u32 v13, 16384, v13
    v_bfe_u32 v14, v1, 3, 1
    s_lshr_b32 s77, s7, 2
    s_mul_i32 s77, s77, 3
    ''')
    for jj in range(3):
        A(f's_add_u32 s14, s77, {jj}\nv_xor_b32 v2, s14, v14\nv_lshl_add_u32 v{RB+jj}, v2, 6, v13\nv_add_u32 v{RB+3+jj}, {2*K2S}, v{RB+jj}')
    def setup2():
        A(f'''
        v_lshrrev_b32 v252, 5, v1
        v_lshrrev_b32 v253, 4, v1
        v_lshlrev_b32 v254, 2, v252
        v_and_b32 v255, 7, v1
        v_xor_b32 v254, v254, v255
        v_lshlrev_b32 v254, 4, v254
        v_lshrrev_b32 v255, 3, v1
        v_lshl_add_u32 v4, v255, 8, v254
        v_lshrrev_b32 v254, 3, v1
        v_mul_u32_u24 v254, 1152, v254
        v_and_b32 v255, 7, v1
        v_xor_b32 v255, v255, v253
        v_lshl_add_u32 v5, v255, 4, v254
        s_and_b32 s75, s7, 1
        s_lshl_b32 s75, s75, 6
        v_xor_b32 v5, s75, v5
        v_xor_b32 v6, 64, v5
        s_lshl_b32 s29, s7, 11
        s_mul_i32 s75, s45, {2*72*2048}
        s_add_u32 s29, s29, s75
        s_add_u32 s29, s29, {HT_OFF}
        s_mul_i32 s74, s46, 192
        s_mul_i32 s75, s7, 24
        s_add_u32 s74, s74, s75
        s_mul_i32 s74, s74, 1152
        s_mov_b32 s66, 663552
        s_mov_b32 s67, 0x20000
        s_mov_b32 s64, s68
        s_mov_b32 s65, s69
        v_bfe_u32 v253, v1, 1, 1
        s_and_b32 s75, s44, 1
        v_xor_b32 v253, s75, v253
        v_bfe_u32 v254, v1, 4, 1
        s_bfe_u32 s75, s44, 0x10001
        v_xor_b32 v254, s75, v254
        v_lshlrev_b32 v255, 11, v252
        v_lshl_add_u32 v255, v254, 7, v255
        v_mul_u32_u24 v253, 576, v253
        v_add_u32 v255, v255, v253
        v_bfe_u32 v254, v1, 2, 2
        v_lshl_add_u32 v255, v254, 4, v255
        v_and_b32 v254, 1, v1
        v_lshl_add_u32 v255, v254, 3, v255
        s_bfe_u32 s75, s7, 0x10001
        s_lshl_b32 s75, s75, 10
        v_add_u32 v255, s75, v255
        s_and_b32 s75, s7, 1
        s_lshl_b32 s75, s75, 8
        v_add_u32 v{SA}, s75, v255
        v_add_u32 v{SA+1}, {2*K2S}, v{SA}
        v_xor_b32 v244, 64, v{SA}
        v_xor_b32 v245, 64, v{SA+1}
        v_and_b32 v253, 31, v1
        v_bfe_u32 v254, v1, 1, 3
        v_xor_b32 v254, v254, v252
        v_lshlrev_b32 v254, 4, v254
        v_lshl_add_u32 v253, v253, 7, v254
        s_lshl_b32 s75, s77, 12
        s_add_u32 s75, s75, 16384
        v_add_u32 v253, s75, v253
        ''')
        for sp in range(4): A(f'v_xor_b32 v{SB+sp}, {32*sp}, v253\nv_add_u32 v{SB+4+sp}, {2*K2S}, v{SB+sp}')
        A(f'''
        s_lshl_b32 s75, s45, 2
        s_and_b32 s31, s7, 3
        s_add_u32 s75, s75, s31
        s_lshl_b32 s75, s75, 2
        s_and_b32 s31, s44, 3
        s_add_u32 s75, s75, s31
        s_lshl_b32 s30, s75, 6
        s_add_u32 s30, s30, {STAT_OFF}
        s_mul_i32 s31, s75, {8*2304}
        s_mul_i32 s75, s46, 768
        s_add_u32 s31, s31, s75
        s_lshl_b32 s75, s77, 7
        s_add_u32 s31, s31, s75
        v_mul_u32_u24 v7, {4*2304}, v252
        v_and_b32 v255, 31, v1
        v_lshl_add_u32 v7, v255, 2, v7
        s_lshl_b32 s33, s45, 7
        s_add_u32 s33, s33, {FT_OFF}
        s_add_u32 s28, s33, 64
        v_and_b32 v242, 63, v15
        ''')
    global k2_dma_ssm
    def late_flags():
        flag_store(1, 's_add_u32 s14, s34, 3072', 2)
    def ft_flag():
        flag_store(2, f's_lshr_b32 s14, s11, 4\ns_lshl_b32 s14, s14, 7\ns_and_b32 s12, s11, 15\ns_lshl_b32 s12, s12, 2\ns_add_u32 s14, s14, s12\ns_add_u32 s14, s14, {FT_OFF}', 2)
    S(z='fx')
    bg.flush_m('k0')
    vm.wait('k0')
    A('s_barrier')
    A('s_cmp_lt_u32 s4, 30\ns_cbranch_scc1 K2_GO')
    sv = (list(vm.q), list(lg.q), list(bg.v), list(bg.m))
    A(f'v_lshlrev_b32 v14, 2, v1')
    for k in range(4):
        A(f's_mov_b32 s{24+k}, {FE_OFF+256*k}'); poll_issue(24+k, 14, f's{24+k}', f'pall{k}')
    bg.emit_m(1000); bg.emit_v(10**9)
    vm.wait('h7'); A('s_barrier'); flag_store(0, 's_add_u32 s14, s34, 2048', 2)
    bg.push_v(fix_items()); bg.emit_v(10**9)
    for k in range(4): poll_check(24+k, 14, f's{24+k}', f'pall{k}')
    A('''
    s_lshl_b32 s75, s3, 1
    s_add_u32 s75, s75, s4
    s_sub_u32 s75, s75, 30
    s_lshl_b32 s75, s75, 3
    s_add_u32 s75, s75, s7
    s_lshl_b32 s75, s75, 1
    s_add_u32 s73, s75, 1
    s_mov_b32 s74, 8
    ''')
    fix_loads('s75', 's74'); fix_loads('s73', 's74', 112, 's72'); bg.emit_m(1000)
    vm.wait('h8', 'ht'); A('s_barrier')
    late_flags(); ft_flag()
    A.lab('IDLE_LOOP')
    bg.push_v(fix_items()); bg.emit_v(10**9)
    A('s_cmp_eq_u32 s74, 0\ns_cbranch_scc1 IDLE_DONE\ns_mov_b32 s74, 0\ns_mov_b32 s22, s72')
    for k in range(29): A(f'v_mov_b32 v{FA+k}, v{112+k}')
    A('s_branch IDLE_LOOP')
    A.lab('IDLE_DONE')
    A(f'''
    s_lshr_b32 s14, s75, 4
    s_lshl_b32 s14, s14, 7
    s_and_b32 s12, s75, 15
    s_lshl_b32 s12, s12, 2
    s_add_u32 s14, s14, s12
    s_add_u32 s14, s14, {FT_OFF+64}
    v_mov_b32 v12, {TAG}
    v_mov_b32 v13, {TAG}
    s_mov_b64 exec, 1
    s_waitcnt vmcnt(0)
    buffer_store_dwordx2 v[12:13], off, {WS}, s14 sc1
    s_mov_b64 exec, -1
    s_branch K_FIN
    ''')
    vm.q, lg.q, bg.v, bg.m = sv
    A.lab('K2_GO')
    S(); S(z='k2'); S(z='fx')
    bg.v = [(0, it) for _, it in bg.v]
    fi = fix_items()
    if P('NOFIX', 0): fi = [x for x in fi if not isinstance(x, str) or 'v{}'.format(FT_+22) in x or 'v{},'.format(FT_+21) in x or 'v_add_u32' in x or 'v_and_b32' in x or 'v_lshl' in x]
    bg.push_v(fi); bg.push_v(capture(setup2))
    LK = 3
    def slab_ops(n, typ): return [(n, typ, s, jj) for s in range(4) for jj in range(3)]
    def rd(i, op):
        n, typ, s, jj = op
        slot = (n + 1) % 4; hi = slot // 2; so = (slot % 2) * K2S
        ra = AF + 4*(s % 2); r = BR[i % 6]
        if typ == 'f':
            if jj == 0: A(f'ds_read_b128 {vr(ra,4)}, v{RA+hi} offset:{so+1024*s}'); lg.add(f'q{i}')
            off = so + s*16*384
            A(f'ds_read_b64_tr_b16 {vr(r,2)}, v{RB+3*hi+jj} offset:{off}\nds_read_b64_tr_b16 {vr(r+2,2)}, v{RB+3*hi+jj} offset:{off+8*384}'); lg.add(f'q{i}', 2)
        else:
            if jj == 0:
                A(f'ds_read_b64_tr_b16 {vr(ra,2)}, v{SA+hi} offset:{so+4096*s}\nds_read_b64_tr_b16 {vr(ra+2,2)}, v{244+hi} offset:{so+4096*s}'); lg.add(f'q{i}', 2)
            A(f'ds_read_b128 {vr(r,4)}, v{SB+4*hi+s} offset:{so+4096*jj}'); lg.add(f'q{i}')
    def run(ops, i0, i1, variant):
        N = len(ops)
        for i in range(i0, i1):
            n, typ, s, jj = ops[i]
            j = i + LK
            if j < N:
                if j % 12 == 0: ksync(j // 12, variant)
                rd(j, ops[j])
            lg.wait(f'q{i}')
            a = ACC2 + 16*jj
            A(f'v_mfma_f32_32x32x16_bf16 {vr(a,16)}, {vr(AF+4*(s%2),4)}, {vr(BR[i%6],4)}, {"0" if (n == 0 and s == 0) else vr(a,16)}')
            if i % 2 == 1: bg.emit_m(1)
            bg.emit_v(P('K2RATE', 4), i)
            if i % 24 == 23: S(z='k2')
            if i == 9*12 - 1: S()
    def ksync(n, variant):
        if 3 <= n <= 8: S(z='k2b')
        bg.flush_m(f'k{n}'); vm.wait(f'k{n}')
        if n == 2: vm.wait('h7')
        if n == 5: vm.wait('h8')
        if n == 8: vm.wait('ht')
        A('s_barrier')
        if n == 2: flag_store(0, 's_add_u32 s14, s34, 2048', 2)
        if n == 5: late_flags()
        if n == 8: ft_flag()
        nn = n + 2
        if n <= 11: S(z='k2a')
        if 3 <= n <= 8: S(z='k2b')
        if nn == 6: poll_check(12, 15, 's78', 'pg1')
        if nn == 9: poll_check(12, 15, 's79', 'pg1b')
        if nn == 12: poll_check(12, 15, 's8', 'pg2')
        if nn == 14: poll_check(13, 242, 's33', 'pft')
        if nn == 17:
            sk = newlab('NOF8'); vm.wait('pft8')
            A(f's_cmp_lt_u32 s44, 3\ns_cbranch_scc1 {sk}'); poll_check(13, 242, 's28', 'pft8'); A.lab(sk)
        if nn == 3: pass
        elif nn <= 13 or (nn == 14 and variant == 0): k2_dma_ffn(nn)
        elif nn == 14: k2_dma_ssm(14, 3)
        elif nn <= 17: k2_dma_ssm(nn, nn - 15)
        def pq(*args): bg.m.insert(0, (0, lambda: poll_issue(*args), args[3], 0))
        if n == 3: pq(12, 15, 's78', 'pg1')
        if n == 6: pq(12, 15, 's79', 'pg1b')
        if n == 9: pq(12, 15, 's8', 'pg2')
        if n == 11: assert not bg.v, len(bg.v); pq(13, 242, 's33', 'pft')
        if n == 14: pq(13, 242, 's28', 'pft8')
        if n == 13:
            bg.push_m(f'''s_load_dwordx2 s[24:25], s[0:1], 0
            s_load_dwordx2 s[26:27], s[0:1], 64
            v_add_u32 v176, s31, v7
            v_lshrrev_b32 v176, 1, v176
            v_and_b32 v177, 31, v1
            s_mul_i32 s12, s46, 6
            s_add_u32 s12, s12, s77
            s_lshl_b32 s12, s12, 6
            v_lshl_add_u32 v177, v177, 1, s12
            v_lshrrev_b32 v178, 5, v1
            v_lshlrev_b32 v178, 5, v178
            s_waitcnt lgkmcnt(0)
            buffer_load_dwordx4 v[168:171], v178, {WS}, s30 offen sc1
            buffer_load_dwordx4 v[172:175], v178, {WS}, s30 offen offset:16 sc1''', 'base', 2)
            bg.push_m('\n'.join(f'global_load_ushort v{124+jj}, v177, s[26:27] offset:{64*jj}' for jj in range(3)), 'base', 3)
        if n in (14, 15):
            for e in (2*(n-14), 2*(n-14)+1):
                bg.push_m('\n'.join(f'global_load_ushort v{112+4*jj+e}, v176, s[24:25] offset:{1152*e+64*jj}' for jj in range(3)), 'base', 3)
        if n == 16:
            it = [('vmw', 'base'), 's_mov_b32 s13, 0xffff0000']
            for jj in range(3): it.append(f'v_lshlrev_b32 v{124+jj}, 16, v{124+jj}')
            for jj in range(3):
                for e in (0, 2):
                    a0 = 112+4*jj+e; a1 = a0+1; m0, r0, m1, r1 = 168+2*e, 169+2*e, 170+2*e, 171+2*e
                    un = ['v_cvt_pk_bf16_f32 v181, v180, v181', 'v_lshlrev_b32 v180, 16, v181', 'v_and_b32 v181, s13, v181']
                    it += [f'v_lshlrev_b32 v{a0}, 16, v{a0}', f'v_lshlrev_b32 v{a1}, 16, v{a1}', f'v_sub_f32 v180, v{a0}, v{m0}', f'v_sub_f32 v181, v{a1}, v{m1}'] + un
                    it += [f'v_mul_f32 v180, v180, v{r0}', f'v_mul_f32 v181, v181, v{r1}'] + un
                    it += [f'v_mul_f32 v180, v180, v{124+jj}', f'v_mul_f32 v181, v181, v{124+jj}'] + un
                    it += [f'v_add_f32 v{a0}, v{a0}, v180', f'v_add_f32 v{a1}, v{a1}, v181']
            bg.push_v(it, 16*12 + 4)
    ops0 = sum([slab_ops(n, 'f' if n <= 14 else 's') for n in range(18)], [])
    ops1 = sum([slab_ops(n, 'f' if n <= 13 else 's') for n in range(18)], [])
    A('s_add_u32 s78, s32, 1024\ns_add_u32 s79, s32, 2048\ns_add_u32 s8, s32, 3072')
    k2_dma_ffn(3)
    for i in range(LK): rd(i, ops0[i])
    SPLIT = 12*12 - LK
    run(ops0, 0, SPLIT, 0)
    A('s_cmp_ge_u32 s44, 2\ns_cbranch_scc1 K2_V1')
    sv = (list(vm.q), list(lg.q), list(bg.v), list(bg.m)); ns = nstamp[0]
    run(ops0, SPLIT, 216, 0); bg.emit_m(100); rest = list(bg.v); bg.v = []
    A('s_branch K2_J'); A.lab('K2_V1')
    vm.q, lg.q, bg.v, bg.m = sv; nstamp[0] = ns
    run(ops1, SPLIT, 216, 1); bg.emit_m(100); assert rest == bg.v; bg.v = []
    A.lab('K2_J')
    S()
    A(f'''
    s_mul_i32 s35, s47, {16*12288}
    s_mul_i32 s14, s7, 1536
    s_add_u32 s35, s35, s14
    s_add_u32 s35, s35, {PART_OFF}
    v_lshlrev_b32 v2, 3, v1
    s_and_b32 s12, s44, 3
    s_cmp_eq_u32 s44, 4
    s_cselect_b32 s41, 0, 12288
    s_nop 3
    ''')
    def pub(ap):
        r = 136 + 8*ap
        for jj in range(3):
            a = ACC2 + 16*jj + 4*ap
            A(f'v_cvt_pk_bf16_f32 v{r+2*jj}, v{a}, v{a+1}\nv_cvt_pk_bf16_f32 v{r+2*jj+1}, v{a+2}, v{a+3}')
        A(f's_xor_b32 s14, s12, {ap}\ns_mul_i32 s14, s14, {4*12288}\ns_add_u32 s14, s14, s35\ns_mul_i32 s13, s41, {ap}\ns_add_u32 s14, s14, s13')
        A(f'buffer_store_dwordx4 {vr(r,4)}, v3, {WS}, s14 offen sc1\nbuffer_store_dwordx2 {vr(r+4,2)}, v2, {WS}, s14 offen offset:1024 sc1')
    for ap in (1, 2, 3): pub(ap)
    A('s_cmp_lg_u32 s44, 4\ns_cbranch_scc1 NOPUB0')
    pub(0)
    A.lab('NOPUB0')
    if P('PWF', 0):
        A(f'''
    s_lshl_b32 s33, s47, 3
    s_add_u32 s33, s33, s7
    s_lshl_b32 s33, s33, 7
    s_add_u32 s33, s33, {FP_OFF}
    v_min_u32 v14, 4, v1
    v_lshlrev_b32 v14, 2, v14
    s_lshl_b32 s14, s44, 2
    s_add_u32 s14, s14, s33
    v_mov_b32 v12, {TAG}
    s_mov_b64 exec, 1
    s_waitcnt vmcnt(0)
    buffer_store_dword v12, off, {WS}, s14 sc1
    s_mov_b64 exec, -1
    ''')
        vm.q = []; vm.add('fl')
    else:
        A(f'''
    s_lshl_b32 s33, s47, 7
    s_add_u32 s33, s33, {FP_OFF}
    v_min_u32 v14, 4, v1
    v_lshlrev_b32 v14, 2, v14
    s_waitcnt vmcnt(0)
    s_barrier
    ''')
        vm.q = []
        flag_store(0, 's_lshl_b32 s14, s44, 2\ns_add_u32 s14, s14, s33', 12)
    S()
    A('s_cmp_eq_u32 s44, 4\ns_cbranch_scc1 K_FIN')
    poll_issue(13, 14, 's33', 'pp')
    A('s_mov_b32 s13, 0xffff0000')
    bg.v = rest; bg.emit_v(10**9)
    for jj in range(3):
        for e in range(4): A(f'v_add_f32 v{ACC2+16*jj+e}, v{ACC2+16*jj+e}, v{112+4*jj+e}')
    A(f's_mul_i32 s14, s44, {4*12288}\ns_add_u32 s14, s14, s35')
    poll_check(13, 14, 's33', 'pp')
    S()
    for sl in range(4):
        r = 136 + 8*sl
        A(f'buffer_load_dwordx4 {vr(r,4)}, v3, {WS}, s14 offen sc1\nbuffer_load_dwordx2 {vr(r+4,2)}, v2, {WS}, s14 offen offset:1024 sc1')
        if sl < 3: A('s_add_u32 s14, s14, 12288')
    for sl in range(4):
        A(f's_waitcnt vmcnt({2*(3-sl)})')
        r = 136 + 8*sl
        for jj in range(3):
            for h in range(2):
                a = ACC2 + 16*jj + 2*h; p = r + 2*jj + h
                A(f'v_lshlrev_b32 v12, 16, v{p}\nv_and_b32 v13, s13, v{p}\nv_pk_add_f32 {vr(a,2)}, {vr(a,2)}, v[12:13]')
    for e in range(4):
        A(f's_add_u32 s14, s31, {e*2304}')
        for jj in range(3): A(f'buffer_store_dword v{ACC2+16*jj+e}, v7, {OUT}, s14 offen offset:{128*jj}')
    A.lab('K_FIN')
    if STAMP:
        A('s_waitcnt vmcnt(0)'); nstamp[0] = 14; S(force=True); S(True); Sflush()

def main(path):
    hdr = open('parallel_sum__ssm_conv_s5__geglu_ffn__prompt.s.ref').read().split('; Override launch')[0]
    A.raw(hdr.rstrip())
    A.raw('; @launch grid=(256,1,1) block=(512,1,1) lds=163840')
    A.raw('.amdgcn_target "amdgcn-amd-amdhsa--gfx950"\n.text')
    A.raw(f'.globl {NAME}\n.p2align 8\n.type {NAME},@function\n{NAME}:')
    if STAMP:
        for i in range(16): A(f's_mov_b32 s{86+i}, 0')
    phase_a(); phase_k1(); phase_k2()
    A.lab('K_END')
    A('s_endpgm')
    for c in cold: A.raw(c)
    A.lab('K_LAST')
    A('s_endpgm')
    A.raw(f'''.section .rodata,"a"
.p2align 6
.amdhsa_kernel {NAME}
  .amdhsa_next_free_vgpr 256
  .amdhsa_next_free_sgpr 102
  .amdhsa_accum_offset 256
  .amdhsa_group_segment_fixed_size 0
  .amdhsa_kernarg_size 128
  .amdhsa_user_sgpr_count 2
  .amdhsa_user_sgpr_kernarg_segment_ptr 1
  .amdhsa_system_sgpr_workgroup_id_x 1
  .amdhsa_float_denorm_mode_32 3
.end_amdhsa_kernel''')
    open(path, 'w').write('\n'.join(A.L) + '\n')

if __name__ == '__main__':
    main(sys.argv[1] if len(sys.argv) > 1 else 'k3.s')
```

```python
import sys, struct, os
from layout import *
from gen_v1 import f32, LOG2E, INV2PI, Asm, vr, sr, srd, lam_consts, csq, cmul, DPP8, mapply

STAMP = int(os.environ.get('STAMP', '0'))
DBGT = int(os.environ.get('DBGT', '0'))
LSC = ' sc1' if int(os.environ.get('LSC', '1')) else ''
ZOOM = os.environ.get('ZOOM', '')
def P(name, d): return int(os.environ.get(name, d))
A = Asm()
NAME = 'parallel_sum__ssm_conv_s5__geglu_ffn__prompt_kernel'

class Cnt:
    def __init__(self, name, mx): self.q = []; self.ever = set(); self.name = name; self.mx = mx
    def add(self, tag, n=1): self.q += [tag]*n; self.ever.add(tag)
    def wait(self, *tags):
        for t in tags: assert t in self.ever, t
        idx = [i for i, t in enumerate(self.q) if t in tags]
        if not idx: return
        last = max(idx); n = len(self.q) - 1 - last
        if n > self.mx:
            if self.name == 'vmcnt': self.q = self.q[last+1:]; return
            n = self.mx; last = len(self.q) - 1 - n
        A(f's_waitcnt {self.name}({n})')
        self.q = self.q[last+1:]
    def drain(self):
        A(f's_waitcnt {self.name}(0)'); self.q = []
vm = Cnt('vmcnt', 63); lg = Cnt('lgkmcnt', 15)
nstamp = [0]
def S(real=False, z='', force=False):
    if not STAMP: return
    if not (real or force) and z != ZOOM: return
    A(f'{"s_memrealtime" if (real or DBGT) else "s_memtime"} s[84:85]\ns_waitcnt lgkmcnt(0)\ns_mov_b32 s{86+nstamp[0]}, s84')
    nstamp[0] += 1
    assert nstamp[0] <= 16
def Sflush():
    if DBGT:
        A(f's_mov_b64 exec, 1\ns_load_dwordx2 s[72:73], s[0:1], 112\ns_mov_b32 s74, 256\ns_mov_b32 s75, 0x20000\nv_mov_b32 v2, s101\nv_mov_b32 v1, 0\ns_waitcnt lgkmcnt(0)\nbuffer_atomic_umax v2, v1, s[72:75], 0 offen offset:60 sc1')
        A('s_cmp_lg_u32 s2, 5\ns_cbranch_scc1 NODBG\ns_cmp_lg_u32 s7, 0\ns_cbranch_scc1 NODBG')
        for i in range(14): A(f'v_mov_b32 v2, s{87+i}\nbuffer_store_dword v2, v1, s[72:75], 0 offen offset:{4+4*i}')
        A.lab('NODBG')
        return
    A(f's_mov_b64 exec, -1\ns_lshl_b32 s84, s2, 3\ns_add_u32 s84, s84, s7\ns_lshl_b32 s84, s84, 6\ns_add_u32 s84, s84, {STAMP_OFF}\nv_mov_b32 v1, 0')
    for i in range(16):
        A(f'v_mov_b32 v2, s{86+i}\nbuffer_store_dword v2, v1, s[48:51], s84 offen offset:{4*i}')
uid = [0]
def newlab(p):
    uid[0] += 1; return f'{p}_{uid[0]}'

WS = 's[48:51]'; OUT = 's[52:55]'; DBG = 's[72:75]'
TAG = 's15'
cold = []
def poll_issue(vdst, vaddr, soff, tag):
    A(f'buffer_load_dword v{vdst}, v{vaddr}, {WS}, {soff} offen sc1'); vm.add(tag)
def poll_check(vdst, vaddr, soff, tag):
    vm.wait(tag)
    slow = newlab('SLOW'); back = newlab('BACK')
    A(f'v_cmp_ne_u32 vcc, {TAG}, v{vdst}\ns_cbranch_vccnz {slow}')
    A.lab(back)
    cold.append(f'''{slow}:
    s_sub_u32 s23, s23, 1
    s_cbranch_scc1 {back}
    s_sleep 1
    buffer_load_dword v{vdst}, v{vaddr}, {WS}, {soff} offen sc1
    s_waitcnt vmcnt(0)
    v_cmp_ne_u32 vcc, {TAG}, v{vdst}
    s_cbranch_vccnz {slow}
    s_branch {back}''')
def flag_store(wave, spre, vtmp):
    sk = newlab('NOFLAG')
    A(f's_cmp_lg_u32 s7, {wave}\ns_cbranch_scc1 {sk}\n{spre}\nv_mov_b32 v{vtmp}, {TAG}\ns_mov_b64 exec, 1\nbuffer_store_dword v{vtmp}, off, {WS}, s14 sc1\ns_mov_b64 exec, -1')
    A.lab(sk)
def dma_txt(voff, srdn, soff, m0expr, imm=0, sc=''):
    return f'{m0expr}\ns_nop 0\nbuffer_load_dwordx4 v{voff}, {srdn}, {soff} offen{" offset:%d" % imm if imm else ""}{sc} lds'

def capture(f, group=1):
    n0 = len(A.L); f(); out = A.L[n0:]; del A.L[n0:]
    return [l.strip() for l in out]

class BG:
    def __init__(self): self.v = []; self.m = []
    def push_v(self, items, ready=0): self.v += [(ready, it) for it in items]
    def push_m(self, text, tag, n=1, ready=0): self.m.append((ready, text, tag, n))
    def emit_v(self, k, now=10**9):
        while k > 0 and self.v and self.v[0][0] <= now:
            it = self.v.pop(0)[1]
            if isinstance(it, str): A(it); k -= it.count('\n') + 1
            elif it[0] == 'vm': A(it[1]); vm.add(it[2], it[3]); k -= 2
            elif it[0] == 'ds': A(it[1]); lg.add(it[2]); k -= 1
            elif it[0] == 'lgw': lg.wait(it[1])
            elif it[0] == 'vmw': self.flush_m(it[1]); vm.wait(it[1])
            elif it[0] == 'call': it[1]()
    def emit_m(self, k=1, now=10**9):
        while k > 0 and self.m and self.m[0][0] <= now:
            _, text, tag, n = self.m.pop(0)
            if callable(text): text()
            else:
                for part in text.split('@@'):
                    if part.startswith('LAB '): A.lab(part[4:])
                    else: A(part)
            if n: vm.add(tag, n)
            k -= 1
    def flush_m(self, *tags):
        while any(t[2] in tags for t in self.m): self.emit_m(1)
bg = BG()
def valu_with_vmem(lines, every=8):
    for i, l in enumerate(lines):
        if l.endswith(':'): A.lab(l[:-1])
        else: A(l)
        if i % every == every - 1 and not l.startswith('v_cmp') and not l.startswith('s_nop') and not l.startswith('s_'): bg.emit_m(1)

UREG = 73760
A2_B = [16384, 90144, 34816, 108672]
A2_X = [53248, 127104, 61440, 135296]
TB = 147584
EX_T = 147584; EX_B = EX_T + 8192; EX_S = EX_B + 2048; EX_R = 69632
G2U = 18560
K2S = 40960
XR = 112; ACC = 48; WR = 24; NW = 6; TMP = 16
CONSTS = (244, 245, 246, 247, 248, 249)

def ln_stats(r, t):
    inv = f32(1.0/576.0)
    A(f'''
    v_mul_f32 v{r}, {inv}, v{r}
    v_mul_f32 v{r+1}, {inv}, v{r+1}
    v_fma_f32 v{r+1}, -v{r}, v{r}, v{r+1}
    v_max_f32 v{r+1}, 0, v{r+1}
    v_cvt_pk_bf16_f32 v{t}, v{r}, v{r+1}
    v_lshlrev_b32 v{r}, 16, v{t}
    v_and_b32 v{r+1}, 0xffff0000, v{t}
    v_add_f32 v{r+1}, {f32(1e-5)}, v{r+1}
    v_cvt_pk_bf16_f32 v{r+1}, v{r+1}, v{r+1}
    v_lshlrev_b32 v{r+1}, 16, v{r+1}
    v_sqrt_f32 v{r+1}, v{r+1}
    s_nop 0
    v_cvt_pk_bf16_f32 v{r+1}, v{r+1}, v{r+1}
    v_lshlrev_b32 v{r+1}, 16, v{r+1}
    v_rcp_f32 v{r+1}, v{r+1}
    s_nop 0
    ''')
def unit_consts(p, t=232):
    LR, SLI, A1, A2c, L16R, SL16I = CONSTS
    lam_consts(A, p, p+1, p+2, LR, t, t+1, t+2, t+3, t+4, t+5, t+6)
    A(f'''
    v_and_b32 v{t+7}, 8, v1
    v_lshlrev_b32 v{t+7}, 28, v{t+7}
    v_xor_b32 v{SLI}, v{t+7}, v{t}
    v_add_f32 v{A1}, v{t+1}, v{t+1}
    v_xor_b32 v{A1}, v{t+7}, v{A1}
    v_mul_f32 v{A2c}, -2.0, v{t+2}
    ''')
    csq(A, LR, t, L16R, SL16I, t+3)
    for _ in range(3): csq(A, L16R, SL16I, L16R, SL16I, t+3)
    A(f'v_xor_b32 v{SL16I}, v{t+7}, v{SL16I}')
def get_tag():
    vm.wait('tag')
    slow = newlab('TAGSLOW'); back = newlab('TAGBACK')
    A(f'v_readfirstlane_b32 {TAG}, v15\ns_cmp_eq_u32 {TAG}, 0\ns_cbranch_scc1 {slow}')
    A.lab(back)
    cold.append(f'''{slow}:
    s_sub_u32 s23, s23, 1
    s_cbranch_scc1 {back}
    s_sleep 1
    buffer_load_dword v15, off, {DBG}, 0 sc1
    s_waitcnt vmcnt(0)
    v_readfirstlane_b32 {TAG}, v15
    s_cmp_eq_u32 {TAG}, 0
    s_cbranch_scc1 {slow}
    s_branch {back}''')

def k1_dma(g, n, ready=0):
    pre = f's_add_u32 s12, s32, {n*64*9216 + g*128}\n'
    bg.push_m(pre + dma_txt(0, 's[24:27]', 's12', f's_add_u32 m0, s81, {8192*n}'), f'w{g}_{n}', 1, ready)
    bg.push_m(pre + dma_txt(0, 's[36:39]', 's12', f's_add_u32 m0, s81, {UREG+8192*n}'), f'w{g}_{n}', 1, ready)
def k1_xload(ks, ready=0):
    if ks < 4: t = f'buffer_load_dwordx4 {vr(XR+4*ks,4)}, v3, {WS}, s40 offen offset:{ks*1024}{LSC}'
    else: t = f's_add_u32 s12, s40, {ks*1024}\nbuffer_load_dwordx4 {vr(XR+4*ks,4)}, v3, {WS}, s12 offen{LSC}'
    bg.push_m(t, f'x{ks}', 1, ready)
def k1_dma_g2(part, ready=0):
    sd = 's[24:27]' if part == 0 else 's[36:39]'
    base = 0 if part == 0 else G2U
    sk = newlab('G2X')
    bg.push_m(f's_cmp_ge_u32 s7, 2\ns_cbranch_scc1 {sk}\ns_add_u32 s12, s41, {16*32*9216}\n' + dma_txt(4, sd, 's12', f's_add_u32 m0, s81, {base+16384}') + f'@@LAB {sk}', f'g2_{part}', 0, ready)
    for i in range(2):
        bg.push_m(f's_add_u32 s12, s41, {i*8*32*9216}\n' + dma_txt(4, sd, 's12', f's_add_u32 m0, s81, {base+8192*i}'), f'g2_{part}', 1, ready)


XS = [16384, 90144, 24576, 98336, 32768, 106528, 40960, 114720, 49152]
B8L = 122912; STG = 57344
U = 208; CR = 224; XA = 224; BS8 = 228; STT = 232; ONES = 236; BS = 240; PAR = 250
scan_items = []
def phase_a():
    A(f"""
    s_cmp_ge_u32 s2, 256
    s_cbranch_scc1 K_END
    s_load_dwordx16 s[16:31], s[0:1], 0
    s_load_dwordx8 s[36:43], s[0:1], 80
    s_load_dwordx4 s[44:47], s[0:1], 112
    v_and_b32 v1, 63, v0
    v_lshrrev_b32 v2, 6, v0
    s_and_b32 s3, s2, 7
    s_lshr_b32 s4, s2, 3
    v_readfirstlane_b32 s7, v2
    s_lshr_b32 s5, s4, 3
    s_lshl_b32 s8, s3, 2
    s_add_u32 s5, s5, s8
    s_and_b32 s6, s4, 7
    s_lshr_b32 s8, s3, 2
    s_lshl_b32 s8, s8, 2
    s_lshr_b32 s9, s4, 3
    s_add_u32 s8, s8, s9
    s_and_b32 s9, s3, 3
    s_lshl_b32 s9, s9, 3
    s_add_u32 s9, s9, s6
    s_lshl_b32 s10, s8, 3
    s_add_u32 s10, s10, s7
    v_lshlrev_b32 v3, 4, v1
    v_lshrrev_b32 v4, 3, v1
    v_and_b32 v5, 7, v1
    v_add_u32 v6, 1024, v3
    v_cmp_gt_u32 vcc, 8, v1
    v_mov_b32 v7, 0x3ffffff0
    s_lshl_b32 s11, s5, 3
    s_add_u32 s11, s11, s6
    v_cndmask_b32 v6, v7, v6, vcc
    s_lshl_b32 s33, s11, 3
    s_add_u32 s33, s33, s7
    s_mul_i32 s13, s33, 1152
    v_mul_u32_u24 v8, 1152, v4
    v_bfe_u32 v9, v4, 1, 1
    s_and_b32 s14, s7, 6
    v_xor_b32 v9, s14, v9
    v_xor_b32 v9, v9, v5
    v_lshl_add_u32 v9, v9, 4, v8
    v_lshrrev_b32 v10, 1, v4
    v_xor_b32 v10, v10, v5
    v_lshl_add_u32 v10, v10, 4, v8
    v_xor_b32 v11, 64, v10
    s_lshl_b32 s14, s7, 6
    s_and_b32 s14, s14, 64
    v_xor_b32 v12, s14, v10
    s_lshl_b32 s14, s5, 3
    s_add_u32 s14, s14, s7
    s_mul_i32 s34, s14, {8*1152}
    s_lshl_b32 s14, s6, 3
    s_add_u32 s35, s14, s7
    s_mul_i32 s35, s35, {8*1152}
    s_add_u32 s80, s6, 64
    s_mul_i32 s80, s80, {8*1152}
    s_lshr_b32 s14, s7, 1
    s_lshl_b32 s14, s14, 7
    s_add_u32 s80, s80, s14
    s_lshl_b32 s81, s7, 10
    s_lshl_b32 s82, s7, 11
    s_waitcnt lgkmcnt(0)
    """)
    S(True); S(force=True)
    if P('PRIO', 0): A(f"s_cmp_{'ge' if P('PRIO',0)==1 else 'lt'}_u32 s7, 4\ns_cbranch_scc0 NOPRIO\ns_setprio 1"); A.lab('NOPRIO')
    XRW = 80; XNR = 88; MR_ = 96; T0 = 100
    srd(A, 56, 16, 2359296)
    A(f'buffer_load_dwordx4 {vr(XRW,4)}, v3, s[56:59], s13 offen\nbuffer_load_dwordx4 {vr(XRW+4,4)}, v6, s[56:59], s13 offen')
    vm.add('xr', 2)
    srd(A, 60, 22, 663552); srd(A, 64, 24, 663552)
    A("""
    s_and_b32 s14, s7, 1
    s_cselect_b32 s68, s24, s22
    s_cselect_b32 s69, s25, s23
    s_mov_b32 s70, 663552
    s_mov_b32 s71, 0x20000
    s_mov_b32 s23, 100000
    """)
    def bsg(n): return 112 + 8*n if n < 8 else 88
    def b8(i):
        t = f's_add_u32 s12, s80, {512*i}\n' + dma_txt(12, 's[68:71]', 's12', f's_add_u32 m0, s81, {B8L+8192*i}')
        if i < 2: bg.push_m(t, f'b8_{i}', 1)
        else:
            sk = newlab('B8X'); bg.push_m(f's_cmp_ge_u32 s7, 2\ns_cbranch_scc1 {sk}\n' + t + f'@@LAB {sk}', 'b8_2', 0)
    def a2q(n):
        bg.push_m(f's_add_u32 s12, s34, {128*n}\n' + dma_txt(9, 's[56:59]', 's12', f's_add_u32 m0, s81, {XS[n]}'), f'ax{n}', 1)
        bg.push_m(f'buffer_load_dwordx4 {vr(bsg(n),4)}, v10, s[60:63], s35 offen offset:{128*n}', f'ab{n}', 1, 2 if n == 8 else 0)
        bg.push_m(f'buffer_load_dwordx4 {vr(bsg(n)+4,4)}, v11, s[64:67], s35 offen offset:{128*n}', f'ab{n}', 1)
    a2q(0); b8(0); a2q(1)
    bg.emit_m(4)
    if P('CPF', 1):
        A(f"""
        s_cmp_lg_u32 s7, 5
        s_cbranch_scc1 NOCPF
        s_getpc_b64 s[76:77]
        """)
        A.lab('PCREF')
        A(f"""
        s_and_b32 s76, s76, 0xffffff80
        s_mov_b32 s78, K_LAST-PCREF
        s_mov_b32 s79, 0x20000
        s_lshl_b32 s14, s4, 11
        v_lshlrev_b32 v13, 7, v1
        s_mov_b64 exec, 0xffff
        buffer_load_dword v111, v13, s[76:79], s14 offen
        s_mov_b64 exec, -1
        """)
        A.lab('NOCPF')
    srd(A, 72, 44, 256)
    A(f"""
    s_or_b32 s14, s2, s7
    s_cmp_lg_u32 s14, 0
    s_cbranch_scc1 NOTAG
    s_memrealtime s[84:85]
    s_waitcnt lgkmcnt(0)
    s_mul_i32 s14, s84, 0x9E3779B1
    s_or_b32 s14, s14, 1
    v_mov_b32 v8, s14
    s_mov_b64 exec, 1
    buffer_store_dword v8, off, {DBG}, 0 sc1
    s_mov_b64 exec, -1
    """)
    A.lab('NOTAG')
    srd(A, 48, 46, 0x10000000); srd(A, 52, 42, 4718592)
    U1 = 224; BS1 = 240
    AD = 196
    def setup():
        A(f"""
        v_and_b32 v13, 15, v1
        v_lshrrev_b32 v14, 4, v1
        v_bfe_u32 v2, v1, 1, 3
        v_xor_b32 v2, v2, v14
        v_lshlrev_b32 v2, 4, v2
        v_lshl_add_u32 v8, v13, 7, v2
        v_bfe_u32 v14, v1, 2, 2
        v_lshlrev_b32 v14, 11, v14
        v_and_b32 v13, 3, v1
        v_lshl_add_u32 v14, v13, 7, v14
        v_add_u32 v{AD}, v14, v2
        v_xor_b32 v{AD+1}, 64, v{AD}
        v_add_u32 v{AD+2}, 90144, v{AD}
        v_add_u32 v{AD+3}, 90144, v{AD+1}
        s_lshr_b32 s14, s7, 2
        s_lshl_b32 s14, s14, 6
        v_xor_b32 v{AD+8}, s14, v8
        v_add_u32 v{AD+8}, {B8L}, v{AD+8}
        v_xor_b32 v{AD+4}, s14, v{AD}
        s_and_b32 s14, s7, 3
        s_lshl_b32 s14, s14, 9
        v_add_u32 v{AD+4}, s14, v{AD+4}
        v_add_u32 v{AD+5}, 90144, v{AD+4}
        s_add_u32 s14, s82, {STG}
        v_add_u32 v192, s14, v8
        v_xor_b32 v193, 64, v192
        v_add_u32 v194, s14, v3
        v_mov_b32 v{ONES}, 0x3f803f80
        v_mov_b32 v{ONES+1}, 0x3f803f80
        v_mov_b32 v{ONES+2}, 0x3f803f80
        v_mov_b32 v{ONES+3}, 0x3f803f80
        s_mov_b32 s83, 0x3f803f80
        s_lshl_b32 s14, s6, 3
        v_add_u32 v14, s14, v5
        v_add_u32 v14, 512, v14
        s_add_u32 s14, s14, s7
        s_lshl_b32 s14, s14, 3
        v_add_u32 v13, s14, v5
        v_lshlrev_b32 v108, 1, v13
        v_lshlrev_b32 v109, 1, v14
        s_lshr_b32 s14, s9, 2
        s_mul_i32 s14, s14, 1152
        s_cmp_lt_u32 s2, 128
        s_cselect_b32 s76, s36, s38
        s_cselect_b32 s77, s37, s39
        s_mov_b32 s78, {576*9216}
        s_mov_b32 s79, 0x20000
        s_add_u32 s24, s36, s14
        s_addc_u32 s25, s37, 0
        s_sub_u32 s26, {576*9216}, s14
        s_mov_b32 s27, 0x20000
        s_add_u32 s36, s38, s14
        s_addc_u32 s37, s39, 0
        s_mov_b32 s38, s26
        s_mov_b32 s39, 0x20000
        s_and_b32 s14, s9, 3
        s_lshl_b32 s32, s14, 8
        s_mul_i32 s41, s7, {8*9216}
        s_add_u32 s32, s32, s41
        s_mul_i32 s40, s10, 36864
        v_bfe_u32 v0, v1, 2, 3
        v_mul_u32_u24 v0, 9216, v0
        v_lshrrev_b32 v13, 5, v1
        v_lshl_add_u32 v0, v13, 6, v0
        v_and_b32 v13, 3, v1
        v_lshl_add_u32 v0, v13, 4, v0
        v_lshlrev_b32 v110, 7, v1
        v_min_u32 v110, {41*128}, v110
        s_and_b32 s14, s2, 127
        s_lshl_b32 s14, s14, 3
        s_add_u32 s14, s14, s7
        s_mul_i32 s41, s14, 5184
        s_and_b32 s41, s41, 0xffffff80
        s_lshl_b32 s14, s7, 4
        s_add_u32 s14, s14, {TB}
        v_lshl_add_u32 v{AD+6}, v1, 7, s14
        s_add_u32 s14, s81, {TB}
        v_add_u32 v{AD+7}, s14, v3
        v_lshlrev_b32 v{AD+9}, 9, v4
        v_lshl_add_u32 v{AD+9}, v5, 4, v{AD+9}
        s_lshr_b32 s42, s11, 2
        s_mul_i32 s42, s42, 36864
        s_and_b32 s14, s6, 3
        s_lshl_b32 s14, s14, 7
        s_add_u32 s42, s42, s14
        s_lshl_b32 s14, s7, 12
        s_add_u32 s42, s42, s14
        s_lshl_b32 s43, s33, 3
        s_add_u32 s43, s43, {STAT_OFF}
        v_lshlrev_b32 v17, 2, v1
        v_and_b32 v16, 31, v17
        v_and_b32 v17, 127, v17
        s_lshl_b32 s14, s8, 7
        v_add_u32 v17, s14, v17
        s_lshl_b32 s14, s5, 5
        v_add_u32 v16, s14, v16
        v_cmp_lt_u32 vcc, 31, v1
        s_mov_b32 s33, {FX_OFF}
        s_nop 0
        v_cndmask_b32 v17, v17, v16, vcc
        """)
    a2q(2); a2q(3)
    valu_with_vmem(capture(setup), every=P('A0EVERY', 10))
    b8(1)
    bg.push_m(f'global_load_ushort v{PAR}, v108, s[18:19]\nglobal_load_ushort v{PAR+1}, v108, s[20:21]\nglobal_load_ushort v{PAR+2}, v108, s[30:31]', 'par', 3)
    bg.push_m(f'global_load_ushort v{PAR+3}, v109, s[18:19]\nglobal_load_ushort v{PAR+4}, v109, s[20:21]\nglobal_load_ushort v{PAR+5}, v109, s[30:31]', 'par', 3)
    bg.push_m(f'buffer_load_dword v15, off, {DBG}, 0 sc1', 'tag', 1)
    a2q(4); a2q(5); a2q(6); a2q(7); b8(2); a2q(8)
    k1_dma(0, 0); k1_dma(0, 1)
    if P('TOUCH', 1) == 1: bg.push_m('buffer_load_dword v111, v110, s[76:79], s41 offen', 'touch', 1)
    if P('TOUCH', 1) == 2: bg.m.insert(0, (0, 'buffer_load_dword v111, v110, s[76:79], s41 offen', 'touch', 1))
    def a1():
        for q in range(8):
            c0 = '0' if q == 0 else f'v{MR_}'; c1 = '0' if q == 0 else f'v{MR_+1}'
            A(f'v_dot2_f32_bf16 v{MR_}, v{XRW+q}, s83, {c0}\nv_dot2_f32_bf16 v{MR_+1}, v{XRW+q}, v{XRW+q}, {c1}')
        A('s_nop 2')
        for pat in ('quad_perm:[1,0,3,2] row_mask:0xf', 'quad_perm:[2,3,0,1] row_mask:0xf', 'row_half_mirror row_mask:0xf', 'row_mirror row_mask:0xf',
                    'row_bcast:15 row_mask:0xa', 'row_bcast:31 row_mask:0xc'):
            A(f'v_add_f32_dpp v{MR_}, v{MR_}, v{MR_} {pat} bank_mask:0xf\nv_add_f32_dpp v{MR_+1}, v{MR_+1}, v{MR_+1} {pat} bank_mask:0xf\ns_nop 0')
        A(f'v_readlane_b32 s44, v{MR_}, 63\nv_readlane_b32 s45, v{MR_+1}, 63\ns_nop 1\nv_mov_b32 v{MR_}, s44\nv_mov_b32 v{MR_+1}, s45')
        ln_stats(MR_, MR_+2)
        A(f's_mov_b32 s44, 0xffff0000\nv_sub_f32 v18, 0, v{MR_}\nv_sub_f32 v19, 0, v{MR_}\nv_mov_b32 v20, v{MR_+1}\nv_mov_b32 v21, v{MR_+1}')
        for h in range(2):
            for q in range(4):
                x = XRW+4*h+q; a = T0+2*q
                A(f'v_lshlrev_b32 v{a}, 16, v{x}\nv_and_b32 v{a+1}, s44, v{x}')
            for q in range(4):
                a = T0+2*q; A(f'v_pk_add_f32 {vr(a,2)}, {vr(a,2)}, v[18:19]')
            for q in range(4):
                a = T0+2*q; A(f'v_cvt_pk_bf16_f32 v{a+1}, v{a}, v{a+1}')
            for q in range(4):
                a = T0+2*q; A(f'v_lshlrev_b32 v{a}, 16, v{a+1}\nv_and_b32 v{a+1}, s44, v{a+1}')
            for q in range(4):
                a = T0+2*q; A(f'v_pk_mul_f32 {vr(a,2)}, {vr(a,2)}, v[20:21]')
            for q in range(4):
                a = T0+2*q; A(f'v_cvt_pk_bf16_f32 v{XNR+4*h+q}, v{a}, v{a+1}')
    vm.wait('xr'); S(z='a2')
    a1l = capture(a1)
    NPRE = P('A1PRE', 1000); TBN = P('TBN', 0); FLN = P('FLN', 4)
    valu_with_vmem(a1l[:NPRE], every=P('A1EVERY', 12))
    it = a1l[NPRE:]
    it.append(('ds', f'ds_write_b128 v{AD+6}, {vr(XNR,4)}', 'tbw'))
    it.append(('ds', f's_mov_b64 exec, 0xff\nds_write_b128 v{AD+6}, {vr(XNR+4,4)} offset:8192\ns_mov_b64 exec, -1', 'tbw'))
    it.append(('vm', f's_mov_b64 exec, 1\nbuffer_store_dwordx2 {vr(MR_,2)}, off, {WS}, s43 sc1\ns_mov_b64 exec, -1', 'xn', 1))
    bg.push_v(it)
    E = 72
    def reads(sg):
        n = sg // 2; sp = sg % 2; F = 24 + 16*(sg % 3)
        xo = XS[n] if n % 2 == 0 else XS[n] - 90144
        for t in range(4): A(f'ds_read_b128 {vr(F+4*t,4)}, v{AD+2*(n%2)+sp} offset:{xo+512*t}')
        lg.add(f'r{sg}', 4)
    def ereads(n):
        xo = XS[n] if n % 2 == 0 else XS[n] - 90144
        A(f'ds_read_b128 {vr(E,4)}, v{AD+4+(n%2)} offset:{xo}\nds_read_b128 {vr(E+4,4)}, v{AD+8} offset:{2048*n}'); lg.add(f'e{n}', 2)
    def bswap(n):
        bg.flush_m(f'ab{n}'); vm.wait(f'ab{n}')
        Fb = 176 + 8*(n % 2)
        A(f'ds_write_b128 v194, {vr(bsg(n),4)}\nds_write_b128 v194, {vr(bsg(n)+4,4)} offset:1024')
        A(f'ds_read_b128 {vr(Fb,4)}, v192\nds_read_b128 {vr(Fb+4,4)}, v193'); lg.add(f'b{n}', 4)
    def xn_out():
        sk = newlab('NOXN8')
        A(f'ds_read_b128 {vr(XRW,4)}, v{AD+7}'); lg.add('tbr')
        A(f's_cmp_lg_u32 s7, 0\ns_cbranch_scc1 {sk}\nds_read_b128 {vr(XRW+4,4)}, v{AD+7} offset:8192\ns_add_u32 s12, s42, 32768\ns_waitcnt lgkmcnt(0)\nbuffer_store_dwordx4 {vr(XRW+4,4)}, v{AD+9}, {WS}, s12 offen sc1')
        A.lab(sk)
        bg.push_v([('lgw', 'tbr'), ('vm', f'buffer_store_dwordx4 {vr(XRW,4)}, v{AD+9}, {WS}, s42 offen sc1', 'xn', 1)])
        bg.push_v([('vmw', 'par')] + capture(lambda: unit_consts(PAR, T0)), 7)
    if TBN == 0: bg.emit_v(10**9); lg.wait('tbw')
    bg.flush_m('ax0', 'ax1', 'b8_0'); vm.wait('ax0', 'ax1', 'b8_0')
    A('s_barrier'); S(); S(z='a2')
    if TBN == 0: xn_out()
    bswap(0); reads(0); reads(1)
    VG = P('A2VG', 2); PXS = P('PXS', 15)
    for sg in range(18):
        n = sg // 2; sp = sg % 2; F = 24 + 16*(sg % 3)
        if sg < 16:
            n1 = (sg + 2) // 2
            if (sg + 2) % 4 == 0:
                tags = [f'ax{n1}'] + ([f'ax{n1+1}'] if n1 < 8 else []) + (['b8_1'] if n1 == 4 else [])
                if n1 == TBN: bg.emit_v(10**9); lg.wait('tbw')
                bg.flush_m(*tags, 'b8_2' if n1 == 8 else 'zz'); vm.wait(*tags)
                if n1 == FLN: bg.flush_m('tag'); vm.wait('xn'); get_tag()
                A('s_barrier'); S(z='a2')
                if n1 == TBN: xn_out()
                if n1 == FLN: flag_store(6, f's_lshl_b32 s14, s11, 2\ns_add_u32 s14, s14, {FX_OFF}', 13)
                if n1 >= 4: k1_dma(0, n1 // 2)
            reads(sg + 2)
        if sp == 0: ereads(n)
        lg.wait(f'r{sg}')
        z = (sg == 0)
        if sp == 0: lg.wait(f'b{n}')
        def c(rg, zz=z): return '0' if zz else vr(rg, 4)
        UU = U; BB = BS; BF_ = 176 + 8*(n % 2) + 4*sp
        ms = [f'v_mfma_f32_16x16x32_bf16 {vr(UU+4*t,4)}, {vr(F+4*t,4)}, {vr(BF_,4)}, {c(UU+4*t)}' for t in range(4)]
        ms += [f'v_mfma_f32_16x16x32_bf16 {vr(BB,4)}, {vr(ONES,4)}, {vr(BF_,4)}, {c(BB)}']
        if sp == 1:
            lg.wait(f'e{n}')
            ms += [f'v_mfma_f32_16x16x32_bf16 {vr(XA,4)}, {vr(E,4)}, {vr(E+4,4)}, {c(XA, sg == 1)}', f'v_mfma_f32_16x16x32_bf16 {vr(BS8,4)}, {vr(ONES,4)}, {vr(E+4,4)}, {c(BS8, sg == 1)}']
        for i, m in enumerate(ms):
            A(m)
            bg.emit_v(2, sg)
            if sp == 0 and i == 4 and n < 8: bswap(n + 1)
            if i % VG == VG - 1: bg.emit_m(1, sg)
        if sg == PXS: bg.m.insert(0, (0, lambda: poll_issue(16, 17, 's33', 'pfx'), 'pfx', 0))
        if sg == PXS + 2:
            bg.flush_m('pfx'); poll_check(16, 17, 's33', 'pfx')
            A(f'v_lshlrev_b32 v22, 3, v1\ns_lshl_b32 s12, s5, 9\ns_add_u32 s12, s12, {STAT_OFF}\nbuffer_load_dwordx2 v[18:19], v22, {WS}, s12 offen sc1'); vm.add('stl')
            for ks in range(16): k1_xload(ks, 2*(ks//2) - 1)
    bg.emit_v(10**9)
    S(); S(z='a2')
    A(f"""
    s_nop 3
    s_add_u32 s14, s81, {EX_T}
    v_add_u32 v14, s14, v3
    s_lshl_b32 s14, s7, 8
    s_add_u32 s14, s14, {EX_B}
    v_lshl_add_u32 v2, v1, 2, s14
    ds_write_b128 v14, {vr(XA,4)}
    ds_write_b32 v2, v{BS8}
    """)
    bg.flush_m('w0_0', 'w0_1', 'touch'); vm.wait('w0_0', 'w0_1'); vm.wait('touch') if P('TOUCH', 1) in (1, 2) else None
    A('s_waitcnt lgkmcnt(0)\ns_barrier'); lg.q = []
    S(z='a3')
    k1_dma(0, 5); k1_dma(0, 6)
    bg.m = [(0,) + tuple(t[1:]) for t in bg.m]
    bg.emit_m(2)
    LR, SLI, A1, A2c, L16R, SL16I = CONSTS
    E0 = 16; T2, T3, EE = 20, 21, 15; W0, W1, W2 = 241, 242, 243; TA, TB_ = 22, 23
    def st2():
        A(f"""
        v_mul_f32 v18, -v18, v19
        s_lshl_b32 s44, s7, 9
        s_add_u32 s44, s44, {EX_R}
        v_lshl_add_u32 v{W0}, v1, 3, s44
        v_lshrrev_b32 v{W1}, 4, v1
        v_lshl_add_u32 v{W2}, v{W1}, 7, s44
        """)
    def fin_items(tg, sc):
        it = []
        for hf in range(2):
            it += [('ds', f'ds_read_b128 {vr(CR+4*k,4)}, v{W2} offset:{64*hf+16*k}', f'{tg}cr{hf}') for k in range(4)]
            if hf == 0 and tg == '':
                it += capture(lambda: A("""
                v_and_b32 v8, 15, v1
                v_lshlrev_b32 v8, 2, v8
                v_add_u32 v9, 64, v8
                v_add_u32 v10, 128, v8
                v_add_u32 v12, 192, v8
                s_mul_i32 s83, s11, 9
                s_add_u32 s83, s83, s7
                """))
            it.append(('lgw', f'{tg}cr{hf}'))
            it += [f'v_mul_f32 v{U+8*hf+k}, v{CR+1+2*k}, v{U+8*hf+k}' for k in range(8)]
            it += [f'v_fmac_f32 v{U+8*hf+k}, v{CR+2*k}, v{BS}' for k in range(8)]
        tt = (TA, TB_)
        it += [f'v_mul_f32 v{tt[0]}, v{A1}, v{U}', f'v_fmac_f32_dpp v{tt[0]}, v{U}, v{A2c} {DPP8}',
               f'v_mul_f32 v{tt[1]}, v{A1}, v{U+1}', f'v_fmac_f32_dpp v{tt[1]}, v{U+1}, v{A2c} {DPP8}', f'v_mov_b32 v{U}, v{tt[0]}']
        for k in range(1, 16):
            t_ = tt[k % 2]; o_ = tt[(k+1) % 2]
            it.append(f'v_fma_f32 v{U+k}, v{LR}, v{U+k-1}, v{t_}')
            if k < 15: it.append(f'v_mul_f32 v{o_}, v{A1}, v{U+k+1}')
            else: it.append('s_nop 0')
            it.append(f'v_fmac_f32_dpp v{U+k}, v{U+k-1}, v{SLI} {DPP8}')
            if k < 15: it.append(f'v_fmac_f32_dpp v{o_}, v{U+k+1}, v{A2c} {DPP8}')
        it += [('ds', f'ds_bpermute_b32 v{E0+g}, v{(8,9,10,12)[g]}, v{U+15}', tg+'bp') for g in range(4)]
        it.append(f's_mul_i32 s45, s83, {H0_UNIT}\ns_add_u32 s45, s45, {H0_OFF}')
        it += [('vm', f'buffer_store_dwordx4 {vr(U+4*k,4)}, v3, {WS}, s45 offen offset:{1024*k}{sc}', tg+'h0', 1) for k in range(4)]
        it.append(('lgw', tg+'bp'))
        ee = EE if tg == '' else 14
        def part2():
            mapply(A, T2, E0, L16R, SL16I, E0+1); mapply(A, T3, T2, L16R, SL16I, E0+2); mapply(A, ee, T3, L16R, SL16I, E0+3)
            A(f'v_mov_b32 v{W0}, 0')
        it += capture(part2)
        for k, r in enumerate((E0, T2, T3)): it.append(f'v_cmp_eq_u32 vcc, {k+1}, v{W1}\ns_nop 1\nv_cndmask_b32 v{W0}, v{W0}, v{r}, vcc')
        it.append(('vm', f'v_lshlrev_b32 v{E0}, 2, v1\ns_add_u32 s12, s45, 4096\nbuffer_store_dword v{W0}, v{E0}, {WS}, s12 offen{sc}', tg+'h0', 1))
        return it
    it = [('vmw', 'stl')] + capture(st2)
    it.append(('ds', f'ds_write_b64 v{W0}, v[18:19]', 'crw'))
    it += fin_items('', '')
    def unit8():
        sv = (list(vm.q), list(bg.v))
        A(f"""
        s_cmp_lg_u32 s7, 7
        s_cbranch_scc1 UNIT_DONE
        s_add_u32 s83, s83, 1
        v_add_u32 v{W0}, {EX_T}, v3
        v_lshlrev_b32 v{E0}, 2, v1
        v_add_u32 v{E0}, {EX_B}, v{E0}
        """)
        for t in range(4):
            A(f'ds_read_b128 {vr(U+4*t,4)}, v{W0} offset:{1024*t}\nds_read_b128 {vr(CR+4*t,4)}, v{W0} offset:{1024*(t+4)}')
        A(f'ds_read_b32 v{BS}, v{E0}\nds_read_b32 v{W0}, v{E0} offset:1024')
        unit_consts(PAR+3, 16)
        A('s_waitcnt lgkmcnt(0)')
        for k in range(16): A(f'v_add_f32 v{U+k}, v{U+k}, v{CR+k}')
        A(f'v_add_f32 v{BS}, v{BS}, v{W0}')
        lq = list(lg.q); lg.q = []
        bg.v = []; bg.push_v(fin_items('u8', ' sc1')); bg.emit_v(10**9)
        A('s_sub_u32 s83, s83, 1')
        A.lab('UNIT_DONE')
        lg.q = lq; vm.q, bg.v = sv
    if not P('NOU8', 0): it.append(('call', unit8))
    if P('NOSCAN', 0): it = [x for x in it if not isinstance(x, str) or x.startswith('s_') or 'v_lshl' in x or 'v_and_b32 v8' in x or 'v_add_u32' in x or 'v_lshr' in x]
    it.append(('call', lambda: scan_done.append(1)))
    scan_items.extend(it)
    S(); S(z='a3')
scan_done = []

FA = 168; FT_ = 199
def phase_k1():
    KS1 = P('KS1', 24); HD = 4; LOOK = 4
    seq = [(ks, fb) for ks in range(KS1) for fb in range(4)]
    seq += [(ks, fb) for fb in range(4) for ks in range(KS1, 36)]
    seq += [(ks, fb) for fb in (4, 5) for ks in range(24)] + [(ks, fb) for fb in (4, 5) for ks in range(24, 36)]
    seq += [(ks, fb) for fb in (6, 7) for ks in range(24)] + [(ks, fb) for fb in (6, 7) for ks in range(24, 36)]
    seq += [(ks, 8) for ks in range(36)]
    N = len(seq)
    P2 = 4*KS1; P3 = P2 + 2*(36-KS1); P4, P5, P6 = 144, 216, 288
    A(f'''
    v_bfe_u32 v13, v1, 4, 1
    v_lshrrev_b32 v14, 5, v1
    v_and_b32 v2, 15, v1
    v_lshlrev_b32 v2, 3, v2
    v_mul_u32_u24 v5, {UREG}, v13
    v_lshl_add_u32 v5, v14, 10, v5
    v_add_u32 v5, v5, v2
    v_and_b32 v6, 12, v1
    v_lshl_add_u32 v5, v6, 3, v5
    v_add_u32 v6, 36864, v5
    ''')
    A(f'v_mul_u32_u24 v7, {G2U}, v13\nv_lshl_add_u32 v7, v14, 8, v7\nv_add_u32 v7, v7, v2')
    setup2 = capture(lambda: A(f'''
    v_lshrrev_b32 v4, 1, v1
    v_mul_u32_u24 v4, 9216, v4
    v_and_b32 v13, 1, v1
    v_lshl_add_u32 v4, v13, 4, v4
    s_mul_i32 s41, s7, {32*9216}
    s_and_b32 s13, s9, 3
    s_lshl_b32 s13, s13, 5
    s_add_u32 s41, s41, s13
    s_add_u32 s41, s41, 1024
    s_mov_b32 s42, {f32(-2.302208198*0.044715)}
    v_mov_b32 v11, {f32(-2.302208198)}
    s_lshr_b32 s14, s9, 2
    s_mul_i32 s14, s14, 9
    s_and_b32 s13, s9, 3
    s_lshl_b32 s34, s13, 1
    s_add_u32 s34, s34, s14
    s_lshl_b32 s34, s34, 12
    s_mul_i32 s43, s10, 294912
    s_add_u32 s43, s43, {HF_OFF}
    s_add_u32 s14, s14, 8
    s_lshl_b32 s14, s14, 12
    s_lshl_b32 s13, s13, 10
    s_add_u32 s14, s14, s13
    s_add_u32 s35, s43, s14
    s_add_u32 s43, s43, s34
    s_lshl_b32 s34, s8, 5
    s_add_u32 s34, s34, s9
    s_lshl_b32 s34, s34, 2
    s_add_u32 s34, s34, {FH_OFF}
    '''))
    bg.push_v(scan_items); bg.push_v(setup2)
    for k in range(16, 24): k1_xload(k)
    if P('TOUCH', 1) == 3: A('v_mov_b32 v13, v110\ns_mov_b32 s46, s41'); bg.push_m('buffer_load_dword v2, v13, s[76:79], s46 offen', 'touch', 1)
    def wread(m):
        ks, fb = seq[m]
        r = WR + 4*(m % NW)
        if fb < 8: ad = 5 if ks < 18 else 6; off = (ks % 18)*2048 + ((fb % 4) >> 1)*512 + (fb & 1)*32; o2 = 256
        else: ad = 7; off = ks*512; o2 = 128
        A(f'ds_read_b64_tr_b16 {vr(r,2)}, v{ad} offset:{off}\nds_read_b64_tr_b16 {vr(r+2,2)}, v{ad} offset:{off+o2}')
        lg.add(f'm{m}', 2)
    busy = set()
    def make_epi(fb):
        a = ACC + 16*(fb % 4); t = TMP
        out = []
        for half in range(2):
            es = range(4*half, 4*half+4)
            for e in es: out.append(f'v_mul_f32 v{t+e%4}, v{a+e}, v{a+e}')
            for e in es: out.append(f'v_fma_f32 v{t+e%4}, v{t+e%4}, s42, v11')
            for e in es: out.append(f'v_mul_f32 v{t+e%4}, v{t+e%4}, v{a+e}')
            for e in es: out.append(f'v_exp_f32 v{t+e%4}, v{t+e%4}')
            for e in es: out.append(f'v_mul_f32 v{a+e}, v{a+e}, v{a+8+e}')
            for e in es: out.append(f'v_add_f32 v{t+e%4}, 1.0, v{t+e%4}')
            for e in es: out.append(f'v_rcp_f32 v{t+e%4}, v{t+e%4}')
            out.append('s_nop 0')
            for e in es: out.append(f'v_mul_f32 v{a+e}, v{a+e}, v{t+e%4}')
            out.append(f'v_cvt_pk_bf16_f32 v{t+4+2*half}, v{a+4*half}, v{a+4*half+1}')
            out.append(f'v_cvt_pk_bf16_f32 v{t+5+2*half}, v{a+4*half+2}, v{a+4*half+3}')
        out.append(('call', lambda: busy.discard(fb % 4)))
        if fb < 4: st = f'buffer_store_dwordx4 {vr(t+4,4)}, v3, {WS}, s43 offen offset:{fb*1024} sc1'
        elif fb < 8: st = f's_add_u32 s12, s43, 4096\nbuffer_store_dwordx4 {vr(t+4,4)}, v3, {WS}, s12 offen offset:{(fb-4)*1024} sc1'
        else: st = f'buffer_store_dwordx4 {vr(t+4,4)}, v3, {WS}, s35 offen sc1'
        out.append(('vm', st, f'h{fb}', 1))
        return out
    def flagH(g): return lambda: flag_store(0, f's_add_u32 s14, s34, {1024*g}', 2)
    def flagE(): flag_store(1, f's_lshl_b32 s14, s6, 5\ns_add_u32 s14, s14, s5\ns_lshl_b32 s14, s14, 2\ns_add_u32 s14, s14, {FE_OFF}', 2)
    def xl(a, b): return lambda: [k1_xload(k) for k in range(a, b)]
    def wd(g, *ns): return lambda: [k1_dma(g, n) for n in ns]
    assert KS1 == 24
    def chk_scan(): assert scan_done
    def estore():
        sk = newlab('E8')
        bg.push_m(f's_lshl_b32 s12, s83, 6\ns_add_u32 s12, s12, {E_OFF}\ns_cmp_lg_u32 s7, 7\ns_cbranch_scc1 {sk}\nbuffer_store_dword v14, v8, {WS}, s12 offen offset:64 sc1@@LAB {sk}@@buffer_store_dword v15, v8, {WS}, s12 offen sc1', 'est', 1)
    def touch2():
        if not P('TOUCH', 1): return
        bg.push_m(f'''s_load_dwordx2 s[76:77], s[0:1], 96
        v_lshlrev_b32 v13, 7, v1
        v_min_u32 v13, {21*128}, v13
        s_lshl_b32 s12, s2, 3
        s_add_u32 s12, s12, s7
        s_mul_i32 s12, s12, 2592
        s_and_b32 s12, s12, 0xffffff80
        s_mov_b32 s78, {4608*1152}
        s_mov_b32 s79, 0x20000
        s_waitcnt lgkmcnt(0)
        buffer_load_dword v9, v13, s[76:79], s12 offen''', 'touch2', 1)
        bg.push_m(f'''s_lshr_b32 s12, s2, 7
        s_lshl_b32 s12, s12, 3
        s_add_u32 s76, s0, s12
        s_addc_u32 s77, s1, 0
        s_load_dwordx2 s[76:77], s[76:77], 40
        v_min_u32 v13, {6*128}, v13
        s_and_b32 s12, s2, 127
        s_lshl_b32 s12, s12, 3
        s_add_u32 s12, s12, s7
        s_mul_i32 s12, s12, 648
        s_and_b32 s12, s12, 0xffffff80
        s_mov_b32 s78, 663552
        s_waitcnt lgkmcnt(0)
        buffer_load_dword v10, v13, s[76:79], s12 offen''', 'touch2', 1)
    sync = {
        32:  (['w0_2', 'w0_3'], [wd(0, 7)]),
        64:  (['w0_4', 'w0_5'], [chk_scan, xl(24, 28), wd(0, 8), xl(28, 36), wd(1, 0, 1, 2)]),
        96:  (['w0_6', 'w0_7'], [wd(1, 3, 4)]),
        104: (['w0_8'], [wd(1, 5), estore, touch2]),
        144: (['w1_0', 'w1_1', 'w1_2', 'w1_3', 'w1_4', 'w1_5'], [wd(1, 6, 7)]),
        150: ([], [wd(1, 8)]),
        192: (['w1_6', 'w1_7', 'w1_8', 'est'], [flagE]),
        P5+20: (['h3'], [flagH(0)]),
        P5+40: ([], [lambda: k1_dma_g2(0)]),
        P5+48: ([], [lambda: k1_dma_g2(1)]),
        P6:  (['g2_0', 'g2_1'], []),
        P6+4: (['h5'], [flagH(1), k2_prefetch]),
    }
    def do_sync(m):
        if m in sync:
            tags, acts = sync[m]
            bg.flush_m(*tags); vm.wait(*tags); A('s_barrier')
            for f in acts: f()
    seen_x = set()
    S()
    for m in range(LOOK): wread(m)
    for n in range(N):
        ks, fb = seq[n]
        if n in (P4, P6): S()
        if n % 32 == 0: S(z='k1')
        if n == P5 + 56: k2_setup()
        if n + LOOK < N:
            do_sync(n + LOOK); wread(n + LOOK)
        if ks not in seen_x:
            seen_x.add(ks); bg.flush_m(f'x{ks}'); vm.wait(f'x{ks}')
        first = (ks == 0)
        if first: assert (fb % 4) not in busy, (n, fb)
        lg.wait(f'm{n}')
        a = ACC + 16*(fb % 4)
        A(f'v_mfma_f32_32x32x16_bf16 {vr(a,16)}, {vr(WR+4*(n%NW),4)}, {vr(XR+4*ks,4)}, {"0" if first else vr(a,16)}')
        if ks == 35:
            busy.add(fb % 4); bg.push_v(make_epi(fb), n + 4)
        if n == P6 + 22: fix_loads('s11', 's7')
        gap = P('G1', 2) if n < P2 else (P('G2', 2) if n < P6 else 1)
        if n % gap == gap - 1: bg.emit_m(1, n)
        rate = P('R0', 5) if n < 64 else (P('R1', 3) if n < P6 else P('P6RATE', 4))
        bg.emit_v(rate, n)
    assert not bg.m
    while busy - {0}: bg.emit_v(4)
    S(); S(z='fx')

def fix_loads(swg, sunit, base=None, sht='s22'):
    base = FA if base is None else base
    pcalc = f's_lshl_b32 s12, s12, 3\ns_add_u32 s12, s12, {sunit}\ns_lshl_b32 s12, s12, 3' if sunit == 's7' else 's_lshl_b32 s12, s12, 3\ns_add_u32 s12, s12, 512'
    pre = f'''s_mul_i32 s16, {swg}, 9
    s_add_u32 s16, s16, {sunit}
    s_mul_i32 s17, s16, {H0_UNIT}
    s_add_u32 s17, s17, {H0_OFF}
    s_and_b32 s12, {swg}, 7
    {pcalc}
    v_and_b32 v{base+30}, 7, v1
    v_add_u32 v{base+28}, s12, v{base+30}
    v_lshlrev_b32 v{base+30}, 1, v{base+28}
    s_lshr_b32 {sht}, {swg}, 3
    s_mul_i32 {sht}, {sht}, {72*2048}
    s_lshl_b32 s12, s12, 8
    s_add_u32 {sht}, {sht}, s12
    s_add_u32 {sht}, {sht}, {HT_OFF}
    global_load_ushort v{base+25}, v{base+30}, s[18:19]
    global_load_ushort v{base+26}, v{base+30}, s[20:21]
    global_load_ushort v{base+27}, v{base+30}, s[30:31]'''
    bg.push_m(pre, 'fx', 3)
    pre2 = f'''s_lshl_b32 s16, s16, 6
    v_lshrrev_b32 v{base+30}, 4, v1
    v_mul_u32_u24 v{base+30}, {8*4608}, v{base+30}
    v_and_b32 v{base+29}, 15, v1
    v_lshl_add_u32 v{base+29}, v{base+29}, 2, s16
    v_sub_u32 v{base+29}, v{base+29}, v{base+30}
    '''
    for i in range(0, 8, 2):
        t = pre2 if i == 0 else ''
        for k in (i, i+1): t += f'v_subrev_u32 v{base+29}, 4608, v{base+29}\nbuffer_load_dword v{base+17+k}, v{base+29}, s[60:63], 0 offen sc1\n'
        bg.push_m(t, 'fx', 2)
    for k in range(4): bg.push_m(f'buffer_load_dwordx4 {vr(base+4*k,4)}, v3, {WS}, s17 offen offset:{1024*k} sc1', 'fx', 1)
    bg.push_m(f'v_lshlrev_b32 v{base+30}, 2, v1\ns_add_u32 s12, s17, 4096\nbuffer_load_dword v{base+16}, v{base+30}, {WS}, s12 offen sc1', 'fx', 1)
def fix_items():
    t = FT_
    LR, LI, SG = t, t+1, t+2
    PR, PI = t+3, t+4; QR, QI = t+5, t+6; L64R, L64I = t+7, t+8
    it = [('vmw', 'fx')]
    def p1():
        lam_consts(A, FA+25, FA+26, FA+27, LR, LI, 0, 0, t+9, t+10, t+11, t+12, need_coef=False)
        A(f'v_and_b32 v{SG}, 8, v1\nv_lshlrev_b32 v{SG}, 28, v{SG}')
        csq(A, LR, LI, t+23, t+24, t+9)
        csq(A, t+23, t+24, PR, PI, t+9)
        A(f'v_xor_b32 v{t+24}, v{SG}, v{t+24}')
        for _ in range(2): csq(A, PR, PI, PR, PI, t+9)
        A(f'v_mov_b32 v{t+13}, v{PR}\nv_mov_b32 v{t+14}, v{PI}')
        csq(A, PR, PI, PR, PI, t+9)
        cmul(A, PR, PI, t+13, t+14, t+15, t+16)
        A(f'v_lshrrev_b32 v{t+21}, 4, v1\nv_mov_b32 v{QR}, 1.0\nv_mov_b32 v{QI}, 0')
    it += capture(p1)
    for k, (a, b) in enumerate(((t+13, t+14), (PR, PI), (t+15, t+16))):
        it.append(f'v_cmp_eq_u32 vcc, {k+1}, v{t+21}\ns_nop 1\nv_cndmask_b32 v{QR}, v{QR}, v{a}, vcc\nv_cndmask_b32 v{QI}, v{QI}, v{b}, vcc')
    def p2():
        A(f'v_xor_b32 v{QI}, v{SG}, v{QI}')
        csq(A, PR, PI, L64R, L64I, t+9)
        csq(A, L64R, L64I, PR, PI, t+9)
        for _ in range(2): csq(A, PR, PI, PR, PI, t+9)
        A(f'v_xor_b32 v{L64I}, v{SG}, v{L64I}\nv_xor_b32 v{PI}, v{SG}, v{PI}\nv_xor_b32 v{LI}, v{SG}, v{LI}')
        for i in range(6, -1, -1): mapply(A, FA+17+i, FA+17+i+1, L64R, L64I, FA+17+i)
        A(f'''
        v_and_b32 v{t+17}, 15, v1
        v_lshlrev_b32 v{t+17}, 2, v{t+17}
        v_add_u32 v{t+18}, 64, v{t+17}
        v_add_u32 v{t+19}, 128, v{t+17}
        v_add_u32 v{t+20}, 192, v{t+17}
        ''')
    it += capture(p2)
    u = newlab('bp')
    for g in range(4): it.append(('ds', f'ds_bpermute_b32 v{FA+18+g}, v{t+17+g}, v{FA+17}', u))
    it.append(('lgw', u))
    def p3():
        for g in (2, 1, 0): mapply(A, FA+18+g, FA+18+g+1, PR, PI, FA+18+g)
        mapply(A, FA+16, FA+18, QR, QI, FA+16)
        G = [FA+17, FA+18, FA+19, FA+20]
        mapply(A, G[0], FA+16, LR, LI, None)
        mapply(A, G[1], FA+16, t+23, t+24, None)
        for k in range(0, 16, 2):
            a0, a1, b0, b1 = (G[0], G[1], G[2], G[3]) if k % 4 == 0 else (G[2], G[3], G[0], G[1])
            A(f'v_add_f32 v{FA+k}, v{FA+k}, v{a0}')
            if k < 14: A(f'v_mul_f32 v{b0}, v{t+23}, v{a0}\nv_mul_f32 v{b1}, v{t+23}, v{a1}')
            A(f'v_add_f32 v{FA+k+1}, v{FA+k+1}, v{a1}')
            if k < 14: A(f'v_fmac_f32_dpp v{b0}, v{a0}, v{t+24} {DPP8}\nv_fmac_f32_dpp v{b1}, v{a1}, v{t+24} {DPP8}')
        for k in range(8): A(f'v_cvt_pk_bf16_f32 v{FA+k}, v{FA+2*k}, v{FA+2*k+1}')
    it += capture(p3)
    it.append(('vm', f'buffer_store_dwordx4 {vr(FA,4)}, v3, {WS}, s22 offen sc1\nbuffer_store_dwordx4 {vr(FA+4,4)}, v3, {WS}, s22 offen offset:1024 sc1', 'ht', 2))
    return it

def k2_setup():
    A(f'''
    s_load_dwordx4 s[68:71], s[0:1], 40
    s_load_dwordx2 s[56:57], s[0:1], 96
    s_load_dwordx2 s[60:61], s[0:1], 120
    s_mul_i32 s14, s3, 30
    s_add_u32 s14, s14, s4
    s_mul_i32 s44, s14, 1366
    s_lshr_b32 s44, s44, 16
    s_mul_i32 s13, s44, 48
    s_sub_u32 s47, s14, s13
    s_mul_i32 s45, s47, 86
    s_lshr_b32 s45, s45, 8
    s_mul_i32 s13, s45, 3
    s_sub_u32 s46, s47, s13
    s_lshl_b32 s14, s45, 2
    s_lshr_b32 s13, s7, 1
    s_add_u32 s14, s14, s13
    s_mul_i32 s76, s14, 294912
    s_and_b32 s9, s7, 1
    s_lshr_b32 s10, s7, 2
    s_add_u32 s76, s76, {HF_OFF}
    s_mul_i32 s83, s7, 3072
    s_add_u32 s83, s83, 16384
    s_mul_i32 s80, s46, 384
    s_lshr_b32 s14, s45, 1
    s_lshl_b32 s32, s14, 7
    s_add_u32 s32, s32, {FH_OFF}
    s_waitcnt lgkmcnt(0)
    s_mov_b32 s58, {4608*1152}
    s_mov_b32 s59, 0x20000
    s_add_u32 s60, s60, {E_OFF}
    s_addc_u32 s61, s61, 0
    s_mov_b32 s62, {E_BYTES}
    s_mov_b32 s63, 0x20000
    v_lshlrev_b32 v15, 2, v1
    v_and_b32 v15, 127, v15
    s_lshl_b32 s33, s6, 7
    s_add_u32 s33, s33, {FE_OFF}
    ''')
    lg.q = []
    for i in range(3):
        A(f'''
        s_and_b32 s13, s7, 3
        s_mul_i32 s13, s13, 192
        s_add_u32 s13, s13, {64*i}
        v_add_u32 v12, s13, v1
        v_mul_u32_u24 v13, 2731, v12
        v_lshrrev_b32 v13, 16, v13
        v_mul_u32_u24 v14, 24, v13
        v_sub_u32 v14, v12, v14
        v_bfe_u32 v12, v13, 1, 1
        v_lshlrev_b32 v12, 2, v12
        v_xor_b32 v14, v14, v12
        v_mul_u32_u24 v13, 1152, v13
        v_lshl_add_u32 v{8+i}, v14, 4, v13
        ''')
    poll_issue(12, 15, 's32', 'pg0')
    poll_issue(13, 15, 's33', 'pfe')
for n_ in range(240): assert (n_*1366) >> 16 == n_//48
for n_ in range(48): assert (n_*86) >> 8 == n_//3
def k2_dma_ffn(n):
    slot = ((n + 1) % 4) * K2S
    def g0(dst, sel):
        return f'''s_add_u32 {dst}, s44, {5*n}
        s_lshr_b32 s12, {dst}, 2
        s_lshl_b32 {dst}, {dst}, 1
        s_add_u32 {dst}, {dst}, s12
        s_lshl_b32 {dst}, {dst}, 1
        s_add_u32 {dst}, {dst}, {sel}
        '''
    def g1(dst, sel):
        return f'''s_add_u32 {dst}, s44, {5*n-32}
        s_lshr_b32 s13, {dst}, 4
        s_and_b32 {dst}, {dst}, 15
        s_lshl_b32 {dst}, {dst}, 1
        s_add_u32 {dst}, {dst}, {sel}
        s_lshr_b32 s12, {dst}, 2
        s_lshl_b32 {dst}, {dst}, 1
        s_add_u32 {dst}, {dst}, s12
        s_lshl_b32 {dst}, {dst}, 1
        s_add_u32 {dst}, {dst}, s13
        s_add_u32 {dst}, {dst}, 2
        '''
    def g2(dst, sel):
        return f's_add_u32 {dst}, s44, {5*n-64}\ns_mul_i32 {dst}, {dst}, 18\ns_add_u32 {dst}, {dst}, 16\ns_add_u32 {dst}, {dst}, {sel}\n'
    def calc(dst, sel):
        lo, hi = 5*n, 5*n + 4
        if hi < 32: return g0(dst, sel)
        if lo >= 32 and hi < 64: return g1(dst, sel)
        if lo >= 64: return g2(dst, sel)
        f1, f2, th = (g0, g1, 32 - lo) if lo < 32 else (g1, g2, 64 - lo)
        return f1('s14', sel) + f2(dst, sel) + f's_cmp_lt_u32 s44, {th}\ns_cselect_b32 {dst}, s14, {dst}\n'
    preW = calc('s73', 's10') + f's_mul_i32 s73, s73, {32*1152}\ns_add_u32 s73, s73, s80\n'
    preH = calc('s72', 's9') + 's_lshl_b32 s72, s72, 11\ns_add_u32 s72, s72, s76\n'
    for i in range(3): bg.push_m((preW if i == 0 else '') + dma_txt(8+i, 's[56:59]', 's73', f's_add_u32 m0, s83, {slot+1024*i}'), f'k{n}', 1)
    bg.push_m(preH + dma_txt(3, WS, 's72', f's_add_u32 m0, s82, {slot}', sc=LSC), f'k{n}', 1)
    bg.push_m(dma_txt(3, WS, 's72', f's_add_u32 m0, s82, {slot}', imm=1024, sc=LSC), f'k{n}', 1)
def k2_dma_ssm(n, m):
    slot = ((n + 1) % 4) * K2S
    e0 = {14: -2, 15: 3, 16: 9, 17: 14}[n]
    sp = 's_cmp_eq_u32 s44, 3\ns_cselect_b32 s73, 8, s73\ns_min_u32 s73, s73, 17\n' if n == 17 else ''
    pre = f'''s_add_i32 s73, s44, {e0}
    {sp}
    s_cmp_lt_u32 s73, 9
    s_cselect_b32 s64, s68, s70
    s_cselect_b32 s65, s69, s71
    s_cselect_b32 s72, 0, 128
    s_cselect_b32 s12, 0, 9
    s_sub_u32 s73, s73, s12
    s_add_u32 s72, s72, s29
    s_lshl_b32 s12, s73, 14
    s_add_u32 s72, s72, s12
    s_lshl_b32 s73, s73, 7
    s_add_u32 s73, s73, s74
    '''
    for i in range(3):
        bg.push_m((pre if i == 0 else '') + f's_add_u32 s12, s73, {i*8*1152}\n' + dma_txt(5 + (i % 2), 's[64:67]', 's12', f's_add_u32 m0, s83, {slot+1024*i}'), f'k{n}', 1)
    bg.push_m(dma_txt(4, WS, 's72', f's_add_u32 m0, s82, {slot}', sc=LSC), f'k{n}', 1)
    bg.push_m(f's_add_u32 s12, s72, {72*2048}\n' + dma_txt(4, WS, 's12', f's_add_u32 m0, s82, {slot+1024}', sc=LSC), f'k{n}', 1)
def k2_prefetch():
    poll_check(13, 15, 's33', 'pfe')
    poll_check(12, 15, 's32', 'pg0')
    for n in range(3): k2_dma_ffn(n)

def phase_k2():
    ACC2 = 64; AF = 24; BF = 32
    BR = [32, 36, 40, 44, 128, 132]
    RA, RB, SA, SB = 224, 226, 232, 234
    VH, VC, VO, VF = 100+142, 243, 245, 246
    A(f'''
    s_and_b32 s14, s44, 3
    s_lshl_b32 s14, s14, 7
    v_xor_b32 v{RA}, s14, v3
    s_and_b32 s13, s7, 3
    s_lshl_b32 s12, s13, 12
    v_add_u32 v{RA}, s12, v{RA}
    v_add_u32 v{RA+1}, {2*K2S}, v{RA}
    v_lshrrev_b32 v12, 5, v1
    v_lshlrev_b32 v13, 2, v12
    v_bfe_u32 v14, v1, 2, 2
    v_add_u32 v13, v13, v14
    v_mul_u32_u24 v13, 384, v13
    v_bfe_u32 v14, v1, 4, 1
    v_lshl_add_u32 v13, v14, 5, v13
    v_and_b32 v14, 3, v1
    v_lshl_add_u32 v13, v14, 3, v13
    v_add_u32 v13, 16384, v13
    v_bfe_u32 v14, v1, 3, 1
    s_lshr_b32 s77, s7, 2
    s_mul_i32 s77, s77, 3
    ''')
    for jj in range(3):
        A(f's_add_u32 s14, s77, {jj}\nv_xor_b32 v2, s14, v14\nv_lshl_add_u32 v{RB+jj}, v2, 6, v13\nv_add_u32 v{RB+3+jj}, {2*K2S}, v{RB+jj}')
    def setup2():
        A(f'''
        v_lshrrev_b32 v252, 5, v1
        v_lshrrev_b32 v253, 4, v1
        v_lshlrev_b32 v254, 2, v252
        v_and_b32 v255, 7, v1
        v_xor_b32 v254, v254, v255
        v_lshlrev_b32 v254, 4, v254
        v_lshrrev_b32 v255, 3, v1
        v_lshl_add_u32 v4, v255, 8, v254
        v_lshrrev_b32 v254, 3, v1
        v_mul_u32_u24 v254, 1152, v254
        v_and_b32 v255, 7, v1
        v_xor_b32 v255, v255, v253
        v_lshl_add_u32 v5, v255, 4, v254
        s_and_b32 s75, s7, 1
        s_lshl_b32 s75, s75, 6
        v_xor_b32 v5, s75, v5
        v_xor_b32 v6, 64, v5
        s_lshl_b32 s29, s7, 11
        s_mul_i32 s75, s45, {2*72*2048}
        s_add_u32 s29, s29, s75
        s_add_u32 s29, s29, {HT_OFF}
        s_mul_i32 s74, s46, 192
        s_mul_i32 s75, s7, 24
        s_add_u32 s74, s74, s75
        s_mul_i32 s74, s74, 1152
        s_mov_b32 s66, 663552
        s_mov_b32 s67, 0x20000
        s_mov_b32 s64, s68
        s_mov_b32 s65, s69
        v_bfe_u32 v253, v1, 1, 1
        s_and_b32 s75, s44, 1
        v_xor_b32 v253, s75, v253
        v_bfe_u32 v254, v1, 4, 1
        s_bfe_u32 s75, s44, 0x10001
        v_xor_b32 v254, s75, v254
        v_lshlrev_b32 v255, 11, v252
        v_lshl_add_u32 v255, v254, 7, v255
        v_mul_u32_u24 v253, 576, v253
        v_add_u32 v255, v255, v253
        v_bfe_u32 v254, v1, 2, 2
        v_lshl_add_u32 v255, v254, 4, v255
        v_and_b32 v254, 1, v1
        v_lshl_add_u32 v255, v254, 3, v255
        s_bfe_u32 s75, s7, 0x10001
        s_lshl_b32 s75, s75, 10
        v_add_u32 v255, s75, v255
        s_and_b32 s75, s7, 1
        s_lshl_b32 s75, s75, 8
        v_add_u32 v{SA}, s75, v255
        v_add_u32 v{SA+1}, {2*K2S}, v{SA}
        v_xor_b32 v244, 64, v{SA}
        v_xor_b32 v245, 64, v{SA+1}
        v_and_b32 v253, 31, v1
        v_bfe_u32 v254, v1, 1, 3
        v_xor_b32 v254, v254, v252
        v_lshlrev_b32 v254, 4, v254
        v_lshl_add_u32 v253, v253, 7, v254
        s_lshl_b32 s75, s77, 12
        s_add_u32 s75, s75, 16384
        v_add_u32 v253, s75, v253
        ''')
        for sp in range(4): A(f'v_xor_b32 v{SB+sp}, {32*sp}, v253\nv_add_u32 v{SB+4+sp}, {2*K2S}, v{SB+sp}')
        A(f'''
        s_lshl_b32 s75, s45, 2
        s_and_b32 s31, s7, 3
        s_add_u32 s75, s75, s31
        s_lshl_b32 s75, s75, 2
        s_and_b32 s31, s44, 3
        s_add_u32 s75, s75, s31
        s_lshl_b32 s30, s75, 6
        s_add_u32 s30, s30, {STAT_OFF}
        s_mul_i32 s31, s75, {8*2304}
        s_mul_i32 s75, s46, 768
        s_add_u32 s31, s31, s75
        s_lshl_b32 s75, s77, 7
        s_add_u32 s31, s31, s75
        v_mul_u32_u24 v7, {4*2304}, v252
        v_and_b32 v255, 31, v1
        v_lshl_add_u32 v7, v255, 2, v7
        s_lshl_b32 s33, s45, 7
        s_add_u32 s33, s33, {FT_OFF}
        s_add_u32 s28, s33, 64
        v_and_b32 v242, 63, v15
        ''')
    global k2_dma_ssm
    def late_flags():
        flag_store(1, 's_add_u32 s14, s34, 3072', 2)
    def ft_flag():
        flag_store(2, f's_lshr_b32 s14, s11, 4\ns_lshl_b32 s14, s14, 7\ns_and_b32 s12, s11, 15\ns_lshl_b32 s12, s12, 2\ns_add_u32 s14, s14, s12\ns_add_u32 s14, s14, {FT_OFF}', 2)
    S(z='fx')
    bg.flush_m('k0')
    vm.wait('k0')
    A('s_barrier')
    A('s_cmp_lt_u32 s4, 30\ns_cbranch_scc1 K2_GO')
    sv = (list(vm.q), list(lg.q), list(bg.v), list(bg.m))
    A(f'v_lshlrev_b32 v14, 2, v1')
    for k in range(4):
        A(f's_mov_b32 s{24+k}, {FE_OFF+256*k}'); poll_issue(24+k, 14, f's{24+k}', f'pall{k}')
    bg.emit_m(1000); bg.emit_v(10**9)
    vm.wait('h7'); A('s_barrier'); flag_store(0, 's_add_u32 s14, s34, 2048', 2)
    bg.push_v(fix_items()); bg.emit_v(10**9)
    for k in range(4): poll_check(24+k, 14, f's{24+k}', f'pall{k}')
    A('''
    s_lshl_b32 s75, s3, 1
    s_add_u32 s75, s75, s4
    s_sub_u32 s75, s75, 30
    s_lshl_b32 s75, s75, 3
    s_add_u32 s75, s75, s7
    s_lshl_b32 s75, s75, 1
    s_add_u32 s73, s75, 1
    s_mov_b32 s74, 8
    ''')
    fix_loads('s75', 's74'); fix_loads('s73', 's74', 112, 's72'); bg.emit_m(1000)
    vm.wait('h8', 'ht'); A('s_barrier')
    late_flags(); ft_flag()
    A.lab('IDLE_LOOP')
    bg.push_v(fix_items()); bg.emit_v(10**9)
    A('s_cmp_eq_u32 s74, 0\ns_cbranch_scc1 IDLE_DONE\ns_mov_b32 s74, 0\ns_mov_b32 s22, s72')
    for k in range(29): A(f'v_mov_b32 v{FA+k}, v{112+k}')
    A('s_branch IDLE_LOOP')
    A.lab('IDLE_DONE')
    A(f'''
    s_lshr_b32 s14, s75, 4
    s_lshl_b32 s14, s14, 7
    s_and_b32 s12, s75, 15
    s_lshl_b32 s12, s12, 2
    s_add_u32 s14, s14, s12
    s_add_u32 s14, s14, {FT_OFF+64}
    v_mov_b32 v12, {TAG}
    v_mov_b32 v13, {TAG}
    s_mov_b64 exec, 1
    s_waitcnt vmcnt(0)
    buffer_store_dwordx2 v[12:13], off, {WS}, s14 sc1
    s_mov_b64 exec, -1
    s_branch K_FIN
    ''')
    vm.q, lg.q, bg.v, bg.m = sv
    A.lab('K2_GO')
    S(); S(z='k2'); S(z='fx')
    bg.v = [(0, it) for _, it in bg.v]
    fi = fix_items()
    if P('NOFIX', 0): fi = [x for x in fi if not isinstance(x, str) or 'v{}'.format(FT_+22) in x or 'v{},'.format(FT_+21) in x or 'v_add_u32' in x or 'v_and_b32' in x or 'v_lshl' in x]
    bg.push_v(fi); bg.push_v(capture(setup2))
    LK = 3
    def slab_ops(n, typ): return [(n, typ, s, jj) for s in range(4) for jj in range(3)]
    def rd(i, op):
        n, typ, s, jj = op
        slot = (n + 1) % 4; hi = slot // 2; so = (slot % 2) * K2S
        ra = AF + 4*(s % 2); r = BR[i % 6]
        if typ == 'f':
            if jj == 0: A(f'ds_read_b128 {vr(ra,4)}, v{RA+hi} offset:{so+1024*s}'); lg.add(f'q{i}')
            off = so + s*16*384
            A(f'ds_read_b64_tr_b16 {vr(r,2)}, v{RB+3*hi+jj} offset:{off}\nds_read_b64_tr_b16 {vr(r+2,2)}, v{RB+3*hi+jj} offset:{off+8*384}'); lg.add(f'q{i}', 2)
        else:
            if jj == 0:
                A(f'ds_read_b64_tr_b16 {vr(ra,2)}, v{SA+hi} offset:{so+4096*s}\nds_read_b64_tr_b16 {vr(ra+2,2)}, v{244+hi} offset:{so+4096*s}'); lg.add(f'q{i}', 2)
            A(f'ds_read_b128 {vr(r,4)}, v{SB+4*hi+s} offset:{so+4096*jj}'); lg.add(f'q{i}')
    def run(ops, i0, i1, variant):
        N = len(ops)
        for i in range(i0, i1):
            n, typ, s, jj = ops[i]
            j = i + LK
            if j < N:
                if j % 12 == 0: ksync(j // 12, variant)
                rd(j, ops[j])
            lg.wait(f'q{i}')
            a = ACC2 + 16*jj
            A(f'v_mfma_f32_32x32x16_bf16 {vr(a,16)}, {vr(AF+4*(s%2),4)}, {vr(BR[i%6],4)}, {"0" if (n == 0 and s == 0) else vr(a,16)}')
            if i % 2 == 1: bg.emit_m(1)
            bg.emit_v(P('K2RATE', 4), i)
            if i % 24 == 23: S(z='k2')
            if i == 9*12 - 1: S()
    def ksync(n, variant):
        if 3 <= n <= 8: S(z='k2b')
        bg.flush_m(f'k{n}'); vm.wait(f'k{n}')
        if n == 2: vm.wait('h7')
        if n == 5: vm.wait('h8')
        if n == 8: vm.wait('ht')
        A('s_barrier')
        if n == 2: flag_store(0, 's_add_u32 s14, s34, 2048', 2)
        if n == 5: late_flags()
        if n == 8: ft_flag()
        nn = n + 2
        if n <= 11: S(z='k2a')
        if 3 <= n <= 8: S(z='k2b')
        if nn == 6: poll_check(12, 15, 's78', 'pg1')
        if nn == 9: poll_check(12, 15, 's79', 'pg1b')
        if nn == 12: poll_check(12, 15, 's8', 'pg2')
        if nn == 14: poll_check(13, 242, 's33', 'pft')
        if nn == 17:
            sk = newlab('NOF8'); vm.wait('pft8')
            A(f's_cmp_lt_u32 s44, 3\ns_cbranch_scc1 {sk}'); poll_check(13, 242, 's28', 'pft8'); A.lab(sk)
        if nn == 3: pass
        elif nn <= 13 or (nn == 14 and variant == 0): k2_dma_ffn(nn)
        elif nn == 14: k2_dma_ssm(14, 3)
        elif nn <= 17: k2_dma_ssm(nn, nn - 15)
        def pq(*args): bg.m.insert(0, (0, lambda: poll_issue(*args), args[3], 0))
        if n == 3: pq(12, 15, 's78', 'pg1')
        if n == 6: pq(12, 15, 's79', 'pg1b')
        if n == 9: pq(12, 15, 's8', 'pg2')
        if n == 11: assert not bg.v, len(bg.v); pq(13, 242, 's33', 'pft')
        if n == 14: pq(13, 242, 's28', 'pft8')
        if n == 13:
            bg.push_m(f'''s_load_dwordx2 s[24:25], s[0:1], 0
            s_load_dwordx2 s[26:27], s[0:1], 64
            v_add_u32 v176, s31, v7
            v_lshrrev_b32 v176, 1, v176
            v_and_b32 v177, 31, v1
            s_mul_i32 s12, s46, 6
            s_add_u32 s12, s12, s77
            s_lshl_b32 s12, s12, 6
            v_lshl_add_u32 v177, v177, 1, s12
            v_lshrrev_b32 v178, 5, v1
            v_lshlrev_b32 v178, 5, v178
            s_waitcnt lgkmcnt(0)
            buffer_load_dwordx4 v[168:171], v178, {WS}, s30 offen sc1
            buffer_load_dwordx4 v[172:175], v178, {WS}, s30 offen offset:16 sc1''', 'base', 2)
            bg.push_m('\n'.join(f'global_load_ushort v{124+jj}, v177, s[26:27] offset:{64*jj}' for jj in range(3)), 'base', 3)
        if n in (14, 15):
            for e in (2*(n-14), 2*(n-14)+1):
                bg.push_m('\n'.join(f'global_load_ushort v{112+4*jj+e}, v176, s[24:25] offset:{1152*e+64*jj}' for jj in range(3)), 'base', 3)
        if n == 16:
            it = [('vmw', 'base'), 's_mov_b32 s13, 0xffff0000']
            for jj in range(3): it.append(f'v_lshlrev_b32 v{124+jj}, 16, v{124+jj}')
            for jj in range(3):
                for e in (0, 2):
                    a0 = 112+4*jj+e; a1 = a0+1; m0, r0, m1, r1 = 168+2*e, 169+2*e, 170+2*e, 171+2*e
                    un = ['v_cvt_pk_bf16_f32 v181, v180, v181', 'v_lshlrev_b32 v180, 16, v181', 'v_and_b32 v181, s13, v181']
                    it += [f'v_lshlrev_b32 v{a0}, 16, v{a0}', f'v_lshlrev_b32 v{a1}, 16, v{a1}', f'v_sub_f32 v180, v{a0}, v{m0}', f'v_sub_f32 v181, v{a1}, v{m1}'] + un
                    it += [f'v_mul_f32 v180, v180, v{r0}', f'v_mul_f32 v181, v181, v{r1}'] + un
                    it += [f'v_mul_f32 v180, v180, v{124+jj}', f'v_mul_f32 v181, v181, v{124+jj}'] + un
                    it += [f'v_add_f32 v{a0}, v{a0}, v180', f'v_add_f32 v{a1}, v{a1}, v181']
            bg.push_v(it, 16*12 + 4)
    ops0 = sum([slab_ops(n, 'f' if n <= 14 else 's') for n in range(18)], [])
    ops1 = sum([slab_ops(n, 'f' if n <= 13 else 's') for n in range(18)], [])
    A('s_add_u32 s78, s32, 1024\ns_add_u32 s79, s32, 2048\ns_add_u32 s8, s32, 3072')
    k2_dma_ffn(3)
    for i in range(LK): rd(i, ops0[i])
    SPLIT = 12*12 - LK
    run(ops0, 0, SPLIT, 0)
    A('s_cmp_ge_u32 s44, 2\ns_cbranch_scc1 K2_V1')
    sv = (list(vm.q), list(lg.q), list(bg.v), list(bg.m)); ns = nstamp[0]
    run(ops0, SPLIT, 216, 0); bg.emit_m(100); rest = list(bg.v); bg.v = []
    A('s_branch K2_J'); A.lab('K2_V1')
    vm.q, lg.q, bg.v, bg.m = sv; nstamp[0] = ns
    run(ops1, SPLIT, 216, 1); bg.emit_m(100); assert rest == bg.v; bg.v = []
    A.lab('K2_J')
    S()
    A(f'''
    s_mul_i32 s35, s47, {16*12288}
    s_mul_i32 s14, s7, 1536
    s_add_u32 s35, s35, s14
    s_add_u32 s35, s35, {PART_OFF}
    v_lshlrev_b32 v2, 3, v1
    s_and_b32 s12, s44, 3
    s_cmp_eq_u32 s44, 4
    s_cselect_b32 s41, 0, 12288
    s_nop 3
    ''')
    def pub(ap):
        r = 136 + 8*ap
        for jj in range(3):
            a = ACC2 + 16*jj + 4*ap
            A(f'v_cvt_pk_bf16_f32 v{r+2*jj}, v{a}, v{a+1}\nv_cvt_pk_bf16_f32 v{r+2*jj+1}, v{a+2}, v{a+3}')
        A(f's_xor_b32 s14, s12, {ap}\ns_mul_i32 s14, s14, {4*12288}\ns_add_u32 s14, s14, s35\ns_mul_i32 s13, s41, {ap}\ns_add_u32 s14, s14, s13')
        A(f'buffer_store_dwordx4 {vr(r,4)}, v3, {WS}, s14 offen sc1\nbuffer_store_dwordx2 {vr(r+4,2)}, v2, {WS}, s14 offen offset:1024 sc1')
    for ap in (1, 2, 3): pub(ap)
    A('s_cmp_lg_u32 s44, 4\ns_cbranch_scc1 NOPUB0')
    pub(0)
    A.lab('NOPUB0')
    if P('PWF', 0):
        A(f'''
    s_lshl_b32 s33, s47, 3
    s_add_u32 s33, s33, s7
    s_lshl_b32 s33, s33, 7
    s_add_u32 s33, s33, {FP_OFF}
    v_min_u32 v14, 4, v1
    v_lshlrev_b32 v14, 2, v14
    s_lshl_b32 s14, s44, 2
    s_add_u32 s14, s14, s33
    v_mov_b32 v12, {TAG}
    s_mov_b64 exec, 1
    s_waitcnt vmcnt(0)
    buffer_store_dword v12, off, {WS}, s14 sc1
    s_mov_b64 exec, -1
    ''')
        vm.q = []; vm.add('fl')
    else:
        A(f'''
    s_lshl_b32 s33, s47, 7
    s_add_u32 s33, s33, {FP_OFF}
    v_min_u32 v14, 4, v1
    v_lshlrev_b32 v14, 2, v14
    s_waitcnt vmcnt(0)
    s_barrier
    ''')
        vm.q = []
        flag_store(0, 's_lshl_b32 s14, s44, 2\ns_add_u32 s14, s14, s33', 12)
    S()
    A('s_cmp_eq_u32 s44, 4\ns_cbranch_scc1 K_FIN')
    poll_issue(13, 14, 's33', 'pp')
    A('s_mov_b32 s13, 0xffff0000')
    bg.v = rest; bg.emit_v(10**9)
    for jj in range(3):
        for e in range(4): A(f'v_add_f32 v{ACC2+16*jj+e}, v{ACC2+16*jj+e}, v{112+4*jj+e}')
    A(f's_mul_i32 s14, s44, {4*12288}\ns_add_u32 s14, s14, s35')
    poll_check(13, 14, 's33', 'pp')
    S()
    for sl in range(4):
        r = 136 + 8*sl
        A(f'buffer_load_dwordx4 {vr(r,4)}, v3, {WS}, s14 offen sc1\nbuffer_load_dwordx2 {vr(r+4,2)}, v2, {WS}, s14 offen offset:1024 sc1')
        if sl < 3: A('s_add_u32 s14, s14, 12288')
    for sl in range(4):
        A(f's_waitcnt vmcnt({2*(3-sl)})')
        r = 136 + 8*sl
        for jj in range(3):
            for h in range(2):
                a = ACC2 + 16*jj + 2*h; p = r + 2*jj + h
                A(f'v_lshlrev_b32 v12, 16, v{p}\nv_and_b32 v13, s13, v{p}\nv_pk_add_f32 {vr(a,2)}, {vr(a,2)}, v[12:13]')
    for e in range(4):
        A(f's_add_u32 s14, s31, {e*2304}')
        for jj in range(3): A(f'buffer_store_dword v{ACC2+16*jj+e}, v7, {OUT}, s14 offen offset:{128*jj}')
    A.lab('K_FIN')
    if STAMP:
        A('s_waitcnt vmcnt(0)'); nstamp[0] = 14; S(force=True); S(True); Sflush()

def main(path):
    hdr = open('parallel_sum__ssm_conv_s5__geglu_ffn__prompt.s.ref').read().split('; Override launch')[0]
    A.raw(hdr.rstrip())
    A.raw('; @launch grid=(256,1,1) block=(512,1,1) lds=163840')
    A.raw('.amdgcn_target "amdgcn-amd-amdhsa--gfx950"\n.text')
    A.raw(f'.globl {NAME}\n.p2align 8\n.type {NAME},@function\n{NAME}:')
    if STAMP:
        for i in range(16): A(f's_mov_b32 s{86+i}, 0')
    phase_a(); phase_k1(); phase_k2()
    A.lab('K_END')
    A('s_endpgm')
    for c in cold: A.raw(c)
    A.lab('K_LAST')
    A('s_endpgm')
    A.raw(f'''.section .rodata,"a"
.p2align 6
.amdhsa_kernel {NAME}
  .amdhsa_next_free_vgpr 256
  .amdhsa_next_free_sgpr 102
  .amdhsa_accum_offset 256
  .amdhsa_group_segment_fixed_size 0
  .amdhsa_kernarg_size 128
  .amdhsa_user_sgpr_count 2
  .amdhsa_user_sgpr_kernarg_segment_ptr 1
  .amdhsa_system_sgpr_workgroup_id_x 1
  .amdhsa_float_denorm_mode_32 3
.end_amdhsa_kernel''')
    open(path, 'w').write('\n'.join(A.L) + '\n')

if __name__ == '__main__':
    main(sys.argv[1] if len(sys.argv) > 1 else 'k3.s')
```

```python
import sys, struct, os
from layout import *
from gen_v1 import f32, LOG2E, INV2PI, Asm, vr, sr, srd, lam_consts, csq, cmul, DPP8, mapply

STAMP = int(os.environ.get('STAMP', '0'))
DBGT = int(os.environ.get('DBGT', '0'))
LSC = ' sc1' if int(os.environ.get('LSC', '1')) else ''
ZOOM = os.environ.get('ZOOM', '')
def P(name, d): return int(os.environ.get(name, d))
A = Asm()
NAME = 'parallel_sum__ssm_conv_s5__geglu_ffn__prompt_kernel'

class Cnt:
    def __init__(self, name, mx): self.q = []; self.ever = set(); self.name = name; self.mx = mx
    def add(self, tag, n=1): self.q += [tag]*n; self.ever.add(tag)
    def wait(self, *tags):
        for t in tags: assert t in self.ever, t
        idx = [i for i, t in enumerate(self.q) if t in tags]
        if not idx: return
        last = max(idx); n = len(self.q) - 1 - last
        if n > self.mx:
            if self.name == 'vmcnt': self.q = self.q[last+1:]; return
            n = self.mx; last = len(self.q) - 1 - n
        A(f's_waitcnt {self.name}({n})')
        self.q = self.q[last+1:]
    def drain(self):
        A(f's_waitcnt {self.name}(0)'); self.q = []
vm = Cnt('vmcnt', 63); lg = Cnt('lgkmcnt', 15)
nstamp = [0]
def S(real=False, z='', force=False):
    if not STAMP: return
    if not (real or force) and z != ZOOM: return
    A(f'{"s_memrealtime" if (real or DBGT) else "s_memtime"} s[84:85]\ns_waitcnt lgkmcnt(0)\ns_mov_b32 s{86+nstamp[0]}, s84')
    nstamp[0] += 1
    assert nstamp[0] <= 16
def Sflush():
    if DBGT:
        A(f's_mov_b64 exec, 1\ns_load_dwordx2 s[72:73], s[0:1], 112\ns_mov_b32 s74, 256\ns_mov_b32 s75, 0x20000\nv_mov_b32 v2, s101\nv_mov_b32 v1, 0\ns_waitcnt lgkmcnt(0)\nbuffer_atomic_umax v2, v1, s[72:75], 0 offen offset:60 sc1')
        A('s_cmp_lg_u32 s2, 5\ns_cbranch_scc1 NODBG\ns_cmp_lg_u32 s7, 0\ns_cbranch_scc1 NODBG')
        for i in range(14): A(f'v_mov_b32 v2, s{87+i}\nbuffer_store_dword v2, v1, s[72:75], 0 offen offset:{4+4*i}')
        A.lab('NODBG')
        return
    A(f's_mov_b64 exec, -1\ns_lshl_b32 s84, s2, 3\ns_add_u32 s84, s84, s7\ns_lshl_b32 s84, s84, 6\ns_add_u32 s84, s84, {STAMP_OFF}\nv_mov_b32 v1, 0')
    for i in range(16):
        A(f'v_mov_b32 v2, s{86+i}\nbuffer_store_dword v2, v1, s[48:51], s84 offen offset:{4*i}')
uid = [0]
def newlab(p):
    uid[0] += 1; return f'{p}_{uid[0]}'

WS = 's[48:51]'; OUT = 's[52:55]'; DBG = 's[72:75]'
TAG = 's15'
cold = []
def poll_issue(vdst, vaddr, soff, tag):
    A(f'buffer_load_dword v{vdst}, v{vaddr}, {WS}, {soff} offen sc1'); vm.add(tag)
def poll_check(vdst, vaddr, soff, tag):
    vm.wait(tag)
    slow = newlab('SLOW'); back = newlab('BACK')
    A(f'v_cmp_ne_u32 vcc, {TAG}, v{vdst}\ns_cbranch_vccnz {slow}')
    A.lab(back)
    cold.append(f'''{slow}:
    s_sub_u32 s23, s23, 1
    s_cbranch_scc1 {back}
    s_sleep 1
    buffer_load_dword v{vdst}, v{vaddr}, {WS}, {soff} offen sc1
    s_waitcnt vmcnt(0)
    v_cmp_ne_u32 vcc, {TAG}, v{vdst}
    s_cbranch_vccnz {slow}
    s_branch {back}''')
def flag_store(wave, spre, vtmp):
    sk = newlab('NOFLAG')
    A(f's_cmp_lg_u32 s7, {wave}\ns_cbranch_scc1 {sk}\n{spre}\nv_mov_b32 v{vtmp}, {TAG}\ns_mov_b64 exec, 1\nbuffer_store_dword v{vtmp}, off, {WS}, s14 sc1\ns_mov_b64 exec, -1')
    A.lab(sk)
def dma_txt(voff, srdn, soff, m0expr, imm=0, sc=''):
    return f'{m0expr}\ns_nop 0\nbuffer_load_dwordx4 v{voff}, {srdn}, {soff} offen{" offset:%d" % imm if imm else ""}{sc} lds'

def capture(f, group=1):
    n0 = len(A.L); f(); out = A.L[n0:]; del A.L[n0:]
    return [l.strip() for l in out]

class BG:
    def __init__(self): self.v = []; self.m = []
    def push_v(self, items, ready=0): self.v += [(ready, it) for it in items]
    def push_m(self, text, tag, n=1, ready=0): self.m.append((ready, text, tag, n))
    def emit_v(self, k, now=10**9):
        while k > 0 and self.v and self.v[0][0] <= now:
            it = self.v.pop(0)[1]
            if isinstance(it, str): A(it); k -= it.count('\n') + 1
            elif it[0] == 'vm': A(it[1]); vm.add(it[2], it[3]); k -= 2
            elif it[0] == 'ds': A(it[1]); lg.add(it[2]); k -= 1
            elif it[0] == 'lgw': lg.wait(it[1])
            elif it[0] == 'vmw': self.flush_m(it[1]); vm.wait(it[1])
            elif it[0] == 'call': it[1]()
    def emit_m(self, k=1, now=10**9):
        while k > 0 and self.m and self.m[0][0] <= now:
            _, text, tag, n = self.m.pop(0)
            if callable(text): text()
            else:
                for part in text.split('@@'):
                    if part.startswith('LAB '): A.lab(part[4:])
                    else: A(part)
            if n: vm.add(tag, n)
            k -= 1
    def flush_m(self, *tags):
        while any(t[2] in tags for t in self.m): self.emit_m(1)
bg = BG()
def valu_with_vmem(lines, every=8):
    for i, l in enumerate(lines):
        if l.endswith(':'): A.lab(l[:-1])
        else: A(l)
        if i % every == every - 1 and not l.startswith('v_cmp') and not l.startswith('s_nop') and not l.startswith('s_'): bg.emit_m(1)

UREG = 73760
A2_B = [16384, 90144, 34816, 108672]
A2_X = [53248, 127104, 61440, 135296]
TB = 147584
EX_T = 147584; EX_B = EX_T + 8192; EX_S = EX_B + 2048; EX_R = 69632
G2U = 18560
K2S = 40960
XR = 112; ACC = 48; WR = 24; NW = 6; TMP = 16
CONSTS = (244, 245, 246, 247, 248, 249)

def ln_stats(r, t):
    inv = f32(1.0/576.0)
    A(f'''
    v_mul_f32 v{r}, {inv}, v{r}
    v_mul_f32 v{r+1}, {inv}, v{r+1}
    v_fma_f32 v{r+1}, -v{r}, v{r}, v{r+1}
    v_max_f32 v{r+1}, 0, v{r+1}
    v_cvt_pk_bf16_f32 v{t}, v{r}, v{r+1}
    v_lshlrev_b32 v{r}, 16, v{t}
    v_and_b32 v{r+1}, 0xffff0000, v{t}
    v_add_f32 v{r+1}, {f32(1e-5)}, v{r+1}
    v_cvt_pk_bf16_f32 v{r+1}, v{r+1}, v{r+1}
    v_lshlrev_b32 v{r+1}, 16, v{r+1}
    v_sqrt_f32 v{r+1}, v{r+1}
    s_nop 0
    v_cvt_pk_bf16_f32 v{r+1}, v{r+1}, v{r+1}
    v_lshlrev_b32 v{r+1}, 16, v{r+1}
    v_rcp_f32 v{r+1}, v{r+1}
    s_nop 0
    ''')
def unit_consts(p, t=232):
    LR, SLI, A1, A2c, L16R, SL16I = CONSTS
    lam_consts(A, p, p+1, p+2, LR, t, t+1, t+2, t+3, t+4, t+5, t+6)
    A(f'''
    v_and_b32 v{t+7}, 8, v1
    v_lshlrev_b32 v{t+7}, 28, v{t+7}
    v_xor_b32 v{SLI}, v{t+7}, v{t}
    v_add_f32 v{A1}, v{t+1}, v{t+1}
    v_xor_b32 v{A1}, v{t+7}, v{A1}
    v_mul_f32 v{A2c}, -2.0, v{t+2}
    ''')
    csq(A, LR, t, L16R, SL16I, t+3)
    for _ in range(3): csq(A, L16R, SL16I, L16R, SL16I, t+3)
    A(f'v_xor_b32 v{SL16I}, v{t+7}, v{SL16I}')
def get_tag():
    vm.wait('tag')
    slow = newlab('TAGSLOW'); back = newlab('TAGBACK')
    A(f'v_readfirstlane_b32 {TAG}, v15\ns_cmp_eq_u32 {TAG}, 0\ns_cbranch_scc1 {slow}')
    A.lab(back)
    cold.append(f'''{slow}:
    s_sub_u32 s23, s23, 1
    s_cbranch_scc1 {back}
    s_sleep 1
    buffer_load_dword v15, off, {DBG}, 0 sc1
    s_waitcnt vmcnt(0)
    v_readfirstlane_b32 {TAG}, v15
    s_cmp_eq_u32 {TAG}, 0
    s_cbranch_scc1 {slow}
    s_branch {back}''')

def k1_dma(g, n, ready=0):
    pre = f's_add_u32 s12, s32, {n*64*9216 + g*128}\n'
    bg.push_m(pre + dma_txt(0, 's[24:27]', 's12', f's_add_u32 m0, s81, {8192*n}'), f'w{g}_{n}', 1, ready)
    bg.push_m(pre + dma_txt(0, 's[36:39]', 's12', f's_add_u32 m0, s81, {UREG+8192*n}'), f'w{g}_{n}', 1, ready)
def k1_xload(ks, ready=0):
    if ks < 4: t = f'buffer_load_dwordx4 {vr(XR+4*ks,4)}, v3, {WS}, s40 offen offset:{ks*1024}{LSC}'
    else: t = f's_add_u32 s12, s40, {ks*1024}\nbuffer_load_dwordx4 {vr(XR+4*ks,4)}, v3, {WS}, s12 offen{LSC}'
    bg.push_m(t, f'x{ks}', 1, ready)
def k1_dma_g2(part, ready=0):
    sd = 's[24:27]' if part == 0 else 's[36:39]'
    base = 0 if part == 0 else G2U
    sk = newlab('G2X')
    bg.push_m(f's_cmp_ge_u32 s7, 2\ns_cbranch_scc1 {sk}\ns_add_u32 s12, s41, {16*32*9216}\n' + dma_txt(4, sd, 's12', f's_add_u32 m0, s81, {base+16384}') + f'@@LAB {sk}', f'g2_{part}', 0, ready)
    for i in range(2):
        bg.push_m(f's_add_u32 s12, s41, {i*8*32*9216}\n' + dma_txt(4, sd, 's12', f's_add_u32 m0, s81, {base+8192*i}'), f'g2_{part}', 1, ready)


XS = [16384, 90144, 24576, 98336, 32768, 106528, 40960, 114720, 49152]
B8L = 122912; STG = 57344
U = 208; CR = 224; XA = 224; BS8 = 228; STT = 232; ONES = 236; BS = 240; PAR = 250
scan_items = []
def phase_a():
    A(f"""
    s_cmp_ge_u32 s2, 256
    s_cbranch_scc1 K_END
    s_load_dwordx16 s[16:31], s[0:1], 0
    s_load_dwordx8 s[36:43], s[0:1], 80
    s_load_dwordx4 s[44:47], s[0:1], 112
    v_and_b32 v1, 63, v0
    v_lshrrev_b32 v2, 6, v0
    s_and_b32 s3, s2, 7
    s_lshr_b32 s4, s2, 3
    v_readfirstlane_b32 s7, v2
    s_lshr_b32 s5, s4, 3
    s_lshl_b32 s8, s3, 2
    s_add_u32 s5, s5, s8
    s_and_b32 s6, s4, 7
    s_lshr_b32 s8, s3, 2
    s_lshl_b32 s8, s8, 2
    s_lshr_b32 s9, s4, 3
    s_add_u32 s8, s8, s9
    s_and_b32 s9, s3, 3
    s_lshl_b32 s9, s9, 3
    s_add_u32 s9, s9, s6
    s_lshl_b32 s10, s8, 3
    s_add_u32 s10, s10, s7
    v_lshlrev_b32 v3, 4, v1
    v_lshrrev_b32 v4, 3, v1
    v_and_b32 v5, 7, v1
    v_add_u32 v6, 1024, v3
    v_cmp_gt_u32 vcc, 8, v1
    v_mov_b32 v7, 0x3ffffff0
    s_lshl_b32 s11, s5, 3
    s_add_u32 s11, s11, s6
    v_cndmask_b32 v6, v7, v6, vcc
    s_lshl_b32 s33, s11, 3
    s_add_u32 s33, s33, s7
    s_mul_i32 s13, s33, 1152
    v_mul_u32_u24 v8, 1152, v4
    v_bfe_u32 v9, v4, 1, 1
    s_and_b32 s14, s7, 6
    v_xor_b32 v9, s14, v9
    v_xor_b32 v9, v9, v5
    v_lshl_add_u32 v9, v9, 4, v8
    v_lshrrev_b32 v10, 1, v4
    v_xor_b32 v10, v10, v5
    v_lshl_add_u32 v10, v10, 4, v8
    v_xor_b32 v11, 64, v10
    s_lshl_b32 s14, s7, 6
    s_and_b32 s14, s14, 64
    v_xor_b32 v12, s14, v10
    s_lshl_b32 s14, s5, 3
    s_add_u32 s14, s14, s7
    s_mul_i32 s34, s14, {8*1152}
    s_lshl_b32 s14, s6, 3
    s_add_u32 s35, s14, s7
    s_mul_i32 s35, s35, {8*1152}
    s_add_u32 s80, s6, 64
    s_mul_i32 s80, s80, {8*1152}
    s_lshr_b32 s14, s7, 1
    s_lshl_b32 s14, s14, 7
    s_add_u32 s80, s80, s14
    s_lshl_b32 s81, s7, 10
    s_lshl_b32 s82, s7, 11
    s_waitcnt lgkmcnt(0)
    """)
    S(True); S(force=True)
    if P('PRIO', 0): A(f"s_cmp_{'ge' if P('PRIO',0)==1 else 'lt'}_u32 s7, 4\ns_cbranch_scc0 NOPRIO\ns_setprio 1"); A.lab('NOPRIO')
    XRW = 80; XNR = 88; MR_ = 96; T0 = 100
    srd(A, 56, 16, 2359296)
    A(f'buffer_load_dwordx4 {vr(XRW,4)}, v3, s[56:59], s13 offen\nbuffer_load_dwordx4 {vr(XRW+4,4)}, v6, s[56:59], s13 offen')
    vm.add('xr', 2)
    srd(A, 60, 22, 663552); srd(A, 64, 24, 663552)
    A("""
    s_and_b32 s14, s7, 1
    s_cselect_b32 s68, s24, s22
    s_cselect_b32 s69, s25, s23
    s_mov_b32 s70, 663552
    s_mov_b32 s71, 0x20000
    s_mov_b32 s23, 100000
    """)
    def bsg(n): return 112 + 8*n if n < 8 else 88
    def b8(i):
        t = f's_add_u32 s12, s80, {512*i}\n' + dma_txt(12, 's[68:71]', 's12', f's_add_u32 m0, s81, {B8L+8192*i}')
        if i < 2: bg.push_m(t, f'b8_{i}', 1)
        else:
            sk = newlab('B8X'); bg.push_m(f's_cmp_ge_u32 s7, 2\ns_cbranch_scc1 {sk}\n' + t + f'@@LAB {sk}', 'b8_2', 0)
    def a2q(n):
        bg.push_m(f's_add_u32 s12, s34, {128*n}\n' + dma_txt(9, 's[56:59]', 's12', f's_add_u32 m0, s81, {XS[n]}'), f'ax{n}', 1)
        bg.push_m(f'buffer_load_dwordx4 {vr(bsg(n),4)}, v10, s[60:63], s35 offen offset:{128*n}', f'ab{n}', 1, 2 if n == 8 else 0)
        bg.push_m(f'buffer_load_dwordx4 {vr(bsg(n)+4,4)}, v11, s[64:67], s35 offen offset:{128*n}', f'ab{n}', 1)
    a2q(0); b8(0); a2q(1)
    bg.emit_m(4)
    if P('CPF', 1):
        A(f"""
        s_cmp_lg_u32 s7, 5
        s_cbranch_scc1 NOCPF
        s_getpc_b64 s[76:77]
        """)
        A.lab('PCREF')
        A(f"""
        s_and_b32 s76, s76, 0xffffff80
        s_mov_b32 s78, K_LAST-PCREF
        s_mov_b32 s79, 0x20000
        s_lshl_b32 s14, s4, 11
        v_lshlrev_b32 v13, 7, v1
        s_mov_b64 exec, 0xffff
        buffer_load_dword v111, v13, s[76:79], s14 offen
        s_mov_b64 exec, -1
        """)
        A.lab('NOCPF')
    srd(A, 72, 44, 256)
    A(f"""
    s_or_b32 s14, s2, s7
    s_cmp_lg_u32 s14, 0
    s_cbranch_scc1 NOTAG
    s_memrealtime s[84:85]
    s_waitcnt lgkmcnt(0)
    s_mul_i32 s14, s84, 0x9E3779B1
    s_or_b32 s14, s14, 1
    v_mov_b32 v8, s14
    s_mov_b64 exec, 1
    buffer_store_dword v8, off, {DBG}, 0 sc1
    s_mov_b64 exec, -1
    """)
    A.lab('NOTAG')
    srd(A, 48, 46, 0x10000000); srd(A, 52, 42, 4718592)
    if P('TLB', 0):
        sh = P('TLB', 0)
        A(f"""
        s_cmp_lg_u32 s7, 4
        s_cbranch_scc1 NOTLB
        v_lshlrev_b32 v13, {sh}, v1
        s_lshl_b32 s14, s4, {sh+6}
        s_and_b32 s14, s14, 0x3ffffff
        buffer_load_dword v111, v13, {WS}, s14 offen
        buffer_load_dword v111, v13, {OUT}, s14 offen
        """)
        A.lab('NOTLB')
    U1 = 224; BS1 = 240
    AD = 196
    def setup():
        A(f"""
        v_and_b32 v13, 15, v1
        v_lshrrev_b32 v14, 4, v1
        v_bfe_u32 v2, v1, 1, 3
        v_xor_b32 v2, v2, v14
        v_lshlrev_b32 v2, 4, v2
        v_lshl_add_u32 v8, v13, 7, v2
        v_bfe_u32 v14, v1, 2, 2
        v_lshlrev_b32 v14, 11, v14
        v_and_b32 v13, 3, v1
        v_lshl_add_u32 v14, v13, 7, v14
        v_add_u32 v{AD}, v14, v2
        v_xor_b32 v{AD+1}, 64, v{AD}
        v_add_u32 v{AD+2}, 90144, v{AD}
        v_add_u32 v{AD+3}, 90144, v{AD+1}
        s_lshr_b32 s14, s7, 2
        s_lshl_b32 s14, s14, 6
        v_xor_b32 v{AD+8}, s14, v8
        v_add_u32 v{AD+8}, {B8L}, v{AD+8}
        v_xor_b32 v{AD+4}, s14, v{AD}
        s_and_b32 s14, s7, 3
        s_lshl_b32 s14, s14, 9
        v_add_u32 v{AD+4}, s14, v{AD+4}
        v_add_u32 v{AD+5}, 90144, v{AD+4}
        s_add_u32 s14, s82, {STG}
        v_add_u32 v192, s14, v8
        v_xor_b32 v193, 64, v192
        v_add_u32 v194, s14, v3
        v_mov_b32 v{ONES}, 0x3f803f80
        v_mov_b32 v{ONES+1}, 0x3f803f80
        v_mov_b32 v{ONES+2}, 0x3f803f80
        v_mov_b32 v{ONES+3}, 0x3f803f80
        s_mov_b32 s83, 0x3f803f80
        s_lshl_b32 s14, s6, 3
        v_add_u32 v14, s14, v5
        v_add_u32 v14, 512, v14
        s_add_u32 s14, s14, s7
        s_lshl_b32 s14, s14, 3
        v_add_u32 v13, s14, v5
        v_lshlrev_b32 v108, 1, v13
        v_lshlrev_b32 v109, 1, v14
        s_lshr_b32 s14, s9, 2
        s_mul_i32 s14, s14, 1152
        s_cmp_lt_u32 s2, 128
        s_cselect_b32 s76, s36, s38
        s_cselect_b32 s77, s37, s39
        s_mov_b32 s78, {576*9216}
        s_mov_b32 s79, 0x20000
        s_add_u32 s24, s36, s14
        s_addc_u32 s25, s37, 0
        s_sub_u32 s26, {576*9216}, s14
        s_mov_b32 s27, 0x20000
        s_add_u32 s36, s38, s14
        s_addc_u32 s37, s39, 0
        s_mov_b32 s38, s26
        s_mov_b32 s39, 0x20000
        s_and_b32 s14, s9, 3
        s_lshl_b32 s32, s14, 8
        s_mul_i32 s41, s7, {8*9216}
        s_add_u32 s32, s32, s41
        s_mul_i32 s40, s10, 36864
        v_bfe_u32 v0, v1, 2, 3
        v_mul_u32_u24 v0, 9216, v0
        v_lshrrev_b32 v13, 5, v1
        v_lshl_add_u32 v0, v13, 6, v0
        v_and_b32 v13, 3, v1
        v_lshl_add_u32 v0, v13, 4, v0
        v_lshlrev_b32 v110, 7, v1
        v_min_u32 v110, {41*128}, v110
        s_and_b32 s14, s2, 127
        s_lshl_b32 s14, s14, 3
        s_add_u32 s14, s14, s7
        s_mul_i32 s41, s14, 5184
        s_and_b32 s41, s41, 0xffffff80
        s_lshl_b32 s14, s7, 4
        s_add_u32 s14, s14, {TB}
        v_lshl_add_u32 v{AD+6}, v1, 7, s14
        s_add_u32 s14, s81, {TB}
        v_add_u32 v{AD+7}, s14, v3
        v_lshlrev_b32 v{AD+9}, 9, v4
        v_lshl_add_u32 v{AD+9}, v5, 4, v{AD+9}
        s_lshr_b32 s42, s11, 2
        s_mul_i32 s42, s42, 36864
        s_and_b32 s14, s6, 3
        s_lshl_b32 s14, s14, 7
        s_add_u32 s42, s42, s14
        s_lshl_b32 s14, s7, 12
        s_add_u32 s42, s42, s14
        s_lshl_b32 s43, s33, 3
        s_add_u32 s43, s43, {STAT_OFF}
        v_lshlrev_b32 v17, 2, v1
        v_and_b32 v16, 31, v17
        v_and_b32 v17, 127, v17
        s_lshl_b32 s14, s8, 7
        v_add_u32 v17, s14, v17
        s_lshl_b32 s14, s5, 5
        v_add_u32 v16, s14, v16
        v_cmp_lt_u32 vcc, 31, v1
        s_mov_b32 s33, {FX_OFF}
        s_nop 0
        v_cndmask_b32 v17, v17, v16, vcc
        """)
    a2q(2); a2q(3)
    valu_with_vmem(capture(setup), every=P('A0EVERY', 10))
    b8(1)
    bg.push_m(f'global_load_ushort v{PAR}, v108, s[18:19]\nglobal_load_ushort v{PAR+1}, v108, s[20:21]\nglobal_load_ushort v{PAR+2}, v108, s[30:31]', 'par', 3)
    bg.push_m(f'global_load_ushort v{PAR+3}, v109, s[18:19]\nglobal_load_ushort v{PAR+4}, v109, s[20:21]\nglobal_load_ushort v{PAR+5}, v109, s[30:31]', 'par', 3)
    bg.push_m(f'buffer_load_dword v15, off, {DBG}, 0 sc1', 'tag', 1)
    a2q(4); a2q(5); a2q(6); a2q(7); b8(2); a2q(8)
    k1_dma(0, 0); k1_dma(0, 1)
    if P('TOUCH', 1) == 1: bg.push_m('buffer_load_dword v111, v110, s[76:79], s41 offen', 'touch', 1)
    if P('TOUCH', 1) == 2: bg.m.insert(0, (0, 'buffer_load_dword v111, v110, s[76:79], s41 offen', 'touch', 1))
    def a1():
        for q in range(8):
            c0 = '0' if q == 0 else f'v{MR_}'; c1 = '0' if q == 0 else f'v{MR_+1}'
            A(f'v_dot2_f32_bf16 v{MR_}, v{XRW+q}, s83, {c0}\nv_dot2_f32_bf16 v{MR_+1}, v{XRW+q}, v{XRW+q}, {c1}')
        A('s_nop 2')
        for pat in ('quad_perm:[1,0,3,2] row_mask:0xf', 'quad_perm:[2,3,0,1] row_mask:0xf', 'row_half_mirror row_mask:0xf', 'row_mirror row_mask:0xf',
                    'row_bcast:15 row_mask:0xa', 'row_bcast:31 row_mask:0xc'):
            A(f'v_add_f32_dpp v{MR_}, v{MR_}, v{MR_} {pat} bank_mask:0xf\nv_add_f32_dpp v{MR_+1}, v{MR_+1}, v{MR_+1} {pat} bank_mask:0xf\ns_nop 0')
        A(f'v_readlane_b32 s44, v{MR_}, 63\nv_readlane_b32 s45, v{MR_+1}, 63\ns_nop 1\nv_mov_b32 v{MR_}, s44\nv_mov_b32 v{MR_+1}, s45')
        ln_stats(MR_, MR_+2)
        A(f's_mov_b32 s44, 0xffff0000\nv_sub_f32 v18, 0, v{MR_}\nv_sub_f32 v19, 0, v{MR_}\nv_mov_b32 v20, v{MR_+1}\nv_mov_b32 v21, v{MR_+1}')
        for h in range(2):
            for q in range(4):
                x = XRW+4*h+q; a = T0+2*q
                A(f'v_lshlrev_b32 v{a}, 16, v{x}\nv_and_b32 v{a+1}, s44, v{x}')
            for q in range(4):
                a = T0+2*q; A(f'v_pk_add_f32 {vr(a,2)}, {vr(a,2)}, v[18:19]')
            for q in range(4):
                a = T0+2*q; A(f'v_cvt_pk_bf16_f32 v{a+1}, v{a}, v{a+1}')
            for q in range(4):
                a = T0+2*q; A(f'v_lshlrev_b32 v{a}, 16, v{a+1}\nv_and_b32 v{a+1}, s44, v{a+1}')
            for q in range(4):
                a = T0+2*q; A(f'v_pk_mul_f32 {vr(a,2)}, {vr(a,2)}, v[20:21]')
            for q in range(4):
                a = T0+2*q; A(f'v_cvt_pk_bf16_f32 v{XNR+4*h+q}, v{a}, v{a+1}')
    vm.wait('xr'); S(z='a2')
    a1l = capture(a1)
    NPRE = P('A1PRE', 1000); TBN = P('TBN', 0); FLN = P('FLN', 4)
    valu_with_vmem(a1l[:NPRE], every=P('A1EVERY', 12))
    it = a1l[NPRE:]
    it.append(('ds', f'ds_write_b128 v{AD+6}, {vr(XNR,4)}', 'tbw'))
    it.append(('ds', f's_mov_b64 exec, 0xff\nds_write_b128 v{AD+6}, {vr(XNR+4,4)} offset:8192\ns_mov_b64 exec, -1', 'tbw'))
    it.append(('vm', f's_mov_b64 exec, 1\nbuffer_store_dwordx2 {vr(MR_,2)}, off, {WS}, s43 sc1\ns_mov_b64 exec, -1', 'xn', 1))
    bg.push_v(it)
    E = 72
    def reads(sg):
        n = sg // 2; sp = sg % 2; F = 24 + 16*(sg % 3)
        xo = XS[n] if n % 2 == 0 else XS[n] - 90144
        for t in range(4): A(f'ds_read_b128 {vr(F+4*t,4)}, v{AD+2*(n%2)+sp} offset:{xo+512*t}')
        lg.add(f'r{sg}', 4)
    def ereads(n):
        xo = XS[n] if n % 2 == 0 else XS[n] - 90144
        A(f'ds_read_b128 {vr(E,4)}, v{AD+4+(n%2)} offset:{xo}\nds_read_b128 {vr(E+4,4)}, v{AD+8} offset:{2048*n}'); lg.add(f'e{n}', 2)
    def bswap(n):
        bg.flush_m(f'ab{n}'); vm.wait(f'ab{n}')
        Fb = 176 + 8*(n % 2)
        A(f'ds_write_b128 v194, {vr(bsg(n),4)}\nds_write_b128 v194, {vr(bsg(n)+4,4)} offset:1024')
        A(f'ds_read_b128 {vr(Fb,4)}, v192\nds_read_b128 {vr(Fb+4,4)}, v193'); lg.add(f'b{n}', 4)
    def xn_out():
        sk = newlab('NOXN8')
        A(f'ds_read_b128 {vr(XRW,4)}, v{AD+7}'); lg.add('tbr')
        A(f's_cmp_lg_u32 s7, 0\ns_cbranch_scc1 {sk}\nds_read_b128 {vr(XRW+4,4)}, v{AD+7} offset:8192\ns_add_u32 s12, s42, 32768\ns_waitcnt lgkmcnt(0)\nbuffer_store_dwordx4 {vr(XRW+4,4)}, v{AD+9}, {WS}, s12 offen sc1')
        A.lab(sk)
        bg.push_v([('lgw', 'tbr'), ('vm', f'buffer_store_dwordx4 {vr(XRW,4)}, v{AD+9}, {WS}, s42 offen sc1', 'xn', 1)])
        bg.push_v([('vmw', 'par')] + capture(lambda: unit_consts(PAR, T0)), 7)
    if TBN == 0: bg.emit_v(10**9); lg.wait('tbw')
    bg.flush_m('ax0', 'ax1', 'b8_0'); vm.wait('ax0', 'ax1', 'b8_0')
    A('s_barrier'); S(); S(z='a2')
    if TBN == 0: xn_out()
    bswap(0); reads(0); reads(1)
    VG = P('A2VG', 2); PXS = P('PXS', 15)
    for sg in range(18):
        n = sg // 2; sp = sg % 2; F = 24 + 16*(sg % 3)
        if sg < 16:
            n1 = (sg + 2) // 2
            if (sg + 2) % 4 == 0:
                tags = [f'ax{n1}'] + ([f'ax{n1+1}'] if n1 < 8 else []) + (['b8_1'] if n1 == 4 else [])
                if n1 == TBN: bg.emit_v(10**9); lg.wait('tbw')
                bg.flush_m(*tags, 'b8_2' if n1 == 8 else 'zz'); vm.wait(*tags)
                if n1 == FLN: bg.flush_m('tag'); vm.wait('xn'); get_tag()
                A('s_barrier'); S(z='a2')
                if n1 == TBN: xn_out()
                if n1 == FLN: flag_store(6, f's_lshl_b32 s14, s11, 2\ns_add_u32 s14, s14, {FX_OFF}', 13)
                if n1 >= 4: k1_dma(0, n1 // 2)
            reads(sg + 2)
        if sp == 0: ereads(n)
        lg.wait(f'r{sg}')
        z = (sg == 0)
        if sp == 0: lg.wait(f'b{n}')
        def c(rg, zz=z): return '0' if zz else vr(rg, 4)
        UU = U; BB = BS; BF_ = 176 + 8*(n % 2) + 4*sp
        ms = [f'v_mfma_f32_16x16x32_bf16 {vr(UU+4*t,4)}, {vr(F+4*t,4)}, {vr(BF_,4)}, {c(UU+4*t)}' for t in range(4)]
        ms += [f'v_mfma_f32_16x16x32_bf16 {vr(BB,4)}, {vr(ONES,4)}, {vr(BF_,4)}, {c(BB)}']
        if sp == 1:
            lg.wait(f'e{n}')
            ms += [f'v_mfma_f32_16x16x32_bf16 {vr(XA,4)}, {vr(E,4)}, {vr(E+4,4)}, {c(XA, sg == 1)}', f'v_mfma_f32_16x16x32_bf16 {vr(BS8,4)}, {vr(ONES,4)}, {vr(E+4,4)}, {c(BS8, sg == 1)}']
        for i, m in enumerate(ms):
            A(m)
            bg.emit_v(2, sg)
            if sp == 0 and i == 4 and n < 8: bswap(n + 1)
            if i % VG == VG - 1: bg.emit_m(1, sg)
        if sg == PXS: bg.m.insert(0, (0, lambda: poll_issue(16, 17, 's33', 'pfx'), 'pfx', 0))
        if sg == PXS + 2:
            bg.flush_m('pfx'); poll_check(16, 17, 's33', 'pfx')
            A(f'v_lshlrev_b32 v22, 3, v1\ns_lshl_b32 s12, s5, 9\ns_add_u32 s12, s12, {STAT_OFF}\nbuffer_load_dwordx2 v[18:19], v22, {WS}, s12 offen sc1'); vm.add('stl')
            for ks in range(16): k1_xload(ks, 2*(ks//2) - 1)
    bg.emit_v(10**9)
    S(); S(z='a2')
    A(f"""
    s_nop 3
    s_add_u32 s14, s81, {EX_T}
    v_add_u32 v14, s14, v3
    s_lshl_b32 s14, s7, 8
    s_add_u32 s14, s14, {EX_B}
    v_lshl_add_u32 v2, v1, 2, s14
    ds_write_b128 v14, {vr(XA,4)}
    ds_write_b32 v2, v{BS8}
    """)
    bg.flush_m('w0_0', 'w0_1', 'touch'); vm.wait('w0_0', 'w0_1'); vm.wait('touch') if P('TOUCH', 1) in (1, 2) else None
    A('s_waitcnt lgkmcnt(0)\ns_barrier'); lg.q = []
    S(z='a3')
    k1_dma(0, 5); k1_dma(0, 6)
    bg.m = [(0,) + tuple(t[1:]) for t in bg.m]
    bg.emit_m(2)
    LR, SLI, A1, A2c, L16R, SL16I = CONSTS
    E0 = 16; T2, T3, EE = 20, 21, 15; W0, W1, W2 = 241, 242, 243; TA, TB_ = 22, 23
    def st2():
        A(f"""
        v_mul_f32 v18, -v18, v19
        s_lshl_b32 s44, s7, 9
        s_add_u32 s44, s44, {EX_R}
        v_lshl_add_u32 v{W0}, v1, 3, s44
        v_lshrrev_b32 v{W1}, 4, v1
        v_lshl_add_u32 v{W2}, v{W1}, 7, s44
        """)
    def fin_items(tg, sc):
        it = []
        for hf in range(2):
            it += [('ds', f'ds_read_b128 {vr(CR+4*k,4)}, v{W2} offset:{64*hf+16*k}', f'{tg}cr{hf}') for k in range(4)]
            if hf == 0 and tg == '':
                it += capture(lambda: A("""
                v_and_b32 v8, 15, v1
                v_lshlrev_b32 v8, 2, v8
                v_add_u32 v9, 64, v8
                v_add_u32 v10, 128, v8
                v_add_u32 v12, 192, v8
                s_mul_i32 s83, s11, 9
                s_add_u32 s83, s83, s7
                """))
            it.append(('lgw', f'{tg}cr{hf}'))
            it += [f'v_mul_f32 v{U+8*hf+k}, v{CR+1+2*k}, v{U+8*hf+k}' for k in range(8)]
            it += [f'v_fmac_f32 v{U+8*hf+k}, v{CR+2*k}, v{BS}' for k in range(8)]
        tt = (TA, TB_)
        it += [f'v_mul_f32 v{tt[0]}, v{A1}, v{U}', f'v_fmac_f32_dpp v{tt[0]}, v{U}, v{A2c} {DPP8}',
               f'v_mul_f32 v{tt[1]}, v{A1}, v{U+1}', f'v_fmac_f32_dpp v{tt[1]}, v{U+1}, v{A2c} {DPP8}', f'v_mov_b32 v{U}, v{tt[0]}']
        for k in range(1, 16):
            t_ = tt[k % 2]; o_ = tt[(k+1) % 2]
            it.append(f'v_fma_f32 v{U+k}, v{LR}, v{U+k-1}, v{t_}')
            if k < 15: it.append(f'v_mul_f32 v{o_}, v{A1}, v{U+k+1}')
            else: it.append('s_nop 0')
            it.append(f'v_fmac_f32_dpp v{U+k}, v{U+k-1}, v{SLI} {DPP8}')
            if k < 15: it.append(f'v_fmac_f32_dpp v{o_}, v{U+k+1}, v{A2c} {DPP8}')
        it += [('ds', f'ds_bpermute_b32 v{E0+g}, v{(8,9,10,12)[g]}, v{U+15}', tg+'bp') for g in range(4)]
        it.append(f's_mul_i32 s45, s83, {H0_UNIT}\ns_add_u32 s45, s45, {H0_OFF}')
        it += [('vm', f'buffer_store_dwordx4 {vr(U+4*k,4)}, v3, {WS}, s45 offen offset:{1024*k}{sc}', tg+'h0', 1) for k in range(4)]
        it.append(('lgw', tg+'bp'))
        ee = EE if tg == '' else 14
        def part2():
            mapply(A, T2, E0, L16R, SL16I, E0+1); mapply(A, T3, T2, L16R, SL16I, E0+2); mapply(A, ee, T3, L16R, SL16I, E0+3)
            A(f'v_mov_b32 v{W0}, 0')
        it += capture(part2)
        for k, r in enumerate((E0, T2, T3)): it.append(f'v_cmp_eq_u32 vcc, {k+1}, v{W1}\ns_nop 1\nv_cndmask_b32 v{W0}, v{W0}, v{r}, vcc')
        it.append(('vm', f'v_lshlrev_b32 v{E0}, 2, v1\ns_add_u32 s12, s45, 4096\nbuffer_store_dword v{W0}, v{E0}, {WS}, s12 offen{sc}', tg+'h0', 1))
        return it
    it = [('vmw', 'stl')] + capture(st2)
    it.append(('ds', f'ds_write_b64 v{W0}, v[18:19]', 'crw'))
    it += fin_items('', '')
    def unit8():
        sv = (list(vm.q), list(bg.v))
        A(f"""
        s_cmp_lg_u32 s7, 7
        s_cbranch_scc1 UNIT_DONE
        s_add_u32 s83, s83, 1
        v_add_u32 v{W0}, {EX_T}, v3
        v_lshlrev_b32 v{E0}, 2, v1
        v_add_u32 v{E0}, {EX_B}, v{E0}
        """)
        for t in range(4):
            A(f'ds_read_b128 {vr(U+4*t,4)}, v{W0} offset:{1024*t}\nds_read_b128 {vr(CR+4*t,4)}, v{W0} offset:{1024*(t+4)}')
        A(f'ds_read_b32 v{BS}, v{E0}\nds_read_b32 v{W0}, v{E0} offset:1024')
        unit_consts(PAR+3, 16)
        A('s_waitcnt lgkmcnt(0)')
        for k in range(16): A(f'v_add_f32 v{U+k}, v{U+k}, v{CR+k}')
        A(f'v_add_f32 v{BS}, v{BS}, v{W0}')
        lq = list(lg.q); lg.q = []
        bg.v = []; bg.push_v(fin_items('u8', ' sc1')); bg.emit_v(10**9)
        A('s_sub_u32 s83, s83, 1')
        A.lab('UNIT_DONE')
        lg.q = lq; vm.q, bg.v = sv
    if not P('NOU8', 0): it.append(('call', unit8))
    if P('NOSCAN', 0): it = [x for x in it if not isinstance(x, str) or x.startswith('s_') or 'v_lshl' in x or 'v_and_b32 v8' in x or 'v_add_u32' in x or 'v_lshr' in x]
    it.append(('call', lambda: scan_done.append(1)))
    scan_items.extend(it)
    S(); S(z='a3')
scan_done = []

FA = 168; FT_ = 199
def phase_k1():
    KS1 = P('KS1', 24); HD = 4; LOOK = 4
    seq = [(ks, fb) for ks in range(KS1) for fb in range(4)]
    seq += [(ks, fb) for fb in range(4) for ks in range(KS1, 36)]
    seq += [(ks, fb) for fb in (4, 5) for ks in range(24)] + [(ks, fb) for fb in (4, 5) for ks in range(24, 36)]
    seq += [(ks, fb) for fb in (6, 7) for ks in range(24)] + [(ks, fb) for fb in (6, 7) for ks in range(24, 36)]
    seq += [(ks, 8) for ks in range(36)]
    N = len(seq)
    P2 = 4*KS1; P3 = P2 + 2*(36-KS1); P4, P5, P6 = 144, 216, 288
    A(f'''
    v_bfe_u32 v13, v1, 4, 1
    v_lshrrev_b32 v14, 5, v1
    v_and_b32 v2, 15, v1
    v_lshlrev_b32 v2, 3, v2
    v_mul_u32_u24 v5, {UREG}, v13
    v_lshl_add_u32 v5, v14, 10, v5
    v_add_u32 v5, v5, v2
    v_and_b32 v6, 12, v1
    v_lshl_add_u32 v5, v6, 3, v5
    v_add_u32 v6, 36864, v5
    ''')
    A(f'v_mul_u32_u24 v7, {G2U}, v13\nv_lshl_add_u32 v7, v14, 8, v7\nv_add_u32 v7, v7, v2')
    setup2 = capture(lambda: A(f'''
    v_lshrrev_b32 v4, 1, v1
    v_mul_u32_u24 v4, 9216, v4
    v_and_b32 v13, 1, v1
    v_lshl_add_u32 v4, v13, 4, v4
    s_mul_i32 s41, s7, {32*9216}
    s_and_b32 s13, s9, 3
    s_lshl_b32 s13, s13, 5
    s_add_u32 s41, s41, s13
    s_add_u32 s41, s41, 1024
    s_mov_b32 s42, {f32(-2.302208198*0.044715)}
    v_mov_b32 v11, {f32(-2.302208198)}
    s_lshr_b32 s14, s9, 2
    s_mul_i32 s14, s14, 9
    s_and_b32 s13, s9, 3
    s_lshl_b32 s34, s13, 1
    s_add_u32 s34, s34, s14
    s_lshl_b32 s34, s34, 12
    s_mul_i32 s43, s10, 294912
    s_add_u32 s43, s43, {HF_OFF}
    s_add_u32 s14, s14, 8
    s_lshl_b32 s14, s14, 12
    s_lshl_b32 s13, s13, 10
    s_add_u32 s14, s14, s13
    s_add_u32 s35, s43, s14
    s_add_u32 s43, s43, s34
    s_lshl_b32 s34, s8, 5
    s_add_u32 s34, s34, s9
    s_lshl_b32 s34, s34, 2
    s_add_u32 s34, s34, {FH_OFF}
    '''))
    bg.push_v(scan_items); bg.push_v(setup2)
    for k in range(16, 24): k1_xload(k)
    if P('TOUCH', 1) == 3: A('v_mov_b32 v13, v110\ns_mov_b32 s46, s41'); bg.push_m('buffer_load_dword v2, v13, s[76:79], s46 offen', 'touch', 1)
    def wread(m):
        ks, fb = seq[m]
        r = WR + 4*(m % NW)
        if fb < 8: ad = 5 if ks < 18 else 6; off = (ks % 18)*2048 + ((fb % 4) >> 1)*512 + (fb & 1)*32; o2 = 256
        else: ad = 7; off = ks*512; o2 = 128
        A(f'ds_read_b64_tr_b16 {vr(r,2)}, v{ad} offset:{off}\nds_read_b64_tr_b16 {vr(r+2,2)}, v{ad} offset:{off+o2}')
        lg.add(f'm{m}', 2)
    busy = set()
    def make_epi(fb):
        a = ACC + 16*(fb % 4); t = TMP
        out = []
        for half in range(2):
            es = range(4*half, 4*half+4)
            for e in es: out.append(f'v_mul_f32 v{t+e%4}, v{a+e}, v{a+e}')
            for e in es: out.append(f'v_fma_f32 v{t+e%4}, v{t+e%4}, s42, v11')
            for e in es: out.append(f'v_mul_f32 v{t+e%4}, v{t+e%4}, v{a+e}')
            for e in es: out.append(f'v_exp_f32 v{t+e%4}, v{t+e%4}')
            for e in es: out.append(f'v_mul_f32 v{a+e}, v{a+e}, v{a+8+e}')
            for e in es: out.append(f'v_add_f32 v{t+e%4}, 1.0, v{t+e%4}')
            for e in es: out.append(f'v_rcp_f32 v{t+e%4}, v{t+e%4}')
            out.append('s_nop 0')
            for e in es: out.append(f'v_mul_f32 v{a+e}, v{a+e}, v{t+e%4}')
            out.append(f'v_cvt_pk_bf16_f32 v{t+4+2*half}, v{a+4*half}, v{a+4*half+1}')
            out.append(f'v_cvt_pk_bf16_f32 v{t+5+2*half}, v{a+4*half+2}, v{a+4*half+3}')
        out.append(('call', lambda: busy.discard(fb % 4)))
        if fb < 4: st = f'buffer_store_dwordx4 {vr(t+4,4)}, v3, {WS}, s43 offen offset:{fb*1024} sc1'
        elif fb < 8: st = f's_add_u32 s12, s43, 4096\nbuffer_store_dwordx4 {vr(t+4,4)}, v3, {WS}, s12 offen offset:{(fb-4)*1024} sc1'
        else: st = f'buffer_store_dwordx4 {vr(t+4,4)}, v3, {WS}, s35 offen sc1'
        out.append(('vm', st, f'h{fb}', 1))
        return out
    def flagH(g): return lambda: flag_store(0, f's_add_u32 s14, s34, {1024*g}', 2)
    def flagE(): flag_store(1, f's_lshl_b32 s14, s6, 5\ns_add_u32 s14, s14, s5\ns_lshl_b32 s14, s14, 2\ns_add_u32 s14, s14, {FE_OFF}', 2)
    def xl(a, b): return lambda: [k1_xload(k) for k in range(a, b)]
    def wd(g, *ns): return lambda: [k1_dma(g, n) for n in ns]
    assert KS1 == 24
    def chk_scan(): assert scan_done
    def estore():
        sk = newlab('E8')
        bg.push_m(f's_lshl_b32 s12, s83, 6\ns_add_u32 s12, s12, {E_OFF}\ns_cmp_lg_u32 s7, 7\ns_cbranch_scc1 {sk}\nbuffer_store_dword v14, v8, {WS}, s12 offen offset:64 sc1@@LAB {sk}@@buffer_store_dword v15, v8, {WS}, s12 offen sc1', 'est', 1)
    def touch2():
        if not P('TOUCH', 1): return
        bg.push_m(f'''s_load_dwordx2 s[76:77], s[0:1], 96
        v_lshlrev_b32 v13, 7, v1
        v_min_u32 v13, {21*128}, v13
        s_lshl_b32 s12, s2, 3
        s_add_u32 s12, s12, s7
        s_mul_i32 s12, s12, 2592
        s_and_b32 s12, s12, 0xffffff80
        s_mov_b32 s78, {4608*1152}
        s_mov_b32 s79, 0x20000
        s_waitcnt lgkmcnt(0)
        buffer_load_dword v9, v13, s[76:79], s12 offen''', 'touch2', 1)
        bg.push_m(f'''s_lshr_b32 s12, s2, 7
        s_lshl_b32 s12, s12, 3
        s_add_u32 s76, s0, s12
        s_addc_u32 s77, s1, 0
        s_load_dwordx2 s[76:77], s[76:77], 40
        v_min_u32 v13, {6*128}, v13
        s_and_b32 s12, s2, 127
        s_lshl_b32 s12, s12, 3
        s_add_u32 s12, s12, s7
        s_mul_i32 s12, s12, 648
        s_and_b32 s12, s12, 0xffffff80
        s_mov_b32 s78, 663552
        s_waitcnt lgkmcnt(0)
        buffer_load_dword v10, v13, s[76:79], s12 offen''', 'touch2', 1)
    sync = {
        32:  (['w0_2', 'w0_3'], [wd(0, 7)]),
        64:  (['w0_4', 'w0_5'], [chk_scan, xl(24, 28), wd(0, 8), xl(28, 36), wd(1, 0, 1, 2)]),
        96:  (['w0_6', 'w0_7'], [wd(1, 3, 4)]),
        104: (['w0_8'], [wd(1, 5), estore, touch2]),
        144: (['w1_0', 'w1_1', 'w1_2', 'w1_3', 'w1_4', 'w1_5'], [wd(1, 6, 7)]),
        150: ([], [wd(1, 8)]),
        192: (['w1_6', 'w1_7', 'w1_8', 'est'], [flagE]),
        P5+20: (['h3'], [flagH(0)]),
        P5+40: ([], [lambda: k1_dma_g2(0)]),
        P5+48: ([], [lambda: k1_dma_g2(1)]),
        P6:  (['g2_0', 'g2_1'], []),
        P6+4: (['h5'], [flagH(1), k2_prefetch]),
    }
    def do_sync(m):
        if m in sync:
            tags, acts = sync[m]
            bg.flush_m(*tags); vm.wait(*tags); A('s_barrier')
            for f in acts: f()
    seen_x = set()
    S()
    for m in range(LOOK): wread(m)
    for n in range(N):
        ks, fb = seq[n]
        if n in (P4, P6): S()
        if n % 32 == 0: S(z='k1')
        if n == P5 + 56: k2_setup()
        if n + LOOK < N:
            do_sync(n + LOOK); wread(n + LOOK)
        if ks not in seen_x:
            seen_x.add(ks); bg.flush_m(f'x{ks}'); vm.wait(f'x{ks}')
        first = (ks == 0)
        if first: assert (fb % 4) not in busy, (n, fb)
        lg.wait(f'm{n}')
        a = ACC + 16*(fb % 4)
        A(f'v_mfma_f32_32x32x16_bf16 {vr(a,16)}, {vr(WR+4*(n%NW),4)}, {vr(XR+4*ks,4)}, {"0" if first else vr(a,16)}')
        if ks == 35:
            busy.add(fb % 4); bg.push_v(make_epi(fb), n + 4)
        if n == P6 + 22: fix_loads('s11', 's7')
        gap = P('G1', 2) if n < P2 else (P('G2', 2) if n < P6 else 1)
        if n % gap == gap - 1: bg.emit_m(1, n)
        rate = P('R0', 5) if n < 64 else (P('R1', 3) if n < P6 else P('P6RATE', 4))
        bg.emit_v(rate, n)
    assert not bg.m
    while busy - {0}: bg.emit_v(4)
    S(); S(z='fx')

def fix_loads(swg, sunit, base=None, sht='s22'):
    base = FA if base is None else base
    pcalc = f's_lshl_b32 s12, s12, 3\ns_add_u32 s12, s12, {sunit}\ns_lshl_b32 s12, s12, 3' if sunit == 's7' else 's_lshl_b32 s12, s12, 3\ns_add_u32 s12, s12, 512'
    pre = f'''s_mul_i32 s16, {swg}, 9
    s_add_u32 s16, s16, {sunit}
    s_mul_i32 s17, s16, {H0_UNIT}
    s_add_u32 s17, s17, {H0_OFF}
    s_and_b32 s12, {swg}, 7
    {pcalc}
    v_and_b32 v{base+30}, 7, v1
    v_add_u32 v{base+28}, s12, v{base+30}
    v_lshlrev_b32 v{base+30}, 1, v{base+28}
    s_lshr_b32 {sht}, {swg}, 3
    s_mul_i32 {sht}, {sht}, {72*2048}
    s_lshl_b32 s12, s12, 8
    s_add_u32 {sht}, {sht}, s12
    s_add_u32 {sht}, {sht}, {HT_OFF}
    global_load_ushort v{base+25}, v{base+30}, s[18:19]
    global_load_ushort v{base+26}, v{base+30}, s[20:21]
    global_load_ushort v{base+27}, v{base+30}, s[30:31]'''
    bg.push_m(pre, 'fx', 3)
    pre2 = f'''s_lshl_b32 s16, s16, 6
    v_lshrrev_b32 v{base+30}, 4, v1
    v_mul_u32_u24 v{base+30}, {8*4608}, v{base+30}
    v_and_b32 v{base+29}, 15, v1
    v_lshl_add_u32 v{base+29}, v{base+29}, 2, s16
    v_sub_u32 v{base+29}, v{base+29}, v{base+30}
    '''
    for i in range(0, 8, 2):
        t = pre2 if i == 0 else ''
        for k in (i, i+1): t += f'v_subrev_u32 v{base+29}, 4608, v{base+29}\nbuffer_load_dword v{base+17+k}, v{base+29}, s[60:63], 0 offen sc1\n'
        bg.push_m(t, 'fx', 2)
    for k in range(4): bg.push_m(f'buffer_load_dwordx4 {vr(base+4*k,4)}, v3, {WS}, s17 offen offset:{1024*k} sc1', 'fx', 1)
    bg.push_m(f'v_lshlrev_b32 v{base+30}, 2, v1\ns_add_u32 s12, s17, 4096\nbuffer_load_dword v{base+16}, v{base+30}, {WS}, s12 offen sc1', 'fx', 1)
def fix_items():
    t = FT_
    LR, LI, SG = t, t+1, t+2
    PR, PI = t+3, t+4; QR, QI = t+5, t+6; L64R, L64I = t+7, t+8
    it = [('vmw', 'fx')]
    def p1():
        lam_consts(A, FA+25, FA+26, FA+27, LR, LI, 0, 0, t+9, t+10, t+11, t+12, need_coef=False)
        A(f'v_and_b32 v{SG}, 8, v1\nv_lshlrev_b32 v{SG}, 28, v{SG}')
        csq(A, LR, LI, t+23, t+24, t+9)
        csq(A, t+23, t+24, PR, PI, t+9)
        A(f'v_xor_b32 v{t+24}, v{SG}, v{t+24}')
        for _ in range(2): csq(A, PR, PI, PR, PI, t+9)
        A(f'v_mov_b32 v{t+13}, v{PR}\nv_mov_b32 v{t+14}, v{PI}')
        csq(A, PR, PI, PR, PI, t+9)
        cmul(A, PR, PI, t+13, t+14, t+15, t+16)
        A(f'v_lshrrev_b32 v{t+21}, 4, v1\nv_mov_b32 v{QR}, 1.0\nv_mov_b32 v{QI}, 0')
    it += capture(p1)
    for k, (a, b) in enumerate(((t+13, t+14), (PR, PI), (t+15, t+16))):
        it.append(f'v_cmp_eq_u32 vcc, {k+1}, v{t+21}\ns_nop 1\nv_cndmask_b32 v{QR}, v{QR}, v{a}, vcc\nv_cndmask_b32 v{QI}, v{QI}, v{b}, vcc')
    def p2():
        A(f'v_xor_b32 v{QI}, v{SG}, v{QI}')
        csq(A, PR, PI, L64R, L64I, t+9)
        csq(A, L64R, L64I, PR, PI, t+9)
        for _ in range(2): csq(A, PR, PI, PR, PI, t+9)
        A(f'v_xor_b32 v{L64I}, v{SG}, v{L64I}\nv_xor_b32 v{PI}, v{SG}, v{PI}\nv_xor_b32 v{LI}, v{SG}, v{LI}')
        for i in range(6, -1, -1): mapply(A, FA+17+i, FA+17+i+1, L64R, L64I, FA+17+i)
        A(f'''
        v_and_b32 v{t+17}, 15, v1
        v_lshlrev_b32 v{t+17}, 2, v{t+17}
        v_add_u32 v{t+18}, 64, v{t+17}
        v_add_u32 v{t+19}, 128, v{t+17}
        v_add_u32 v{t+20}, 192, v{t+17}
        ''')
    it += capture(p2)
    u = newlab('bp')
    for g in range(4): it.append(('ds', f'ds_bpermute_b32 v{FA+18+g}, v{t+17+g}, v{FA+17}', u))
    it.append(('lgw', u))
    def p3():
        for g in (2, 1, 0): mapply(A, FA+18+g, FA+18+g+1, PR, PI, FA+18+g)
        mapply(A, FA+16, FA+18, QR, QI, FA+16)
        G = [FA+17, FA+18, FA+19, FA+20]
        mapply(A, G[0], FA+16, LR, LI, None)
        mapply(A, G[1], FA+16, t+23, t+24, None)
        for k in range(0, 16, 2):
            a0, a1, b0, b1 = (G[0], G[1], G[2], G[3]) if k % 4 == 0 else (G[2], G[3], G[0], G[1])
            A(f'v_add_f32 v{FA+k}, v{FA+k}, v{a0}')
            if k < 14: A(f'v_mul_f32 v{b0}, v{t+23}, v{a0}\nv_mul_f32 v{b1}, v{t+23}, v{a1}')
            A(f'v_add_f32 v{FA+k+1}, v{FA+k+1}, v{a1}')
            if k < 14: A(f'v_fmac_f32_dpp v{b0}, v{a0}, v{t+24} {DPP8}\nv_fmac_f32_dpp v{b1}, v{a1}, v{t+24} {DPP8}')
        for k in range(8): A(f'v_cvt_pk_bf16_f32 v{FA+k}, v{FA+2*k}, v{FA+2*k+1}')
    it += capture(p3)
    it.append(('vm', f'buffer_store_dwordx4 {vr(FA,4)}, v3, {WS}, s22 offen sc1\nbuffer_store_dwordx4 {vr(FA+4,4)}, v3, {WS}, s22 offen offset:1024 sc1', 'ht', 2))
    return it

def k2_setup():
    A(f'''
    s_load_dwordx4 s[68:71], s[0:1], 40
    s_load_dwordx2 s[56:57], s[0:1], 96
    s_load_dwordx2 s[60:61], s[0:1], 120
    s_mul_i32 s14, s3, 30
    s_add_u32 s14, s14, s4
    s_mul_i32 s44, s14, 1366
    s_lshr_b32 s44, s44, 16
    s_mul_i32 s13, s44, 48
    s_sub_u32 s47, s14, s13
    s_mul_i32 s45, s47, 86
    s_lshr_b32 s45, s45, 8
    s_mul_i32 s13, s45, 3
    s_sub_u32 s46, s47, s13
    s_lshl_b32 s14, s45, 2
    s_lshr_b32 s13, s7, 1
    s_add_u32 s14, s14, s13
    s_mul_i32 s76, s14, 294912
    s_and_b32 s9, s7, 1
    s_lshr_b32 s10, s7, 2
    s_add_u32 s76, s76, {HF_OFF}
    s_mul_i32 s83, s7, 3072
    s_add_u32 s83, s83, 16384
    s_mul_i32 s80, s46, 384
    s_lshr_b32 s14, s45, 1
    s_lshl_b32 s32, s14, 7
    s_add_u32 s32, s32, {FH_OFF}
    s_waitcnt lgkmcnt(0)
    s_mov_b32 s58, {4608*1152}
    s_mov_b32 s59, 0x20000
    s_add_u32 s60, s60, {E_OFF}
    s_addc_u32 s61, s61, 0
    s_mov_b32 s62, {E_BYTES}
    s_mov_b32 s63, 0x20000
    v_lshlrev_b32 v15, 2, v1
    v_and_b32 v15, 127, v15
    s_lshl_b32 s33, s6, 7
    s_add_u32 s33, s33, {FE_OFF}
    ''')
    lg.q = []
    for i in range(3):
        A(f'''
        s_and_b32 s13, s7, 3
        s_mul_i32 s13, s13, 192
        s_add_u32 s13, s13, {64*i}
        v_add_u32 v12, s13, v1
        v_mul_u32_u24 v13, 2731, v12
        v_lshrrev_b32 v13, 16, v13
        v_mul_u32_u24 v14, 24, v13
        v_sub_u32 v14, v12, v14
        v_bfe_u32 v12, v13, 1, 1
        v_lshlrev_b32 v12, 2, v12
        v_xor_b32 v14, v14, v12
        v_mul_u32_u24 v13, 1152, v13
        v_lshl_add_u32 v{8+i}, v14, 4, v13
        ''')
    poll_issue(12, 15, 's32', 'pg0')
    poll_issue(13, 15, 's33', 'pfe')
for n_ in range(240): assert (n_*1366) >> 16 == n_//48
for n_ in range(48): assert (n_*86) >> 8 == n_//3
def k2_dma_ffn(n):
    slot = ((n + 1) % 4) * K2S
    def g0(dst, sel):
        return f'''s_add_u32 {dst}, s44, {5*n}
        s_lshr_b32 s12, {dst}, 2
        s_lshl_b32 {dst}, {dst}, 1
        s_add_u32 {dst}, {dst}, s12
        s_lshl_b32 {dst}, {dst}, 1
        s_add_u32 {dst}, {dst}, {sel}
        '''
    def g1(dst, sel):
        return f'''s_add_u32 {dst}, s44, {5*n-32}
        s_lshr_b32 s13, {dst}, 4
        s_and_b32 {dst}, {dst}, 15
        s_lshl_b32 {dst}, {dst}, 1
        s_add_u32 {dst}, {dst}, {sel}
        s_lshr_b32 s12, {dst}, 2
        s_lshl_b32 {dst}, {dst}, 1
        s_add_u32 {dst}, {dst}, s12
        s_lshl_b32 {dst}, {dst}, 1
        s_add_u32 {dst}, {dst}, s13
        s_add_u32 {dst}, {dst}, 2
        '''
    def g2(dst, sel):
        return f's_add_u32 {dst}, s44, {5*n-64}\ns_mul_i32 {dst}, {dst}, 18\ns_add_u32 {dst}, {dst}, 16\ns_add_u32 {dst}, {dst}, {sel}\n'
    def calc(dst, sel):
        lo, hi = 5*n, 5*n + 4
        if hi < 32: return g0(dst, sel)
        if lo >= 32 and hi < 64: return g1(dst, sel)
        if lo >= 64: return g2(dst, sel)
        f1, f2, th = (g0, g1, 32 - lo) if lo < 32 else (g1, g2, 64 - lo)
        return f1('s14', sel) + f2(dst, sel) + f's_cmp_lt_u32 s44, {th}\ns_cselect_b32 {dst}, s14, {dst}\n'
    preW = calc('s73', 's10') + f's_mul_i32 s73, s73, {32*1152}\ns_add_u32 s73, s73, s80\n'
    preH = calc('s72', 's9') + 's_lshl_b32 s72, s72, 11\ns_add_u32 s72, s72, s76\n'
    for i in range(3): bg.push_m((preW if i == 0 else '') + dma_txt(8+i, 's[56:59]', 's73', f's_add_u32 m0, s83, {slot+1024*i}'), f'k{n}', 1)
    bg.push_m(preH + dma_txt(3, WS, 's72', f's_add_u32 m0, s82, {slot}', sc=LSC), f'k{n}', 1)
    bg.push_m(dma_txt(3, WS, 's72', f's_add_u32 m0, s82, {slot}', imm=1024, sc=LSC), f'k{n}', 1)
def k2_dma_ssm(n, m):
    slot = ((n + 1) % 4) * K2S
    e0 = {14: -2, 15: 3, 16: 9, 17: 14}[n]
    sp = 's_cmp_eq_u32 s44, 3\ns_cselect_b32 s73, 8, s73\ns_min_u32 s73, s73, 17\n' if n == 17 else ''
    pre = f'''s_add_i32 s73, s44, {e0}
    {sp}
    s_cmp_lt_u32 s73, 9
    s_cselect_b32 s64, s68, s70
    s_cselect_b32 s65, s69, s71
    s_cselect_b32 s72, 0, 128
    s_cselect_b32 s12, 0, 9
    s_sub_u32 s73, s73, s12
    s_add_u32 s72, s72, s29
    s_lshl_b32 s12, s73, 14
    s_add_u32 s72, s72, s12
    s_lshl_b32 s73, s73, 7
    s_add_u32 s73, s73, s74
    '''
    for i in range(3):
        bg.push_m((pre if i == 0 else '') + f's_add_u32 s12, s73, {i*8*1152}\n' + dma_txt(5 + (i % 2), 's[64:67]', 's12', f's_add_u32 m0, s83, {slot+1024*i}'), f'k{n}', 1)
    bg.push_m(dma_txt(4, WS, 's72', f's_add_u32 m0, s82, {slot}', sc=LSC), f'k{n}', 1)
    bg.push_m(f's_add_u32 s12, s72, {72*2048}\n' + dma_txt(4, WS, 's12', f's_add_u32 m0, s82, {slot+1024}', sc=LSC), f'k{n}', 1)
def k2_prefetch():
    poll_check(13, 15, 's33', 'pfe')
    poll_check(12, 15, 's32', 'pg0')
    for n in range(3): k2_dma_ffn(n)

def phase_k2():
    ACC2 = 64; AF = 24; BF = 32
    BR = [32, 36, 40, 44, 128, 132]
    RA, RB, SA, SB = 224, 226, 232, 234
    VH, VC, VO, VF = 100+142, 243, 245, 246
    A(f'''
    s_and_b32 s14, s44, 3
    s_lshl_b32 s14, s14, 7
    v_xor_b32 v{RA}, s14, v3
    s_and_b32 s13, s7, 3
    s_lshl_b32 s12, s13, 12
    v_add_u32 v{RA}, s12, v{RA}
    v_add_u32 v{RA+1}, {2*K2S}, v{RA}
    v_lshrrev_b32 v12, 5, v1
    v_lshlrev_b32 v13, 2, v12
    v_bfe_u32 v14, v1, 2, 2
    v_add_u32 v13, v13, v14
    v_mul_u32_u24 v13, 384, v13
    v_bfe_u32 v14, v1, 4, 1
    v_lshl_add_u32 v13, v14, 5, v13
    v_and_b32 v14, 3, v1
    v_lshl_add_u32 v13, v14, 3, v13
    v_add_u32 v13, 16384, v13
    v_bfe_u32 v14, v1, 3, 1
    s_lshr_b32 s77, s7, 2
    s_mul_i32 s77, s77, 3
    ''')
    for jj in range(3):
        A(f's_add_u32 s14, s77, {jj}\nv_xor_b32 v2, s14, v14\nv_lshl_add_u32 v{RB+jj}, v2, 6, v13\nv_add_u32 v{RB+3+jj}, {2*K2S}, v{RB+jj}')
    def setup2():
        A(f'''
        v_lshrrev_b32 v252, 5, v1
        v_lshrrev_b32 v253, 4, v1
        v_lshlrev_b32 v254, 2, v252
        v_and_b32 v255, 7, v1
        v_xor_b32 v254, v254, v255
        v_lshlrev_b32 v254, 4, v254
        v_lshrrev_b32 v255, 3, v1
        v_lshl_add_u32 v4, v255, 8, v254
        v_lshrrev_b32 v254, 3, v1
        v_mul_u32_u24 v254, 1152, v254
        v_and_b32 v255, 7, v1
        v_xor_b32 v255, v255, v253
        v_lshl_add_u32 v5, v255, 4, v254
        s_and_b32 s75, s7, 1
        s_lshl_b32 s75, s75, 6
        v_xor_b32 v5, s75, v5
        v_xor_b32 v6, 64, v5
        s_lshl_b32 s29, s7, 11
        s_mul_i32 s75, s45, {2*72*2048}
        s_add_u32 s29, s29, s75
        s_add_u32 s29, s29, {HT_OFF}
        s_mul_i32 s74, s46, 192
        s_mul_i32 s75, s7, 24
        s_add_u32 s74, s74, s75
        s_mul_i32 s74, s74, 1152
        s_mov_b32 s66, 663552
        s_mov_b32 s67, 0x20000
        s_mov_b32 s64, s68
        s_mov_b32 s65, s69
        v_bfe_u32 v253, v1, 1, 1
        s_and_b32 s75, s44, 1
        v_xor_b32 v253, s75, v253
        v_bfe_u32 v254, v1, 4, 1
        s_bfe_u32 s75, s44, 0x10001
        v_xor_b32 v254, s75, v254
        v_lshlrev_b32 v255, 11, v252
        v_lshl_add_u32 v255, v254, 7, v255
        v_mul_u32_u24 v253, 576, v253
        v_add_u32 v255, v255, v253
        v_bfe_u32 v254, v1, 2, 2
        v_lshl_add_u32 v255, v254, 4, v255
        v_and_b32 v254, 1, v1
        v_lshl_add_u32 v255, v254, 3, v255
        s_bfe_u32 s75, s7, 0x10001
        s_lshl_b32 s75, s75, 10
        v_add_u32 v255, s75, v255
        s_and_b32 s75, s7, 1
        s_lshl_b32 s75, s75, 8
        v_add_u32 v{SA}, s75, v255
        v_add_u32 v{SA+1}, {2*K2S}, v{SA}
        v_xor_b32 v244, 64, v{SA}
        v_xor_b32 v245, 64, v{SA+1}
        v_and_b32 v253, 31, v1
        v_bfe_u32 v254, v1, 1, 3
        v_xor_b32 v254, v254, v252
        v_lshlrev_b32 v254, 4, v254
        v_lshl_add_u32 v253, v253, 7, v254
        s_lshl_b32 s75, s77, 12
        s_add_u32 s75, s75, 16384
        v_add_u32 v253, s75, v253
        ''')
        for sp in range(4): A(f'v_xor_b32 v{SB+sp}, {32*sp}, v253\nv_add_u32 v{SB+4+sp}, {2*K2S}, v{SB+sp}')
        A(f'''
        s_lshl_b32 s75, s45, 2
        s_and_b32 s31, s7, 3
        s_add_u32 s75, s75, s31
        s_lshl_b32 s75, s75, 2
        s_and_b32 s31, s44, 3
        s_add_u32 s75, s75, s31
        s_lshl_b32 s30, s75, 6
        s_add_u32 s30, s30, {STAT_OFF}
        s_mul_i32 s31, s75, {8*2304}
        s_mul_i32 s75, s46, 768
        s_add_u32 s31, s31, s75
        s_lshl_b32 s75, s77, 7
        s_add_u32 s31, s31, s75
        v_mul_u32_u24 v7, {4*2304}, v252
        v_and_b32 v255, 31, v1
        v_lshl_add_u32 v7, v255, 2, v7
        s_lshl_b32 s33, s45, 7
        s_add_u32 s33, s33, {FT_OFF}
        s_add_u32 s28, s33, 64
        v_and_b32 v242, 63, v15
        ''')
    global k2_dma_ssm
    def late_flags():
        flag_store(1, 's_add_u32 s14, s34, 3072', 2)
    def ft_flag():
        flag_store(2, f's_lshr_b32 s14, s11, 4\ns_lshl_b32 s14, s14, 7\ns_and_b32 s12, s11, 15\ns_lshl_b32 s12, s12, 2\ns_add_u32 s14, s14, s12\ns_add_u32 s14, s14, {FT_OFF}', 2)
    S(z='fx')
    bg.flush_m('k0')
    vm.wait('k0')
    A('s_barrier')
    A('s_cmp_lt_u32 s4, 30\ns_cbranch_scc1 K2_GO')
    sv = (list(vm.q), list(lg.q), list(bg.v), list(bg.m))
    A(f'v_lshlrev_b32 v14, 2, v1')
    for k in range(4):
        A(f's_mov_b32 s{24+k}, {FE_OFF+256*k}'); poll_issue(24+k, 14, f's{24+k}', f'pall{k}')
    bg.emit_m(1000); bg.emit_v(10**9)
    vm.wait('h7'); A('s_barrier'); flag_store(0, 's_add_u32 s14, s34, 2048', 2)
    bg.push_v(fix_items()); bg.emit_v(10**9)
    for k in range(4): poll_check(24+k, 14, f's{24+k}', f'pall{k}')
    A('''
    s_lshl_b32 s75, s3, 1
    s_add_u32 s75, s75, s4
    s_sub_u32 s75, s75, 30
    s_lshl_b32 s75, s75, 3
    s_add_u32 s75, s75, s7
    s_lshl_b32 s75, s75, 1
    s_add_u32 s73, s75, 1
    s_mov_b32 s74, 8
    ''')
    fix_loads('s75', 's74'); fix_loads('s73', 's74', 112, 's72'); bg.emit_m(1000)
    vm.wait('h8', 'ht'); A('s_barrier')
    late_flags(); ft_flag()
    A.lab('IDLE_LOOP')
    bg.push_v(fix_items()); bg.emit_v(10**9)
    A('s_cmp_eq_u32 s74, 0\ns_cbranch_scc1 IDLE_DONE\ns_mov_b32 s74, 0\ns_mov_b32 s22, s72')
    for k in range(29): A(f'v_mov_b32 v{FA+k}, v{112+k}')
    A('s_branch IDLE_LOOP')
    A.lab('IDLE_DONE')
    A(f'''
    s_lshr_b32 s14, s75, 4
    s_lshl_b32 s14, s14, 7
    s_and_b32 s12, s75, 15
    s_lshl_b32 s12, s12, 2
    s_add_u32 s14, s14, s12
    s_add_u32 s14, s14, {FT_OFF+64}
    v_mov_b32 v12, {TAG}
    v_mov_b32 v13, {TAG}
    s_mov_b64 exec, 1
    s_waitcnt vmcnt(0)
    buffer_store_dwordx2 v[12:13], off, {WS}, s14 sc1
    s_mov_b64 exec, -1
    s_branch K_FIN
    ''')
    vm.q, lg.q, bg.v, bg.m = sv
    A.lab('K2_GO')
    S(); S(z='k2'); S(z='fx')
    bg.v = [(0, it) for _, it in bg.v]
    fi = fix_items()
    if P('NOFIX', 0): fi = [x for x in fi if not isinstance(x, str) or 'v{}'.format(FT_+22) in x or 'v{},'.format(FT_+21) in x or 'v_add_u32' in x or 'v_and_b32' in x or 'v_lshl' in x]
    bg.push_v(fi); bg.push_v(capture(setup2))
    LK = 3
    def slab_ops(n, typ): return [(n, typ, s, jj) for s in range(4) for jj in range(3)]
    def rd(i, op):
        n, typ, s, jj = op
        slot = (n + 1) % 4; hi = slot // 2; so = (slot % 2) * K2S
        ra = AF + 4*(s % 2); r = BR[i % 6]
        if typ == 'f':
            if jj == 0: A(f'ds_read_b128 {vr(ra,4)}, v{RA+hi} offset:{so+1024*s}'); lg.add(f'q{i}')
            off = so + s*16*384
            A(f'ds_read_b64_tr_b16 {vr(r,2)}, v{RB+3*hi+jj} offset:{off}\nds_read_b64_tr_b16 {vr(r+2,2)}, v{RB+3*hi+jj} offset:{off+8*384}'); lg.add(f'q{i}', 2)
        else:
            if jj == 0:
                A(f'ds_read_b64_tr_b16 {vr(ra,2)}, v{SA+hi} offset:{so+4096*s}\nds_read_b64_tr_b16 {vr(ra+2,2)}, v{244+hi} offset:{so+4096*s}'); lg.add(f'q{i}', 2)
            A(f'ds_read_b128 {vr(r,4)}, v{SB+4*hi+s} offset:{so+4096*jj}'); lg.add(f'q{i}')
    def run(ops, i0, i1, variant):
        N = len(ops)
        for i in range(i0, i1):
            n, typ, s, jj = ops[i]
            j = i + LK
            if j < N:
                if j % 12 == 0: ksync(j // 12, variant)
                rd(j, ops[j])
            lg.wait(f'q{i}')
            a = ACC2 + 16*jj
            A(f'v_mfma_f32_32x32x16_bf16 {vr(a,16)}, {vr(AF+4*(s%2),4)}, {vr(BR[i%6],4)}, {"0" if (n == 0 and s == 0) else vr(a,16)}')
            if i % 2 == 1: bg.emit_m(1)
            bg.emit_v(P('K2RATE', 4), i)
            if i % 24 == 23: S(z='k2')
            if i == 9*12 - 1: S()
    def ksync(n, variant):
        if 3 <= n <= 8: S(z='k2b')
        bg.flush_m(f'k{n}'); vm.wait(f'k{n}')
        if n == 2: vm.wait('h7')
        if n == 5: vm.wait('h8')
        if n == 8: vm.wait('ht')
        A('s_barrier')
        if n == 2: flag_store(0, 's_add_u32 s14, s34, 2048', 2)
        if n == 5: late_flags()
        if n == 8: ft_flag()
        nn = n + 2
        if n <= 11: S(z='k2a')
        if 3 <= n <= 8: S(z='k2b')
        if nn == 6: poll_check(12, 15, 's78', 'pg1')
        if nn == 9: poll_check(12, 15, 's79', 'pg1b')
        if nn == 12: poll_check(12, 15, 's8', 'pg2')
        if nn == 14: poll_check(13, 242, 's33', 'pft')
        if nn == 17:
            sk = newlab('NOF8'); vm.wait('pft8')
            A(f's_cmp_lt_u32 s44, 3\ns_cbranch_scc1 {sk}'); poll_check(13, 242, 's28', 'pft8'); A.lab(sk)
        if nn == 3: pass
        elif nn <= 13 or (nn == 14 and variant == 0): k2_dma_ffn(nn)
        elif nn == 14: k2_dma_ssm(14, 3)
        elif nn <= 17: k2_dma_ssm(nn, nn - 15)
        def pq(*args): bg.m.insert(0, (0, lambda: poll_issue(*args), args[3], 0))
        if n == 3: pq(12, 15, 's78', 'pg1')
        if n == 6: pq(12, 15, 's79', 'pg1b')
        if n == 9: pq(12, 15, 's8', 'pg2')
        if n == 11: assert not bg.v, len(bg.v); pq(13, 242, 's33', 'pft')
        if n == 14: pq(13, 242, 's28', 'pft8')
        if n == 13:
            bg.push_m(f'''s_load_dwordx2 s[24:25], s[0:1], 0
            s_load_dwordx2 s[26:27], s[0:1], 64
            v_add_u32 v176, s31, v7
            v_lshrrev_b32 v176, 1, v176
            v_and_b32 v177, 31, v1
            s_mul_i32 s12, s46, 6
            s_add_u32 s12, s12, s77
            s_lshl_b32 s12, s12, 6
            v_lshl_add_u32 v177, v177, 1, s12
            v_lshrrev_b32 v178, 5, v1
            v_lshlrev_b32 v178, 5, v178
            s_waitcnt lgkmcnt(0)
            buffer_load_dwordx4 v[168:171], v178, {WS}, s30 offen sc1
            buffer_load_dwordx4 v[172:175], v178, {WS}, s30 offen offset:16 sc1''', 'base', 2)
            bg.push_m('\n'.join(f'global_load_ushort v{124+jj}, v177, s[26:27] offset:{64*jj}' for jj in range(3)), 'base', 3)
        if n in (14, 15):
            for e in (2*(n-14), 2*(n-14)+1):
                bg.push_m('\n'.join(f'global_load_ushort v{112+4*jj+e}, v176, s[24:25] offset:{1152*e+64*jj}' for jj in range(3)), 'base', 3)
        if n == 16:
            it = [('vmw', 'base'), 's_mov_b32 s13, 0xffff0000']
            for jj in range(3): it.append(f'v_lshlrev_b32 v{124+jj}, 16, v{124+jj}')
            for jj in range(3):
                for e in (0, 2):
                    a0 = 112+4*jj+e; a1 = a0+1; m0, r0, m1, r1 = 168+2*e, 169+2*e, 170+2*e, 171+2*e
                    un = ['v_cvt_pk_bf16_f32 v181, v180, v181', 'v_lshlrev_b32 v180, 16, v181', 'v_and_b32 v181, s13, v181']
                    it += [f'v_lshlrev_b32 v{a0}, 16, v{a0}', f'v_lshlrev_b32 v{a1}, 16, v{a1}', f'v_sub_f32 v180, v{a0}, v{m0}', f'v_sub_f32 v181, v{a1}, v{m1}'] + un
                    it += [f'v_mul_f32 v180, v180, v{r0}', f'v_mul_f32 v181, v181, v{r1}'] + un
                    it += [f'v_mul_f32 v180, v180, v{124+jj}', f'v_mul_f32 v181, v181, v{124+jj}'] + un
                    it += [f'v_add_f32 v{a0}, v{a0}, v180', f'v_add_f32 v{a1}, v{a1}, v181']
            bg.push_v(it, 16*12 + 4)
    ops0 = sum([slab_ops(n, 'f' if n <= 14 else 's') for n in range(18)], [])
    ops1 = sum([slab_ops(n, 'f' if n <= 13 else 's') for n in range(18)], [])
    A('s_add_u32 s78, s32, 1024\ns_add_u32 s79, s32, 2048\ns_add_u32 s8, s32, 3072')
    k2_dma_ffn(3)
    for i in range(LK): rd(i, ops0[i])
    SPLIT = 12*12 - LK
    run(ops0, 0, SPLIT, 0)
    A('s_cmp_ge_u32 s44, 2\ns_cbranch_scc1 K2_V1')
    sv = (list(vm.q), list(lg.q), list(bg.v), list(bg.m)); ns = nstamp[0]
    run(ops0, SPLIT, 216, 0); bg.emit_m(100); rest = list(bg.v); bg.v = []
    A('s_branch K2_J'); A.lab('K2_V1')
    vm.q, lg.q, bg.v, bg.m = sv; nstamp[0] = ns
    run(ops1, SPLIT, 216, 1); bg.emit_m(100); assert rest == bg.v; bg.v = []
    A.lab('K2_J')
    S()
    A(f'''
    s_mul_i32 s35, s47, {16*12288}
    s_mul_i32 s14, s7, 1536
    s_add_u32 s35, s35, s14
    s_add_u32 s35, s35, {PART_OFF}
    v_lshlrev_b32 v2, 3, v1
    s_and_b32 s12, s44, 3
    s_cmp_eq_u32 s44, 4
    s_cselect_b32 s41, 0, 12288
    s_nop 3
    ''')
    def pub(ap):
        r = 136 + 8*ap
        for jj in range(3):
            a = ACC2 + 16*jj + 4*ap
            A(f'v_cvt_pk_bf16_f32 v{r+2*jj}, v{a}, v{a+1}\nv_cvt_pk_bf16_f32 v{r+2*jj+1}, v{a+2}, v{a+3}')
        A(f's_xor_b32 s14, s12, {ap}\ns_mul_i32 s14, s14, {4*12288}\ns_add_u32 s14, s14, s35\ns_mul_i32 s13, s41, {ap}\ns_add_u32 s14, s14, s13')
        A(f'buffer_store_dwordx4 {vr(r,4)}, v3, {WS}, s14 offen sc1\nbuffer_store_dwordx2 {vr(r+4,2)}, v2, {WS}, s14 offen offset:1024 sc1')
    for ap in (1, 2, 3): pub(ap)
    A('s_cmp_lg_u32 s44, 4\ns_cbranch_scc1 NOPUB0')
    pub(0)
    A.lab('NOPUB0')
    if P('PWF', 0):
        A(f'''
    s_lshl_b32 s33, s47, 3
    s_add_u32 s33, s33, s7
    s_lshl_b32 s33, s33, 7
    s_add_u32 s33, s33, {FP_OFF}
    v_min_u32 v14, 4, v1
    v_lshlrev_b32 v14, 2, v14
    s_lshl_b32 s14, s44, 2
    s_add_u32 s14, s14, s33
    v_mov_b32 v12, {TAG}
    s_mov_b64 exec, 1
    s_waitcnt vmcnt(0)
    buffer_store_dword v12, off, {WS}, s14 sc1
    s_mov_b64 exec, -1
    ''')
        vm.q = []; vm.add('fl')
    else:
        A(f'''
    s_lshl_b32 s33, s47, 7
    s_add_u32 s33, s33, {FP_OFF}
    v_min_u32 v14, 4, v1
    v_lshlrev_b32 v14, 2, v14
    s_waitcnt vmcnt(0)
    s_barrier
    ''')
        vm.q = []
        flag_store(0, 's_lshl_b32 s14, s44, 2\ns_add_u32 s14, s14, s33', 12)
    S()
    A('s_cmp_eq_u32 s44, 4\ns_cbranch_scc1 K_FIN')
    poll_issue(13, 14, 's33', 'pp')
    A('s_mov_b32 s13, 0xffff0000')
    bg.v = rest; bg.emit_v(10**9)
    for jj in range(3):
        for e in range(4): A(f'v_add_f32 v{ACC2+16*jj+e}, v{ACC2+16*jj+e}, v{112+4*jj+e}')
    A(f's_mul_i32 s14, s44, {4*12288}\ns_add_u32 s14, s14, s35')
    poll_check(13, 14, 's33', 'pp')
    S()
    for sl in range(4):
        r = 136 + 8*sl
        A(f'buffer_load_dwordx4 {vr(r,4)}, v3, {WS}, s14 offen sc1\nbuffer_load_dwordx2 {vr(r+4,2)}, v2, {WS}, s14 offen offset:1024 sc1')
        if sl < 3: A('s_add_u32 s14, s14, 12288')
    for sl in range(4):
        A(f's_waitcnt vmcnt({2*(3-sl)})')
        r = 136 + 8*sl
        for jj in range(3):
            for h in range(2):
                a = ACC2 + 16*jj + 2*h; p = r + 2*jj + h
                A(f'v_lshlrev_b32 v12, 16, v{p}\nv_and_b32 v13, s13, v{p}\nv_pk_add_f32 {vr(a,2)}, {vr(a,2)}, v[12:13]')
    for e in range(4):
        A(f's_add_u32 s14, s31, {e*2304}')
        for jj in range(3): A(f'buffer_store_dword v{ACC2+16*jj+e}, v7, {OUT}, s14 offen offset:{128*jj}')
    A.lab('K_FIN')
    if STAMP:
        A('s_waitcnt vmcnt(0)'); nstamp[0] = 14; S(force=True); S(True); Sflush()

def main(path):
    hdr = open('parallel_sum__ssm_conv_s5__geglu_ffn__prompt.s.ref').read().split('; Override launch')[0]
    A.raw(hdr.rstrip())
    A.raw('; @launch grid=(256,1,1) block=(512,1,1) lds=163840')
    A.raw('.amdgcn_target "amdgcn-amd-amdhsa--gfx950"\n.text')
    A.raw(f'.globl {NAME}\n.p2align 8\n.type {NAME},@function\n{NAME}:')
    if STAMP:
        for i in range(16): A(f's_mov_b32 s{86+i}, 0')
    phase_a(); phase_k1(); phase_k2()
    A.lab('K_END')
    A('s_endpgm')
    for c in cold: A.raw(c)
    A.lab('K_LAST')
    A('s_endpgm')
    A.raw(f'''.section .rodata,"a"
.p2align 6
.amdhsa_kernel {NAME}
  .amdhsa_next_free_vgpr 256
  .amdhsa_next_free_sgpr 102
  .amdhsa_accum_offset 256
  .amdhsa_group_segment_fixed_size 0
  .amdhsa_kernarg_size 128
  .amdhsa_user_sgpr_count 2
  .amdhsa_user_sgpr_kernarg_segment_ptr 1
  .amdhsa_system_sgpr_workgroup_id_x 1
  .amdhsa_float_denorm_mode_32 3
.end_amdhsa_kernel''')
    open(path, 'w').write('\n'.join(A.L) + '\n')

if __name__ == '__main__':
    main(sys.argv[1] if len(sys.argv) > 1 else 'k3.s')
```

```python
import sys, struct, os
from layout import *
from gen_v1 import f32, LOG2E, INV2PI, Asm, vr, sr, srd, lam_consts, csq, cmul, DPP8, mapply

STAMP = int(os.environ.get('STAMP', '0'))
DBGT = int(os.environ.get('DBGT', '0'))
LSC = ' sc1' if int(os.environ.get('LSC', '1')) else ''
ZOOM = os.environ.get('ZOOM', '')
def P(name, d): return int(os.environ.get(name, d))
A = Asm()
NAME = 'parallel_sum__ssm_conv_s5__geglu_ffn__prompt_kernel'

class Cnt:
    def __init__(self, name, mx): self.q = []; self.ever = set(); self.name = name; self.mx = mx
    def add(self, tag, n=1): self.q += [tag]*n; self.ever.add(tag)
    def wait(self, *tags):
        for t in tags: assert t in self.ever, t
        idx = [i for i, t in enumerate(self.q) if t in tags]
        if not idx: return
        last = max(idx); n = len(self.q) - 1 - last
        if n > self.mx:
            if self.name == 'vmcnt': self.q = self.q[last+1:]; return
            n = self.mx; last = len(self.q) - 1 - n
        A(f's_waitcnt {self.name}({n})')
        self.q = self.q[last+1:]
    def drain(self):
        A(f's_waitcnt {self.name}(0)'); self.q = []
vm = Cnt('vmcnt', 63); lg = Cnt('lgkmcnt', 15)
nstamp = [0]
def S(real=False, z='', force=False):
    if not STAMP: return
    if not (real or force) and z != ZOOM: return
    A(f'{"s_memrealtime" if (real or DBGT) else "s_memtime"} s[84:85]\ns_waitcnt lgkmcnt(0)\ns_mov_b32 s{86+nstamp[0]}, s84')
    nstamp[0] += 1
    assert nstamp[0] <= 16
def Sflush():
    if DBGT:
        A(f's_mov_b64 exec, 1\ns_load_dwordx2 s[72:73], s[0:1], 112\ns_mov_b32 s74, 256\ns_mov_b32 s75, 0x20000\nv_mov_b32 v2, s101\nv_mov_b32 v1, 0\ns_waitcnt lgkmcnt(0)\nbuffer_atomic_umax v2, v1, s[72:75], 0 offen offset:60 sc1')
        A('s_cmp_lg_u32 s2, 5\ns_cbranch_scc1 NODBG\ns_cmp_lg_u32 s7, 0\ns_cbranch_scc1 NODBG')
        for i in range(14): A(f'v_mov_b32 v2, s{87+i}\nbuffer_store_dword v2, v1, s[72:75], 0 offen offset:{4+4*i}')
        A.lab('NODBG')
        return
    A(f's_mov_b64 exec, -1\ns_lshl_b32 s84, s2, 3\ns_add_u32 s84, s84, s7\ns_lshl_b32 s84, s84, 6\ns_add_u32 s84, s84, {STAMP_OFF}\nv_mov_b32 v1, 0')
    for i in range(16):
        A(f'v_mov_b32 v2, s{86+i}\nbuffer_store_dword v2, v1, s[48:51], s84 offen offset:{4*i}')
uid = [0]
def newlab(p):
    uid[0] += 1; return f'{p}_{uid[0]}'

WS = 's[48:51]'; OUT = 's[52:55]'; DBG = 's[72:75]'
TAG = 's15'
cold = []
def poll_issue(vdst, vaddr, soff, tag):
    A(f'buffer_load_dword v{vdst}, v{vaddr}, {WS}, {soff} offen sc1'); vm.add(tag)
def poll_check(vdst, vaddr, soff, tag):
    vm.wait(tag)
    slow = newlab('SLOW'); back = newlab('BACK')
    A(f'v_cmp_ne_u32 vcc, {TAG}, v{vdst}\ns_cbranch_vccnz {slow}')
    A.lab(back)
    cold.append(f'''{slow}:
    s_sub_u32 s23, s23, 1
    s_cbranch_scc1 {back}
    s_sleep 1
    buffer_load_dword v{vdst}, v{vaddr}, {WS}, {soff} offen sc1
    s_waitcnt vmcnt(0)
    v_cmp_ne_u32 vcc, {TAG}, v{vdst}
    s_cbranch_vccnz {slow}
    s_branch {back}''')
def flag_store(wave, spre, vtmp):
    sk = newlab('NOFLAG')
    A(f's_cmp_lg_u32 s7, {wave}\ns_cbranch_scc1 {sk}\n{spre}\nv_mov_b32 v{vtmp}, {TAG}\ns_mov_b64 exec, 1\nbuffer_store_dword v{vtmp}, off, {WS}, s14 sc1\ns_mov_b64 exec, -1')
    A.lab(sk)
def dma_txt(voff, srdn, soff, m0expr, imm=0, sc=''):
    return f'{m0expr}\ns_nop 0\nbuffer_load_dwordx4 v{voff}, {srdn}, {soff} offen{" offset:%d" % imm if imm else ""}{sc} lds'

def capture(f, group=1):
    n0 = len(A.L); f(); out = A.L[n0:]; del A.L[n0:]
    return [l.strip() for l in out]

class BG:
    def __init__(self): self.v = []; self.m = []
    def push_v(self, items, ready=0): self.v += [(ready, it) for it in items]
    def push_m(self, text, tag, n=1, ready=0): self.m.append((ready, text, tag, n))
    def emit_v(self, k, now=10**9):
        while k > 0 and self.v and self.v[0][0] <= now:
            it = self.v.pop(0)[1]
            if isinstance(it, str): A(it); k -= it.count('\n') + 1
            elif it[0] == 'vm': A(it[1]); vm.add(it[2], it[3]); k -= 2
            elif it[0] == 'ds': A(it[1]); lg.add(it[2]); k -= 1
            elif it[0] == 'lgw': lg.wait(it[1])
            elif it[0] == 'vmw': self.flush_m(it[1]); vm.wait(it[1])
            elif it[0] == 'call': it[1]()
    def emit_m(self, k=1, now=10**9):
        while k > 0 and self.m and self.m[0][0] <= now:
            _, text, tag, n = self.m.pop(0)
            if callable(text): text()
            else:
                for part in text.split('@@'):
                    if part.startswith('LAB '): A.lab(part[4:])
                    else: A(part)
            if n: vm.add(tag, n)
            k -= 1
    def flush_m(self, *tags):
        while any(t[2] in tags for t in self.m): self.emit_m(1)
bg = BG()
def valu_with_vmem(lines, every=8):
    for i, l in enumerate(lines):
        if l.endswith(':'): A.lab(l[:-1])
        else: A(l)
        if i % every == every - 1 and not l.startswith('v_cmp') and not l.startswith('s_nop') and not l.startswith('s_'): bg.emit_m(1)

UREG = 73760
A2_B = [16384, 90144, 34816, 108672]
A2_X = [53248, 127104, 61440, 135296]
TB = 147584
EX_T = 147584; EX_B = EX_T + 8192; EX_S = EX_B + 2048; EX_R = 69632
G2U = 18560
K2S = 40960
XR = 112; ACC = 48; WR = 24; NW = 6; TMP = 16
CONSTS = (244, 245, 246, 247, 248, 249)

def ln_stats(r, t):
    inv = f32(1.0/576.0)
    A(f'''
    v_mul_f32 v{r}, {inv}, v{r}
    v_mul_f32 v{r+1}, {inv}, v{r+1}
    v_fma_f32 v{r+1}, -v{r}, v{r}, v{r+1}
    v_max_f32 v{r+1}, 0, v{r+1}
    v_cvt_pk_bf16_f32 v{t}, v{r}, v{r+1}
    v_lshlrev_b32 v{r}, 16, v{t}
    v_and_b32 v{r+1}, 0xffff0000, v{t}
    v_add_f32 v{r+1}, {f32(1e-5)}, v{r+1}
    v_cvt_pk_bf16_f32 v{r+1}, v{r+1}, v{r+1}
    v_lshlrev_b32 v{r+1}, 16, v{r+1}
    v_sqrt_f32 v{r+1}, v{r+1}
    s_nop 0
    v_cvt_pk_bf16_f32 v{r+1}, v{r+1}, v{r+1}
    v_lshlrev_b32 v{r+1}, 16, v{r+1}
    v_rcp_f32 v{r+1}, v{r+1}
    s_nop 0
    ''')
def unit_consts(p, t=232):
    LR, SLI, A1, A2c, L16R, SL16I = CONSTS
    lam_consts(A, p, p+1, p+2, LR, t, t+1, t+2, t+3, t+4, t+5, t+6)
    A(f'''
    v_and_b32 v{t+7}, 8, v1
    v_lshlrev_b32 v{t+7}, 28, v{t+7}
    v_xor_b32 v{SLI}, v{t+7}, v{t}
    v_add_f32 v{A1}, v{t+1}, v{t+1}
    v_xor_b32 v{A1}, v{t+7}, v{A1}
    v_mul_f32 v{A2c}, -2.0, v{t+2}
    ''')
    csq(A, LR, t, L16R, SL16I, t+3)
    for _ in range(3): csq(A, L16R, SL16I, L16R, SL16I, t+3)
    A(f'v_xor_b32 v{SL16I}, v{t+7}, v{SL16I}')
def get_tag():
    vm.wait('tag')
    slow = newlab('TAGSLOW'); back = newlab('TAGBACK')
    A(f'v_readfirstlane_b32 {TAG}, v15\ns_cmp_eq_u32 {TAG}, 0\ns_cbranch_scc1 {slow}')
    A.lab(back)
    cold.append(f'''{slow}:
    s_sub_u32 s23, s23, 1
    s_cbranch_scc1 {back}
    s_sleep 1
    buffer_load_dword v15, off, {DBG}, 0 sc1
    s_waitcnt vmcnt(0)
    v_readfirstlane_b32 {TAG}, v15
    s_cmp_eq_u32 {TAG}, 0
    s_cbranch_scc1 {slow}
    s_branch {back}''')

def k1_dma(g, n, ready=0):
    pre = f's_add_u32 s12, s32, {n*64*9216 + g*128}\n'
    bg.push_m(pre + dma_txt(0, 's[24:27]', 's12', f's_add_u32 m0, s81, {8192*n}'), f'w{g}_{n}', 1, ready)
    bg.push_m(pre + dma_txt(0, 's[36:39]', 's12', f's_add_u32 m0, s81, {UREG+8192*n}'), f'w{g}_{n}', 1, ready)
def k1_xload(ks, ready=0):
    if ks < 4: t = f'buffer_load_dwordx4 {vr(XR+4*ks,4)}, v3, {WS}, s40 offen offset:{ks*1024}{LSC}'
    else: t = f's_add_u32 s12, s40, {ks*1024}\nbuffer_load_dwordx4 {vr(XR+4*ks,4)}, v3, {WS}, s12 offen{LSC}'
    bg.push_m(t, f'x{ks}', 1, ready)
def k1_dma_g2(part, ready=0):
    sd = 's[24:27]' if part == 0 else 's[36:39]'
    base = 0 if part == 0 else G2U
    sk = newlab('G2X')
    bg.push_m(f's_cmp_ge_u32 s7, 2\ns_cbranch_scc1 {sk}\ns_add_u32 s12, s41, {16*32*9216}\n' + dma_txt(4, sd, 's12', f's_add_u32 m0, s81, {base+16384}') + f'@@LAB {sk}', f'g2_{part}', 0, ready)
    for i in range(2):
        bg.push_m(f's_add_u32 s12, s41, {i*8*32*9216}\n' + dma_txt(4, sd, 's12', f's_add_u32 m0, s81, {base+8192*i}'), f'g2_{part}', 1, ready)


XS = [16384, 90144, 24576, 98336, 32768, 106528, 40960, 114720, 49152]
B8L = 122912; STG = 57344
U = 208; CR = 224; XA = 224; BS8 = 228; STT = 232; ONES = 236; BS = 240; PAR = 250
scan_items = []
def phase_a():
    A(f"""
    s_cmp_ge_u32 s2, 256
    s_cbranch_scc1 K_END
    {"s_lshr_b32 s3, s2, 5" if P('SCR', 0) else ""}
    {"s_lshl_b32 s2, s2, 3" if P('SCR', 0) else ""}
    {"s_or_b32 s2, s2, s3" if P('SCR', 0) else ""}
    {"s_and_b32 s2, s2, 255" if P('SCR', 0) else ""}
    s_load_dwordx16 s[16:31], s[0:1], 0
    s_load_dwordx8 s[36:43], s[0:1], 80
    s_load_dwordx4 s[44:47], s[0:1], 112
    v_and_b32 v1, 63, v0
    v_lshrrev_b32 v2, 6, v0
    s_and_b32 s3, s2, 7
    s_lshr_b32 s4, s2, 3
    v_readfirstlane_b32 s7, v2
    s_lshr_b32 s5, s4, 3
    s_lshl_b32 s8, s3, 2
    s_add_u32 s5, s5, s8
    s_and_b32 s6, s4, 7
    s_lshr_b32 s8, s3, 2
    s_lshl_b32 s8, s8, 2
    s_lshr_b32 s9, s4, 3
    s_add_u32 s8, s8, s9
    s_and_b32 s9, s3, 3
    s_lshl_b32 s9, s9, 3
    s_add_u32 s9, s9, s6
    s_lshl_b32 s10, s8, 3
    s_add_u32 s10, s10, s7
    v_lshlrev_b32 v3, 4, v1
    v_lshrrev_b32 v4, 3, v1
    v_and_b32 v5, 7, v1
    v_add_u32 v6, 1024, v3
    v_cmp_gt_u32 vcc, 8, v1
    v_mov_b32 v7, 0x3ffffff0
    s_lshl_b32 s11, s5, 3
    s_add_u32 s11, s11, s6
    v_cndmask_b32 v6, v7, v6, vcc
    s_lshl_b32 s33, s11, 3
    s_add_u32 s33, s33, s7
    s_mul_i32 s13, s33, 1152
    v_mul_u32_u24 v8, 1152, v4
    v_bfe_u32 v9, v4, 1, 1
    s_and_b32 s14, s7, 6
    v_xor_b32 v9, s14, v9
    v_xor_b32 v9, v9, v5
    v_lshl_add_u32 v9, v9, 4, v8
    v_lshrrev_b32 v10, 1, v4
    v_xor_b32 v10, v10, v5
    v_lshl_add_u32 v10, v10, 4, v8
    v_xor_b32 v11, 64, v10
    s_lshl_b32 s14, s7, 6
    s_and_b32 s14, s14, 64
    v_xor_b32 v12, s14, v10
    s_lshl_b32 s14, s5, 3
    s_add_u32 s14, s14, s7
    s_mul_i32 s34, s14, {8*1152}
    s_lshl_b32 s14, s6, 3
    s_add_u32 s35, s14, s7
    s_mul_i32 s35, s35, {8*1152}
    s_add_u32 s80, s6, 64
    s_mul_i32 s80, s80, {8*1152}
    s_lshr_b32 s14, s7, 1
    s_lshl_b32 s14, s14, 7
    s_add_u32 s80, s80, s14
    s_lshl_b32 s81, s7, 10
    s_lshl_b32 s82, s7, 11
    s_waitcnt lgkmcnt(0)
    """)
    S(True); S(force=True)
    if P('PRIO', 0): A(f"s_cmp_{'ge' if P('PRIO',0)==1 else 'lt'}_u32 s7, 4\ns_cbranch_scc0 NOPRIO\ns_setprio 1"); A.lab('NOPRIO')
    XRW = 80; XNR = 88; MR_ = 96; T0 = 100
    srd(A, 56, 16, 2359296)
    A(f'buffer_load_dwordx4 {vr(XRW,4)}, v3, s[56:59], s13 offen\nbuffer_load_dwordx4 {vr(XRW+4,4)}, v6, s[56:59], s13 offen')
    vm.add('xr', 2)
    srd(A, 60, 22, 663552); srd(A, 64, 24, 663552)
    A("""
    s_and_b32 s14, s7, 1
    s_cselect_b32 s68, s24, s22
    s_cselect_b32 s69, s25, s23
    s_mov_b32 s70, 663552
    s_mov_b32 s71, 0x20000
    s_mov_b32 s23, 100000
    """)
    def bsg(n): return 112 + 8*n if n < 8 else 88
    def b8(i):
        t = f's_add_u32 s12, s80, {512*i}\n' + dma_txt(12, 's[68:71]', 's12', f's_add_u32 m0, s81, {B8L+8192*i}')
        if i < 2: bg.push_m(t, f'b8_{i}', 1)
        else:
            sk = newlab('B8X'); bg.push_m(f's_cmp_ge_u32 s7, 2\ns_cbranch_scc1 {sk}\n' + t + f'@@LAB {sk}', 'b8_2', 0)
    def a2q(n):
        bg.push_m(f's_add_u32 s12, s34, {128*n}\n' + dma_txt(9, 's[56:59]', 's12', f's_add_u32 m0, s81, {XS[n]}'), f'ax{n}', 1)
        bg.push_m(f'buffer_load_dwordx4 {vr(bsg(n),4)}, v10, s[60:63], s35 offen offset:{128*n}', f'ab{n}', 1, 2 if n == 8 else 0)
        bg.push_m(f'buffer_load_dwordx4 {vr(bsg(n)+4,4)}, v11, s[64:67], s35 offen offset:{128*n}', f'ab{n}', 1)
    a2q(0); b8(0); a2q(1)
    bg.emit_m(4)
    if P('CPF', 1):
        A(f"""
        s_cmp_lg_u32 s7, 5
        s_cbranch_scc1 NOCPF
        s_getpc_b64 s[76:77]
        """)
        A.lab('PCREF')
        A(f"""
        s_and_b32 s76, s76, 0xffffff80
        s_mov_b32 s78, K_LAST-PCREF
        s_mov_b32 s79, 0x20000
        s_lshl_b32 s14, s4, 11
        v_lshlrev_b32 v13, 7, v1
        s_mov_b64 exec, 0xffff
        buffer_load_dword v111, v13, s[76:79], s14 offen
        s_mov_b64 exec, -1
        """)
        A.lab('NOCPF')
    srd(A, 72, 44, 256)
    A(f"""
    s_or_b32 s14, s2, s7
    s_cmp_lg_u32 s14, 0
    s_cbranch_scc1 NOTAG
    s_memrealtime s[84:85]
    s_waitcnt lgkmcnt(0)
    s_mul_i32 s14, s84, 0x9E3779B1
    s_or_b32 s14, s14, 1
    v_mov_b32 v8, s14
    s_mov_b64 exec, 1
    buffer_store_dword v8, off, {DBG}, 0 sc1
    s_mov_b64 exec, -1
    """)
    A.lab('NOTAG')
    srd(A, 48, 46, 0x10000000); srd(A, 52, 42, 4718592)
    if P('TLB', 0):
        sh = P('TLB', 0)
        A(f"""
        s_cmp_lg_u32 s7, 4
        s_cbranch_scc1 NOTLB
        v_lshlrev_b32 v13, {sh}, v1
        s_lshl_b32 s14, s4, {sh+6}
        s_and_b32 s14, s14, 0x3ffffff
        buffer_load_dword v111, v13, {WS}, s14 offen
        buffer_load_dword v111, v13, {OUT}, s14 offen
        """)
        A.lab('NOTLB')
    U1 = 224; BS1 = 240
    AD = 196
    def setup():
        A(f"""
        v_and_b32 v13, 15, v1
        v_lshrrev_b32 v14, 4, v1
        v_bfe_u32 v2, v1, 1, 3
        v_xor_b32 v2, v2, v14
        v_lshlrev_b32 v2, 4, v2
        v_lshl_add_u32 v8, v13, 7, v2
        v_bfe_u32 v14, v1, 2, 2
        v_lshlrev_b32 v14, 11, v14
        v_and_b32 v13, 3, v1
        v_lshl_add_u32 v14, v13, 7, v14
        v_add_u32 v{AD}, v14, v2
        v_xor_b32 v{AD+1}, 64, v{AD}
        v_add_u32 v{AD+2}, 90144, v{AD}
        v_add_u32 v{AD+3}, 90144, v{AD+1}
        s_lshr_b32 s14, s7, 2
        s_lshl_b32 s14, s14, 6
        v_xor_b32 v{AD+8}, s14, v8
        v_add_u32 v{AD+8}, {B8L}, v{AD+8}
        v_xor_b32 v{AD+4}, s14, v{AD}
        s_and_b32 s14, s7, 3
        s_lshl_b32 s14, s14, 9
        v_add_u32 v{AD+4}, s14, v{AD+4}
        v_add_u32 v{AD+5}, 90144, v{AD+4}
        s_add_u32 s14, s82, {STG}
        v_add_u32 v192, s14, v8
        v_xor_b32 v193, 64, v192
        v_add_u32 v194, s14, v3
        v_mov_b32 v{ONES}, 0x3f803f80
        v_mov_b32 v{ONES+1}, 0x3f803f80
        v_mov_b32 v{ONES+2}, 0x3f803f80
        v_mov_b32 v{ONES+3}, 0x3f803f80
        s_mov_b32 s83, 0x3f803f80
        s_lshl_b32 s14, s6, 3
        v_add_u32 v14, s14, v5
        v_add_u32 v14, 512, v14
        s_add_u32 s14, s14, s7
        s_lshl_b32 s14, s14, 3
        v_add_u32 v13, s14, v5
        v_lshlrev_b32 v108, 1, v13
        v_lshlrev_b32 v109, 1, v14
        s_lshr_b32 s14, s9, 2
        s_mul_i32 s14, s14, 1152
        s_cmp_lt_u32 s2, 128
        s_cselect_b32 s76, s36, s38
        s_cselect_b32 s77, s37, s39
        s_mov_b32 s78, {576*9216}
        s_mov_b32 s79, 0x20000
        s_add_u32 s24, s36, s14
        s_addc_u32 s25, s37, 0
        s_sub_u32 s26, {576*9216}, s14
        s_mov_b32 s27, 0x20000
        s_add_u32 s36, s38, s14
        s_addc_u32 s37, s39, 0
        s_mov_b32 s38, s26
        s_mov_b32 s39, 0x20000
        s_and_b32 s14, s9, 3
        s_lshl_b32 s32, s14, 8
        s_mul_i32 s41, s7, {8*9216}
        s_add_u32 s32, s32, s41
        s_mul_i32 s40, s10, 36864
        v_bfe_u32 v0, v1, 2, 3
        v_mul_u32_u24 v0, 9216, v0
        v_lshrrev_b32 v13, 5, v1
        v_lshl_add_u32 v0, v13, 6, v0
        v_and_b32 v13, 3, v1
        v_lshl_add_u32 v0, v13, 4, v0
        v_lshlrev_b32 v110, 7, v1
        v_min_u32 v110, {41*128}, v110
        s_and_b32 s14, s2, 127
        s_lshl_b32 s14, s14, 3
        s_add_u32 s14, s14, s7
        s_mul_i32 s41, s14, 5184
        s_and_b32 s41, s41, 0xffffff80
        s_lshl_b32 s14, s7, 4
        s_add_u32 s14, s14, {TB}
        v_lshl_add_u32 v{AD+6}, v1, 7, s14
        s_add_u32 s14, s81, {TB}
        v_add_u32 v{AD+7}, s14, v3
        v_lshlrev_b32 v{AD+9}, 9, v4
        v_lshl_add_u32 v{AD+9}, v5, 4, v{AD+9}
        s_lshr_b32 s42, s11, 2
        s_mul_i32 s42, s42, 36864
        s_and_b32 s14, s6, 3
        s_lshl_b32 s14, s14, 7
        s_add_u32 s42, s42, s14
        s_lshl_b32 s14, s7, 12
        s_add_u32 s42, s42, s14
        s_lshl_b32 s43, s33, 3
        s_add_u32 s43, s43, {STAT_OFF}
        v_lshlrev_b32 v17, 2, v1
        v_and_b32 v16, 31, v17
        v_and_b32 v17, 127, v17
        s_lshl_b32 s14, s8, 7
        v_add_u32 v17, s14, v17
        s_lshl_b32 s14, s5, 5
        v_add_u32 v16, s14, v16
        v_cmp_lt_u32 vcc, 31, v1
        s_mov_b32 s33, {FX_OFF}
        s_nop 0
        v_cndmask_b32 v17, v17, v16, vcc
        """)
    a2q(2); a2q(3)
    valu_with_vmem(capture(setup), every=P('A0EVERY', 10))
    b8(1)
    bg.push_m(f'global_load_ushort v{PAR}, v108, s[18:19]\nglobal_load_ushort v{PAR+1}, v108, s[20:21]\nglobal_load_ushort v{PAR+2}, v108, s[30:31]', 'par', 3)
    bg.push_m(f'global_load_ushort v{PAR+3}, v109, s[18:19]\nglobal_load_ushort v{PAR+4}, v109, s[20:21]\nglobal_load_ushort v{PAR+5}, v109, s[30:31]', 'par', 3)
    bg.push_m(f'buffer_load_dword v15, off, {DBG}, 0 sc1', 'tag', 1)
    a2q(4); a2q(5); a2q(6); a2q(7); b8(2); a2q(8)
    k1_dma(0, 0); k1_dma(0, 1)
    if P('TOUCH', 1) == 1: bg.push_m('buffer_load_dword v111, v110, s[76:79], s41 offen', 'touch', 1)
    if P('TOUCH', 1) == 2: bg.m.insert(0, (0, 'buffer_load_dword v111, v110, s[76:79], s41 offen', 'touch', 1))
    def a1():
        for q in range(8):
            c0 = '0' if q == 0 else f'v{MR_}'; c1 = '0' if q == 0 else f'v{MR_+1}'
            A(f'v_dot2_f32_bf16 v{MR_}, v{XRW+q}, s83, {c0}\nv_dot2_f32_bf16 v{MR_+1}, v{XRW+q}, v{XRW+q}, {c1}')
        A('s_nop 2')
        for pat in ('quad_perm:[1,0,3,2] row_mask:0xf', 'quad_perm:[2,3,0,1] row_mask:0xf', 'row_half_mirror row_mask:0xf', 'row_mirror row_mask:0xf',
                    'row_bcast:15 row_mask:0xa', 'row_bcast:31 row_mask:0xc'):
            A(f'v_add_f32_dpp v{MR_}, v{MR_}, v{MR_} {pat} bank_mask:0xf\nv_add_f32_dpp v{MR_+1}, v{MR_+1}, v{MR_+1} {pat} bank_mask:0xf\ns_nop 0')
        A(f'v_readlane_b32 s44, v{MR_}, 63\nv_readlane_b32 s45, v{MR_+1}, 63\ns_nop 1\nv_mov_b32 v{MR_}, s44\nv_mov_b32 v{MR_+1}, s45')
        ln_stats(MR_, MR_+2)
        A(f's_mov_b32 s44, 0xffff0000\nv_sub_f32 v18, 0, v{MR_}\nv_sub_f32 v19, 0, v{MR_}\nv_mov_b32 v20, v{MR_+1}\nv_mov_b32 v21, v{MR_+1}')
        for h in range(2):
            for q in range(4):
                x = XRW+4*h+q; a = T0+2*q
                A(f'v_lshlrev_b32 v{a}, 16, v{x}\nv_and_b32 v{a+1}, s44, v{x}')
            for q in range(4):
                a = T0+2*q; A(f'v_pk_add_f32 {vr(a,2)}, {vr(a,2)}, v[18:19]')
            for q in range(4):
                a = T0+2*q; A(f'v_cvt_pk_bf16_f32 v{a+1}, v{a}, v{a+1}')
            for q in range(4):
                a = T0+2*q; A(f'v_lshlrev_b32 v{a}, 16, v{a+1}\nv_and_b32 v{a+1}, s44, v{a+1}')
            for q in range(4):
                a = T0+2*q; A(f'v_pk_mul_f32 {vr(a,2)}, {vr(a,2)}, v[20:21]')
            for q in range(4):
                a = T0+2*q; A(f'v_cvt_pk_bf16_f32 v{XNR+4*h+q}, v{a}, v{a+1}')
    vm.wait('xr'); S(z='a2')
    a1l = capture(a1)
    NPRE = P('A1PRE', 1000); TBN = P('TBN', 0); FLN = P('FLN', 4)
    valu_with_vmem(a1l[:NPRE], every=P('A1EVERY', 12))
    it = a1l[NPRE:]
    it.append(('ds', f'ds_write_b128 v{AD+6}, {vr(XNR,4)}', 'tbw'))
    it.append(('ds', f's_mov_b64 exec, 0xff\nds_write_b128 v{AD+6}, {vr(XNR+4,4)} offset:8192\ns_mov_b64 exec, -1', 'tbw'))
    it.append(('vm', f's_mov_b64 exec, 1\nbuffer_store_dwordx2 {vr(MR_,2)}, off, {WS}, s43 sc1\ns_mov_b64 exec, -1', 'xn', 1))
    bg.push_v(it)
    E = 72
    def reads(sg):
        n = sg // 2; sp = sg % 2; F = 24 + 16*(sg % 3)
        xo = XS[n] if n % 2 == 0 else XS[n] - 90144
        for t in range(4): A(f'ds_read_b128 {vr(F+4*t,4)}, v{AD+2*(n%2)+sp} offset:{xo+512*t}')
        lg.add(f'r{sg}', 4)
    def ereads(n):
        xo = XS[n] if n % 2 == 0 else XS[n] - 90144
        A(f'ds_read_b128 {vr(E,4)}, v{AD+4+(n%2)} offset:{xo}\nds_read_b128 {vr(E+4,4)}, v{AD+8} offset:{2048*n}'); lg.add(f'e{n}', 2)
    def bswap(n):
        bg.flush_m(f'ab{n}'); vm.wait(f'ab{n}')
        Fb = 176 + 8*(n % 2)
        A(f'ds_write_b128 v194, {vr(bsg(n),4)}\nds_write_b128 v194, {vr(bsg(n)+4,4)} offset:1024')
        A(f'ds_read_b128 {vr(Fb,4)}, v192\nds_read_b128 {vr(Fb+4,4)}, v193'); lg.add(f'b{n}', 4)
    def xn_out():
        sk = newlab('NOXN8')
        A(f'ds_read_b128 {vr(XRW,4)}, v{AD+7}'); lg.add('tbr')
        A(f's_cmp_lg_u32 s7, 0\ns_cbranch_scc1 {sk}\nds_read_b128 {vr(XRW+4,4)}, v{AD+7} offset:8192\ns_add_u32 s12, s42, 32768\ns_waitcnt lgkmcnt(0)\nbuffer_store_dwordx4 {vr(XRW+4,4)}, v{AD+9}, {WS}, s12 offen sc1')
        A.lab(sk)
        bg.push_v([('lgw', 'tbr'), ('vm', f'buffer_store_dwordx4 {vr(XRW,4)}, v{AD+9}, {WS}, s42 offen sc1', 'xn', 1)])
        bg.push_v([('vmw', 'par')] + capture(lambda: unit_consts(PAR, T0)), 7)
    if TBN == 0: bg.emit_v(10**9); lg.wait('tbw')
    bg.flush_m('ax0', 'ax1', 'b8_0'); vm.wait('ax0', 'ax1', 'b8_0')
    A('s_barrier'); S(); S(z='a2')
    if TBN == 0: xn_out()
    bswap(0); reads(0); reads(1)
    VG = P('A2VG', 2); PXS = P('PXS', 15)
    for sg in range(18):
        n = sg // 2; sp = sg % 2; F = 24 + 16*(sg % 3)
        if sg < 16:
            n1 = (sg + 2) // 2
            if (sg + 2) % 4 == 0:
                tags = [f'ax{n1}'] + ([f'ax{n1+1}'] if n1 < 8 else []) + (['b8_1'] if n1 == 4 else [])
                if n1 == TBN: bg.emit_v(10**9); lg.wait('tbw')
                bg.flush_m(*tags, 'b8_2' if n1 == 8 else 'zz'); vm.wait(*tags)
                if n1 == FLN: bg.flush_m('tag'); vm.wait('xn'); get_tag()
                A('s_barrier'); S(z='a2')
                if n1 == TBN: xn_out()
                if n1 == FLN: flag_store(6, f's_lshl_b32 s14, s11, 2\ns_add_u32 s14, s14, {FX_OFF}', 13)
                if n1 >= 4: k1_dma(0, n1 // 2)
            reads(sg + 2)
        if sp == 0: ereads(n)
        lg.wait(f'r{sg}')
        z = (sg == 0)
        if sp == 0: lg.wait(f'b{n}')
        def c(rg, zz=z): return '0' if zz else vr(rg, 4)
        UU = U; BB = BS; BF_ = 176 + 8*(n % 2) + 4*sp
        ms = [f'v_mfma_f32_16x16x32_bf16 {vr(UU+4*t,4)}, {vr(F+4*t,4)}, {vr(BF_,4)}, {c(UU+4*t)}' for t in range(4)]
        ms += [f'v_mfma_f32_16x16x32_bf16 {vr(BB,4)}, {vr(ONES,4)}, {vr(BF_,4)}, {c(BB)}']
        if sp == 1:
            lg.wait(f'e{n}')
            ms += [f'v_mfma_f32_16x16x32_bf16 {vr(XA,4)}, {vr(E,4)}, {vr(E+4,4)}, {c(XA, sg == 1)}', f'v_mfma_f32_16x16x32_bf16 {vr(BS8,4)}, {vr(ONES,4)}, {vr(E+4,4)}, {c(BS8, sg == 1)}']
        for i, m in enumerate(ms):
            A(m)
            bg.emit_v(2, sg)
            if sp == 0 and i == 4 and n < 8: bswap(n + 1)
            if i % VG == VG - 1: bg.emit_m(1, sg)
        if sg == PXS: bg.m.insert(0, (0, lambda: poll_issue(16, 17, 's33', 'pfx'), 'pfx', 0))
        if sg == PXS + 2:
            bg.flush_m('pfx'); poll_check(16, 17, 's33', 'pfx')
            A(f'v_lshlrev_b32 v22, 3, v1\ns_lshl_b32 s12, s5, 9\ns_add_u32 s12, s12, {STAT_OFF}\nbuffer_load_dwordx2 v[18:19], v22, {WS}, s12 offen sc1'); vm.add('stl')
            for ks in range(16): k1_xload(ks, 2*(ks//2) - 1)
    bg.emit_v(10**9)
    S(); S(z='a2')
    A(f"""
    s_nop 3
    s_add_u32 s14, s81, {EX_T}
    v_add_u32 v14, s14, v3
    s_lshl_b32 s14, s7, 8
    s_add_u32 s14, s14, {EX_B}
    v_lshl_add_u32 v2, v1, 2, s14
    ds_write_b128 v14, {vr(XA,4)}
    ds_write_b32 v2, v{BS8}
    """)
    bg.flush_m('w0_0', 'w0_1', 'touch'); vm.wait('w0_0', 'w0_1'); vm.wait('touch') if P('TOUCH', 1) in (1, 2) else None
    A('s_waitcnt lgkmcnt(0)\ns_barrier'); lg.q = []
    S(z='a3')
    k1_dma(0, 5); k1_dma(0, 6)
    bg.m = [(0,) + tuple(t[1:]) for t in bg.m]
    bg.emit_m(2)
    LR, SLI, A1, A2c, L16R, SL16I = CONSTS
    E0 = 16; T2, T3, EE = 20, 21, 15; W0, W1, W2 = 241, 242, 243; TA, TB_ = 22, 23
    def st2():
        A(f"""
        v_mul_f32 v18, -v18, v19
        s_lshl_b32 s44, s7, 9
        s_add_u32 s44, s44, {EX_R}
        v_lshl_add_u32 v{W0}, v1, 3, s44
        v_lshrrev_b32 v{W1}, 4, v1
        v_lshl_add_u32 v{W2}, v{W1}, 7, s44
        """)
    def fin_items(tg, sc):
        it = []
        for hf in range(2):
            it += [('ds', f'ds_read_b128 {vr(CR+4*k,4)}, v{W2} offset:{64*hf+16*k}', f'{tg}cr{hf}') for k in range(4)]
            if hf == 0 and tg == '':
                it += capture(lambda: A("""
                v_and_b32 v8, 15, v1
                v_lshlrev_b32 v8, 2, v8
                v_add_u32 v9, 64, v8
                v_add_u32 v10, 128, v8
                v_add_u32 v12, 192, v8
                s_mul_i32 s83, s11, 9
                s_add_u32 s83, s83, s7
                """))
            it.append(('lgw', f'{tg}cr{hf}'))
            it += [f'v_mul_f32 v{U+8*hf+k}, v{CR+1+2*k}, v{U+8*hf+k}' for k in range(8)]
            it += [f'v_fmac_f32 v{U+8*hf+k}, v{CR+2*k}, v{BS}' for k in range(8)]
        tt = (TA, TB_)
        it += [f'v_mul_f32 v{tt[0]}, v{A1}, v{U}', f'v_fmac_f32_dpp v{tt[0]}, v{U}, v{A2c} {DPP8}',
               f'v_mul_f32 v{tt[1]}, v{A1}, v{U+1}', f'v_fmac_f32_dpp v{tt[1]}, v{U+1}, v{A2c} {DPP8}', f'v_mov_b32 v{U}, v{tt[0]}']
        for k in range(1, 16):
            t_ = tt[k % 2]; o_ = tt[(k+1) % 2]
            it.append(f'v_fma_f32 v{U+k}, v{LR}, v{U+k-1}, v{t_}')
            if k < 15: it.append(f'v_mul_f32 v{o_}, v{A1}, v{U+k+1}')
            else: it.append('s_nop 0')
            it.append(f'v_fmac_f32_dpp v{U+k}, v{U+k-1}, v{SLI} {DPP8}')
            if k < 15: it.append(f'v_fmac_f32_dpp v{o_}, v{U+k+1}, v{A2c} {DPP8}')
        it += [('ds', f'ds_bpermute_b32 v{E0+g}, v{(8,9,10,12)[g]}, v{U+15}', tg+'bp') for g in range(4)]
        it.append(f's_mul_i32 s45, s83, {H0_UNIT}\ns_add_u32 s45, s45, {H0_OFF}')
        it += [('vm', f'buffer_store_dwordx4 {vr(U+4*k,4)}, v3, {WS}, s45 offen offset:{1024*k}{sc}', tg+'h0', 1) for k in range(4)]
        it.append(('lgw', tg+'bp'))
        ee = EE if tg == '' else 14
        def part2():
            mapply(A, T2, E0, L16R, SL16I, E0+1); mapply(A, T3, T2, L16R, SL16I, E0+2); mapply(A, ee, T3, L16R, SL16I, E0+3)
            A(f'v_mov_b32 v{W0}, 0')
        it += capture(part2)
        for k, r in enumerate((E0, T2, T3)): it.append(f'v_cmp_eq_u32 vcc, {k+1}, v{W1}\ns_nop 1\nv_cndmask_b32 v{W0}, v{W0}, v{r}, vcc')
        it.append(('vm', f'v_lshlrev_b32 v{E0}, 2, v1\ns_add_u32 s12, s45, 4096\nbuffer_store_dword v{W0}, v{E0}, {WS}, s12 offen{sc}', tg+'h0', 1))
        return it
    it = [('vmw', 'stl')] + capture(st2)
    it.append(('ds', f'ds_write_b64 v{W0}, v[18:19]', 'crw'))
    it += fin_items('', os.environ.get('HSC', ''))
    def unit8():
        sv = (list(vm.q), list(bg.v))
        A(f"""
        s_cmp_lg_u32 s7, 7
        s_cbranch_scc1 UNIT_DONE
        s_add_u32 s83, s83, 1
        v_add_u32 v{W0}, {EX_T}, v3
        v_lshlrev_b32 v{E0}, 2, v1
        v_add_u32 v{E0}, {EX_B}, v{E0}
        """)
        for t in range(4):
            A(f'ds_read_b128 {vr(U+4*t,4)}, v{W0} offset:{1024*t}\nds_read_b128 {vr(CR+4*t,4)}, v{W0} offset:{1024*(t+4)}')
        A(f'ds_read_b32 v{BS}, v{E0}\nds_read_b32 v{W0}, v{E0} offset:1024')
        unit_consts(PAR+3, 16)
        A('s_waitcnt lgkmcnt(0)')
        for k in range(16): A(f'v_add_f32 v{U+k}, v{U+k}, v{CR+k}')
        A(f'v_add_f32 v{BS}, v{BS}, v{W0}')
        lq = list(lg.q); lg.q = []
        bg.v = []; bg.push_v(fin_items('u8', ' sc1')); bg.emit_v(10**9)
        A('s_sub_u32 s83, s83, 1')
        A.lab('UNIT_DONE')
        lg.q = lq; vm.q, bg.v = sv
    if not P('NOU8', 0): it.append(('call', unit8))
    if P('NOSCAN', 0): it = [x for x in it if not isinstance(x, str) or x.startswith('s_') or 'v_lshl' in x or 'v_and_b32 v8' in x or 'v_add_u32' in x or 'v_lshr' in x]
    it.append(('call', lambda: scan_done.append(1)))
    scan_items.extend(it)
    S(); S(z='a3')
scan_done = []

FA = 168; FT_ = 199
def phase_k1():
    KS1 = P('KS1', 24); HD = 4; LOOK = 4
    seq = [(ks, fb) for ks in range(KS1) for fb in range(4)]
    seq += [(ks, fb) for fb in range(4) for ks in range(KS1, 36)]
    seq += [(ks, fb) for fb in (4, 5) for ks in range(24)] + [(ks, fb) for fb in (4, 5) for ks in range(24, 36)]
    seq += [(ks, fb) for fb in (6, 7) for ks in range(24)] + [(ks, fb) for fb in (6, 7) for ks in range(24, 36)]
    seq += [(ks, 8) for ks in range(36)]
    N = len(seq)
    P2 = 4*KS1; P3 = P2 + 2*(36-KS1); P4, P5, P6 = 144, 216, 288
    A(f'''
    v_bfe_u32 v13, v1, 4, 1
    v_lshrrev_b32 v14, 5, v1
    v_and_b32 v2, 15, v1
    v_lshlrev_b32 v2, 3, v2
    v_mul_u32_u24 v5, {UREG}, v13
    v_lshl_add_u32 v5, v14, 10, v5
    v_add_u32 v5, v5, v2
    v_and_b32 v6, 12, v1
    v_lshl_add_u32 v5, v6, 3, v5
    v_add_u32 v6, 36864, v5
    ''')
    A(f'v_mul_u32_u24 v7, {G2U}, v13\nv_lshl_add_u32 v7, v14, 8, v7\nv_add_u32 v7, v7, v2')
    setup2 = capture(lambda: A(f'''
    v_lshrrev_b32 v4, 1, v1
    v_mul_u32_u24 v4, 9216, v4
    v_and_b32 v13, 1, v1
    v_lshl_add_u32 v4, v13, 4, v4
    s_mul_i32 s41, s7, {32*9216}
    s_and_b32 s13, s9, 3
    s_lshl_b32 s13, s13, 5
    s_add_u32 s41, s41, s13
    s_add_u32 s41, s41, 1024
    s_mov_b32 s42, {f32(-2.302208198*0.044715)}
    v_mov_b32 v11, {f32(-2.302208198)}
    s_lshr_b32 s14, s9, 2
    s_mul_i32 s14, s14, 9
    s_and_b32 s13, s9, 3
    s_lshl_b32 s34, s13, 1
    s_add_u32 s34, s34, s14
    s_lshl_b32 s34, s34, 12
    s_mul_i32 s43, s10, 294912
    s_add_u32 s43, s43, {HF_OFF}
    s_add_u32 s14, s14, 8
    s_lshl_b32 s14, s14, 12
    s_lshl_b32 s13, s13, 10
    s_add_u32 s14, s14, s13
    s_add_u32 s35, s43, s14
    s_add_u32 s43, s43, s34
    s_lshl_b32 s34, s8, 5
    s_add_u32 s34, s34, s9
    s_lshl_b32 s34, s34, 2
    s_add_u32 s34, s34, {FH_OFF}
    '''))
    bg.push_v(scan_items); bg.push_v(setup2)
    for k in range(16, 24): k1_xload(k)
    if P('TOUCH', 1) == 3: A('v_mov_b32 v13, v110\ns_mov_b32 s46, s41'); bg.push_m('buffer_load_dword v2, v13, s[76:79], s46 offen', 'touch', 1)
    def wread(m):
        ks, fb = seq[m]
        r = WR + 4*(m % NW)
        if fb < 8: ad = 5 if ks < 18 else 6; off = (ks % 18)*2048 + ((fb % 4) >> 1)*512 + (fb & 1)*32; o2 = 256
        else: ad = 7; off = ks*512; o2 = 128
        A(f'ds_read_b64_tr_b16 {vr(r,2)}, v{ad} offset:{off}\nds_read_b64_tr_b16 {vr(r+2,2)}, v{ad} offset:{off+o2}')
        lg.add(f'm{m}', 2)
    busy = set()
    def make_epi(fb):
        a = ACC + 16*(fb % 4); t = TMP
        out = []
        for half in range(2):
            es = range(4*half, 4*half+4)
            for e in es: out.append(f'v_mul_f32 v{t+e%4}, v{a+e}, v{a+e}')
            for e in es: out.append(f'v_fma_f32 v{t+e%4}, v{t+e%4}, s42, v11')
            for e in es: out.append(f'v_mul_f32 v{t+e%4}, v{t+e%4}, v{a+e}')
            for e in es: out.append(f'v_exp_f32 v{t+e%4}, v{t+e%4}')
            for e in es: out.append(f'v_mul_f32 v{a+e}, v{a+e}, v{a+8+e}')
            for e in es: out.append(f'v_add_f32 v{t+e%4}, 1.0, v{t+e%4}')
            for e in es: out.append(f'v_rcp_f32 v{t+e%4}, v{t+e%4}')
            out.append('s_nop 0')
            for e in es: out.append(f'v_mul_f32 v{a+e}, v{a+e}, v{t+e%4}')
            out.append(f'v_cvt_pk_bf16_f32 v{t+4+2*half}, v{a+4*half}, v{a+4*half+1}')
            out.append(f'v_cvt_pk_bf16_f32 v{t+5+2*half}, v{a+4*half+2}, v{a+4*half+3}')
        out.append(('call', lambda: busy.discard(fb % 4)))
        if fb < 4: st = f'buffer_store_dwordx4 {vr(t+4,4)}, v3, {WS}, s43 offen offset:{fb*1024} sc1'
        elif fb < 8: st = f's_add_u32 s12, s43, 4096\nbuffer_store_dwordx4 {vr(t+4,4)}, v3, {WS}, s12 offen offset:{(fb-4)*1024} sc1'
        else: st = f'buffer_store_dwordx4 {vr(t+4,4)}, v3, {WS}, s35 offen sc1'
        out.append(('vm', st, f'h{fb}', 1))
        return out
    def flagH(g): return lambda: flag_store(0, f's_add_u32 s14, s34, {1024*g}', 2)
    def flagE(): flag_store(1, f's_lshl_b32 s14, s6, 5\ns_add_u32 s14, s14, s5\ns_lshl_b32 s14, s14, 2\ns_add_u32 s14, s14, {FE_OFF}', 2)
    def xl(a, b): return lambda: [k1_xload(k) for k in range(a, b)]
    def wd(g, *ns): return lambda: [k1_dma(g, n) for n in ns]
    assert KS1 == 24
    def chk_scan(): assert scan_done
    def estore():
        sk = newlab('E8')
        bg.push_m(f's_lshl_b32 s12, s83, 6\ns_add_u32 s12, s12, {E_OFF}\ns_cmp_lg_u32 s7, 7\ns_cbranch_scc1 {sk}\nbuffer_store_dword v14, v8, {WS}, s12 offen offset:64 sc1@@LAB {sk}@@buffer_store_dword v15, v8, {WS}, s12 offen sc1', 'est', 1)
    def touch2():
        if not P('TOUCH', 1): return
        bg.push_m(f'''s_load_dwordx2 s[76:77], s[0:1], 96
        v_lshlrev_b32 v13, 7, v1
        v_min_u32 v13, {21*128}, v13
        s_lshl_b32 s12, s2, 3
        s_add_u32 s12, s12, s7
        s_mul_i32 s12, s12, 2592
        s_and_b32 s12, s12, 0xffffff80
        s_mov_b32 s78, {4608*1152}
        s_mov_b32 s79, 0x20000
        s_waitcnt lgkmcnt(0)
        buffer_load_dword v9, v13, s[76:79], s12 offen''', 'touch2', 1)
        bg.push_m(f'''s_lshr_b32 s12, s2, 7
        s_lshl_b32 s12, s12, 3
        s_add_u32 s76, s0, s12
        s_addc_u32 s77, s1, 0
        s_load_dwordx2 s[76:77], s[76:77], 40
        v_min_u32 v13, {6*128}, v13
        s_and_b32 s12, s2, 127
        s_lshl_b32 s12, s12, 3
        s_add_u32 s12, s12, s7
        s_mul_i32 s12, s12, 648
        s_and_b32 s12, s12, 0xffffff80
        s_mov_b32 s78, 663552
        s_waitcnt lgkmcnt(0)
        buffer_load_dword v10, v13, s[76:79], s12 offen''', 'touch2', 1)
    sync = {
        32:  (['w0_2', 'w0_3'], [wd(0, 7)]),
        64:  (['w0_4', 'w0_5'], [chk_scan, xl(24, 28), wd(0, 8), xl(28, 36), wd(1, 0, 1, 2)]),
        96:  (['w0_6', 'w0_7'], [wd(1, 3, 4)]),
        104: (['w0_8'], [wd(1, 5), estore, touch2]),
        144: (['w1_0', 'w1_1', 'w1_2', 'w1_3', 'w1_4', 'w1_5'], [wd(1, 6, 7)]),
        150: ([], [wd(1, 8)]),
        192: (['w1_6', 'w1_7', 'w1_8', 'est'], [flagE]),
        P5+20: (['h3'], [flagH(0)]),
        P5+40: ([], [lambda: k1_dma_g2(0)]),
        P5+48: ([], [lambda: k1_dma_g2(1)]),
        P6:  (['g2_0', 'g2_1'], []),
        P6+4: (['h5'], [flagH(1), k2_prefetch]),
    }
    def do_sync(m):
        if m in sync:
            tags, acts = sync[m]
            bg.flush_m(*tags); vm.wait(*tags); A('s_barrier')
            for f in acts: f()
    seen_x = set()
    S()
    for m in range(LOOK): wread(m)
    for n in range(N):
        ks, fb = seq[n]
        if n in (P4, P6): S()
        if n % 32 == 0: S(z='k1')
        if n == P5 + 56: k2_setup()
        if n + LOOK < N:
            do_sync(n + LOOK); wread(n + LOOK)
        if ks not in seen_x:
            seen_x.add(ks); bg.flush_m(f'x{ks}'); vm.wait(f'x{ks}')
        first = (ks == 0)
        if first: assert (fb % 4) not in busy, (n, fb)
        lg.wait(f'm{n}')
        a = ACC + 16*(fb % 4)
        A(f'v_mfma_f32_32x32x16_bf16 {vr(a,16)}, {vr(WR+4*(n%NW),4)}, {vr(XR+4*ks,4)}, {"0" if first else vr(a,16)}')
        if ks == 35:
            busy.add(fb % 4); bg.push_v(make_epi(fb), n + 4)
        if n == P6 + 22: fix_loads('s11', 's7')
        gap = P('G1', 2) if n < P2 else (P('G2', 2) if n < P6 else 1)
        if n % gap == gap - 1: bg.emit_m(1, n)
        rate = P('R0', 5) if n < 64 else (P('R1', 3) if n < P6 else P('P6RATE', 4))
        bg.emit_v(rate, n)
    assert not bg.m
    while busy - {0}: bg.emit_v(4)
    S(); S(z='fx')

def fix_loads(swg, sunit, base=None, sht='s22'):
    base = FA if base is None else base
    pcalc = f's_lshl_b32 s12, s12, 3\ns_add_u32 s12, s12, {sunit}\ns_lshl_b32 s12, s12, 3' if sunit == 's7' else 's_lshl_b32 s12, s12, 3\ns_add_u32 s12, s12, 512'
    pre = f'''s_mul_i32 s16, {swg}, 9
    s_add_u32 s16, s16, {sunit}
    s_mul_i32 s17, s16, {H0_UNIT}
    s_add_u32 s17, s17, {H0_OFF}
    s_and_b32 s12, {swg}, 7
    {pcalc}
    v_and_b32 v{base+30}, 7, v1
    v_add_u32 v{base+28}, s12, v{base+30}
    v_lshlrev_b32 v{base+30}, 1, v{base+28}
    s_lshr_b32 {sht}, {swg}, 3
    s_mul_i32 {sht}, {sht}, {72*2048}
    s_lshl_b32 s12, s12, 8
    s_add_u32 {sht}, {sht}, s12
    s_add_u32 {sht}, {sht}, {HT_OFF}
    global_load_ushort v{base+25}, v{base+30}, s[18:19]
    global_load_ushort v{base+26}, v{base+30}, s[20:21]
    global_load_ushort v{base+27}, v{base+30}, s[30:31]'''
    bg.push_m(pre, 'fx', 3)
    pre2 = f'''s_lshl_b32 s16, s16, 6
    v_lshrrev_b32 v{base+30}, 4, v1
    v_mul_u32_u24 v{base+30}, {8*4608}, v{base+30}
    v_and_b32 v{base+29}, 15, v1
    v_lshl_add_u32 v{base+29}, v{base+29}, 2, s16
    v_sub_u32 v{base+29}, v{base+29}, v{base+30}
    '''
    for i in range(0, 8, 2):
        t = pre2 if i == 0 else ''
        for k in (i, i+1): t += f'v_subrev_u32 v{base+29}, 4608, v{base+29}\nbuffer_load_dword v{base+17+k}, v{base+29}, s[60:63], 0 offen sc1\n'
        bg.push_m(t, 'fx', 2)
    for k in range(4): bg.push_m(f'buffer_load_dwordx4 {vr(base+4*k,4)}, v3, {WS}, s17 offen offset:{1024*k} sc1', 'fx', 1)
    bg.push_m(f'v_lshlrev_b32 v{base+30}, 2, v1\ns_add_u32 s12, s17, 4096\nbuffer_load_dword v{base+16}, v{base+30}, {WS}, s12 offen sc1', 'fx', 1)
def fix_items():
    t = FT_
    LR, LI, SG = t, t+1, t+2
    PR, PI = t+3, t+4; QR, QI = t+5, t+6; L64R, L64I = t+7, t+8
    it = [('vmw', 'fx')]
    def p1():
        lam_consts(A, FA+25, FA+26, FA+27, LR, LI, 0, 0, t+9, t+10, t+11, t+12, need_coef=False)
        A(f'v_and_b32 v{SG}, 8, v1\nv_lshlrev_b32 v{SG}, 28, v{SG}')
        csq(A, LR, LI, t+23, t+24, t+9)
        csq(A, t+23, t+24, PR, PI, t+9)
        A(f'v_xor_b32 v{t+24}, v{SG}, v{t+24}')
        for _ in range(2): csq(A, PR, PI, PR, PI, t+9)
        A(f'v_mov_b32 v{t+13}, v{PR}\nv_mov_b32 v{t+14}, v{PI}')
        csq(A, PR, PI, PR, PI, t+9)
        cmul(A, PR, PI, t+13, t+14, t+15, t+16)
        A(f'v_lshrrev_b32 v{t+21}, 4, v1\nv_mov_b32 v{QR}, 1.0\nv_mov_b32 v{QI}, 0')
    it += capture(p1)
    for k, (a, b) in enumerate(((t+13, t+14), (PR, PI), (t+15, t+16))):
        it.append(f'v_cmp_eq_u32 vcc, {k+1}, v{t+21}\ns_nop 1\nv_cndmask_b32 v{QR}, v{QR}, v{a}, vcc\nv_cndmask_b32 v{QI}, v{QI}, v{b}, vcc')
    def p2():
        A(f'v_xor_b32 v{QI}, v{SG}, v{QI}')
        csq(A, PR, PI, L64R, L64I, t+9)
        csq(A, L64R, L64I, PR, PI, t+9)
        for _ in range(2): csq(A, PR, PI, PR, PI, t+9)
        A(f'v_xor_b32 v{L64I}, v{SG}, v{L64I}\nv_xor_b32 v{PI}, v{SG}, v{PI}\nv_xor_b32 v{LI}, v{SG}, v{LI}')
        for i in range(6, -1, -1): mapply(A, FA+17+i, FA+17+i+1, L64R, L64I, FA+17+i)
        A(f'''
        v_and_b32 v{t+17}, 15, v1
        v_lshlrev_b32 v{t+17}, 2, v{t+17}
        v_add_u32 v{t+18}, 64, v{t+17}
        v_add_u32 v{t+19}, 128, v{t+17}
        v_add_u32 v{t+20}, 192, v{t+17}
        ''')
    it += capture(p2)
    u = newlab('bp')
    for g in range(4): it.append(('ds', f'ds_bpermute_b32 v{FA+18+g}, v{t+17+g}, v{FA+17}', u))
    it.append(('lgw', u))
    def p3():
        for g in (2, 1, 0): mapply(A, FA+18+g, FA+18+g+1, PR, PI, FA+18+g)
        mapply(A, FA+16, FA+18, QR, QI, FA+16)
        G = [FA+17, FA+18, FA+19, FA+20]
        mapply(A, G[0], FA+16, LR, LI, None)
        mapply(A, G[1], FA+16, t+23, t+24, None)
        for k in range(0, 16, 2):
            a0, a1, b0, b1 = (G[0], G[1], G[2], G[3]) if k % 4 == 0 else (G[2], G[3], G[0], G[1])
            A(f'v_add_f32 v{FA+k}, v{FA+k}, v{a0}')
            if k < 14: A(f'v_mul_f32 v{b0}, v{t+23}, v{a0}\nv_mul_f32 v{b1}, v{t+23}, v{a1}')
            A(f'v_add_f32 v{FA+k+1}, v{FA+k+1}, v{a1}')
            if k < 14: A(f'v_fmac_f32_dpp v{b0}, v{a0}, v{t+24} {DPP8}\nv_fmac_f32_dpp v{b1}, v{a1}, v{t+24} {DPP8}')
        for k in range(8): A(f'v_cvt_pk_bf16_f32 v{FA+k}, v{FA+2*k}, v{FA+2*k+1}')
    it += capture(p3)
    it.append(('vm', f'buffer_store_dwordx4 {vr(FA,4)}, v3, {WS}, s22 offen sc1\nbuffer_store_dwordx4 {vr(FA+4,4)}, v3, {WS}, s22 offen offset:1024 sc1', 'ht', 2))
    return it

def k2_setup():
    A(f'''
    s_load_dwordx4 s[68:71], s[0:1], 40
    s_load_dwordx2 s[56:57], s[0:1], 96
    s_load_dwordx2 s[60:61], s[0:1], 120
    s_mul_i32 s14, s3, 30
    s_add_u32 s14, s14, s4
    s_mul_i32 s44, s14, 1366
    s_lshr_b32 s44, s44, 16
    s_mul_i32 s13, s44, 48
    s_sub_u32 s47, s14, s13
    s_mul_i32 s45, s47, 86
    s_lshr_b32 s45, s45, 8
    s_mul_i32 s13, s45, 3
    s_sub_u32 s46, s47, s13
    s_lshl_b32 s14, s45, 2
    s_lshr_b32 s13, s7, 1
    s_add_u32 s14, s14, s13
    s_mul_i32 s76, s14, 294912
    s_and_b32 s9, s7, 1
    s_lshr_b32 s10, s7, 2
    s_add_u32 s76, s76, {HF_OFF}
    s_mul_i32 s83, s7, 3072
    s_add_u32 s83, s83, 16384
    s_mul_i32 s80, s46, 384
    s_lshr_b32 s14, s45, 1
    s_lshl_b32 s32, s14, 7
    s_add_u32 s32, s32, {FH_OFF}
    s_waitcnt lgkmcnt(0)
    s_mov_b32 s58, {4608*1152}
    s_mov_b32 s59, 0x20000
    s_add_u32 s60, s60, {E_OFF}
    s_addc_u32 s61, s61, 0
    s_mov_b32 s62, {E_BYTES}
    s_mov_b32 s63, 0x20000
    v_lshlrev_b32 v15, 2, v1
    v_and_b32 v15, 127, v15
    s_lshl_b32 s33, s6, 7
    s_add_u32 s33, s33, {FE_OFF}
    ''')
    lg.q = []
    for i in range(3):
        A(f'''
        s_and_b32 s13, s7, 3
        s_mul_i32 s13, s13, 192
        s_add_u32 s13, s13, {64*i}
        v_add_u32 v12, s13, v1
        v_mul_u32_u24 v13, 2731, v12
        v_lshrrev_b32 v13, 16, v13
        v_mul_u32_u24 v14, 24, v13
        v_sub_u32 v14, v12, v14
        v_bfe_u32 v12, v13, 1, 1
        v_lshlrev_b32 v12, 2, v12
        v_xor_b32 v14, v14, v12
        v_mul_u32_u24 v13, 1152, v13
        v_lshl_add_u32 v{8+i}, v14, 4, v13
        ''')
    poll_issue(12, 15, 's32', 'pg0')
    poll_issue(13, 15, 's33', 'pfe')
for n_ in range(240): assert (n_*1366) >> 16 == n_//48
for n_ in range(48): assert (n_*86) >> 8 == n_//3
def k2_dma_ffn(n):
    slot = ((n + 1) % 4) * K2S
    def g0(dst, sel):
        return f'''s_add_u32 {dst}, s44, {5*n}
        s_lshr_b32 s12, {dst}, 2
        s_lshl_b32 {dst}, {dst}, 1
        s_add_u32 {dst}, {dst}, s12
        s_lshl_b32 {dst}, {dst}, 1
        s_add_u32 {dst}, {dst}, {sel}
        '''
    def g1(dst, sel):
        return f'''s_add_u32 {dst}, s44, {5*n-32}
        s_lshr_b32 s13, {dst}, 4
        s_and_b32 {dst}, {dst}, 15
        s_lshl_b32 {dst}, {dst}, 1
        s_add_u32 {dst}, {dst}, {sel}
        s_lshr_b32 s12, {dst}, 2
        s_lshl_b32 {dst}, {dst}, 1
        s_add_u32 {dst}, {dst}, s12
        s_lshl_b32 {dst}, {dst}, 1
        s_add_u32 {dst}, {dst}, s13
        s_add_u32 {dst}, {dst}, 2
        '''
    def g2(dst, sel):
        return f's_add_u32 {dst}, s44, {5*n-64}\ns_mul_i32 {dst}, {dst}, 18\ns_add_u32 {dst}, {dst}, 16\ns_add_u32 {dst}, {dst}, {sel}\n'
    def calc(dst, sel):
        lo, hi = 5*n, 5*n + 4
        if hi < 32: return g0(dst, sel)
        if lo >= 32 and hi < 64: return g1(dst, sel)
        if lo >= 64: return g2(dst, sel)
        f1, f2, th = (g0, g1, 32 - lo) if lo < 32 else (g1, g2, 64 - lo)
        return f1('s14', sel) + f2(dst, sel) + f's_cmp_lt_u32 s44, {th}\ns_cselect_b32 {dst}, s14, {dst}\n'
    preW = calc('s73', 's10') + f's_mul_i32 s73, s73, {32*1152}\ns_add_u32 s73, s73, s80\n'
    preH = calc('s72', 's9') + 's_lshl_b32 s72, s72, 11\ns_add_u32 s72, s72, s76\n'
    for i in range(3): bg.push_m((preW if i == 0 else '') + dma_txt(8+i, 's[56:59]', 's73', f's_add_u32 m0, s83, {slot+1024*i}'), f'k{n}', 1)
    bg.push_m(preH + dma_txt(3, WS, 's72', f's_add_u32 m0, s82, {slot}', sc=LSC), f'k{n}', 1)
    bg.push_m(dma_txt(3, WS, 's72', f's_add_u32 m0, s82, {slot}', imm=1024, sc=LSC), f'k{n}', 1)
def k2_dma_ssm(n, m):
    slot = ((n + 1) % 4) * K2S
    e0 = {14: -2, 15: 3, 16: 9, 17: 14}[n]
    sp = 's_cmp_eq_u32 s44, 3\ns_cselect_b32 s73, 8, s73\ns_min_u32 s73, s73, 17\n' if n == 17 else ''
    pre = f'''s_add_i32 s73, s44, {e0}
    {sp}
    s_cmp_lt_u32 s73, 9
    s_cselect_b32 s64, s68, s70
    s_cselect_b32 s65, s69, s71
    s_cselect_b32 s72, 0, 128
    s_cselect_b32 s12, 0, 9
    s_sub_u32 s73, s73, s12
    s_add_u32 s72, s72, s29
    s_lshl_b32 s12, s73, 14
    s_add_u32 s72, s72, s12
    s_lshl_b32 s73, s73, 7
    s_add_u32 s73, s73, s74
    '''
    for i in range(3):
        bg.push_m((pre if i == 0 else '') + f's_add_u32 s12, s73, {i*8*1152}\n' + dma_txt(5 + (i % 2), 's[64:67]', 's12', f's_add_u32 m0, s83, {slot+1024*i}'), f'k{n}', 1)
    bg.push_m(dma_txt(4, WS, 's72', f's_add_u32 m0, s82, {slot}', sc=LSC), f'k{n}', 1)
    bg.push_m(f's_add_u32 s12, s72, {72*2048}\n' + dma_txt(4, WS, 's12', f's_add_u32 m0, s82, {slot+1024}', sc=LSC), f'k{n}', 1)
def k2_prefetch():
    poll_check(13, 15, 's33', 'pfe')
    poll_check(12, 15, 's32', 'pg0')
    for n in range(3): k2_dma_ffn(n)

def phase_k2():
    ACC2 = 64; AF = 24; BF = 32
    BR = [32, 36, 40, 44, 128, 132]
    RA, RB, SA, SB = 224, 226, 232, 234
    VH, VC, VO, VF = 100+142, 243, 245, 246
    A(f'''
    s_and_b32 s14, s44, 3
    s_lshl_b32 s14, s14, 7
    v_xor_b32 v{RA}, s14, v3
    s_and_b32 s13, s7, 3
    s_lshl_b32 s12, s13, 12
    v_add_u32 v{RA}, s12, v{RA}
    v_add_u32 v{RA+1}, {2*K2S}, v{RA}
    v_lshrrev_b32 v12, 5, v1
    v_lshlrev_b32 v13, 2, v12
    v_bfe_u32 v14, v1, 2, 2
    v_add_u32 v13, v13, v14
    v_mul_u32_u24 v13, 384, v13
    v_bfe_u32 v14, v1, 4, 1
    v_lshl_add_u32 v13, v14, 5, v13
    v_and_b32 v14, 3, v1
    v_lshl_add_u32 v13, v14, 3, v13
    v_add_u32 v13, 16384, v13
    v_bfe_u32 v14, v1, 3, 1
    s_lshr_b32 s77, s7, 2
    s_mul_i32 s77, s77, 3
    ''')
    for jj in range(3):
        A(f's_add_u32 s14, s77, {jj}\nv_xor_b32 v2, s14, v14\nv_lshl_add_u32 v{RB+jj}, v2, 6, v13\nv_add_u32 v{RB+3+jj}, {2*K2S}, v{RB+jj}')
    def setup2():
        A(f'''
        v_lshrrev_b32 v252, 5, v1
        v_lshrrev_b32 v253, 4, v1
        v_lshlrev_b32 v254, 2, v252
        v_and_b32 v255, 7, v1
        v_xor_b32 v254, v254, v255
        v_lshlrev_b32 v254, 4, v254
        v_lshrrev_b32 v255, 3, v1
        v_lshl_add_u32 v4, v255, 8, v254
        v_lshrrev_b32 v254, 3, v1
        v_mul_u32_u24 v254, 1152, v254
        v_and_b32 v255, 7, v1
        v_xor_b32 v255, v255, v253
        v_lshl_add_u32 v5, v255, 4, v254
        s_and_b32 s75, s7, 1
        s_lshl_b32 s75, s75, 6
        v_xor_b32 v5, s75, v5
        v_xor_b32 v6, 64, v5
        s_lshl_b32 s29, s7, 11
        s_mul_i32 s75, s45, {2*72*2048}
        s_add_u32 s29, s29, s75
        s_add_u32 s29, s29, {HT_OFF}
        s_mul_i32 s74, s46, 192
        s_mul_i32 s75, s7, 24
        s_add_u32 s74, s74, s75
        s_mul_i32 s74, s74, 1152
        s_mov_b32 s66, 663552
        s_mov_b32 s67, 0x20000
        s_mov_b32 s64, s68
        s_mov_b32 s65, s69
        v_bfe_u32 v253, v1, 1, 1
        s_and_b32 s75, s44, 1
        v_xor_b32 v253, s75, v253
        v_bfe_u32 v254, v1, 4, 1
        s_bfe_u32 s75, s44, 0x10001
        v_xor_b32 v254, s75, v254
        v_lshlrev_b32 v255, 11, v252
        v_lshl_add_u32 v255, v254, 7, v255
        v_mul_u32_u24 v253, 576, v253
        v_add_u32 v255, v255, v253
        v_bfe_u32 v254, v1, 2, 2
        v_lshl_add_u32 v255, v254, 4, v255
        v_and_b32 v254, 1, v1
        v_lshl_add_u32 v255, v254, 3, v255
        s_bfe_u32 s75, s7, 0x10001
        s_lshl_b32 s75, s75, 10
        v_add_u32 v255, s75, v255
        s_and_b32 s75, s7, 1
        s_lshl_b32 s75, s75, 8
        v_add_u32 v{SA}, s75, v255
        v_add_u32 v{SA+1}, {2*K2S}, v{SA}
        v_xor_b32 v244, 64, v{SA}
        v_xor_b32 v245, 64, v{SA+1}
        v_and_b32 v253, 31, v1
        v_bfe_u32 v254, v1, 1, 3
        v_xor_b32 v254, v254, v252
        v_lshlrev_b32 v254, 4, v254
        v_lshl_add_u32 v253, v253, 7, v254
        s_lshl_b32 s75, s77, 12
        s_add_u32 s75, s75, 16384
        v_add_u32 v253, s75, v253
        ''')
        for sp in range(4): A(f'v_xor_b32 v{SB+sp}, {32*sp}, v253\nv_add_u32 v{SB+4+sp}, {2*K2S}, v{SB+sp}')
        A(f'''
        s_lshl_b32 s75, s45, 2
        s_and_b32 s31, s7, 3
        s_add_u32 s75, s75, s31
        s_lshl_b32 s75, s75, 2
        s_and_b32 s31, s44, 3
        s_add_u32 s75, s75, s31
        s_lshl_b32 s30, s75, 6
        s_add_u32 s30, s30, {STAT_OFF}
        s_mul_i32 s31, s75, {8*2304}
        s_mul_i32 s75, s46, 768
        s_add_u32 s31, s31, s75
        s_lshl_b32 s75, s77, 7
        s_add_u32 s31, s31, s75
        v_mul_u32_u24 v7, {4*2304}, v252
        v_and_b32 v255, 31, v1
        v_lshl_add_u32 v7, v255, 2, v7
        s_lshl_b32 s33, s45, 7
        s_add_u32 s33, s33, {FT_OFF}
        s_add_u32 s28, s33, 64
        v_and_b32 v242, 63, v15
        ''')
    global k2_dma_ssm
    def late_flags():
        flag_store(1, 's_add_u32 s14, s34, 3072', 2)
    def ft_flag():
        flag_store(2, f's_lshr_b32 s14, s11, 4\ns_lshl_b32 s14, s14, 7\ns_and_b32 s12, s11, 15\ns_lshl_b32 s12, s12, 2\ns_add_u32 s14, s14, s12\ns_add_u32 s14, s14, {FT_OFF}', 2)
    S(z='fx')
    bg.flush_m('k0')
    vm.wait('k0')
    A('s_barrier')
    A('s_cmp_lt_u32 s4, 30\ns_cbranch_scc1 K2_GO')
    sv = (list(vm.q), list(lg.q), list(bg.v), list(bg.m))
    A(f'v_lshlrev_b32 v14, 2, v1')
    for k in range(4):
        A(f's_mov_b32 s{24+k}, {FE_OFF+256*k}'); poll_issue(24+k, 14, f's{24+k}', f'pall{k}')
    bg.emit_m(1000); bg.emit_v(10**9)
    vm.wait('h7'); A('s_barrier'); flag_store(0, 's_add_u32 s14, s34, 2048', 2)
    bg.push_v(fix_items()); bg.emit_v(10**9)
    for k in range(4): poll_check(24+k, 14, f's{24+k}', f'pall{k}')
    A('''
    s_lshl_b32 s75, s3, 1
    s_add_u32 s75, s75, s4
    s_sub_u32 s75, s75, 30
    s_lshl_b32 s75, s75, 3
    s_add_u32 s75, s75, s7
    s_lshl_b32 s75, s75, 1
    s_add_u32 s73, s75, 1
    s_mov_b32 s74, 8
    ''')
    fix_loads('s75', 's74'); fix_loads('s73', 's74', 112, 's72'); bg.emit_m(1000)
    vm.wait('h8', 'ht'); A('s_barrier')
    late_flags(); ft_flag()
    A.lab('IDLE_LOOP')
    bg.push_v(fix_items()); bg.emit_v(10**9)
    A('s_cmp_eq_u32 s74, 0\ns_cbranch_scc1 IDLE_DONE\ns_mov_b32 s74, 0\ns_mov_b32 s22, s72')
    for k in range(29): A(f'v_mov_b32 v{FA+k}, v{112+k}')
    A('s_branch IDLE_LOOP')
    A.lab('IDLE_DONE')
    A(f'''
    s_lshr_b32 s14, s75, 4
    s_lshl_b32 s14, s14, 7
    s_and_b32 s12, s75, 15
    s_lshl_b32 s12, s12, 2
    s_add_u32 s14, s14, s12
    s_add_u32 s14, s14, {FT_OFF+64}
    v_mov_b32 v12, {TAG}
    v_mov_b32 v13, {TAG}
    s_mov_b64 exec, 1
    s_waitcnt vmcnt(0)
    buffer_store_dwordx2 v[12:13], off, {WS}, s14 sc1
    s_mov_b64 exec, -1
    s_branch K_FIN
    ''')
    vm.q, lg.q, bg.v, bg.m = sv
    A.lab('K2_GO')
    S(); S(z='k2'); S(z='fx')
    bg.v = [(0, it) for _, it in bg.v]
    fi = fix_items()
    if P('NOFIX', 0): fi = [x for x in fi if not isinstance(x, str) or 'v{}'.format(FT_+22) in x or 'v{},'.format(FT_+21) in x or 'v_add_u32' in x or 'v_and_b32' in x or 'v_lshl' in x]
    bg.push_v(fi); bg.push_v(capture(setup2))
    LK = 3
    def slab_ops(n, typ): return [(n, typ, s, jj) for s in range(4) for jj in range(3)]
    def rd(i, op):
        n, typ, s, jj = op
        slot = (n + 1) % 4; hi = slot // 2; so = (slot % 2) * K2S
        ra = AF + 4*(s % 2); r = BR[i % 6]
        if typ == 'f':
            if jj == 0: A(f'ds_read_b128 {vr(ra,4)}, v{RA+hi} offset:{so+1024*s}'); lg.add(f'q{i}')
            off = so + s*16*384
            A(f'ds_read_b64_tr_b16 {vr(r,2)}, v{RB+3*hi+jj} offset:{off}\nds_read_b64_tr_b16 {vr(r+2,2)}, v{RB+3*hi+jj} offset:{off+8*384}'); lg.add(f'q{i}', 2)
        else:
            if jj == 0:
                A(f'ds_read_b64_tr_b16 {vr(ra,2)}, v{SA+hi} offset:{so+4096*s}\nds_read_b64_tr_b16 {vr(ra+2,2)}, v{244+hi} offset:{so+4096*s}'); lg.add(f'q{i}', 2)
            A(f'ds_read_b128 {vr(r,4)}, v{SB+4*hi+s} offset:{so+4096*jj}'); lg.add(f'q{i}')
    def run(ops, i0, i1, variant):
        N = len(ops)
        for i in range(i0, i1):
            n, typ, s, jj = ops[i]
            j = i + LK
            if j < N:
                if j % 12 == 0: ksync(j // 12, variant)
                rd(j, ops[j])
            lg.wait(f'q{i}')
            a = ACC2 + 16*jj
            A(f'v_mfma_f32_32x32x16_bf16 {vr(a,16)}, {vr(AF+4*(s%2),4)}, {vr(BR[i%6],4)}, {"0" if (n == 0 and s == 0) else vr(a,16)}')
            if i % 2 == 1: bg.emit_m(1)
            bg.emit_v(P('K2RATE', 4), i)
            if i % 24 == 23: S(z='k2')
            if i == 9*12 - 1: S()
    def ksync(n, variant):
        if 3 <= n <= 8: S(z='k2b')
        bg.flush_m(f'k{n}'); vm.wait(f'k{n}')
        if n == 2: vm.wait('h7')
        if n == 5: vm.wait('h8')
        if n == 8: vm.wait('ht')
        A('s_barrier')
        if n == 2: flag_store(0, 's_add_u32 s14, s34, 2048', 2)
        if n == 5: late_flags()
        if n == 8: ft_flag()
        nn = n + 2
        if n <= 11: S(z='k2a')
        if 3 <= n <= 8: S(z='k2b')
        if nn == 6: poll_check(12, 15, 's78', 'pg1')
        if nn == 9: poll_check(12, 15, 's79', 'pg1b')
        if nn == 12: poll_check(12, 15, 's8', 'pg2')
        if nn == 14: poll_check(13, 242, 's33', 'pft')
        if nn == 17:
            sk = newlab('NOF8'); vm.wait('pft8')
            A(f's_cmp_lt_u32 s44, 3\ns_cbranch_scc1 {sk}'); poll_check(13, 242, 's28', 'pft8'); A.lab(sk)
        if nn == 3: pass
        elif nn <= 13 or (nn == 14 and variant == 0): k2_dma_ffn(nn)
        elif nn == 14: k2_dma_ssm(14, 3)
        elif nn <= 17: k2_dma_ssm(nn, nn - 15)
        def pq(*args): bg.m.insert(0, (0, lambda: poll_issue(*args), args[3], 0))
        if n == 3: pq(12, 15, 's78', 'pg1')
        if n == 6: pq(12, 15, 's79', 'pg1b')
        if n == 9: pq(12, 15, 's8', 'pg2')
        if n == 11: assert not bg.v, len(bg.v); pq(13, 242, 's33', 'pft')
        if n == 14: pq(13, 242, 's28', 'pft8')
        if n == 13:
            bg.push_m(f'''s_load_dwordx2 s[24:25], s[0:1], 0
            s_load_dwordx2 s[26:27], s[0:1], 64
            v_add_u32 v176, s31, v7
            v_lshrrev_b32 v176, 1, v176
            v_and_b32 v177, 31, v1
            s_mul_i32 s12, s46, 6
            s_add_u32 s12, s12, s77
            s_lshl_b32 s12, s12, 6
            v_lshl_add_u32 v177, v177, 1, s12
            v_lshrrev_b32 v178, 5, v1
            v_lshlrev_b32 v178, 5, v178
            s_waitcnt lgkmcnt(0)
            buffer_load_dwordx4 v[168:171], v178, {WS}, s30 offen sc1
            buffer_load_dwordx4 v[172:175], v178, {WS}, s30 offen offset:16 sc1''', 'base', 2)
            bg.push_m('\n'.join(f'global_load_ushort v{124+jj}, v177, s[26:27] offset:{64*jj}' for jj in range(3)), 'base', 3)
        if n in (14, 15):
            for e in (2*(n-14), 2*(n-14)+1):
                bg.push_m('\n'.join(f'global_load_ushort v{112+4*jj+e}, v176, s[24:25] offset:{1152*e+64*jj}' for jj in range(3)), 'base', 3)
        if n == 16:
            it = [('vmw', 'base'), 's_mov_b32 s13, 0xffff0000']
            for jj in range(3): it.append(f'v_lshlrev_b32 v{124+jj}, 16, v{124+jj}')
            for jj in range(3):
                for e in (0, 2):
                    a0 = 112+4*jj+e; a1 = a0+1; m0, r0, m1, r1 = 168+2*e, 169+2*e, 170+2*e, 171+2*e
                    un = ['v_cvt_pk_bf16_f32 v181, v180, v181', 'v_lshlrev_b32 v180, 16, v181', 'v_and_b32 v181, s13, v181']
                    it += [f'v_lshlrev_b32 v{a0}, 16, v{a0}', f'v_lshlrev_b32 v{a1}, 16, v{a1}', f'v_sub_f32 v180, v{a0}, v{m0}', f'v_sub_f32 v181, v{a1}, v{m1}'] + un
                    it += [f'v_mul_f32 v180, v180, v{r0}', f'v_mul_f32 v181, v181, v{r1}'] + un
                    it += [f'v_mul_f32 v180, v180, v{124+jj}', f'v_mul_f32 v181, v181, v{124+jj}'] + un
                    it += [f'v_add_f32 v{a0}, v{a0}, v180', f'v_add_f32 v{a1}, v{a1}, v181']
            bg.push_v(it, 16*12 + 4)
    ops0 = sum([slab_ops(n, 'f' if n <= 14 else 's') for n in range(18)], [])
    ops1 = sum([slab_ops(n, 'f' if n <= 13 else 's') for n in range(18)], [])
    A('s_add_u32 s78, s32, 1024\ns_add_u32 s79, s32, 2048\ns_add_u32 s8, s32, 3072')
    k2_dma_ffn(3)
    for i in range(LK): rd(i, ops0[i])
    SPLIT = 12*12 - LK
    run(ops0, 0, SPLIT, 0)
    A('s_cmp_ge_u32 s44, 2\ns_cbranch_scc1 K2_V1')
    sv = (list(vm.q), list(lg.q), list(bg.v), list(bg.m)); ns = nstamp[0]
    run(ops0, SPLIT, 216, 0); bg.emit_m(100); rest = list(bg.v); bg.v = []
    A('s_branch K2_J'); A.lab('K2_V1')
    vm.q, lg.q, bg.v, bg.m = sv; nstamp[0] = ns
    run(ops1, SPLIT, 216, 1); bg.emit_m(100); assert rest == bg.v; bg.v = []
    A.lab('K2_J')
    S()
    A(f'''
    s_mul_i32 s35, s47, {16*12288}
    s_mul_i32 s14, s7, 1536
    s_add_u32 s35, s35, s14
    s_add_u32 s35, s35, {PART_OFF}
    v_lshlrev_b32 v2, 3, v1
    s_and_b32 s12, s44, 3
    s_cmp_eq_u32 s44, 4
    s_cselect_b32 s41, 0, 12288
    s_nop 3
    ''')
    def pub(ap):
        r = 136 + 8*ap
        for jj in range(3):
            a = ACC2 + 16*jj + 4*ap
            A(f'v_cvt_pk_bf16_f32 v{r+2*jj}, v{a}, v{a+1}\nv_cvt_pk_bf16_f32 v{r+2*jj+1}, v{a+2}, v{a+3}')
        A(f's_xor_b32 s14, s12, {ap}\ns_mul_i32 s14, s14, {4*12288}\ns_add_u32 s14, s14, s35\ns_mul_i32 s13, s41, {ap}\ns_add_u32 s14, s14, s13')
        A(f'buffer_store_dwordx4 {vr(r,4)}, v3, {WS}, s14 offen sc1\nbuffer_store_dwordx2 {vr(r+4,2)}, v2, {WS}, s14 offen offset:1024 sc1')
    for ap in (1, 2, 3): pub(ap)
    A('s_cmp_lg_u32 s44, 4\ns_cbranch_scc1 NOPUB0')
    pub(0)
    A.lab('NOPUB0')
    if P('PWF', 0):
        A(f'''
    s_lshl_b32 s33, s47, 3
    s_add_u32 s33, s33, s7
    s_lshl_b32 s33, s33, 7
    s_add_u32 s33, s33, {FP_OFF}
    v_min_u32 v14, 4, v1
    v_lshlrev_b32 v14, 2, v14
    s_lshl_b32 s14, s44, 2
    s_add_u32 s14, s14, s33
    v_mov_b32 v12, {TAG}
    s_mov_b64 exec, 1
    s_waitcnt vmcnt(0)
    buffer_store_dword v12, off, {WS}, s14 sc1
    s_mov_b64 exec, -1
    ''')
        vm.q = []; vm.add('fl')
    else:
        A(f'''
    s_lshl_b32 s33, s47, 7
    s_add_u32 s33, s33, {FP_OFF}
    v_min_u32 v14, 4, v1
    v_lshlrev_b32 v14, 2, v14
    s_waitcnt vmcnt(0)
    s_barrier
    ''')
        vm.q = []
        flag_store(0, 's_lshl_b32 s14, s44, 2\ns_add_u32 s14, s14, s33', 12)
    S()
    A('s_cmp_eq_u32 s44, 4\ns_cbranch_scc1 K_FIN')
    poll_issue(13, 14, 's33', 'pp')
    A('s_mov_b32 s13, 0xffff0000')
    bg.v = rest; bg.emit_v(10**9)
    for jj in range(3):
        for e in range(4): A(f'v_add_f32 v{ACC2+16*jj+e}, v{ACC2+16*jj+e}, v{112+4*jj+e}')
    A(f's_mul_i32 s14, s44, {4*12288}\ns_add_u32 s14, s14, s35')
    poll_check(13, 14, 's33', 'pp')
    S()
    for sl in range(4):
        r = 136 + 8*sl
        A(f'buffer_load_dwordx4 {vr(r,4)}, v3, {WS}, s14 offen sc1\nbuffer_load_dwordx2 {vr(r+4,2)}, v2, {WS}, s14 offen offset:1024 sc1')
        if sl < 3: A('s_add_u32 s14, s14, 12288')
    for sl in range(4):
        A(f's_waitcnt vmcnt({2*(3-sl)})')
        r = 136 + 8*sl
        for jj in range(3):
            for h in range(2):
                a = ACC2 + 16*jj + 2*h; p = r + 2*jj + h
                A(f'v_lshlrev_b32 v12, 16, v{p}\nv_and_b32 v13, s13, v{p}\nv_pk_add_f32 {vr(a,2)}, {vr(a,2)}, v[12:13]')
    for e in range(4):
        A(f's_add_u32 s14, s31, {e*2304}')
        for jj in range(3): A(f'buffer_store_dword v{ACC2+16*jj+e}, v7, {OUT}, s14 offen offset:{128*jj}' + os.environ.get('OSC', ''))
    A.lab('K_FIN')
    if STAMP:
        A('s_waitcnt vmcnt(0)'); nstamp[0] = 14; S(force=True); S(True); Sflush()

def main(path):
    hdr = open('parallel_sum__ssm_conv_s5__geglu_ffn__prompt.s.ref').read().split('; Override launch')[0]
    A.raw(hdr.rstrip())
    A.raw('; @launch grid=(256,1,1) block=(512,1,1) lds=163840')
    A.raw('.amdgcn_target "amdgcn-amd-amdhsa--gfx950"\n.text')
    A.raw(f'.globl {NAME}\n.p2align 8\n.type {NAME},@function\n{NAME}:')
    if STAMP:
        for i in range(16): A(f's_mov_b32 s{86+i}, 0')
    phase_a(); phase_k1(); phase_k2()
    A.lab('K_END')
    A('s_endpgm')
    for c in cold: A.raw(c)
    A.lab('K_LAST')
    A('s_endpgm')
    A.raw(f'''.section .rodata,"a"
.p2align 6
.amdhsa_kernel {NAME}
  .amdhsa_next_free_vgpr 256
  .amdhsa_next_free_sgpr 102
  .amdhsa_accum_offset 256
  .amdhsa_group_segment_fixed_size 0
  .amdhsa_kernarg_size 128
  .amdhsa_user_sgpr_count 2
  .amdhsa_user_sgpr_kernarg_segment_ptr 1
  .amdhsa_system_sgpr_workgroup_id_x 1
  .amdhsa_float_denorm_mode_32 3
.end_amdhsa_kernel''')
    open(path, 'w').write('\n'.join(A.L) + '\n')

if __name__ == '__main__':
    main(sys.argv[1] if len(sys.argv) > 1 else 'k3.s')
```

```python
import sys, struct, os
from layout import *
from gen_v1 import f32, LOG2E, INV2PI, Asm, vr, sr, srd, lam_consts, csq, cmul, DPP8, mapply

STAMP = int(os.environ.get('STAMP', '0'))
DBGT = int(os.environ.get('DBGT', '0'))
LSC = ' sc1' if int(os.environ.get('LSC', '1')) else ''
ZOOM = os.environ.get('ZOOM', '')
def P(name, d): return int(os.environ.get(name, d))
A = Asm()
NAME = 'parallel_sum__ssm_conv_s5__geglu_ffn__prompt_kernel'

class Cnt:
    def __init__(self, name, mx): self.q = []; self.ever = set(); self.name = name; self.mx = mx
    def add(self, tag, n=1): self.q += [tag]*n; self.ever.add(tag)
    def wait(self, *tags):
        for t in tags: assert t in self.ever, t
        idx = [i for i, t in enumerate(self.q) if t in tags]
        if not idx: return
        last = max(idx); n = len(self.q) - 1 - last
        if n > self.mx:
            if self.name == 'vmcnt': self.q = self.q[last+1:]; return
            n = self.mx; last = len(self.q) - 1 - n
        A(f's_waitcnt {self.name}({n})')
        self.q = self.q[last+1:]
    def drain(self):
        A(f's_waitcnt {self.name}(0)'); self.q = []
vm = Cnt('vmcnt', 63); lg = Cnt('lgkmcnt', 15)
nstamp = [0]
def S(real=False, z='', force=False):
    if not STAMP: return
    if not (real or force) and z != ZOOM: return
    A(f'{"s_memrealtime" if (real or DBGT) else "s_memtime"} s[84:85]\ns_waitcnt lgkmcnt(0)\ns_mov_b32 s{86+nstamp[0]}, s84')
    nstamp[0] += 1
    assert nstamp[0] <= 16
def Sflush():
    if DBGT:
        A(f's_mov_b64 exec, 1\ns_load_dwordx2 s[72:73], s[0:1], 112\ns_mov_b32 s74, 256\ns_mov_b32 s75, 0x20000\nv_mov_b32 v2, s101\nv_mov_b32 v1, 0\ns_waitcnt lgkmcnt(0)\nbuffer_atomic_umax v2, v1, s[72:75], 0 offen offset:60 sc1')
        A('s_cmp_lg_u32 s2, 5\ns_cbranch_scc1 NODBG\ns_cmp_lg_u32 s7, 0\ns_cbranch_scc1 NODBG')
        for i in range(14): A(f'v_mov_b32 v2, s{87+i}\nbuffer_store_dword v2, v1, s[72:75], 0 offen offset:{4+4*i}')
        A.lab('NODBG')
        return
    A(f's_mov_b64 exec, -1\ns_lshl_b32 s84, s2, 3\ns_add_u32 s84, s84, s7\ns_lshl_b32 s84, s84, 6\ns_add_u32 s84, s84, {STAMP_OFF}\nv_mov_b32 v1, 0')
    for i in range(16):
        A(f'v_mov_b32 v2, s{86+i}\nbuffer_store_dword v2, v1, s[48:51], s84 offen offset:{4*i}')
uid = [0]
def newlab(p):
    uid[0] += 1; return f'{p}_{uid[0]}'

WS = 's[48:51]'; OUT = 's[52:55]'; DBG = 's[72:75]'
TAG = 's15'
cold = []
def poll_issue(vdst, vaddr, soff, tag):
    A(f'buffer_load_dword v{vdst}, v{vaddr}, {WS}, {soff} offen sc1'); vm.add(tag)
def poll_check(vdst, vaddr, soff, tag):
    vm.wait(tag)
    slow = newlab('SLOW'); back = newlab('BACK')
    A(f'v_cmp_ne_u32 vcc, {TAG}, v{vdst}\ns_cbranch_vccnz {slow}')
    A.lab(back)
    cold.append(f'''{slow}:
    s_sub_u32 s23, s23, 1
    s_cbranch_scc1 {back}
    s_sleep {P('SLP', 1)}
    buffer_load_dword v{vdst}, v{vaddr}, {WS}, {soff} offen sc1
    s_waitcnt vmcnt(0)
    v_cmp_ne_u32 vcc, {TAG}, v{vdst}
    s_cbranch_vccnz {slow}
    s_branch {back}''')
def flag_store(wave, spre, vtmp):
    sk = newlab('NOFLAG')
    A(f's_cmp_lg_u32 s7, {wave}\ns_cbranch_scc1 {sk}\n{spre}\nv_mov_b32 v{vtmp}, {TAG}\ns_mov_b64 exec, 1\nbuffer_store_dword v{vtmp}, off, {WS}, s14 sc1\ns_mov_b64 exec, -1')
    A.lab(sk)
def dma_txt(voff, srdn, soff, m0expr, imm=0, sc=''):
    return f'{m0expr}\ns_nop 0\nbuffer_load_dwordx4 v{voff}, {srdn}, {soff} offen{" offset:%d" % imm if imm else ""}{sc} lds'

def capture(f, group=1):
    n0 = len(A.L); f(); out = A.L[n0:]; del A.L[n0:]
    return [l.strip() for l in out]

class BG:
    def __init__(self): self.v = []; self.m = []
    def push_v(self, items, ready=0): self.v += [(ready, it) for it in items]
    def push_m(self, text, tag, n=1, ready=0): self.m.append((ready, text, tag, n))
    def emit_v(self, k, now=10**9):
        while k > 0 and self.v and self.v[0][0] <= now:
            it = self.v.pop(0)[1]
            if isinstance(it, str): A(it); k -= it.count('\n') + 1
            elif it[0] == 'vm': A(it[1]); vm.add(it[2], it[3]); k -= 2
            elif it[0] == 'ds': A(it[1]); lg.add(it[2]); k -= 1
            elif it[0] == 'lgw': lg.wait(it[1])
            elif it[0] == 'vmw': self.flush_m(it[1]); vm.wait(it[1])
            elif it[0] == 'call': it[1]()
    def emit_m(self, k=1, now=10**9):
        while k > 0 and self.m and self.m[0][0] <= now:
            _, text, tag, n = self.m.pop(0)
            if callable(text): text()
            else:
                for part in text.split('@@'):
                    if part.startswith('LAB '): A.lab(part[4:])
                    else: A(part)
            if n: vm.add(tag, n)
            k -= 1
    def flush_m(self, *tags):
        while any(t[2] in tags for t in self.m): self.emit_m(1)
bg = BG()
def valu_with_vmem(lines, every=8):
    for i, l in enumerate(lines):
        if l.endswith(':'): A.lab(l[:-1])
        else: A(l)
        if i % every == every - 1 and not l.startswith('v_cmp') and not l.startswith('s_nop') and not l.startswith('s_'): bg.emit_m(1, 0)

UREG = 73760
A2_B = [16384, 90144, 34816, 108672]
A2_X = [53248, 127104, 61440, 135296]
TB = 147584
EX_T = 147584; EX_B = EX_T + 8192; EX_S = EX_B + 2048; EX_R = 69632
G2U = 18560
K2S = 40960
XR = 112; ACC = 48; WR = 24; NW = 6; TMP = 16
CONSTS = (244, 245, 246, 247, 248, 249)

def ln_stats(r, t):
    inv = f32(1.0/576.0)
    A(f'''
    v_mul_f32 v{r}, {inv}, v{r}
    v_mul_f32 v{r+1}, {inv}, v{r+1}
    v_fma_f32 v{r+1}, -v{r}, v{r}, v{r+1}
    v_max_f32 v{r+1}, 0, v{r+1}
    v_cvt_pk_bf16_f32 v{t}, v{r}, v{r+1}
    v_lshlrev_b32 v{r}, 16, v{t}
    v_and_b32 v{r+1}, 0xffff0000, v{t}
    v_add_f32 v{r+1}, {f32(1e-5)}, v{r+1}
    v_cvt_pk_bf16_f32 v{r+1}, v{r+1}, v{r+1}
    v_lshlrev_b32 v{r+1}, 16, v{r+1}
    v_sqrt_f32 v{r+1}, v{r+1}
    s_nop 0
    v_cvt_pk_bf16_f32 v{r+1}, v{r+1}, v{r+1}
    v_lshlrev_b32 v{r+1}, 16, v{r+1}
    v_rcp_f32 v{r+1}, v{r+1}
    s_nop 0
    ''')
def unit_consts(p, t=232):
    LR, SLI, A1, A2c, L16R, SL16I = CONSTS
    lam_consts(A, p, p+1, p+2, LR, t, t+1, t+2, t+3, t+4, t+5, t+6)
    A(f'''
    v_and_b32 v{t+7}, 8, v1
    v_lshlrev_b32 v{t+7}, 28, v{t+7}
    v_xor_b32 v{SLI}, v{t+7}, v{t}
    v_add_f32 v{A1}, v{t+1}, v{t+1}
    v_xor_b32 v{A1}, v{t+7}, v{A1}
    v_mul_f32 v{A2c}, -2.0, v{t+2}
    ''')
    csq(A, LR, t, L16R, SL16I, t+3)
    for _ in range(3): csq(A, L16R, SL16I, L16R, SL16I, t+3)
    A(f'v_xor_b32 v{SL16I}, v{t+7}, v{SL16I}')
def get_tag():
    vm.wait('tag')
    slow = newlab('TAGSLOW'); back = newlab('TAGBACK')
    A(f'v_readfirstlane_b32 {TAG}, v15\ns_cmp_eq_u32 {TAG}, 0\ns_cbranch_scc1 {slow}')
    A.lab(back)
    cold.append(f'''{slow}:
    s_sub_u32 s23, s23, 1
    s_cbranch_scc1 {back}
    s_sleep {P('SLP', 1)}
    buffer_load_dword v15, off, {DBG}, 0 sc1
    s_waitcnt vmcnt(0)
    v_readfirstlane_b32 {TAG}, v15
    s_cmp_eq_u32 {TAG}, 0
    s_cbranch_scc1 {slow}
    s_branch {back}''')

def k1_dma(g, n, ready=0):
    pre = f's_add_u32 s12, s32, {n*64*9216 + g*128}\n'
    bg.push_m(pre + dma_txt(0, 's[24:27]', 's12', f's_add_u32 m0, s81, {8192*n}'), f'w{g}_{n}', 1, ready)
    bg.push_m(pre + dma_txt(0, 's[36:39]', 's12', f's_add_u32 m0, s81, {UREG+8192*n}'), f'w{g}_{n}', 1, ready)
def k1_xload(ks, ready=0):
    if ks < 4: t = f'buffer_load_dwordx4 {vr(XR+4*ks,4)}, v3, {WS}, s40 offen offset:{ks*1024}{LSC}'
    else: t = f's_add_u32 s12, s40, {ks*1024}\nbuffer_load_dwordx4 {vr(XR+4*ks,4)}, v3, {WS}, s12 offen{LSC}'
    bg.push_m(t, f'x{ks}', 1, ready)
def k1_dma_g2(part, ready=0):
    sd = 's[24:27]' if part == 0 else 's[36:39]'
    base = 0 if part == 0 else G2U
    sk = newlab('G2X')
    bg.push_m(f's_cmp_ge_u32 s7, 2\ns_cbranch_scc1 {sk}\ns_add_u32 s12, s41, {16*32*9216}\n' + dma_txt(4, sd, 's12', f's_add_u32 m0, s81, {base+16384}') + f'@@LAB {sk}', f'g2_{part}', 0, ready)
    for i in range(2):
        bg.push_m(f's_add_u32 s12, s41, {i*8*32*9216}\n' + dma_txt(4, sd, 's12', f's_add_u32 m0, s81, {base+8192*i}'), f'g2_{part}', 1, ready)


XS = [16384, 90144, 24576, 98336, 32768, 106528, 40960, 114720, 49152]
B8L = 122912; STG = 57344
U = 208; CR = 224; XA = 224; BS8 = 228; STT = 232; ONES = 236; BS = 240; PAR = 250
scan_items = []
def phase_a():
    A(f"""
    s_cmp_ge_u32 s2, 256
    s_cbranch_scc1 K_END
    {"s_lshr_b32 s3, s2, 5" if P('SCR', 0) else ""}
    {"s_lshl_b32 s2, s2, 3" if P('SCR', 0) else ""}
    {"s_or_b32 s2, s2, s3" if P('SCR', 0) else ""}
    {"s_and_b32 s2, s2, 255" if P('SCR', 0) else ""}
    s_load_dwordx16 s[16:31], s[0:1], 0
    s_load_dwordx8 s[36:43], s[0:1], 80
    s_load_dwordx4 s[44:47], s[0:1], 112
    v_and_b32 v1, 63, v0
    v_lshrrev_b32 v2, 6, v0
    s_and_b32 s3, s2, 7
    s_lshr_b32 s4, s2, 3
    v_readfirstlane_b32 s7, v2
    s_lshr_b32 s5, s4, 3
    s_lshl_b32 s8, s3, 2
    s_add_u32 s5, s5, s8
    s_and_b32 s6, s4, 7
    s_lshr_b32 s8, s3, 2
    s_lshl_b32 s8, s8, 2
    s_lshr_b32 s9, s4, 3
    s_add_u32 s8, s8, s9
    s_and_b32 s9, s3, 3
    s_lshl_b32 s9, s9, 3
    s_add_u32 s9, s9, s6
    s_lshl_b32 s10, s8, 3
    s_add_u32 s10, s10, s7
    v_lshlrev_b32 v3, 4, v1
    v_lshrrev_b32 v4, 3, v1
    v_and_b32 v5, 7, v1
    v_add_u32 v6, 1024, v3
    v_cmp_gt_u32 vcc, 8, v1
    v_mov_b32 v7, 0x3ffffff0
    s_lshl_b32 s11, s5, 3
    s_add_u32 s11, s11, s6
    v_cndmask_b32 v6, v7, v6, vcc
    s_lshl_b32 s33, s11, 3
    s_add_u32 s33, s33, s7
    s_mul_i32 s13, s33, 1152
    v_mul_u32_u24 v8, 1152, v4
    v_bfe_u32 v9, v4, 1, 1
    s_and_b32 s14, s7, 6
    v_xor_b32 v9, s14, v9
    v_xor_b32 v9, v9, v5
    v_lshl_add_u32 v9, v9, 4, v8
    v_lshrrev_b32 v10, 1, v4
    v_xor_b32 v10, v10, v5
    v_lshl_add_u32 v10, v10, 4, v8
    v_xor_b32 v11, 64, v10
    s_lshl_b32 s14, s7, 6
    s_and_b32 s14, s14, 64
    v_xor_b32 v12, s14, v10
    s_lshl_b32 s14, s5, 3
    s_add_u32 s14, s14, s7
    s_mul_i32 s34, s14, {8*1152}
    s_lshl_b32 s14, s6, 3
    s_add_u32 s35, s14, s7
    s_mul_i32 s35, s35, {8*1152}
    s_add_u32 s80, s6, 64
    s_mul_i32 s80, s80, {8*1152}
    s_lshr_b32 s14, s7, 1
    s_lshl_b32 s14, s14, 7
    s_add_u32 s80, s80, s14
    s_lshl_b32 s81, s7, 10
    s_lshl_b32 s82, s7, 11
    s_waitcnt lgkmcnt(0)
    """)
    S(True); S(force=True)
    if P('PRIO', 0): A(f"s_cmp_{'ge' if P('PRIO',0)==1 else 'lt'}_u32 s7, 4\ns_cbranch_scc0 NOPRIO\ns_setprio 1"); A.lab('NOPRIO')
    XRW = 80; XNR = 88; MR_ = 96; T0 = 100
    srd(A, 56, 16, 2359296)
    A(f'buffer_load_dwordx4 {vr(XRW,4)}, v3, s[56:59], s13 offen\nbuffer_load_dwordx4 {vr(XRW+4,4)}, v6, s[56:59], s13 offen')
    vm.add('xr', 2)
    srd(A, 60, 22, 663552); srd(A, 64, 24, 663552)
    A("""
    s_and_b32 s14, s7, 1
    s_cselect_b32 s68, s24, s22
    s_cselect_b32 s69, s25, s23
    s_mov_b32 s70, 663552
    s_mov_b32 s71, 0x20000
    s_mov_b32 s23, 100000
    """)
    def bsg(n): return 112 + 8*n if n < 8 else 88
    def b8(i):
        t = f's_add_u32 s12, s80, {512*i}\n' + dma_txt(12, 's[68:71]', 's12', f's_add_u32 m0, s81, {B8L+8192*i}')
        if i < 2: bg.push_m(t, f'b8_{i}', 1)
        else:
            sk = newlab('B8X'); bg.push_m(f's_cmp_ge_u32 s7, 2\ns_cbranch_scc1 {sk}\n' + t + f'@@LAB {sk}', 'b8_2', 0)
    def a2q(n):
        bg.push_m(f's_add_u32 s12, s34, {128*n}\n' + dma_txt(9, 's[56:59]', 's12', f's_add_u32 m0, s81, {XS[n]}'), f'ax{n}', 1)
        bg.push_m(f'buffer_load_dwordx4 {vr(bsg(n),4)}, v10, s[60:63], s35 offen offset:{128*n}', f'ab{n}', 1, 2 if n == 8 else 0)
        bg.push_m(f'buffer_load_dwordx4 {vr(bsg(n)+4,4)}, v11, s[64:67], s35 offen offset:{128*n}', f'ab{n}', 1)
    a2q(0); b8(0); a2q(1)
    bg.emit_m(4)
    if P('CPF', 1):
        A(f"""
        s_cmp_lg_u32 s7, 5
        s_cbranch_scc1 NOCPF
        s_getpc_b64 s[76:77]
        """)
        A.lab('PCREF')
        A(f"""
        s_and_b32 s76, s76, 0xffffff80
        s_mov_b32 s78, K_LAST-PCREF
        s_mov_b32 s79, 0x20000
        s_lshl_b32 s14, s4, 11
        v_lshlrev_b32 v13, 7, v1
        s_mov_b64 exec, 0xffff
        buffer_load_dword v111, v13, s[76:79], s14 offen
        s_mov_b64 exec, -1
        """)
        A.lab('NOCPF')
    srd(A, 72, 44, 256)
    A(f"""
    s_or_b32 s14, s2, s7
    s_cmp_lg_u32 s14, 0
    s_cbranch_scc1 NOTAG
    s_memrealtime s[84:85]
    s_waitcnt lgkmcnt(0)
    s_mul_i32 s14, s84, 0x9E3779B1
    s_or_b32 s14, s14, 1
    v_mov_b32 v8, s14
    s_mov_b64 exec, 1
    buffer_store_dword v8, off, {DBG}, 0 sc1
    s_mov_b64 exec, -1
    """)
    A.lab('NOTAG')
    srd(A, 48, 46, 0x10000000); srd(A, 52, 42, 4718592)
    if P('TLB', 0):
        sh = P('TLB', 0)
        A(f"""
        s_cmp_lg_u32 s7, 4
        s_cbranch_scc1 NOTLB
        v_lshlrev_b32 v13, {sh}, v1
        s_lshl_b32 s14, s4, {sh+6}
        s_and_b32 s14, s14, 0x3ffffff
        buffer_load_dword v111, v13, {WS}, s14 offen
        buffer_load_dword v111, v13, {OUT}, s14 offen
        """)
        A.lab('NOTLB')
    U1 = 224; BS1 = 240
    AD = 196
    def setup():
        A(f"""
        v_and_b32 v13, 15, v1
        v_lshrrev_b32 v14, 4, v1
        v_bfe_u32 v2, v1, 1, 3
        v_xor_b32 v2, v2, v14
        v_lshlrev_b32 v2, 4, v2
        v_lshl_add_u32 v8, v13, 7, v2
        v_bfe_u32 v14, v1, 2, 2
        v_lshlrev_b32 v14, 11, v14
        v_and_b32 v13, 3, v1
        v_lshl_add_u32 v14, v13, 7, v14
        v_add_u32 v{AD}, v14, v2
        v_xor_b32 v{AD+1}, 64, v{AD}
        v_add_u32 v{AD+2}, 90144, v{AD}
        v_add_u32 v{AD+3}, 90144, v{AD+1}
        s_lshr_b32 s14, s7, 2
        s_lshl_b32 s14, s14, 6
        v_xor_b32 v{AD+8}, s14, v8
        v_add_u32 v{AD+8}, {B8L}, v{AD+8}
        v_xor_b32 v{AD+4}, s14, v{AD}
        s_and_b32 s14, s7, 3
        s_lshl_b32 s14, s14, 9
        v_add_u32 v{AD+4}, s14, v{AD+4}
        v_add_u32 v{AD+5}, 90144, v{AD+4}
        s_add_u32 s14, s82, {STG}
        v_add_u32 v192, s14, v8
        v_xor_b32 v193, 64, v192
        v_add_u32 v194, s14, v3
        v_mov_b32 v{ONES}, 0x3f803f80
        v_mov_b32 v{ONES+1}, 0x3f803f80
        v_mov_b32 v{ONES+2}, 0x3f803f80
        v_mov_b32 v{ONES+3}, 0x3f803f80
        s_mov_b32 s83, 0x3f803f80
        s_lshl_b32 s14, s6, 3
        v_add_u32 v14, s14, v5
        v_add_u32 v14, 512, v14
        s_add_u32 s14, s14, s7
        s_lshl_b32 s14, s14, 3
        v_add_u32 v13, s14, v5
        v_lshlrev_b32 v108, 1, v13
        v_lshlrev_b32 v109, 1, v14
        s_lshr_b32 s14, s9, 2
        s_mul_i32 s14, s14, 1152
        s_cmp_lt_u32 s2, 128
        s_cselect_b32 s76, s36, s38
        s_cselect_b32 s77, s37, s39
        s_mov_b32 s78, {576*9216}
        s_mov_b32 s79, 0x20000
        s_add_u32 s24, s36, s14
        s_addc_u32 s25, s37, 0
        s_sub_u32 s26, {576*9216}, s14
        s_mov_b32 s27, 0x20000
        s_add_u32 s36, s38, s14
        s_addc_u32 s37, s39, 0
        s_mov_b32 s38, s26
        s_mov_b32 s39, 0x20000
        s_and_b32 s14, s9, 3
        s_lshl_b32 s32, s14, 8
        s_mul_i32 s41, s7, {8*9216}
        s_add_u32 s32, s32, s41
        s_mul_i32 s40, s10, 36864
        v_bfe_u32 v0, v1, 2, 3
        v_mul_u32_u24 v0, 9216, v0
        v_lshrrev_b32 v13, 5, v1
        v_lshl_add_u32 v0, v13, 6, v0
        v_and_b32 v13, 3, v1
        v_lshl_add_u32 v0, v13, 4, v0
        v_lshlrev_b32 v110, 7, v1
        v_min_u32 v110, {41*128}, v110
        s_and_b32 s14, s2, 127
        s_lshl_b32 s14, s14, 3
        s_add_u32 s14, s14, s7
        s_mul_i32 s41, s14, 5184
        s_and_b32 s41, s41, 0xffffff80
        s_lshl_b32 s14, s7, 4
        s_add_u32 s14, s14, {TB}
        v_lshl_add_u32 v{AD+6}, v1, 7, s14
        s_add_u32 s14, s81, {TB}
        v_add_u32 v{AD+7}, s14, v3
        v_lshlrev_b32 v{AD+9}, 9, v4
        v_lshl_add_u32 v{AD+9}, v5, 4, v{AD+9}
        s_lshr_b32 s42, s11, 2
        s_mul_i32 s42, s42, 36864
        s_and_b32 s14, s6, 3
        s_lshl_b32 s14, s14, 7
        s_add_u32 s42, s42, s14
        s_lshl_b32 s14, s7, 12
        s_add_u32 s42, s42, s14
        s_lshl_b32 s43, s33, 3
        s_add_u32 s43, s43, {STAT_OFF}
        v_lshlrev_b32 v17, 2, v1
        v_and_b32 v16, 31, v17
        v_and_b32 v17, 127, v17
        s_lshl_b32 s14, s8, 7
        v_add_u32 v17, s14, v17
        s_lshl_b32 s14, s5, 5
        v_add_u32 v16, s14, v16
        v_cmp_lt_u32 vcc, 31, v1
        s_mov_b32 s33, {FX_OFF}
        s_nop 0
        v_cndmask_b32 v17, v17, v16, vcc
        """)
    a2q(2); a2q(3)
    valu_with_vmem(capture(setup), every=P('A0EVERY', 10))
    b8(1)
    bg.push_m(f'global_load_ushort v{PAR}, v108, s[18:19]\nglobal_load_ushort v{PAR+1}, v108, s[20:21]\nglobal_load_ushort v{PAR+2}, v108, s[30:31]', 'par', 3)
    bg.push_m(f'global_load_ushort v{PAR+3}, v109, s[18:19]\nglobal_load_ushort v{PAR+4}, v109, s[20:21]\nglobal_load_ushort v{PAR+5}, v109, s[30:31]', 'par', 3)
    bg.push_m(f'buffer_load_dword v15, off, {DBG}, 0 sc1', 'tag', 1)
    a2q(4); a2q(5); a2q(6); a2q(7); b8(2); a2q(8)
    k1_dma(0, 0); k1_dma(0, 1)
    if P('TOUCH', 1) == 1: bg.push_m('buffer_load_dword v111, v110, s[76:79], s41 offen', 'touch', 1)
    if P('TOUCH', 1) == 2: bg.m.insert(0, (0, 'buffer_load_dword v111, v110, s[76:79], s41 offen', 'touch', 1))
    def a1():
        for q in range(8):
            c0 = '0' if q == 0 else f'v{MR_}'; c1 = '0' if q == 0 else f'v{MR_+1}'
            A(f'v_dot2_f32_bf16 v{MR_}, v{XRW+q}, s83, {c0}\nv_dot2_f32_bf16 v{MR_+1}, v{XRW+q}, v{XRW+q}, {c1}')
        A('s_nop 2')
        for pat in ('quad_perm:[1,0,3,2] row_mask:0xf', 'quad_perm:[2,3,0,1] row_mask:0xf', 'row_half_mirror row_mask:0xf', 'row_mirror row_mask:0xf',
                    'row_bcast:15 row_mask:0xa', 'row_bcast:31 row_mask:0xc'):
            A(f'v_add_f32_dpp v{MR_}, v{MR_}, v{MR_} {pat} bank_mask:0xf\nv_add_f32_dpp v{MR_+1}, v{MR_+1}, v{MR_+1} {pat} bank_mask:0xf\ns_nop 0')
        A(f'v_readlane_b32 s44, v{MR_}, 63\nv_readlane_b32 s45, v{MR_+1}, 63\ns_nop 1\nv_mov_b32 v{MR_}, s44\nv_mov_b32 v{MR_+1}, s45')
        ln_stats(MR_, MR_+2)
        A(f's_mov_b32 s44, 0xffff0000\nv_sub_f32 v18, 0, v{MR_}\nv_sub_f32 v19, 0, v{MR_}\nv_mov_b32 v20, v{MR_+1}\nv_mov_b32 v21, v{MR_+1}')
        for h in range(2):
            for q in range(4):
                x = XRW+4*h+q; a = T0+2*q
                A(f'v_lshlrev_b32 v{a}, 16, v{x}\nv_and_b32 v{a+1}, s44, v{x}')
            for q in range(4):
                a = T0+2*q; A(f'v_pk_add_f32 {vr(a,2)}, {vr(a,2)}, v[18:19]')
            for q in range(4):
                a = T0+2*q; A(f'v_cvt_pk_bf16_f32 v{a+1}, v{a}, v{a+1}')
            for q in range(4):
                a = T0+2*q; A(f'v_lshlrev_b32 v{a}, 16, v{a+1}\nv_and_b32 v{a+1}, s44, v{a+1}')
            for q in range(4):
                a = T0+2*q; A(f'v_pk_mul_f32 {vr(a,2)}, {vr(a,2)}, v[20:21]')
            for q in range(4):
                a = T0+2*q; A(f'v_cvt_pk_bf16_f32 v{XNR+4*h+q}, v{a}, v{a+1}')
    vm.wait('xr'); S(z='a2')
    a1l = capture(a1)
    NPRE = P('A1PRE', 1000); TBN = P('TBN', 0); FLN = P('FLN', 4)
    valu_with_vmem(a1l[:NPRE], every=P('A1EVERY', 12))
    it = a1l[NPRE:]
    it.append(('ds', f'ds_write_b128 v{AD+6}, {vr(XNR,4)}', 'tbw'))
    it.append(('ds', f's_mov_b64 exec, 0xff\nds_write_b128 v{AD+6}, {vr(XNR+4,4)} offset:8192\ns_mov_b64 exec, -1', 'tbw'))
    it.append(('vm', f's_mov_b64 exec, 1\nbuffer_store_dwordx2 {vr(MR_,2)}, off, {WS}, s43 sc1\ns_mov_b64 exec, -1', 'xn', 1))
    bg.push_v(it)
    E = 72
    def reads(sg):
        n = sg // 2; sp = sg % 2; F = 24 + 16*(sg % 3)
        xo = XS[n] if n % 2 == 0 else XS[n] - 90144
        for t in range(4): A(f'ds_read_b128 {vr(F+4*t,4)}, v{AD+2*(n%2)+sp} offset:{xo+512*t}')
        lg.add(f'r{sg}', 4)
    def ereads(n):
        xo = XS[n] if n % 2 == 0 else XS[n] - 90144
        A(f'ds_read_b128 {vr(E,4)}, v{AD+4+(n%2)} offset:{xo}\nds_read_b128 {vr(E+4,4)}, v{AD+8} offset:{2048*n}'); lg.add(f'e{n}', 2)
    def bswap(n):
        bg.flush_m(f'ab{n}'); vm.wait(f'ab{n}')
        Fb = 176 + 8*(n % 2)
        A(f'ds_write_b128 v194, {vr(bsg(n),4)}\nds_write_b128 v194, {vr(bsg(n)+4,4)} offset:1024')
        A(f'ds_read_b128 {vr(Fb,4)}, v192\nds_read_b128 {vr(Fb+4,4)}, v193'); lg.add(f'b{n}', 4)
    def xn_out():
        sk = newlab('NOXN8')
        A(f'ds_read_b128 {vr(XRW,4)}, v{AD+7}'); lg.add('tbr')
        A(f's_cmp_lg_u32 s7, 0\ns_cbranch_scc1 {sk}\nds_read_b128 {vr(XRW+4,4)}, v{AD+7} offset:8192\ns_add_u32 s12, s42, 32768\ns_waitcnt lgkmcnt(0)\nbuffer_store_dwordx4 {vr(XRW+4,4)}, v{AD+9}, {WS}, s12 offen sc1')
        A.lab(sk)
        bg.push_v([('lgw', 'tbr'), ('vm', f'buffer_store_dwordx4 {vr(XRW,4)}, v{AD+9}, {WS}, s42 offen sc1', 'xn', 1)])
        bg.push_v([('vmw', 'par')] + capture(lambda: unit_consts(PAR, T0)), 7)
    if TBN == 0: bg.emit_v(10**9); lg.wait('tbw')
    bg.flush_m('ax0', 'ax1', 'b8_0'); vm.wait('ax0', 'ax1', 'b8_0')
    A('s_barrier'); S(); S(z='a2')
    if TBN == 0: xn_out()
    bswap(0); reads(0); reads(1)
    VG = P('A2VG', 2); PXS = P('PXS', 15)
    for sg in range(18):
        n = sg // 2; sp = sg % 2; F = 24 + 16*(sg % 3)
        if sg < 16:
            n1 = (sg + 2) // 2
            if (sg + 2) % 4 == 0:
                tags = [f'ax{n1}'] + ([f'ax{n1+1}'] if n1 < 8 else []) + (['b8_1'] if n1 == 4 else [])
                if n1 == TBN: bg.emit_v(10**9); lg.wait('tbw')
                bg.flush_m(*tags, 'b8_2' if n1 == 8 else 'zz'); vm.wait(*tags)
                if n1 == FLN: bg.flush_m('tag'); vm.wait('xn'); get_tag()
                A('s_barrier'); S(z='a2')
                if n1 == TBN: xn_out()
                if n1 == FLN: flag_store(6, f's_lshl_b32 s14, s11, 2\ns_add_u32 s14, s14, {FX_OFF}', 13)
                if n1 >= 4: k1_dma(0, n1 // 2)
            reads(sg + 2)
        if sp == 0: ereads(n)
        lg.wait(f'r{sg}')
        z = (sg == 0)
        if sp == 0: lg.wait(f'b{n}')
        def c(rg, zz=z): return '0' if zz else vr(rg, 4)
        UU = U; BB = BS; BF_ = 176 + 8*(n % 2) + 4*sp
        ms = [f'v_mfma_f32_16x16x32_bf16 {vr(UU+4*t,4)}, {vr(F+4*t,4)}, {vr(BF_,4)}, {c(UU+4*t)}' for t in range(4)]
        ms += [f'v_mfma_f32_16x16x32_bf16 {vr(BB,4)}, {vr(ONES,4)}, {vr(BF_,4)}, {c(BB)}']
        if sp == 1:
            lg.wait(f'e{n}')
            ms += [f'v_mfma_f32_16x16x32_bf16 {vr(XA,4)}, {vr(E,4)}, {vr(E+4,4)}, {c(XA, sg == 1)}', f'v_mfma_f32_16x16x32_bf16 {vr(BS8,4)}, {vr(ONES,4)}, {vr(E+4,4)}, {c(BS8, sg == 1)}']
        for i, m in enumerate(ms):
            A(m)
            bg.emit_v(2, sg)
            if sp == 0 and i == 4 and n < 8: bswap(n + 1)
            if i % VG == VG - 1: bg.emit_m(1, sg)
        if sg == PXS: bg.m.insert(0, (0, lambda: poll_issue(16, 17, 's33', 'pfx'), 'pfx', 0))
        if sg == PXS + 2:
            bg.flush_m('pfx'); poll_check(16, 17, 's33', 'pfx')
            A(f'v_lshlrev_b32 v22, 3, v1\ns_lshl_b32 s12, s5, 9\ns_add_u32 s12, s12, {STAT_OFF}\nbuffer_load_dwordx2 v[18:19], v22, {WS}, s12 offen sc1'); vm.add('stl')
            for ks in range(16): k1_xload(ks, 2*(ks//2) - 1)
    bg.emit_v(10**9)
    S(); S(z='a2')
    A(f"""
    s_nop 3
    s_add_u32 s14, s81, {EX_T}
    v_add_u32 v14, s14, v3
    s_lshl_b32 s14, s7, 8
    s_add_u32 s14, s14, {EX_B}
    v_lshl_add_u32 v2, v1, 2, s14
    ds_write_b128 v14, {vr(XA,4)}
    ds_write_b32 v2, v{BS8}
    """)
    bg.flush_m('w0_0', 'w0_1', 'touch'); vm.wait('w0_0', 'w0_1'); vm.wait('touch') if P('TOUCH', 1) in (1, 2) else None
    A('s_waitcnt lgkmcnt(0)\ns_barrier'); lg.q = []
    S(z='a3')
    k1_dma(0, 5); k1_dma(0, 6)
    bg.m = [(0,) + tuple(t[1:]) for t in bg.m]
    bg.emit_m(2)
    LR, SLI, A1, A2c, L16R, SL16I = CONSTS
    E0 = 16; T2, T3, EE = 20, 21, 15; W0, W1, W2 = 241, 242, 243; TA, TB_ = 22, 23
    def st2():
        A(f"""
        v_mul_f32 v18, -v18, v19
        s_lshl_b32 s44, s7, 9
        s_add_u32 s44, s44, {EX_R}
        v_lshl_add_u32 v{W0}, v1, 3, s44
        v_lshrrev_b32 v{W1}, 4, v1
        v_lshl_add_u32 v{W2}, v{W1}, 7, s44
        """)
    def fin_items(tg, sc):
        it = []
        for hf in range(2):
            it += [('ds', f'ds_read_b128 {vr(CR+4*k,4)}, v{W2} offset:{64*hf+16*k}', f'{tg}cr{hf}') for k in range(4)]
            if hf == 0 and tg == '':
                it += capture(lambda: A("""
                v_and_b32 v8, 15, v1
                v_lshlrev_b32 v8, 2, v8
                v_add_u32 v9, 64, v8
                v_add_u32 v10, 128, v8
                v_add_u32 v12, 192, v8
                s_mul_i32 s83, s11, 9
                s_add_u32 s83, s83, s7
                """))
            it.append(('lgw', f'{tg}cr{hf}'))
            it += [f'v_mul_f32 v{U+8*hf+k}, v{CR+1+2*k}, v{U+8*hf+k}' for k in range(8)]
            it += [f'v_fmac_f32 v{U+8*hf+k}, v{CR+2*k}, v{BS}' for k in range(8)]
        tt = (TA, TB_)
        it += [f'v_mul_f32 v{tt[0]}, v{A1}, v{U}', f'v_fmac_f32_dpp v{tt[0]}, v{U}, v{A2c} {DPP8}',
               f'v_mul_f32 v{tt[1]}, v{A1}, v{U+1}', f'v_fmac_f32_dpp v{tt[1]}, v{U+1}, v{A2c} {DPP8}', f'v_mov_b32 v{U}, v{tt[0]}']
        for k in range(1, 16):
            t_ = tt[k % 2]; o_ = tt[(k+1) % 2]
            it.append(f'v_fma_f32 v{U+k}, v{LR}, v{U+k-1}, v{t_}')
            if k < 15: it.append(f'v_mul_f32 v{o_}, v{A1}, v{U+k+1}')
            else: it.append('s_nop 0')
            it.append(f'v_fmac_f32_dpp v{U+k}, v{U+k-1}, v{SLI} {DPP8}')
            if k < 15: it.append(f'v_fmac_f32_dpp v{o_}, v{U+k+1}, v{A2c} {DPP8}')
        it += [('ds', f'ds_bpermute_b32 v{E0+g}, v{(8,9,10,12)[g]}, v{U+15}', tg+'bp') for g in range(4)]
        it.append(f's_mul_i32 s45, s83, {H0_UNIT}\ns_add_u32 s45, s45, {H0_OFF}')
        it += [('vm', f'buffer_store_dwordx4 {vr(U+4*k,4)}, v3, {WS}, s45 offen offset:{1024*k}{sc}', tg+'h0', 1) for k in range(4)]
        it.append(('lgw', tg+'bp'))
        ee = EE if tg == '' else 14
        def part2():
            mapply(A, T2, E0, L16R, SL16I, E0+1); mapply(A, T3, T2, L16R, SL16I, E0+2); mapply(A, ee, T3, L16R, SL16I, E0+3)
            A(f'v_mov_b32 v{W0}, 0')
        it += capture(part2)
        for k, r in enumerate((E0, T2, T3)): it.append(f'v_cmp_eq_u32 vcc, {k+1}, v{W1}\ns_nop 1\nv_cndmask_b32 v{W0}, v{W0}, v{r}, vcc')
        it.append(('vm', f'v_lshlrev_b32 v{E0}, 2, v1\ns_add_u32 s12, s45, 4096\nbuffer_store_dword v{W0}, v{E0}, {WS}, s12 offen{sc}', tg+'h0', 1))
        return it
    it = [('vmw', 'stl')] + capture(st2)
    it.append(('ds', f'ds_write_b64 v{W0}, v[18:19]', 'crw'))
    it += fin_items('', os.environ.get('HSC', ''))
    def unit8():
        sv = (list(vm.q), list(bg.v))
        A(f"""
        s_cmp_lg_u32 s7, 7
        s_cbranch_scc1 UNIT_DONE
        s_add_u32 s83, s83, 1
        v_add_u32 v{W0}, {EX_T}, v3
        v_lshlrev_b32 v{E0}, 2, v1
        v_add_u32 v{E0}, {EX_B}, v{E0}
        """)
        for t in range(4):
            A(f'ds_read_b128 {vr(U+4*t,4)}, v{W0} offset:{1024*t}\nds_read_b128 {vr(CR+4*t,4)}, v{W0} offset:{1024*(t+4)}')
        A(f'ds_read_b32 v{BS}, v{E0}\nds_read_b32 v{W0}, v{E0} offset:1024')
        unit_consts(PAR+3, 16)
        A('s_waitcnt lgkmcnt(0)')
        for k in range(16): A(f'v_add_f32 v{U+k}, v{U+k}, v{CR+k}')
        A(f'v_add_f32 v{BS}, v{BS}, v{W0}')
        lq = list(lg.q); lg.q = []
        bg.v = []; bg.push_v(fin_items('u8', ' sc1')); bg.emit_v(10**9)
        A('s_sub_u32 s83, s83, 1')
        A.lab('UNIT_DONE')
        lg.q = lq; vm.q, bg.v = sv
    if not P('NOU8', 0): it.append(('call', unit8))
    if P('NOSCAN', 0): it = [x for x in it if not isinstance(x, str) or x.startswith('s_') or 'v_lshl' in x or 'v_and_b32 v8' in x or 'v_add_u32' in x or 'v_lshr' in x]
    it.append(('call', lambda: scan_done.append(1)))
    scan_items.extend(it)
    S(); S(z='a3')
scan_done = []

FA = 168; FT_ = 199
def phase_k1():
    KS1 = P('KS1', 24); HD = 4; LOOK = 4
    seq = [(ks, fb) for ks in range(KS1) for fb in range(4)]
    seq += [(ks, fb) for fb in range(4) for ks in range(KS1, 36)]
    seq += [(ks, fb) for fb in (4, 5) for ks in range(24)] + [(ks, fb) for fb in (4, 5) for ks in range(24, 36)]
    seq += [(ks, fb) for fb in (6, 7) for ks in range(24)] + [(ks, fb) for fb in (6, 7) for ks in range(24, 36)]
    seq += [(ks, 8) for ks in range(36)]
    N = len(seq)
    P2 = 4*KS1; P3 = P2 + 2*(36-KS1); P4, P5, P6 = 144, 216, 288
    A(f'''
    v_bfe_u32 v13, v1, 4, 1
    v_lshrrev_b32 v14, 5, v1
    v_and_b32 v2, 15, v1
    v_lshlrev_b32 v2, 3, v2
    v_mul_u32_u24 v5, {UREG}, v13
    v_lshl_add_u32 v5, v14, 10, v5
    v_add_u32 v5, v5, v2
    v_and_b32 v6, 12, v1
    v_lshl_add_u32 v5, v6, 3, v5
    v_add_u32 v6, 36864, v5
    ''')
    A(f'v_mul_u32_u24 v7, {G2U}, v13\nv_lshl_add_u32 v7, v14, 8, v7\nv_add_u32 v7, v7, v2')
    setup2 = capture(lambda: A(f'''
    v_lshrrev_b32 v4, 1, v1
    v_mul_u32_u24 v4, 9216, v4
    v_and_b32 v13, 1, v1
    v_lshl_add_u32 v4, v13, 4, v4
    s_mul_i32 s41, s7, {32*9216}
    s_and_b32 s13, s9, 3
    s_lshl_b32 s13, s13, 5
    s_add_u32 s41, s41, s13
    s_add_u32 s41, s41, 1024
    s_mov_b32 s42, {f32(-2.302208198*0.044715)}
    v_mov_b32 v11, {f32(-2.302208198)}
    s_lshr_b32 s14, s9, 2
    s_mul_i32 s14, s14, 9
    s_and_b32 s13, s9, 3
    s_lshl_b32 s34, s13, 1
    s_add_u32 s34, s34, s14
    s_lshl_b32 s34, s34, 12
    s_mul_i32 s43, s10, 294912
    s_add_u32 s43, s43, {HF_OFF}
    s_add_u32 s14, s14, 8
    s_lshl_b32 s14, s14, 12
    s_lshl_b32 s13, s13, 10
    s_add_u32 s14, s14, s13
    s_add_u32 s35, s43, s14
    s_add_u32 s43, s43, s34
    s_lshl_b32 s34, s8, 5
    s_add_u32 s34, s34, s9
    s_lshl_b32 s34, s34, 2
    s_add_u32 s34, s34, {FH_OFF}
    '''))
    bg.push_v(scan_items); bg.push_v(setup2)
    for k in range(16, 24): k1_xload(k)
    if P('TOUCH', 1) == 3: A('v_mov_b32 v13, v110\ns_mov_b32 s46, s41'); bg.push_m('buffer_load_dword v2, v13, s[76:79], s46 offen', 'touch', 1)
    def wread(m):
        ks, fb = seq[m]
        r = WR + 4*(m % NW)
        if fb < 8: ad = 5 if ks < 18 else 6; off = (ks % 18)*2048 + ((fb % 4) >> 1)*512 + (fb & 1)*32; o2 = 256
        else: ad = 7; off = ks*512; o2 = 128
        A(f'ds_read_b64_tr_b16 {vr(r,2)}, v{ad} offset:{off}\nds_read_b64_tr_b16 {vr(r+2,2)}, v{ad} offset:{off+o2}')
        lg.add(f'm{m}', 2)
    busy = set()
    def make_epi(fb):
        a = ACC + 16*(fb % 4); t = TMP
        out = []
        for half in range(2):
            es = range(4*half, 4*half+4)
            for e in es: out.append(f'v_mul_f32 v{t+e%4}, v{a+e}, v{a+e}')
            for e in es: out.append(f'v_fma_f32 v{t+e%4}, v{t+e%4}, s42, v11')
            for e in es: out.append(f'v_mul_f32 v{t+e%4}, v{t+e%4}, v{a+e}')
            for e in es: out.append(f'v_exp_f32 v{t+e%4}, v{t+e%4}')
            for e in es: out.append(f'v_mul_f32 v{a+e}, v{a+e}, v{a+8+e}')
            for e in es: out.append(f'v_add_f32 v{t+e%4}, 1.0, v{t+e%4}')
            for e in es: out.append(f'v_rcp_f32 v{t+e%4}, v{t+e%4}')
            out.append('s_nop 0')
            for e in es: out.append(f'v_mul_f32 v{a+e}, v{a+e}, v{t+e%4}')
            out.append(f'v_cvt_pk_bf16_f32 v{t+4+2*half}, v{a+4*half}, v{a+4*half+1}')
            out.append(f'v_cvt_pk_bf16_f32 v{t+5+2*half}, v{a+4*half+2}, v{a+4*half+3}')
        out.append(('call', lambda: busy.discard(fb % 4)))
        if fb < 4: st = f'buffer_store_dwordx4 {vr(t+4,4)}, v3, {WS}, s43 offen offset:{fb*1024} sc1'
        elif fb < 8: st = f's_add_u32 s12, s43, 4096\nbuffer_store_dwordx4 {vr(t+4,4)}, v3, {WS}, s12 offen offset:{(fb-4)*1024} sc1'
        else: st = f'buffer_store_dwordx4 {vr(t+4,4)}, v3, {WS}, s35 offen sc1'
        out.append(('vm', st, f'h{fb}', 1))
        return out
    def flagH(g): return lambda: flag_store(0, f's_add_u32 s14, s34, {1024*g}', 2)
    def flagE(): flag_store(1, f's_lshl_b32 s14, s6, 5\ns_add_u32 s14, s14, s5\ns_lshl_b32 s14, s14, 2\ns_add_u32 s14, s14, {FE_OFF}', 2)
    def xl(a, b): return lambda: [k1_xload(k) for k in range(a, b)]
    def wd(g, *ns): return lambda: [k1_dma(g, n) for n in ns]
    assert KS1 == 24
    def chk_scan(): assert scan_done
    def estore():
        sk = newlab('E8')
        bg.push_m(f's_lshl_b32 s12, s83, 6\ns_add_u32 s12, s12, {E_OFF}\ns_cmp_lg_u32 s7, 7\ns_cbranch_scc1 {sk}\nbuffer_store_dword v14, v8, {WS}, s12 offen offset:64 sc1@@LAB {sk}@@buffer_store_dword v15, v8, {WS}, s12 offen sc1', 'est', 1)
    def touch2():
        if not P('TOUCH', 1): return
        bg.push_m(f'''s_load_dwordx2 s[76:77], s[0:1], 96
        v_lshlrev_b32 v13, 7, v1
        v_min_u32 v13, {21*128}, v13
        s_lshl_b32 s12, s2, 3
        s_add_u32 s12, s12, s7
        s_mul_i32 s12, s12, 2592
        s_and_b32 s12, s12, 0xffffff80
        s_mov_b32 s78, {4608*1152}
        s_mov_b32 s79, 0x20000
        s_waitcnt lgkmcnt(0)
        buffer_load_dword v9, v13, s[76:79], s12 offen''', 'touch2', 1)
        bg.push_m(f'''s_lshr_b32 s12, s2, 7
        s_lshl_b32 s12, s12, 3
        s_add_u32 s76, s0, s12
        s_addc_u32 s77, s1, 0
        s_load_dwordx2 s[76:77], s[76:77], 40
        v_min_u32 v13, {6*128}, v13
        s_and_b32 s12, s2, 127
        s_lshl_b32 s12, s12, 3
        s_add_u32 s12, s12, s7
        s_mul_i32 s12, s12, 648
        s_and_b32 s12, s12, 0xffffff80
        s_mov_b32 s78, 663552
        s_waitcnt lgkmcnt(0)
        buffer_load_dword v10, v13, s[76:79], s12 offen''', 'touch2', 1)
    sync = {
        32:  (['w0_2', 'w0_3'], [wd(0, 7)]),
        64:  (['w0_4', 'w0_5'], [chk_scan, xl(24, 28), wd(0, 8), xl(28, 36), wd(1, 0, 1, 2)]),
        96:  (['w0_6', 'w0_7'], [wd(1, 3, 4)]),
        104: (['w0_8'], [wd(1, 5), estore, touch2]),
        144: (['w1_0', 'w1_1', 'w1_2', 'w1_3', 'w1_4', 'w1_5'], [wd(1, 6, 7)]),
        150: ([], [wd(1, 8)]),
        192: (['w1_6', 'w1_7', 'w1_8', 'est'], [flagE]),
        P5+20: (['h3'], [flagH(0)]),
        P5+40: ([], [lambda: k1_dma_g2(0)]),
        P5+48: ([], [lambda: k1_dma_g2(1)]),
        P6:  (['g2_0', 'g2_1'], []),
        P6+4: (['h5'], [flagH(1), k2_prefetch]),
    }
    def do_sync(m):
        if m in sync:
            tags, acts = sync[m]
            bg.flush_m(*tags); vm.wait(*tags); A('s_barrier')
            for f in acts: f()
    seen_x = set()
    S()
    for m in range(LOOK): wread(m)
    for n in range(N):
        ks, fb = seq[n]
        if n in (P4, P6): S()
        if n % 32 == 0: S(z='k1')
        if n == P5 + 56: k2_setup()
        if n + LOOK < N:
            do_sync(n + LOOK); wread(n + LOOK)
        if ks not in seen_x:
            seen_x.add(ks); bg.flush_m(f'x{ks}'); vm.wait(f'x{ks}')
        first = (ks == 0)
        if first: assert (fb % 4) not in busy, (n, fb)
        lg.wait(f'm{n}')
        a = ACC + 16*(fb % 4)
        A(f'v_mfma_f32_32x32x16_bf16 {vr(a,16)}, {vr(WR+4*(n%NW),4)}, {vr(XR+4*ks,4)}, {"0" if first else vr(a,16)}')
        if ks == 35:
            busy.add(fb % 4); bg.push_v(make_epi(fb), n + 4)
        if n == P6 + 22: fix_loads('s11', 's7')
        gap = P('G1', 2) if n < P2 else (P('G2', 2) if n < P6 else 1)
        if n % gap == gap - 1: bg.emit_m(1, n)
        rate = P('R0', 5) if n < 64 else (P('R1', 3) if n < P6 else P('P6RATE', 4))
        bg.emit_v(rate, n)
    assert not bg.m
    while busy - {0}: bg.emit_v(4)
    S(); S(z='fx')

def fix_loads(swg, sunit, base=None, sht='s22'):
    base = FA if base is None else base
    pcalc = f's_lshl_b32 s12, s12, 3\ns_add_u32 s12, s12, {sunit}\ns_lshl_b32 s12, s12, 3' if sunit == 's7' else 's_lshl_b32 s12, s12, 3\ns_add_u32 s12, s12, 512'
    pre = f'''s_mul_i32 s16, {swg}, 9
    s_add_u32 s16, s16, {sunit}
    s_mul_i32 s17, s16, {H0_UNIT}
    s_add_u32 s17, s17, {H0_OFF}
    s_and_b32 s12, {swg}, 7
    {pcalc}
    v_and_b32 v{base+30}, 7, v1
    v_add_u32 v{base+28}, s12, v{base+30}
    v_lshlrev_b32 v{base+30}, 1, v{base+28}
    s_lshr_b32 {sht}, {swg}, 3
    s_mul_i32 {sht}, {sht}, {72*2048}
    s_lshl_b32 s12, s12, 8
    s_add_u32 {sht}, {sht}, s12
    s_add_u32 {sht}, {sht}, {HT_OFF}
    global_load_ushort v{base+25}, v{base+30}, s[18:19]
    global_load_ushort v{base+26}, v{base+30}, s[20:21]
    global_load_ushort v{base+27}, v{base+30}, s[30:31]'''
    bg.push_m(pre, 'fx', 3)
    pre2 = f'''s_lshl_b32 s16, s16, 6
    v_lshrrev_b32 v{base+30}, 4, v1
    v_mul_u32_u24 v{base+30}, {8*4608}, v{base+30}
    v_and_b32 v{base+29}, 15, v1
    v_lshl_add_u32 v{base+29}, v{base+29}, 2, s16
    v_sub_u32 v{base+29}, v{base+29}, v{base+30}
    '''
    for i in range(0, 8, 2):
        t = pre2 if i == 0 else ''
        for k in (i, i+1): t += f'v_subrev_u32 v{base+29}, 4608, v{base+29}\nbuffer_load_dword v{base+17+k}, v{base+29}, s[60:63], 0 offen sc1\n'
        bg.push_m(t, 'fx', 2)
    for k in range(4): bg.push_m(f'buffer_load_dwordx4 {vr(base+4*k,4)}, v3, {WS}, s17 offen offset:{1024*k} sc1', 'fx', 1)
    bg.push_m(f'v_lshlrev_b32 v{base+30}, 2, v1\ns_add_u32 s12, s17, 4096\nbuffer_load_dword v{base+16}, v{base+30}, {WS}, s12 offen sc1', 'fx', 1)
def fix_items():
    t = FT_
    LR, LI, SG = t, t+1, t+2
    PR, PI = t+3, t+4; QR, QI = t+5, t+6; L64R, L64I = t+7, t+8
    it = [('vmw', 'fx')]
    def p1():
        lam_consts(A, FA+25, FA+26, FA+27, LR, LI, 0, 0, t+9, t+10, t+11, t+12, need_coef=False)
        A(f'v_and_b32 v{SG}, 8, v1\nv_lshlrev_b32 v{SG}, 28, v{SG}')
        csq(A, LR, LI, t+23, t+24, t+9)
        csq(A, t+23, t+24, PR, PI, t+9)
        A(f'v_xor_b32 v{t+24}, v{SG}, v{t+24}')
        for _ in range(2): csq(A, PR, PI, PR, PI, t+9)
        A(f'v_mov_b32 v{t+13}, v{PR}\nv_mov_b32 v{t+14}, v{PI}')
        csq(A, PR, PI, PR, PI, t+9)
        cmul(A, PR, PI, t+13, t+14, t+15, t+16)
        A(f'v_lshrrev_b32 v{t+21}, 4, v1\nv_mov_b32 v{QR}, 1.0\nv_mov_b32 v{QI}, 0')
    it += capture(p1)
    for k, (a, b) in enumerate(((t+13, t+14), (PR, PI), (t+15, t+16))):
        it.append(f'v_cmp_eq_u32 vcc, {k+1}, v{t+21}\ns_nop 1\nv_cndmask_b32 v{QR}, v{QR}, v{a}, vcc\nv_cndmask_b32 v{QI}, v{QI}, v{b}, vcc')
    def p2():
        A(f'v_xor_b32 v{QI}, v{SG}, v{QI}')
        csq(A, PR, PI, L64R, L64I, t+9)
        csq(A, L64R, L64I, PR, PI, t+9)
        for _ in range(2): csq(A, PR, PI, PR, PI, t+9)
        A(f'v_xor_b32 v{L64I}, v{SG}, v{L64I}\nv_xor_b32 v{PI}, v{SG}, v{PI}\nv_xor_b32 v{LI}, v{SG}, v{LI}')
        for i in range(6, -1, -1): mapply(A, FA+17+i, FA+17+i+1, L64R, L64I, FA+17+i)
        A(f'''
        v_and_b32 v{t+17}, 15, v1
        v_lshlrev_b32 v{t+17}, 2, v{t+17}
        v_add_u32 v{t+18}, 64, v{t+17}
        v_add_u32 v{t+19}, 128, v{t+17}
        v_add_u32 v{t+20}, 192, v{t+17}
        ''')
    it += capture(p2)
    u = newlab('bp')
    for g in range(4): it.append(('ds', f'ds_bpermute_b32 v{FA+18+g}, v{t+17+g}, v{FA+17}', u))
    it.append(('lgw', u))
    def p3():
        for g in (2, 1, 0): mapply(A, FA+18+g, FA+18+g+1, PR, PI, FA+18+g)
        mapply(A, FA+16, FA+18, QR, QI, FA+16)
        G = [FA+17, FA+18, FA+19, FA+20]
        mapply(A, G[0], FA+16, LR, LI, None)
        mapply(A, G[1], FA+16, t+23, t+24, None)
        for k in range(0, 16, 2):
            a0, a1, b0, b1 = (G[0], G[1], G[2], G[3]) if k % 4 == 0 else (G[2], G[3], G[0], G[1])
            A(f'v_add_f32 v{FA+k}, v{FA+k}, v{a0}')
            if k < 14: A(f'v_mul_f32 v{b0}, v{t+23}, v{a0}\nv_mul_f32 v{b1}, v{t+23}, v{a1}')
            A(f'v_add_f32 v{FA+k+1}, v{FA+k+1}, v{a1}')
            if k < 14: A(f'v_fmac_f32_dpp v{b0}, v{a0}, v{t+24} {DPP8}\nv_fmac_f32_dpp v{b1}, v{a1}, v{t+24} {DPP8}')
        for k in range(8): A(f'v_cvt_pk_bf16_f32 v{FA+k}, v{FA+2*k}, v{FA+2*k+1}')
    it += capture(p3)
    it.append(('vm', f'buffer_store_dwordx4 {vr(FA,4)}, v3, {WS}, s22 offen sc1\nbuffer_store_dwordx4 {vr(FA+4,4)}, v3, {WS}, s22 offen offset:1024 sc1', 'ht', 2))
    return it

def k2_setup():
    A(f'''
    s_load_dwordx4 s[68:71], s[0:1], 40
    s_load_dwordx2 s[56:57], s[0:1], 96
    s_load_dwordx2 s[60:61], s[0:1], 120
    s_mul_i32 s14, s3, 30
    s_add_u32 s14, s14, s4
    s_mul_i32 s44, s14, 1366
    s_lshr_b32 s44, s44, 16
    s_mul_i32 s13, s44, 48
    s_sub_u32 s47, s14, s13
    s_mul_i32 s45, s47, 86
    s_lshr_b32 s45, s45, 8
    s_mul_i32 s13, s45, 3
    s_sub_u32 s46, s47, s13
    s_lshl_b32 s14, s45, 2
    s_lshr_b32 s13, s7, 1
    s_add_u32 s14, s14, s13
    s_mul_i32 s76, s14, 294912
    s_and_b32 s9, s7, 1
    s_lshr_b32 s10, s7, 2
    s_add_u32 s76, s76, {HF_OFF}
    s_mul_i32 s83, s7, 3072
    s_add_u32 s83, s83, 16384
    s_mul_i32 s80, s46, 384
    s_lshr_b32 s14, s45, 1
    s_lshl_b32 s32, s14, 7
    s_add_u32 s32, s32, {FH_OFF}
    s_waitcnt lgkmcnt(0)
    s_mov_b32 s58, {4608*1152}
    s_mov_b32 s59, 0x20000
    s_add_u32 s60, s60, {E_OFF}
    s_addc_u32 s61, s61, 0
    s_mov_b32 s62, {E_BYTES}
    s_mov_b32 s63, 0x20000
    v_lshlrev_b32 v15, 2, v1
    v_and_b32 v15, 127, v15
    s_lshl_b32 s33, s6, 7
    s_add_u32 s33, s33, {FE_OFF}
    ''')
    lg.q = []
    for i in range(3):
        A(f'''
        s_and_b32 s13, s7, 3
        s_mul_i32 s13, s13, 192
        s_add_u32 s13, s13, {64*i}
        v_add_u32 v12, s13, v1
        v_mul_u32_u24 v13, 2731, v12
        v_lshrrev_b32 v13, 16, v13
        v_mul_u32_u24 v14, 24, v13
        v_sub_u32 v14, v12, v14
        v_bfe_u32 v12, v13, 1, 1
        v_lshlrev_b32 v12, 2, v12
        v_xor_b32 v14, v14, v12
        v_mul_u32_u24 v13, 1152, v13
        v_lshl_add_u32 v{8+i}, v14, 4, v13
        ''')
    poll_issue(12, 15, 's32', 'pg0')
    poll_issue(13, 15, 's33', 'pfe')
for n_ in range(240): assert (n_*1366) >> 16 == n_//48
for n_ in range(48): assert (n_*86) >> 8 == n_//3
def k2_dma_ffn(n):
    slot = ((n + 1) % 4) * K2S
    def g0(dst, sel):
        return f'''s_add_u32 {dst}, s44, {5*n}
        s_lshr_b32 s12, {dst}, 2
        s_lshl_b32 {dst}, {dst}, 1
        s_add_u32 {dst}, {dst}, s12
        s_lshl_b32 {dst}, {dst}, 1
        s_add_u32 {dst}, {dst}, {sel}
        '''
    def g1(dst, sel):
        return f'''s_add_u32 {dst}, s44, {5*n-32}
        s_lshr_b32 s13, {dst}, 4
        s_and_b32 {dst}, {dst}, 15
        s_lshl_b32 {dst}, {dst}, 1
        s_add_u32 {dst}, {dst}, {sel}
        s_lshr_b32 s12, {dst}, 2
        s_lshl_b32 {dst}, {dst}, 1
        s_add_u32 {dst}, {dst}, s12
        s_lshl_b32 {dst}, {dst}, 1
        s_add_u32 {dst}, {dst}, s13
        s_add_u32 {dst}, {dst}, 2
        '''
    def g2(dst, sel):
        return f's_add_u32 {dst}, s44, {5*n-64}\ns_mul_i32 {dst}, {dst}, 18\ns_add_u32 {dst}, {dst}, 16\ns_add_u32 {dst}, {dst}, {sel}\n'
    def calc(dst, sel):
        lo, hi = 5*n, 5*n + 4
        if hi < 32: return g0(dst, sel)
        if lo >= 32 and hi < 64: return g1(dst, sel)
        if lo >= 64: return g2(dst, sel)
        f1, f2, th = (g0, g1, 32 - lo) if lo < 32 else (g1, g2, 64 - lo)
        return f1('s14', sel) + f2(dst, sel) + f's_cmp_lt_u32 s44, {th}\ns_cselect_b32 {dst}, s14, {dst}\n'
    preW = calc('s73', 's10') + f's_mul_i32 s73, s73, {32*1152}\ns_add_u32 s73, s73, s80\n'
    preH = calc('s72', 's9') + 's_lshl_b32 s72, s72, 11\ns_add_u32 s72, s72, s76\n'
    for i in range(3): bg.push_m((preW if i == 0 else '') + dma_txt(8+i, 's[56:59]', 's73', f's_add_u32 m0, s83, {slot+1024*i}'), f'k{n}', 1)
    bg.push_m(preH + dma_txt(3, WS, 's72', f's_add_u32 m0, s82, {slot}', sc=LSC), f'k{n}', 1)
    bg.push_m(dma_txt(3, WS, 's72', f's_add_u32 m0, s82, {slot}', imm=1024, sc=LSC), f'k{n}', 1)
def k2_dma_ssm(n, m):
    slot = ((n + 1) % 4) * K2S
    e0 = {14: -2, 15: 3, 16: 9, 17: 14}[n]
    sp = 's_cmp_eq_u32 s44, 3\ns_cselect_b32 s73, 8, s73\ns_min_u32 s73, s73, 17\n' if n == 17 else ''
    pre = f'''s_add_i32 s73, s44, {e0}
    {sp}
    s_cmp_lt_u32 s73, 9
    s_cselect_b32 s64, s68, s70
    s_cselect_b32 s65, s69, s71
    s_cselect_b32 s72, 0, 128
    s_cselect_b32 s12, 0, 9
    s_sub_u32 s73, s73, s12
    s_add_u32 s72, s72, s29
    s_lshl_b32 s12, s73, 14
    s_add_u32 s72, s72, s12
    s_lshl_b32 s73, s73, 7
    s_add_u32 s73, s73, s74
    '''
    for i in range(3):
        bg.push_m((pre if i == 0 else '') + f's_add_u32 s12, s73, {i*8*1152}\n' + dma_txt(5 + (i % 2), 's[64:67]', 's12', f's_add_u32 m0, s83, {slot+1024*i}'), f'k{n}', 1)
    bg.push_m(dma_txt(4, WS, 's72', f's_add_u32 m0, s82, {slot}', sc=LSC), f'k{n}', 1)
    bg.push_m(f's_add_u32 s12, s72, {72*2048}\n' + dma_txt(4, WS, 's12', f's_add_u32 m0, s82, {slot+1024}', sc=LSC), f'k{n}', 1)
def k2_prefetch():
    poll_check(13, 15, 's33', 'pfe')
    poll_check(12, 15, 's32', 'pg0')
    for n in range(3): k2_dma_ffn(n)

def phase_k2():
    ACC2 = 64; AF = 24; BF = 32
    BR = [32, 36, 40, 44, 128, 132]
    RA, RB, SA, SB = 224, 226, 232, 234
    VH, VC, VO, VF = 100+142, 243, 245, 246
    A(f'''
    s_and_b32 s14, s44, 3
    s_lshl_b32 s14, s14, 7
    v_xor_b32 v{RA}, s14, v3
    s_and_b32 s13, s7, 3
    s_lshl_b32 s12, s13, 12
    v_add_u32 v{RA}, s12, v{RA}
    v_add_u32 v{RA+1}, {2*K2S}, v{RA}
    v_lshrrev_b32 v12, 5, v1
    v_lshlrev_b32 v13, 2, v12
    v_bfe_u32 v14, v1, 2, 2
    v_add_u32 v13, v13, v14
    v_mul_u32_u24 v13, 384, v13
    v_bfe_u32 v14, v1, 4, 1
    v_lshl_add_u32 v13, v14, 5, v13
    v_and_b32 v14, 3, v1
    v_lshl_add_u32 v13, v14, 3, v13
    v_add_u32 v13, 16384, v13
    v_bfe_u32 v14, v1, 3, 1
    s_lshr_b32 s77, s7, 2
    s_mul_i32 s77, s77, 3
    ''')
    for jj in range(3):
        A(f's_add_u32 s14, s77, {jj}\nv_xor_b32 v2, s14, v14\nv_lshl_add_u32 v{RB+jj}, v2, 6, v13\nv_add_u32 v{RB+3+jj}, {2*K2S}, v{RB+jj}')
    def setup2():
        A(f'''
        v_lshrrev_b32 v252, 5, v1
        v_lshrrev_b32 v253, 4, v1
        v_lshlrev_b32 v254, 2, v252
        v_and_b32 v255, 7, v1
        v_xor_b32 v254, v254, v255
        v_lshlrev_b32 v254, 4, v254
        v_lshrrev_b32 v255, 3, v1
        v_lshl_add_u32 v4, v255, 8, v254
        v_lshrrev_b32 v254, 3, v1
        v_mul_u32_u24 v254, 1152, v254
        v_and_b32 v255, 7, v1
        v_xor_b32 v255, v255, v253
        v_lshl_add_u32 v5, v255, 4, v254
        s_and_b32 s75, s7, 1
        s_lshl_b32 s75, s75, 6
        v_xor_b32 v5, s75, v5
        v_xor_b32 v6, 64, v5
        s_lshl_b32 s29, s7, 11
        s_mul_i32 s75, s45, {2*72*2048}
        s_add_u32 s29, s29, s75
        s_add_u32 s29, s29, {HT_OFF}
        s_mul_i32 s74, s46, 192
        s_mul_i32 s75, s7, 24
        s_add_u32 s74, s74, s75
        s_mul_i32 s74, s74, 1152
        s_mov_b32 s66, 663552
        s_mov_b32 s67, 0x20000
        s_mov_b32 s64, s68
        s_mov_b32 s65, s69
        v_bfe_u32 v253, v1, 1, 1
        s_and_b32 s75, s44, 1
        v_xor_b32 v253, s75, v253
        v_bfe_u32 v254, v1, 4, 1
        s_bfe_u32 s75, s44, 0x10001
        v_xor_b32 v254, s75, v254
        v_lshlrev_b32 v255, 11, v252
        v_lshl_add_u32 v255, v254, 7, v255
        v_mul_u32_u24 v253, 576, v253
        v_add_u32 v255, v255, v253
        v_bfe_u32 v254, v1, 2, 2
        v_lshl_add_u32 v255, v254, 4, v255
        v_and_b32 v254, 1, v1
        v_lshl_add_u32 v255, v254, 3, v255
        s_bfe_u32 s75, s7, 0x10001
        s_lshl_b32 s75, s75, 10
        v_add_u32 v255, s75, v255
        s_and_b32 s75, s7, 1
        s_lshl_b32 s75, s75, 8
        v_add_u32 v{SA}, s75, v255
        v_add_u32 v{SA+1}, {2*K2S}, v{SA}
        v_xor_b32 v244, 64, v{SA}
        v_xor_b32 v245, 64, v{SA+1}
        v_and_b32 v253, 31, v1
        v_bfe_u32 v254, v1, 1, 3
        v_xor_b32 v254, v254, v252
        v_lshlrev_b32 v254, 4, v254
        v_lshl_add_u32 v253, v253, 7, v254
        s_lshl_b32 s75, s77, 12
        s_add_u32 s75, s75, 16384
        v_add_u32 v253, s75, v253
        ''')
        for sp in range(4): A(f'v_xor_b32 v{SB+sp}, {32*sp}, v253\nv_add_u32 v{SB+4+sp}, {2*K2S}, v{SB+sp}')
        A(f'''
        s_lshl_b32 s75, s45, 2
        s_and_b32 s31, s7, 3
        s_add_u32 s75, s75, s31
        s_lshl_b32 s75, s75, 2
        s_and_b32 s31, s44, 3
        s_add_u32 s75, s75, s31
        s_lshl_b32 s30, s75, 6
        s_add_u32 s30, s30, {STAT_OFF}
        s_mul_i32 s31, s75, {8*2304}
        s_mul_i32 s75, s46, 768
        s_add_u32 s31, s31, s75
        s_lshl_b32 s75, s77, 7
        s_add_u32 s31, s31, s75
        v_mul_u32_u24 v7, {4*2304}, v252
        v_and_b32 v255, 31, v1
        v_lshl_add_u32 v7, v255, 2, v7
        s_lshl_b32 s33, s45, 7
        s_add_u32 s33, s33, {FT_OFF}
        s_add_u32 s28, s33, 64
        v_and_b32 v242, 63, v15
        ''')
    global k2_dma_ssm
    def late_flags():
        flag_store(1, 's_add_u32 s14, s34, 3072', 2)
    def ft_flag():
        flag_store(2, f's_lshr_b32 s14, s11, 4\ns_lshl_b32 s14, s14, 7\ns_and_b32 s12, s11, 15\ns_lshl_b32 s12, s12, 2\ns_add_u32 s14, s14, s12\ns_add_u32 s14, s14, {FT_OFF}', 2)
    S(z='fx')
    bg.flush_m('k0')
    vm.wait('k0')
    A('s_barrier')
    A('s_cmp_lt_u32 s4, 30\ns_cbranch_scc1 K2_GO')
    sv = (list(vm.q), list(lg.q), list(bg.v), list(bg.m))
    A(f'v_lshlrev_b32 v14, 2, v1')
    for k in range(4):
        A(f's_mov_b32 s{24+k}, {FE_OFF+256*k}'); poll_issue(24+k, 14, f's{24+k}', f'pall{k}')
    bg.emit_m(1000); bg.emit_v(10**9)
    vm.wait('h7'); A('s_barrier'); flag_store(0, 's_add_u32 s14, s34, 2048', 2)
    bg.push_v(fix_items()); bg.emit_v(10**9)
    for k in range(4): poll_check(24+k, 14, f's{24+k}', f'pall{k}')
    A('''
    s_lshl_b32 s75, s3, 1
    s_add_u32 s75, s75, s4
    s_sub_u32 s75, s75, 30
    s_lshl_b32 s75, s75, 3
    s_add_u32 s75, s75, s7
    s_lshl_b32 s75, s75, 1
    s_add_u32 s73, s75, 1
    s_mov_b32 s74, 8
    ''')
    fix_loads('s75', 's74'); fix_loads('s73', 's74', 112, 's72'); bg.emit_m(1000)
    vm.wait('h8', 'ht'); A('s_barrier')
    late_flags(); ft_flag()
    A.lab('IDLE_LOOP')
    bg.push_v(fix_items()); bg.emit_v(10**9)
    A('s_cmp_eq_u32 s74, 0\ns_cbranch_scc1 IDLE_DONE\ns_mov_b32 s74, 0\ns_mov_b32 s22, s72')
    for k in range(29): A(f'v_mov_b32 v{FA+k}, v{112+k}')
    A('s_branch IDLE_LOOP')
    A.lab('IDLE_DONE')
    A(f'''
    s_lshr_b32 s14, s75, 4
    s_lshl_b32 s14, s14, 7
    s_and_b32 s12, s75, 15
    s_lshl_b32 s12, s12, 2
    s_add_u32 s14, s14, s12
    s_add_u32 s14, s14, {FT_OFF+64}
    v_mov_b32 v12, {TAG}
    v_mov_b32 v13, {TAG}
    s_mov_b64 exec, 1
    s_waitcnt vmcnt(0)
    buffer_store_dwordx2 v[12:13], off, {WS}, s14 sc1
    s_mov_b64 exec, -1
    s_branch K_FIN
    ''')
    vm.q, lg.q, bg.v, bg.m = sv
    A.lab('K2_GO')
    S(); S(z='k2'); S(z='fx')
    bg.v = [(0, it) for _, it in bg.v]
    fi = fix_items()
    if P('NOFIX', 0): fi = [x for x in fi if not isinstance(x, str) or 'v{}'.format(FT_+22) in x or 'v{},'.format(FT_+21) in x or 'v_add_u32' in x or 'v_and_b32' in x or 'v_lshl' in x]
    bg.push_v(fi); bg.push_v(capture(setup2))
    LK = 3
    def slab_ops(n, typ): return [(n, typ, s, jj) for s in range(4) for jj in range(3)]
    def rd(i, op):
        n, typ, s, jj = op
        slot = (n + 1) % 4; hi = slot // 2; so = (slot % 2) * K2S
        ra = AF + 4*(s % 2); r = BR[i % 6]
        if typ == 'f':
            if jj == 0: A(f'ds_read_b128 {vr(ra,4)}, v{RA+hi} offset:{so+1024*s}'); lg.add(f'q{i}')
            off = so + s*16*384
            A(f'ds_read_b64_tr_b16 {vr(r,2)}, v{RB+3*hi+jj} offset:{off}\nds_read_b64_tr_b16 {vr(r+2,2)}, v{RB+3*hi+jj} offset:{off+8*384}'); lg.add(f'q{i}', 2)
        else:
            if jj == 0:
                A(f'ds_read_b64_tr_b16 {vr(ra,2)}, v{SA+hi} offset:{so+4096*s}\nds_read_b64_tr_b16 {vr(ra+2,2)}, v{244+hi} offset:{so+4096*s}'); lg.add(f'q{i}', 2)
            A(f'ds_read_b128 {vr(r,4)}, v{SB+4*hi+s} offset:{so+4096*jj}'); lg.add(f'q{i}')
    def run(ops, i0, i1, variant):
        N = len(ops)
        for i in range(i0, i1):
            n, typ, s, jj = ops[i]
            j = i + LK
            if j < N:
                if j % 12 == 0: ksync(j // 12, variant)
                rd(j, ops[j])
            lg.wait(f'q{i}')
            a = ACC2 + 16*jj
            A(f'v_mfma_f32_32x32x16_bf16 {vr(a,16)}, {vr(AF+4*(s%2),4)}, {vr(BR[i%6],4)}, {"0" if (n == 0 and s == 0) else vr(a,16)}')
            if i % 2 == 1: bg.emit_m(1)
            bg.emit_v(P('K2RATE', 4), i)
            if i % 24 == 23: S(z='k2')
            if i == 9*12 - 1: S()
    def ksync(n, variant):
        if 3 <= n <= 8: S(z='k2b')
        bg.flush_m(f'k{n}'); vm.wait(f'k{n}')
        if n == 2: vm.wait('h7')
        if n == 5: vm.wait('h8')
        if n == 8: vm.wait('ht')
        A('s_barrier')
        if n == 2: flag_store(0, 's_add_u32 s14, s34, 2048', 2)
        if n == 5: late_flags()
        if n == 8: ft_flag()
        nn = n + 2
        if n <= 11: S(z='k2a')
        if 3 <= n <= 8: S(z='k2b')
        if nn == 6: poll_check(12, 15, 's78', 'pg1')
        if nn == 9: poll_check(12, 15, 's79', 'pg1b')
        if nn == 12: poll_check(12, 15, 's8', 'pg2')
        if nn == 14: poll_check(13, 242, 's33', 'pft')
        if nn == 17:
            sk = newlab('NOF8'); vm.wait('pft8')
            A(f's_cmp_lt_u32 s44, 3\ns_cbranch_scc1 {sk}'); poll_check(13, 242, 's28', 'pft8'); A.lab(sk)
        if nn == 3: pass
        elif nn <= 13 or (nn == 14 and variant == 0): k2_dma_ffn(nn)
        elif nn == 14: k2_dma_ssm(14, 3)
        elif nn <= 17: k2_dma_ssm(nn, nn - 15)
        def pq(*args): bg.m.insert(0, (0, lambda: poll_issue(*args), args[3], 0))
        if n == 3: pq(12, 15, 's78', 'pg1')
        if n == 6: pq(12, 15, 's79', 'pg1b')
        if n == 9: pq(12, 15, 's8', 'pg2')
        if n == 11: assert not bg.v, len(bg.v); pq(13, 242, 's33', 'pft')
        if n == 14: pq(13, 242, 's28', 'pft8')
        if n == 13:
            bg.push_m(f'''s_load_dwordx2 s[24:25], s[0:1], 0
            s_load_dwordx2 s[26:27], s[0:1], 64
            v_add_u32 v176, s31, v7
            v_lshrrev_b32 v176, 1, v176
            v_and_b32 v177, 31, v1
            s_mul_i32 s12, s46, 6
            s_add_u32 s12, s12, s77
            s_lshl_b32 s12, s12, 6
            v_lshl_add_u32 v177, v177, 1, s12
            v_lshrrev_b32 v178, 5, v1
            v_lshlrev_b32 v178, 5, v178
            s_waitcnt lgkmcnt(0)
            buffer_load_dwordx4 v[168:171], v178, {WS}, s30 offen sc1
            buffer_load_dwordx4 v[172:175], v178, {WS}, s30 offen offset:16 sc1''', 'base', 2)
            bg.push_m('\n'.join(f'global_load_ushort v{124+jj}, v177, s[26:27] offset:{64*jj}' for jj in range(3)), 'base', 3)
        if n in (14, 15):
            for e in (2*(n-14), 2*(n-14)+1):
                bg.push_m('\n'.join(f'global_load_ushort v{112+4*jj+e}, v176, s[24:25] offset:{1152*e+64*jj}' for jj in range(3)), 'base', 3)
        if n == 16:
            it = [('vmw', 'base'), 's_mov_b32 s13, 0xffff0000']
            for jj in range(3): it.append(f'v_lshlrev_b32 v{124+jj}, 16, v{124+jj}')
            for jj in range(3):
                for e in (0, 2):
                    a0 = 112+4*jj+e; a1 = a0+1; m0, r0, m1, r1 = 168+2*e, 169+2*e, 170+2*e, 171+2*e
                    un = ['v_cvt_pk_bf16_f32 v181, v180, v181', 'v_lshlrev_b32 v180, 16, v181', 'v_and_b32 v181, s13, v181']
                    it += [f'v_lshlrev_b32 v{a0}, 16, v{a0}', f'v_lshlrev_b32 v{a1}, 16, v{a1}', f'v_sub_f32 v180, v{a0}, v{m0}', f'v_sub_f32 v181, v{a1}, v{m1}'] + un
                    it += [f'v_mul_f32 v180, v180, v{r0}', f'v_mul_f32 v181, v181, v{r1}'] + un
                    it += [f'v_mul_f32 v180, v180, v{124+jj}', f'v_mul_f32 v181, v181, v{124+jj}'] + un
                    it += [f'v_add_f32 v{a0}, v{a0}, v180', f'v_add_f32 v{a1}, v{a1}, v181']
            bg.push_v(it, 16*12 + 4)
    ops0 = sum([slab_ops(n, 'f' if n <= 14 else 's') for n in range(18)], [])
    ops1 = sum([slab_ops(n, 'f' if n <= 13 else 's') for n in range(18)], [])
    A('s_add_u32 s78, s32, 1024\ns_add_u32 s79, s32, 2048\ns_add_u32 s8, s32, 3072')
    k2_dma_ffn(3)
    for i in range(LK): rd(i, ops0[i])
    SPLIT = 12*12 - LK
    run(ops0, 0, SPLIT, 0)
    A('s_cmp_ge_u32 s44, 2\ns_cbranch_scc1 K2_V1')
    sv = (list(vm.q), list(lg.q), list(bg.v), list(bg.m)); ns = nstamp[0]
    run(ops0, SPLIT, 216, 0); bg.emit_m(100); rest = list(bg.v); bg.v = []
    A('s_branch K2_J'); A.lab('K2_V1')
    vm.q, lg.q, bg.v, bg.m = sv; nstamp[0] = ns
    run(ops1, SPLIT, 216, 1); bg.emit_m(100); assert rest == bg.v; bg.v = []
    A.lab('K2_J')
    S()
    A(f'''
    s_mul_i32 s35, s47, {16*12288}
    s_mul_i32 s14, s7, 1536
    s_add_u32 s35, s35, s14
    s_add_u32 s35, s35, {PART_OFF}
    v_lshlrev_b32 v2, 3, v1
    s_and_b32 s12, s44, 3
    s_cmp_eq_u32 s44, 4
    s_cselect_b32 s41, 0, 12288
    s_nop 3
    ''')
    def pub(ap):
        r = 136 + 8*ap
        for jj in range(3):
            a = ACC2 + 16*jj + 4*ap
            A(f'v_cvt_pk_bf16_f32 v{r+2*jj}, v{a}, v{a+1}\nv_cvt_pk_bf16_f32 v{r+2*jj+1}, v{a+2}, v{a+3}')
        A(f's_xor_b32 s14, s12, {ap}\ns_mul_i32 s14, s14, {4*12288}\ns_add_u32 s14, s14, s35\ns_mul_i32 s13, s41, {ap}\ns_add_u32 s14, s14, s13')
        A(f'buffer_store_dwordx4 {vr(r,4)}, v3, {WS}, s14 offen sc1\nbuffer_store_dwordx2 {vr(r+4,2)}, v2, {WS}, s14 offen offset:1024 sc1')
    for ap in (1, 2, 3): pub(ap)
    A('s_cmp_lg_u32 s44, 4\ns_cbranch_scc1 NOPUB0')
    pub(0)
    A.lab('NOPUB0')
    if P('PWF', 0):
        A(f'''
    s_lshl_b32 s33, s47, 3
    s_add_u32 s33, s33, s7
    s_lshl_b32 s33, s33, 7
    s_add_u32 s33, s33, {FP_OFF}
    v_min_u32 v14, 4, v1
    v_lshlrev_b32 v14, 2, v14
    s_lshl_b32 s14, s44, 2
    s_add_u32 s14, s14, s33
    v_mov_b32 v12, {TAG}
    s_mov_b64 exec, 1
    s_waitcnt vmcnt(0)
    buffer_store_dword v12, off, {WS}, s14 sc1
    s_mov_b64 exec, -1
    ''')
        vm.q = []; vm.add('fl')
    else:
        A(f'''
    s_lshl_b32 s33, s47, 7
    s_add_u32 s33, s33, {FP_OFF}
    v_min_u32 v14, 4, v1
    v_lshlrev_b32 v14, 2, v14
    s_waitcnt vmcnt(0)
    s_barrier
    ''')
        vm.q = []
        flag_store(0, 's_lshl_b32 s14, s44, 2\ns_add_u32 s14, s14, s33', 12)
    S()
    A('s_cmp_eq_u32 s44, 4\ns_cbranch_scc1 K_FIN')
    if not P('P1W', 0): poll_issue(13, 14, 's33', 'pp')
    A('s_mov_b32 s13, 0xffff0000')
    bg.v = rest; bg.emit_v(10**9)
    for jj in range(3):
        for e in range(4): A(f'v_add_f32 v{ACC2+16*jj+e}, v{ACC2+16*jj+e}, v{112+4*jj+e}')
    A(f's_mul_i32 s14, s44, {4*12288}\ns_add_u32 s14, s14, s35')
    if P('P1W', 0):
        A('s_cmp_lg_u32 s7, 0\ns_cbranch_scc1 PP_W'); poll_issue(13, 14, 's33', 'pp'); poll_check(13, 14, 's33', 'pp'); A.lab('PP_W'); A('s_barrier'); vm.q = []
    else: poll_check(13, 14, 's33', 'pp')
    S()
    for sl in range(4):
        r = 136 + 8*sl
        A(f'buffer_load_dwordx4 {vr(r,4)}, v3, {WS}, s14 offen sc1\nbuffer_load_dwordx2 {vr(r+4,2)}, v2, {WS}, s14 offen offset:1024 sc1')
        if sl < 3: A('s_add_u32 s14, s14, 12288')
    for sl in range(4):
        A(f's_waitcnt vmcnt({2*(3-sl)})')
        r = 136 + 8*sl
        for jj in range(3):
            for h in range(2):
                a = ACC2 + 16*jj + 2*h; p = r + 2*jj + h
                A(f'v_lshlrev_b32 v12, 16, v{p}\nv_and_b32 v13, s13, v{p}\nv_pk_add_f32 {vr(a,2)}, {vr(a,2)}, v[12:13]')
    for e in range(4):
        A(f's_add_u32 s14, s31, {e*2304}')
        for jj in range(3): A(f'buffer_store_dword v{ACC2+16*jj+e}, v7, {OUT}, s14 offen offset:{128*jj}' + os.environ.get('OSC', ''))
    A.lab('K_FIN')
    if STAMP:
        A('s_waitcnt vmcnt(0)'); nstamp[0] = 14; S(force=True); S(True); Sflush()

def main(path):
    hdr = open('parallel_sum__ssm_conv_s5__geglu_ffn__prompt.s.ref').read().split('; Override launch')[0]
    A.raw(hdr.rstrip())
    A.raw('; @launch grid=(256,1,1) block=(512,1,1) lds=163840')
    A.raw('.amdgcn_target "amdgcn-amd-amdhsa--gfx950"\n.text')
    A.raw(f'.globl {NAME}\n.p2align 8\n.type {NAME},@function\n{NAME}:')
    if STAMP:
        for i in range(16): A(f's_mov_b32 s{86+i}, 0')
    phase_a(); phase_k1(); phase_k2()
    A.lab('K_END')
    A('s_endpgm')
    for c in cold: A.raw(c)
    A.lab('K_LAST')
    A('s_endpgm')
    A.raw(f'''.section .rodata,"a"
.p2align 6
.amdhsa_kernel {NAME}
  .amdhsa_next_free_vgpr 256
  .amdhsa_next_free_sgpr 102
  .amdhsa_accum_offset 256
  .amdhsa_group_segment_fixed_size 0
  .amdhsa_kernarg_size 128
  .amdhsa_user_sgpr_count 2
  .amdhsa_user_sgpr_kernarg_segment_ptr 1
  .amdhsa_system_sgpr_workgroup_id_x 1
  .amdhsa_float_denorm_mode_32 3
.end_amdhsa_kernel''')
    open(path, 'w').write('\n'.join(A.L) + '\n')

if __name__ == '__main__':
    main(sys.argv[1] if len(sys.argv) > 1 else 'k3.s')
```

```python
import sys, struct, os
from layout import *
from gen_v1 import f32, LOG2E, INV2PI, Asm, vr, sr, srd, lam_consts, csq, cmul, DPP8, mapply

STAMP = int(os.environ.get('STAMP', '0'))
DBGT = int(os.environ.get('DBGT', '0'))
LSC = ' sc1' if int(os.environ.get('LSC', '1')) else ''
ZOOM = os.environ.get('ZOOM', '')
def P(name, d): return int(os.environ.get(name, d))
A = Asm()
NAME = 'parallel_sum__ssm_conv_s5__geglu_ffn__prompt_kernel'

class Cnt:
    def __init__(self, name, mx): self.q = []; self.ever = set(); self.name = name; self.mx = mx
    def add(self, tag, n=1): self.q += [tag]*n; self.ever.add(tag)
    def wait(self, *tags):
        for t in tags: assert t in self.ever, t
        idx = [i for i, t in enumerate(self.q) if t in tags]
        if not idx: return
        last = max(idx); n = len(self.q) - 1 - last
        if n > self.mx:
            if self.name == 'vmcnt': self.q = self.q[last+1:]; return
            n = self.mx; last = len(self.q) - 1 - n
        A(f's_waitcnt {self.name}({n})')
        self.q = self.q[last+1:]
    def drain(self):
        A(f's_waitcnt {self.name}(0)'); self.q = []
vm = Cnt('vmcnt', 63); lg = Cnt('lgkmcnt', 15)
nstamp = [0]
def S(real=False, z='', force=False):
    if not STAMP: return
    if not (real or force) and z != ZOOM: return
    A(f'{"s_memrealtime" if (real or DBGT) else "s_memtime"} s[84:85]\ns_waitcnt lgkmcnt(0)\ns_mov_b32 s{86+nstamp[0]}, s84')
    nstamp[0] += 1
    assert nstamp[0] <= 16
def Sflush():
    if DBGT:
        A(f's_mov_b64 exec, 1\ns_load_dwordx2 s[72:73], s[0:1], 112\ns_mov_b32 s74, 256\ns_mov_b32 s75, 0x20000\nv_mov_b32 v2, s101\nv_mov_b32 v1, 0\ns_waitcnt lgkmcnt(0)\nbuffer_atomic_umax v2, v1, s[72:75], 0 offen offset:60 sc1')
        A('s_cmp_lg_u32 s2, 5\ns_cbranch_scc1 NODBG\ns_cmp_lg_u32 s7, 0\ns_cbranch_scc1 NODBG')
        for i in range(14): A(f'v_mov_b32 v2, s{87+i}\nbuffer_store_dword v2, v1, s[72:75], 0 offen offset:{4+4*i}')
        A.lab('NODBG')
        return
    A(f's_mov_b64 exec, -1\ns_lshl_b32 s84, s2, 3\ns_add_u32 s84, s84, s7\ns_lshl_b32 s84, s84, 6\ns_add_u32 s84, s84, {STAMP_OFF}\nv_mov_b32 v1, 0')
    for i in range(16):
        A(f'v_mov_b32 v2, s{86+i}\nbuffer_store_dword v2, v1, s[48:51], s84 offen offset:{4*i}')
uid = [0]
def newlab(p):
    uid[0] += 1; return f'{p}_{uid[0]}'

WS = 's[48:51]'; OUT = 's[52:55]'; DBG = 's[72:75]'
TAG = 's15'
cold = []
def poll_issue(vdst, vaddr, soff, tag):
    A(f'buffer_load_dword v{vdst}, v{vaddr}, {WS}, {soff} offen sc1'); vm.add(tag)
def poll_check(vdst, vaddr, soff, tag):
    vm.wait(tag)
    slow = newlab('SLOW'); back = newlab('BACK')
    A(f'v_cmp_ne_u32 vcc, {TAG}, v{vdst}\ns_cbranch_vccnz {slow}')
    A.lab(back)
    cold.append(f'''{slow}:
    s_sub_u32 s23, s23, 1
    s_cbranch_scc1 {back}
    s_sleep {P('SLP', 1)}
    buffer_load_dword v{vdst}, v{vaddr}, {WS}, {soff} offen sc1
    s_waitcnt vmcnt(0)
    v_cmp_ne_u32 vcc, {TAG}, v{vdst}
    s_cbranch_vccnz {slow}
    s_branch {back}''')
def flag_store(wave, spre, vtmp):
    sk = newlab('NOFLAG')
    A(f's_cmp_lg_u32 s7, {wave}\ns_cbranch_scc1 {sk}\n{spre}\nv_mov_b32 v{vtmp}, {TAG}\ns_mov_b64 exec, 1\nbuffer_store_dword v{vtmp}, off, {WS}, s14 sc1\ns_mov_b64 exec, -1')
    A.lab(sk)
def dma_txt(voff, srdn, soff, m0expr, imm=0, sc=''):
    return f'{m0expr}\ns_nop 0\nbuffer_load_dwordx4 v{voff}, {srdn}, {soff} offen{" offset:%d" % imm if imm else ""}{sc} lds'

def capture(f, group=1):
    n0 = len(A.L); f(); out = A.L[n0:]; del A.L[n0:]
    return [l.strip() for l in out]

class BG:
    def __init__(self): self.v = []; self.m = []
    def push_v(self, items, ready=0): self.v += [(ready, it) for it in items]
    def push_m(self, text, tag, n=1, ready=0): self.m.append((ready, text, tag, n))
    def emit_v(self, k, now=10**9):
        while k > 0 and self.v and self.v[0][0] <= now:
            it = self.v.pop(0)[1]
            if isinstance(it, str): A(it); k -= it.count('\n') + 1
            elif it[0] == 'vm': A(it[1]); vm.add(it[2], it[3]); k -= 2
            elif it[0] == 'ds': A(it[1]); lg.add(it[2]); k -= 1
            elif it[0] == 'lgw': lg.wait(it[1])
            elif it[0] == 'vmw': self.flush_m(it[1]); vm.wait(it[1])
            elif it[0] == 'call': it[1]()
    def emit_m(self, k=1, now=10**9):
        while k > 0 and self.m and self.m[0][0] <= now:
            _, text, tag, n = self.m.pop(0)
            if callable(text): text()
            else:
                for part in text.split('@@'):
                    if part.startswith('LAB '): A.lab(part[4:])
                    else: A(part)
            if n: vm.add(tag, n)
            k -= 1
    def flush_m(self, *tags):
        while any(t[2] in tags for t in self.m): self.emit_m(1)
bg = BG()
def valu_with_vmem(lines, every=8):
    for i, l in enumerate(lines):
        if l.endswith(':'): A.lab(l[:-1])
        else: A(l)
        if i % every == every - 1 and not l.startswith('v_cmp') and not l.startswith('s_nop') and not l.startswith('s_'): bg.emit_m(1, 0)

UREG = 73760
A2_B = [16384, 90144, 34816, 108672]
A2_X = [53248, 127104, 61440, 135296]
TB = 147584
EX_T = 147584; EX_B = EX_T + 8192; EX_S = EX_B + 2048; EX_R = 69632
G2U = 18560
K2S = 40960
XR = 112; ACC = 48; WR = 24; NW = 6; TMP = 16
CONSTS = (244, 245, 246, 247, 248, 249)

def ln_stats(r, t):
    inv = f32(1.0/576.0)
    A(f'''
    v_mul_f32 v{r}, {inv}, v{r}
    v_mul_f32 v{r+1}, {inv}, v{r+1}
    v_fma_f32 v{r+1}, -v{r}, v{r}, v{r+1}
    v_max_f32 v{r+1}, 0, v{r+1}
    v_cvt_pk_bf16_f32 v{t}, v{r}, v{r+1}
    v_lshlrev_b32 v{r}, 16, v{t}
    v_and_b32 v{r+1}, 0xffff0000, v{t}
    v_add_f32 v{r+1}, {f32(1e-5)}, v{r+1}
    v_cvt_pk_bf16_f32 v{r+1}, v{r+1}, v{r+1}
    v_lshlrev_b32 v{r+1}, 16, v{r+1}
    v_sqrt_f32 v{r+1}, v{r+1}
    s_nop 0
    v_cvt_pk_bf16_f32 v{r+1}, v{r+1}, v{r+1}
    v_lshlrev_b32 v{r+1}, 16, v{r+1}
    v_rcp_f32 v{r+1}, v{r+1}
    s_nop 0
    ''')
def unit_consts(p, t=232):
    LR, SLI, A1, A2c, L16R, SL16I = CONSTS
    lam_consts(A, p, p+1, p+2, LR, t, t+1, t+2, t+3, t+4, t+5, t+6)
    A(f'''
    v_and_b32 v{t+7}, 8, v1
    v_lshlrev_b32 v{t+7}, 28, v{t+7}
    v_xor_b32 v{SLI}, v{t+7}, v{t}
    v_add_f32 v{A1}, v{t+1}, v{t+1}
    v_xor_b32 v{A1}, v{t+7}, v{A1}
    v_mul_f32 v{A2c}, -2.0, v{t+2}
    ''')
    csq(A, LR, t, L16R, SL16I, t+3)
    for _ in range(3): csq(A, L16R, SL16I, L16R, SL16I, t+3)
    A(f'v_xor_b32 v{SL16I}, v{t+7}, v{SL16I}')
def get_tag():
    vm.wait('tag')
    slow = newlab('TAGSLOW'); back = newlab('TAGBACK')
    A(f'v_readfirstlane_b32 {TAG}, v15\ns_cmp_eq_u32 {TAG}, 0\ns_cbranch_scc1 {slow}')
    A.lab(back)
    cold.append(f'''{slow}:
    s_sub_u32 s23, s23, 1
    s_cbranch_scc1 {back}
    s_sleep {P('SLP', 1)}
    buffer_load_dword v15, off, {DBG}, 0 sc1
    s_waitcnt vmcnt(0)
    v_readfirstlane_b32 {TAG}, v15
    s_cmp_eq_u32 {TAG}, 0
    s_cbranch_scc1 {slow}
    s_branch {back}''')

def k1_dma(g, n, ready=0):
    pre = f's_add_u32 s12, s32, {n*64*9216 + g*128}\n'
    bg.push_m(pre + dma_txt(0, 's[24:27]', 's12', f's_add_u32 m0, s81, {8192*n}'), f'w{g}_{n}', 1, ready)
    bg.push_m(pre + dma_txt(0, 's[36:39]', 's12', f's_add_u32 m0, s81, {UREG+8192*n}'), f'w{g}_{n}', 1, ready)
def k1_xload(ks, ready=0):
    if ks < 4: t = f'buffer_load_dwordx4 {vr(XR+4*ks,4)}, v3, {WS}, s40 offen offset:{ks*1024}{LSC}'
    else: t = f's_add_u32 s12, s40, {ks*1024}\nbuffer_load_dwordx4 {vr(XR+4*ks,4)}, v3, {WS}, s12 offen{LSC}'
    bg.push_m(t, f'x{ks}', 1, ready)
def k1_dma_g2(part, ready=0):
    sd = 's[24:27]' if part == 0 else 's[36:39]'
    base = 0 if part == 0 else G2U
    sk = newlab('G2X')
    bg.push_m(f's_cmp_ge_u32 s7, 2\ns_cbranch_scc1 {sk}\ns_add_u32 s12, s41, {16*32*9216}\n' + dma_txt(4, sd, 's12', f's_add_u32 m0, s81, {base+16384}') + f'@@LAB {sk}', f'g2_{part}', 0, ready)
    for i in range(2):
        bg.push_m(f's_add_u32 s12, s41, {i*8*32*9216}\n' + dma_txt(4, sd, 's12', f's_add_u32 m0, s81, {base+8192*i}'), f'g2_{part}', 1, ready)


XS = [16384, 90144, 24576, 98336, 32768, 106528, 40960, 114720, 49152]
B8L = 122912; STG = 57344
U = 208; CR = 224; XA = 224; BS8 = 228; STT = 232; ONES = 236; BS = 240; PAR = 250
scan_items = []
def phase_a():
    A(f"""
    s_cmp_ge_u32 s2, 256
    s_cbranch_scc1 K_END
    {"s_lshr_b32 s3, s2, 5" if P('SCR', 0) else ""}
    {"s_lshl_b32 s2, s2, 3" if P('SCR', 0) else ""}
    {"s_or_b32 s2, s2, s3" if P('SCR', 0) else ""}
    {"s_and_b32 s2, s2, 255" if P('SCR', 0) else ""}
    s_load_dwordx16 s[16:31], s[0:1], 0
    s_load_dwordx8 s[36:43], s[0:1], 80
    s_load_dwordx4 s[44:47], s[0:1], 112
    v_and_b32 v1, 63, v0
    v_lshrrev_b32 v2, 6, v0
    s_and_b32 s3, s2, 7
    s_lshr_b32 s4, s2, 3
    v_readfirstlane_b32 s7, v2
    s_lshr_b32 s5, s4, 3
    s_lshl_b32 s8, s3, 2
    s_add_u32 s5, s5, s8
    s_and_b32 s6, s4, 7
    s_lshr_b32 s8, s3, 2
    s_lshl_b32 s8, s8, 2
    s_lshr_b32 s9, s4, 3
    s_add_u32 s8, s8, s9
    s_and_b32 s9, s3, 3
    s_lshl_b32 s9, s9, 3
    s_add_u32 s9, s9, s6
    s_lshl_b32 s10, s8, 3
    s_add_u32 s10, s10, s7
    v_lshlrev_b32 v3, 4, v1
    v_lshrrev_b32 v4, 3, v1
    v_and_b32 v5, 7, v1
    v_add_u32 v6, 1024, v3
    v_cmp_gt_u32 vcc, 8, v1
    v_mov_b32 v7, 0x3ffffff0
    s_lshl_b32 s11, s5, 3
    s_add_u32 s11, s11, s6
    v_cndmask_b32 v6, v7, v6, vcc
    s_lshl_b32 s33, s11, 3
    s_add_u32 s33, s33, s7
    s_mul_i32 s13, s33, 1152
    v_mul_u32_u24 v8, 1152, v4
    v_bfe_u32 v9, v4, 1, 1
    s_and_b32 s14, s7, 6
    v_xor_b32 v9, s14, v9
    v_xor_b32 v9, v9, v5
    v_lshl_add_u32 v9, v9, 4, v8
    v_lshrrev_b32 v10, 1, v4
    v_xor_b32 v10, v10, v5
    v_lshl_add_u32 v10, v10, 4, v8
    v_xor_b32 v11, 64, v10
    s_lshl_b32 s14, s7, 6
    s_and_b32 s14, s14, 64
    v_xor_b32 v12, s14, v10
    s_lshl_b32 s14, s5, 3
    s_add_u32 s14, s14, s7
    s_mul_i32 s34, s14, {8*1152}
    s_lshl_b32 s14, s6, 3
    s_add_u32 s35, s14, s7
    s_mul_i32 s35, s35, {8*1152}
    s_add_u32 s80, s6, 64
    s_mul_i32 s80, s80, {8*1152}
    s_lshr_b32 s14, s7, 1
    s_lshl_b32 s14, s14, 7
    s_add_u32 s80, s80, s14
    s_lshl_b32 s81, s7, 10
    s_lshl_b32 s82, s7, 11
    s_waitcnt lgkmcnt(0)
    """)
    S(True); S(force=True)
    if P('PRIO', 0): A(f"s_cmp_{'ge' if P('PRIO',0)==1 else 'lt'}_u32 s7, 4\ns_cbranch_scc0 NOPRIO\ns_setprio 1"); A.lab('NOPRIO')
    XRW = 80; XNR = 88; MR_ = 96; T0 = 100
    srd(A, 56, 16, 2359296)
    A(f'buffer_load_dwordx4 {vr(XRW,4)}, v3, s[56:59], s13 offen\nbuffer_load_dwordx4 {vr(XRW+4,4)}, v6, s[56:59], s13 offen')
    vm.add('xr', 2)
    srd(A, 60, 22, 663552); srd(A, 64, 24, 663552)
    A("""
    s_and_b32 s14, s7, 1
    s_cselect_b32 s68, s24, s22
    s_cselect_b32 s69, s25, s23
    s_mov_b32 s70, 663552
    s_mov_b32 s71, 0x20000
    s_mov_b32 s23, 100000
    """)
    def bsg(n): return 112 + 8*n if n < 8 else 88
    def b8(i):
        t = f's_add_u32 s12, s80, {512*i}\n' + dma_txt(12, 's[68:71]', 's12', f's_add_u32 m0, s81, {B8L+8192*i}')
        if i < 2: bg.push_m(t, f'b8_{i}', 1)
        else:
            sk = newlab('B8X'); bg.push_m(f's_cmp_ge_u32 s7, 2\ns_cbranch_scc1 {sk}\n' + t + f'@@LAB {sk}', 'b8_2', 0)
    def a2q(n):
        bg.push_m(f's_add_u32 s12, s34, {128*n}\n' + dma_txt(9, 's[56:59]', 's12', f's_add_u32 m0, s81, {XS[n]}'), f'ax{n}', 1)
        bg.push_m(f'buffer_load_dwordx4 {vr(bsg(n),4)}, v10, s[60:63], s35 offen offset:{128*n}', f'ab{n}', 1, 2 if n == 8 else 0)
        bg.push_m(f'buffer_load_dwordx4 {vr(bsg(n)+4,4)}, v11, s[64:67], s35 offen offset:{128*n}', f'ab{n}', 1)
    if P('BT', 1):
        A(f"""
        s_cmp_lt_u32 s2, 128
        s_cselect_b32 s76, s60, s64
        s_cselect_b32 s77, s61, s65
        s_mov_b32 s78, 663552
        s_mov_b32 s79, 0x20000
        s_and_b32 s12, s2, 127
        s_lshl_b32 s12, s12, 3
        s_add_u32 s12, s12, s7
        s_mul_i32 s12, s12, 648
        s_and_b32 s12, s12, 0xffffff80
        v_lshlrev_b32 v13, 7, v1
        s_mov_b64 exec, 0x7f
        buffer_load_dword v111, v13, s[76:79], s12 offen
        s_mov_b64 exec, -1
        """)
        vm.add('bt')
    a2q(0); b8(0); a2q(1)
    bg.emit_m(4)
    if P('CPF', 1):
        A(f"""
        s_cmp_lg_u32 s7, 5
        s_cbranch_scc1 NOCPF
        s_getpc_b64 s[76:77]
        """)
        A.lab('PCREF')
        A(f"""
        s_and_b32 s76, s76, 0xffffff80
        s_mov_b32 s78, K_LAST-PCREF
        s_mov_b32 s79, 0x20000
        s_lshl_b32 s14, s4, 11
        v_lshlrev_b32 v13, 7, v1
        s_mov_b64 exec, 0xffff
        buffer_load_dword v111, v13, s[76:79], s14 offen
        s_mov_b64 exec, -1
        """)
        A.lab('NOCPF')
    srd(A, 72, 44, 256)
    A(f"""
    s_or_b32 s14, s2, s7
    s_cmp_lg_u32 s14, 0
    s_cbranch_scc1 NOTAG
    s_memrealtime s[84:85]
    s_waitcnt lgkmcnt(0)
    s_mul_i32 s14, s84, 0x9E3779B1
    s_or_b32 s14, s14, 1
    v_mov_b32 v8, s14
    s_mov_b64 exec, 1
    buffer_store_dword v8, off, {DBG}, 0 sc1
    s_mov_b64 exec, -1
    """)
    A.lab('NOTAG')
    srd(A, 48, 46, 0x10000000); srd(A, 52, 42, 4718592)
    if P('TLB', 0):
        sh = P('TLB', 0)
        A(f"""
        s_cmp_lg_u32 s7, 4
        s_cbranch_scc1 NOTLB
        v_lshlrev_b32 v13, {sh}, v1
        s_lshl_b32 s14, s4, {sh+6}
        s_and_b32 s14, s14, 0x3ffffff
        buffer_load_dword v111, v13, {WS}, s14 offen
        buffer_load_dword v111, v13, {OUT}, s14 offen
        """)
        A.lab('NOTLB')
    U1 = 224; BS1 = 240
    AD = 196
    def setup():
        A(f"""
        v_and_b32 v13, 15, v1
        v_lshrrev_b32 v14, 4, v1
        v_bfe_u32 v2, v1, 1, 3
        v_xor_b32 v2, v2, v14
        v_lshlrev_b32 v2, 4, v2
        v_lshl_add_u32 v8, v13, 7, v2
        v_bfe_u32 v14, v1, 2, 2
        v_lshlrev_b32 v14, 11, v14
        v_and_b32 v13, 3, v1
        v_lshl_add_u32 v14, v13, 7, v14
        v_add_u32 v{AD}, v14, v2
        v_xor_b32 v{AD+1}, 64, v{AD}
        v_add_u32 v{AD+2}, 90144, v{AD}
        v_add_u32 v{AD+3}, 90144, v{AD+1}
        s_lshr_b32 s14, s7, 2
        s_lshl_b32 s14, s14, 6
        v_xor_b32 v{AD+8}, s14, v8
        v_add_u32 v{AD+8}, {B8L}, v{AD+8}
        v_xor_b32 v{AD+4}, s14, v{AD}
        s_and_b32 s14, s7, 3
        s_lshl_b32 s14, s14, 9
        v_add_u32 v{AD+4}, s14, v{AD+4}
        v_add_u32 v{AD+5}, 90144, v{AD+4}
        s_add_u32 s14, s82, {STG}
        v_add_u32 v192, s14, v8
        v_xor_b32 v193, 64, v192
        v_add_u32 v194, s14, v3
        v_mov_b32 v{ONES}, 0x3f803f80
        v_mov_b32 v{ONES+1}, 0x3f803f80
        v_mov_b32 v{ONES+2}, 0x3f803f80
        v_mov_b32 v{ONES+3}, 0x3f803f80
        s_mov_b32 s83, 0x3f803f80
        s_lshl_b32 s14, s6, 3
        v_add_u32 v14, s14, v5
        v_add_u32 v14, 512, v14
        s_add_u32 s14, s14, s7
        s_lshl_b32 s14, s14, 3
        v_add_u32 v13, s14, v5
        v_lshlrev_b32 v108, 1, v13
        v_lshlrev_b32 v109, 1, v14
        s_lshr_b32 s14, s9, 2
        s_mul_i32 s14, s14, 1152
        s_cmp_lt_u32 s2, 128
        s_cselect_b32 s76, s36, s38
        s_cselect_b32 s77, s37, s39
        s_mov_b32 s78, {576*9216}
        s_mov_b32 s79, 0x20000
        s_add_u32 s24, s36, s14
        s_addc_u32 s25, s37, 0
        s_sub_u32 s26, {576*9216}, s14
        s_mov_b32 s27, 0x20000
        s_add_u32 s36, s38, s14
        s_addc_u32 s37, s39, 0
        s_mov_b32 s38, s26
        s_mov_b32 s39, 0x20000
        s_and_b32 s14, s9, 3
        s_lshl_b32 s32, s14, 8
        s_mul_i32 s41, s7, {8*9216}
        s_add_u32 s32, s32, s41
        s_mul_i32 s40, s10, 36864
        v_bfe_u32 v0, v1, 2, 3
        v_mul_u32_u24 v0, 9216, v0
        v_lshrrev_b32 v13, 5, v1
        v_lshl_add_u32 v0, v13, 6, v0
        v_and_b32 v13, 3, v1
        v_lshl_add_u32 v0, v13, 4, v0
        v_lshlrev_b32 v110, 7, v1
        v_min_u32 v110, {14*128 if P('TOUCH', 1) == 4 else 41*128}, v110
        s_and_b32 s14, s2, 127
        s_lshl_b32 s14, s14, 3
        s_add_u32 s14, s14, s7
        s_mul_i32 s41, s14, {1728 if P('TOUCH', 1) == 4 else 5184}
        s_and_b32 s41, s41, 0xffffff80
        s_lshl_b32 s14, s7, 4
        s_add_u32 s14, s14, {TB}
        v_lshl_add_u32 v{AD+6}, v1, 7, s14
        s_add_u32 s14, s81, {TB}
        v_add_u32 v{AD+7}, s14, v3
        v_lshlrev_b32 v{AD+9}, 9, v4
        v_lshl_add_u32 v{AD+9}, v5, 4, v{AD+9}
        s_lshr_b32 s42, s11, 2
        s_mul_i32 s42, s42, 36864
        s_and_b32 s14, s6, 3
        s_lshl_b32 s14, s14, 7
        s_add_u32 s42, s42, s14
        s_lshl_b32 s14, s7, 12
        s_add_u32 s42, s42, s14
        s_lshl_b32 s43, s33, 3
        s_add_u32 s43, s43, {STAT_OFF}
        v_lshlrev_b32 v17, 2, v1
        v_and_b32 v16, 31, v17
        v_and_b32 v17, 127, v17
        s_lshl_b32 s14, s8, 7
        v_add_u32 v17, s14, v17
        s_lshl_b32 s14, s5, 5
        v_add_u32 v16, s14, v16
        v_cmp_lt_u32 vcc, 31, v1
        s_mov_b32 s33, {FX_OFF}
        s_nop 0
        v_cndmask_b32 v17, v17, v16, vcc
        """)
    a2q(2); a2q(3)
    valu_with_vmem(capture(setup), every=P('A0EVERY', 10))
    b8(1)
    bg.push_m(f'global_load_ushort v{PAR}, v108, s[18:19]\nglobal_load_ushort v{PAR+1}, v108, s[20:21]\nglobal_load_ushort v{PAR+2}, v108, s[30:31]', 'par', 3)
    bg.push_m(f'global_load_ushort v{PAR+3}, v109, s[18:19]\nglobal_load_ushort v{PAR+4}, v109, s[20:21]\nglobal_load_ushort v{PAR+5}, v109, s[30:31]', 'par', 3)
    bg.push_m(f'buffer_load_dword v15, off, {DBG}, 0 sc1', 'tag', 1)
    def tpart(i): bg.push_m(f's_add_u32 s12, s41, {i*192*9216}\ns_mov_b64 exec, 0x7fff\nbuffer_load_dword v111, v110, s[76:79], s12 offen\ns_mov_b64 exec, -1', 'touch', 1)
    T4 = P('TOUCH', 1) == 4; TP = os.environ.get('TP', '047')
    for n_ in range(4, 9):
        if T4 and str(n_ - 4) in TP: tpart((2, 1, 0)[TP.index(str(n_ - 4))])
        if n_ == 8: b8(2)
        a2q(n_)
    if T4 and '5' in TP: tpart((2, 1, 0)[TP.index('5')])
    k1_dma(0, 0)
    if T4 and '6' in TP: tpart((2, 1, 0)[TP.index('6')])
    k1_dma(0, 1)
    if T4 and '7' in TP: tpart((2, 1, 0)[TP.index('7')])
    if P('TOUCH', 1) == 1: bg.push_m('buffer_load_dword v111, v110, s[76:79], s41 offen', 'touch', 1)
    if P('TOUCH', 1) == 2: bg.m.insert(0, (0, 'buffer_load_dword v111, v110, s[76:79], s41 offen', 'touch', 1))
    def a1():
        for q in range(8):
            c0 = '0' if q == 0 else f'v{MR_}'; c1 = '0' if q == 0 else f'v{MR_+1}'
            A(f'v_dot2_f32_bf16 v{MR_}, v{XRW+q}, s83, {c0}\nv_dot2_f32_bf16 v{MR_+1}, v{XRW+q}, v{XRW+q}, {c1}')
        A('s_nop 2')
        for pat in ('quad_perm:[1,0,3,2] row_mask:0xf', 'quad_perm:[2,3,0,1] row_mask:0xf', 'row_half_mirror row_mask:0xf', 'row_mirror row_mask:0xf',
                    'row_bcast:15 row_mask:0xa', 'row_bcast:31 row_mask:0xc'):
            A(f'v_add_f32_dpp v{MR_}, v{MR_}, v{MR_} {pat} bank_mask:0xf\nv_add_f32_dpp v{MR_+1}, v{MR_+1}, v{MR_+1} {pat} bank_mask:0xf\ns_nop 0')
        A(f'v_readlane_b32 s44, v{MR_}, 63\nv_readlane_b32 s45, v{MR_+1}, 63\ns_nop 1\nv_mov_b32 v{MR_}, s44\nv_mov_b32 v{MR_+1}, s45')
        ln_stats(MR_, MR_+2)
        A(f's_mov_b32 s44, 0xffff0000\nv_sub_f32 v18, 0, v{MR_}\nv_sub_f32 v19, 0, v{MR_}\nv_mov_b32 v20, v{MR_+1}\nv_mov_b32 v21, v{MR_+1}')
        for h in range(2):
            for q in range(4):
                x = XRW+4*h+q; a = T0+2*q
                A(f'v_lshlrev_b32 v{a}, 16, v{x}\nv_and_b32 v{a+1}, s44, v{x}')
            for q in range(4):
                a = T0+2*q; A(f'v_pk_add_f32 {vr(a,2)}, {vr(a,2)}, v[18:19]')
            for q in range(4):
                a = T0+2*q; A(f'v_cvt_pk_bf16_f32 v{a+1}, v{a}, v{a+1}')
            for q in range(4):
                a = T0+2*q; A(f'v_lshlrev_b32 v{a}, 16, v{a+1}\nv_and_b32 v{a+1}, s44, v{a+1}')
            for q in range(4):
                a = T0+2*q; A(f'v_pk_mul_f32 {vr(a,2)}, {vr(a,2)}, v[20:21]')
            for q in range(4):
                a = T0+2*q; A(f'v_cvt_pk_bf16_f32 v{XNR+4*h+q}, v{a}, v{a+1}')
    vm.wait('xr'); S(z='a2')
    a1l = capture(a1)
    NPRE = P('A1PRE', 1000); TBN = P('TBN', 0); FLN = P('FLN', 4)
    valu_with_vmem(a1l[:NPRE], every=P('A1EVERY', 12))
    it = a1l[NPRE:]
    it.append(('ds', f'ds_write_b128 v{AD+6}, {vr(XNR,4)}', 'tbw'))
    it.append(('ds', f's_mov_b64 exec, 0xff\nds_write_b128 v{AD+6}, {vr(XNR+4,4)} offset:8192\ns_mov_b64 exec, -1', 'tbw'))
    it.append(('vm', f's_mov_b64 exec, 1\nbuffer_store_dwordx2 {vr(MR_,2)}, off, {WS}, s43 sc1\ns_mov_b64 exec, -1', 'xn', 1))
    bg.push_v(it)
    E = 72
    def reads(sg):
        n = sg // 2; sp = sg % 2; F = 24 + 16*(sg % 3)
        xo = XS[n] if n % 2 == 0 else XS[n] - 90144
        for t in range(4): A(f'ds_read_b128 {vr(F+4*t,4)}, v{AD+2*(n%2)+sp} offset:{xo+512*t}')
        lg.add(f'r{sg}', 4)
    def ereads(n):
        xo = XS[n] if n % 2 == 0 else XS[n] - 90144
        A(f'ds_read_b128 {vr(E,4)}, v{AD+4+(n%2)} offset:{xo}\nds_read_b128 {vr(E+4,4)}, v{AD+8} offset:{2048*n}'); lg.add(f'e{n}', 2)
    def bswap(n):
        bg.flush_m(f'ab{n}'); vm.wait(f'ab{n}')
        Fb = 176 + 8*(n % 2)
        A(f'ds_write_b128 v194, {vr(bsg(n),4)}\nds_write_b128 v194, {vr(bsg(n)+4,4)} offset:1024')
        A(f'ds_read_b128 {vr(Fb,4)}, v192\nds_read_b128 {vr(Fb+4,4)}, v193'); lg.add(f'b{n}', 4)
    def xn_out():
        sk = newlab('NOXN8')
        A(f'ds_read_b128 {vr(XRW,4)}, v{AD+7}'); lg.add('tbr')
        A(f's_cmp_lg_u32 s7, 0\ns_cbranch_scc1 {sk}\nds_read_b128 {vr(XRW+4,4)}, v{AD+7} offset:8192\ns_add_u32 s12, s42, 32768\ns_waitcnt lgkmcnt(0)\nbuffer_store_dwordx4 {vr(XRW+4,4)}, v{AD+9}, {WS}, s12 offen sc1')
        A.lab(sk)
        bg.push_v([('lgw', 'tbr'), ('vm', f'buffer_store_dwordx4 {vr(XRW,4)}, v{AD+9}, {WS}, s42 offen sc1', 'xn', 1)])
        bg.push_v([('vmw', 'par')] + capture(lambda: unit_consts(PAR, T0)), 7)
    if TBN == 0: bg.emit_v(10**9); lg.wait('tbw')
    bg.flush_m('ax0', 'ax1', 'b8_0'); vm.wait('ax0', 'ax1', 'b8_0')
    A('s_barrier'); S(); S(z='a2')
    if TBN == 0: xn_out()
    bswap(0); reads(0); reads(1)
    VG = P('A2VG', 2); PXS = P('PXS', 15)
    for sg in range(18):
        n = sg // 2; sp = sg % 2; F = 24 + 16*(sg % 3)
        if sg < 16:
            n1 = (sg + 2) // 2
            if (sg + 2) % 4 == 0:
                tags = [f'ax{n1}'] + ([f'ax{n1+1}'] if n1 < 8 else []) + (['b8_1'] if n1 == 4 else [])
                if n1 == TBN: bg.emit_v(10**9); lg.wait('tbw')
                bg.flush_m(*tags, 'b8_2' if n1 == 8 else 'zz'); vm.wait(*tags)
                if n1 == FLN: bg.flush_m('tag'); vm.wait('xn'); get_tag()
                A('s_barrier'); S(z='a2')
                if n1 == TBN: xn_out()
                if n1 == FLN: flag_store(6, f's_lshl_b32 s14, s11, 2\ns_add_u32 s14, s14, {FX_OFF}', 13)
                if n1 >= 4: k1_dma(0, n1 // 2)
            reads(sg + 2)
        if sp == 0: ereads(n)
        lg.wait(f'r{sg}')
        z = (sg == 0)
        if sp == 0: lg.wait(f'b{n}')
        def c(rg, zz=z): return '0' if zz else vr(rg, 4)
        UU = U; BB = BS; BF_ = 176 + 8*(n % 2) + 4*sp
        ms = [f'v_mfma_f32_16x16x32_bf16 {vr(UU+4*t,4)}, {vr(F+4*t,4)}, {vr(BF_,4)}, {c(UU+4*t)}' for t in range(4)]
        ms += [f'v_mfma_f32_16x16x32_bf16 {vr(BB,4)}, {vr(ONES,4)}, {vr(BF_,4)}, {c(BB)}']
        if sp == 1:
            lg.wait(f'e{n}')
            ms += [f'v_mfma_f32_16x16x32_bf16 {vr(XA,4)}, {vr(E,4)}, {vr(E+4,4)}, {c(XA, sg == 1)}', f'v_mfma_f32_16x16x32_bf16 {vr(BS8,4)}, {vr(ONES,4)}, {vr(E+4,4)}, {c(BS8, sg == 1)}']
        for i, m in enumerate(ms):
            A(m)
            bg.emit_v(2, sg)
            if sp == 0 and i == 4 and n < 8: bswap(n + 1)
            if i % VG == VG - 1: bg.emit_m(1, sg)
        if sg == PXS: bg.m.insert(0, (0, lambda: poll_issue(16, 17, 's33', 'pfx'), 'pfx', 0))
        if sg == PXS + 2:
            bg.flush_m('pfx'); poll_check(16, 17, 's33', 'pfx')
            A(f'v_lshlrev_b32 v22, 3, v1\ns_lshl_b32 s12, s5, 9\ns_add_u32 s12, s12, {STAT_OFF}\nbuffer_load_dwordx2 v[18:19], v22, {WS}, s12 offen sc1'); vm.add('stl')
            for ks in range(16): k1_xload(ks, 2*(ks//2) - 1)
    bg.emit_v(10**9)
    S(); S(z='a2')
    A(f"""
    s_nop 3
    s_add_u32 s14, s81, {EX_T}
    v_add_u32 v14, s14, v3
    s_lshl_b32 s14, s7, 8
    s_add_u32 s14, s14, {EX_B}
    v_lshl_add_u32 v2, v1, 2, s14
    ds_write_b128 v14, {vr(XA,4)}
    ds_write_b32 v2, v{BS8}
    """)
    bg.flush_m('w0_0', 'w0_1', 'touch'); vm.wait('w0_0', 'w0_1'); vm.wait('touch') if P('TOUCH', 1) in (1, 2, 4) else None
    A('s_waitcnt lgkmcnt(0)\ns_barrier'); lg.q = []
    S(z='a3')
    k1_dma(0, 5); k1_dma(0, 6)
    bg.m = [(0,) + tuple(t[1:]) for t in bg.m]
    bg.emit_m(2)
    LR, SLI, A1, A2c, L16R, SL16I = CONSTS
    E0 = 16; T2, T3, EE = 20, 21, 15; W0, W1, W2 = 241, 242, 243; TA, TB_ = 22, 23
    def st2():
        A(f"""
        v_mul_f32 v18, -v18, v19
        s_lshl_b32 s44, s7, 9
        s_add_u32 s44, s44, {EX_R}
        v_lshl_add_u32 v{W0}, v1, 3, s44
        v_lshrrev_b32 v{W1}, 4, v1
        v_lshl_add_u32 v{W2}, v{W1}, 7, s44
        """)
    def fin_items(tg, sc):
        it = []
        for hf in range(2):
            it += [('ds', f'ds_read_b128 {vr(CR+4*k,4)}, v{W2} offset:{64*hf+16*k}', f'{tg}cr{hf}') for k in range(4)]
            if hf == 0 and tg == '':
                it += capture(lambda: A("""
                v_and_b32 v8, 15, v1
                v_lshlrev_b32 v8, 2, v8
                v_add_u32 v9, 64, v8
                v_add_u32 v10, 128, v8
                v_add_u32 v12, 192, v8
                s_mul_i32 s83, s11, 9
                s_add_u32 s83, s83, s7
                """))
            it.append(('lgw', f'{tg}cr{hf}'))
            it += [f'v_mul_f32 v{U+8*hf+k}, v{CR+1+2*k}, v{U+8*hf+k}' for k in range(8)]
            it += [f'v_fmac_f32 v{U+8*hf+k}, v{CR+2*k}, v{BS}' for k in range(8)]
        tt = (TA, TB_)
        it += [f'v_mul_f32 v{tt[0]}, v{A1}, v{U}', f'v_fmac_f32_dpp v{tt[0]}, v{U}, v{A2c} {DPP8}',
               f'v_mul_f32 v{tt[1]}, v{A1}, v{U+1}', f'v_fmac_f32_dpp v{tt[1]}, v{U+1}, v{A2c} {DPP8}', f'v_mov_b32 v{U}, v{tt[0]}']
        for k in range(1, 16):
            t_ = tt[k % 2]; o_ = tt[(k+1) % 2]
            it.append(f'v_fma_f32 v{U+k}, v{LR}, v{U+k-1}, v{t_}')
            if k < 15: it.append(f'v_mul_f32 v{o_}, v{A1}, v{U+k+1}')
            else: it.append('s_nop 0')
            it.append(f'v_fmac_f32_dpp v{U+k}, v{U+k-1}, v{SLI} {DPP8}')
            if k < 15: it.append(f'v_fmac_f32_dpp v{o_}, v{U+k+1}, v{A2c} {DPP8}')
        it += [('ds', f'ds_bpermute_b32 v{E0+g}, v{(8,9,10,12)[g]}, v{U+15}', tg+'bp') for g in range(4)]
        it.append(f's_mul_i32 s45, s83, {H0_UNIT}\ns_add_u32 s45, s45, {H0_OFF}')
        it += [('vm', f'buffer_store_dwordx4 {vr(U+4*k,4)}, v3, {WS}, s45 offen offset:{1024*k}{sc}', tg+'h0', 1) for k in range(4)]
        it.append(('lgw', tg+'bp'))
        ee = EE if tg == '' else 14
        def part2():
            mapply(A, T2, E0, L16R, SL16I, E0+1); mapply(A, T3, T2, L16R, SL16I, E0+2); mapply(A, ee, T3, L16R, SL16I, E0+3)
            A(f'v_mov_b32 v{W0}, 0')
        it += capture(part2)
        for k, r in enumerate((E0, T2, T3)): it.append(f'v_cmp_eq_u32 vcc, {k+1}, v{W1}\ns_nop 1\nv_cndmask_b32 v{W0}, v{W0}, v{r}, vcc')
        it.append(('vm', f'v_lshlrev_b32 v{E0}, 2, v1\ns_add_u32 s12, s45, 4096\nbuffer_store_dword v{W0}, v{E0}, {WS}, s12 offen{sc}', tg+'h0', 1))
        return it
    it = [('vmw', 'stl')] + capture(st2)
    it.append(('ds', f'ds_write_b64 v{W0}, v[18:19]', 'crw'))
    it += fin_items('', os.environ.get('HSC', ''))
    def unit8():
        sv = (list(vm.q), list(bg.v))
        A(f"""
        s_cmp_lg_u32 s7, 7
        s_cbranch_scc1 UNIT_DONE
        s_add_u32 s83, s83, 1
        v_add_u32 v{W0}, {EX_T}, v3
        v_lshlrev_b32 v{E0}, 2, v1
        v_add_u32 v{E0}, {EX_B}, v{E0}
        """)
        for t in range(4):
            A(f'ds_read_b128 {vr(U+4*t,4)}, v{W0} offset:{1024*t}\nds_read_b128 {vr(CR+4*t,4)}, v{W0} offset:{1024*(t+4)}')
        A(f'ds_read_b32 v{BS}, v{E0}\nds_read_b32 v{W0}, v{E0} offset:1024')
        unit_consts(PAR+3, 16)
        A('s_waitcnt lgkmcnt(0)')
        for k in range(16): A(f'v_add_f32 v{U+k}, v{U+k}, v{CR+k}')
        A(f'v_add_f32 v{BS}, v{BS}, v{W0}')
        lq = list(lg.q); lg.q = []
        bg.v = []; bg.push_v(fin_items('u8', ' sc1')); bg.emit_v(10**9)
        A('s_sub_u32 s83, s83, 1')
        A.lab('UNIT_DONE')
        lg.q = lq; vm.q, bg.v = sv
    if not P('NOU8', 0): it.append(('call', unit8))
    if P('NOSCAN', 0): it = [x for x in it if not isinstance(x, str) or x.startswith('s_') or 'v_lshl' in x or 'v_and_b32 v8' in x or 'v_add_u32' in x or 'v_lshr' in x]
    it.append(('call', lambda: scan_done.append(1)))
    scan_items.extend(it)
    S(); S(z='a3')
scan_done = []

FA = 168; FT_ = 199
def phase_k1():
    KS1 = P('KS1', 24); HD = 4; LOOK = 4
    seq = [(ks, fb) for ks in range(KS1) for fb in range(4)]
    seq += [(ks, fb) for fb in range(4) for ks in range(KS1, 36)]
    seq += [(ks, fb) for fb in (4, 5) for ks in range(24)] + [(ks, fb) for fb in (4, 5) for ks in range(24, 36)]
    seq += [(ks, fb) for fb in (6, 7) for ks in range(24)] + [(ks, fb) for fb in (6, 7) for ks in range(24, 36)]
    seq += [(ks, 8) for ks in range(36)]
    N = len(seq)
    P2 = 4*KS1; P3 = P2 + 2*(36-KS1); P4, P5, P6 = 144, 216, 288
    A(f'''
    v_bfe_u32 v13, v1, 4, 1
    v_lshrrev_b32 v14, 5, v1
    v_and_b32 v2, 15, v1
    v_lshlrev_b32 v2, 3, v2
    v_mul_u32_u24 v5, {UREG}, v13
    v_lshl_add_u32 v5, v14, 10, v5
    v_add_u32 v5, v5, v2
    v_and_b32 v6, 12, v1
    v_lshl_add_u32 v5, v6, 3, v5
    v_add_u32 v6, 36864, v5
    ''')
    A(f'v_mul_u32_u24 v7, {G2U}, v13\nv_lshl_add_u32 v7, v14, 8, v7\nv_add_u32 v7, v7, v2')
    setup2 = capture(lambda: A(f'''
    v_lshrrev_b32 v4, 1, v1
    v_mul_u32_u24 v4, 9216, v4
    v_and_b32 v13, 1, v1
    v_lshl_add_u32 v4, v13, 4, v4
    s_mul_i32 s41, s7, {32*9216}
    s_and_b32 s13, s9, 3
    s_lshl_b32 s13, s13, 5
    s_add_u32 s41, s41, s13
    s_add_u32 s41, s41, 1024
    s_mov_b32 s42, {f32(-2.302208198*0.044715)}
    v_mov_b32 v11, {f32(-2.302208198)}
    s_lshr_b32 s14, s9, 2
    s_mul_i32 s14, s14, 9
    s_and_b32 s13, s9, 3
    s_lshl_b32 s34, s13, 1
    s_add_u32 s34, s34, s14
    s_lshl_b32 s34, s34, 12
    s_mul_i32 s43, s10, 294912
    s_add_u32 s43, s43, {HF_OFF}
    s_add_u32 s14, s14, 8
    s_lshl_b32 s14, s14, 12
    s_lshl_b32 s13, s13, 10
    s_add_u32 s14, s14, s13
    s_add_u32 s35, s43, s14
    s_add_u32 s43, s43, s34
    s_lshl_b32 s34, s8, 5
    s_add_u32 s34, s34, s9
    s_lshl_b32 s34, s34, 2
    s_add_u32 s34, s34, {FH_OFF}
    '''))
    bg.push_v(scan_items); bg.push_v(setup2)
    for k in range(16, 24): k1_xload(k)
    if P('TOUCH', 1) == 3: A('v_mov_b32 v13, v110\ns_mov_b32 s46, s41'); bg.push_m('buffer_load_dword v2, v13, s[76:79], s46 offen', 'touch', 1)
    def wread(m):
        ks, fb = seq[m]
        r = WR + 4*(m % NW)
        if fb < 8: ad = 5 if ks < 18 else 6; off = (ks % 18)*2048 + ((fb % 4) >> 1)*512 + (fb & 1)*32; o2 = 256
        else: ad = 7; off = ks*512; o2 = 128
        A(f'ds_read_b64_tr_b16 {vr(r,2)}, v{ad} offset:{off}\nds_read_b64_tr_b16 {vr(r+2,2)}, v{ad} offset:{off+o2}')
        lg.add(f'm{m}', 2)
    busy = set()
    def make_epi(fb):
        a = ACC + 16*(fb % 4); t = TMP
        out = []
        for half in range(2):
            es = range(4*half, 4*half+4)
            for e in es: out.append(f'v_mul_f32 v{t+e%4}, v{a+e}, v{a+e}')
            for e in es: out.append(f'v_fma_f32 v{t+e%4}, v{t+e%4}, s42, v11')
            for e in es: out.append(f'v_mul_f32 v{t+e%4}, v{t+e%4}, v{a+e}')
            for e in es: out.append(f'v_exp_f32 v{t+e%4}, v{t+e%4}')
            for e in es: out.append(f'v_mul_f32 v{a+e}, v{a+e}, v{a+8+e}')
            for e in es: out.append(f'v_add_f32 v{t+e%4}, 1.0, v{t+e%4}')
            for e in es: out.append(f'v_rcp_f32 v{t+e%4}, v{t+e%4}')
            out.append('s_nop 0')
            for e in es: out.append(f'v_mul_f32 v{a+e}, v{a+e}, v{t+e%4}')
            out.append(f'v_cvt_pk_bf16_f32 v{t+4+2*half}, v{a+4*half}, v{a+4*half+1}')
            out.append(f'v_cvt_pk_bf16_f32 v{t+5+2*half}, v{a+4*half+2}, v{a+4*half+3}')
        out.append(('call', lambda: busy.discard(fb % 4)))
        if fb < 4: st = f'buffer_store_dwordx4 {vr(t+4,4)}, v3, {WS}, s43 offen offset:{fb*1024} sc1'
        elif fb < 8: st = f's_add_u32 s12, s43, 4096\nbuffer_store_dwordx4 {vr(t+4,4)}, v3, {WS}, s12 offen offset:{(fb-4)*1024} sc1'
        else: st = f'buffer_store_dwordx4 {vr(t+4,4)}, v3, {WS}, s35 offen sc1'
        out.append(('vm', st, f'h{fb}', 1))
        return out
    def flagH(g): return lambda: flag_store(0, f's_add_u32 s14, s34, {1024*g}', 2)
    def flagE(): flag_store(1, f's_lshl_b32 s14, s6, 5\ns_add_u32 s14, s14, s5\ns_lshl_b32 s14, s14, 2\ns_add_u32 s14, s14, {FE_OFF}', 2)
    def xl(a, b): return lambda: [k1_xload(k) for k in range(a, b)]
    def wd(g, *ns): return lambda: [k1_dma(g, n) for n in ns]
    assert KS1 == 24
    def chk_scan(): assert scan_done
    def estore():
        sk = newlab('E8')
        bg.push_m(f's_lshl_b32 s12, s83, 6\ns_add_u32 s12, s12, {E_OFF}\ns_cmp_lg_u32 s7, 7\ns_cbranch_scc1 {sk}\nbuffer_store_dword v14, v8, {WS}, s12 offen offset:64 sc1@@LAB {sk}@@buffer_store_dword v15, v8, {WS}, s12 offen sc1', 'est', 1)
    def touch2():
        if not P('TOUCH', 1): return
        bg.push_m(f'''s_load_dwordx2 s[76:77], s[0:1], 96
        v_lshlrev_b32 v13, 7, v1
        v_min_u32 v13, {21*128}, v13
        s_lshl_b32 s12, s2, 3
        s_add_u32 s12, s12, s7
        s_mul_i32 s12, s12, 2592
        s_and_b32 s12, s12, 0xffffff80
        s_mov_b32 s78, {4608*1152}
        s_mov_b32 s79, 0x20000
        s_waitcnt lgkmcnt(0)
        buffer_load_dword v9, v13, s[76:79], s12 offen''', 'touch2', 1)
        bg.push_m(f'''s_lshr_b32 s12, s2, 7
        s_lshl_b32 s12, s12, 3
        s_add_u32 s76, s0, s12
        s_addc_u32 s77, s1, 0
        s_load_dwordx2 s[76:77], s[76:77], 40
        v_min_u32 v13, {6*128}, v13
        s_and_b32 s12, s2, 127
        s_lshl_b32 s12, s12, 3
        s_add_u32 s12, s12, s7
        s_mul_i32 s12, s12, 648
        s_and_b32 s12, s12, 0xffffff80
        s_mov_b32 s78, 663552
        s_waitcnt lgkmcnt(0)
        buffer_load_dword v10, v13, s[76:79], s12 offen''', 'touch2', 1)
    sync = {
        32:  (['w0_2', 'w0_3'], [wd(0, 7)]),
        64:  (['w0_4', 'w0_5'], [chk_scan, xl(24, 28), wd(0, 8), xl(28, 36), wd(1, 0, 1, 2)]),
        96:  (['w0_6', 'w0_7'], [wd(1, 3, 4)]),
        104: (['w0_8'], [wd(1, 5), estore, touch2]),
        144: (['w1_0', 'w1_1', 'w1_2', 'w1_3', 'w1_4', 'w1_5'], [wd(1, 6, 7)]),
        150: ([], [wd(1, 8)]),
        192: (['w1_6', 'w1_7', 'w1_8', 'est'], [flagE]),
        P5+20: (['h3'], [flagH(0)]),
        P5+40: ([], [lambda: k1_dma_g2(0)]),
        P5+48: ([], [lambda: k1_dma_g2(1)]),
        P6:  (['g2_0', 'g2_1'], []),
        P6+4: (['h5'], [flagH(1), k2_prefetch]),
    }
    def do_sync(m):
        if m in sync:
            tags, acts = sync[m]
            bg.flush_m(*tags); vm.wait(*tags); A('s_barrier')
            for f in acts: f()
    seen_x = set()
    S()
    for m in range(LOOK): wread(m)
    for n in range(N):
        ks, fb = seq[n]
        if n in (P4, P6): S()
        if n % 32 == 0: S(z='k1')
        if n == P5 + 56: k2_setup()
        if n + LOOK < N:
            do_sync(n + LOOK); wread(n + LOOK)
        if ks not in seen_x:
            seen_x.add(ks); bg.flush_m(f'x{ks}'); vm.wait(f'x{ks}')
        first = (ks == 0)
        if first: assert (fb % 4) not in busy, (n, fb)
        lg.wait(f'm{n}')
        a = ACC + 16*(fb % 4)
        A(f'v_mfma_f32_32x32x16_bf16 {vr(a,16)}, {vr(WR+4*(n%NW),4)}, {vr(XR+4*ks,4)}, {"0" if first else vr(a,16)}')
        if ks == 35:
            busy.add(fb % 4); bg.push_v(make_epi(fb), n + 4)
        if n == P6 + 22: fix_loads('s11', 's7')
        gap = P('G1', 2) if n < P2 else (P('G2', 2) if n < P6 else 1)
        if n % gap == gap - 1: bg.emit_m(1, n)
        rate = P('R0', 5) if n < 64 else (P('R1', 3) if n < P6 else P('P6RATE', 4))
        bg.emit_v(rate, n)
    assert not bg.m
    while busy - {0}: bg.emit_v(4)
    S(); S(z='fx')

def fix_loads(swg, sunit, base=None, sht='s22'):
    base = FA if base is None else base
    pcalc = f's_lshl_b32 s12, s12, 3\ns_add_u32 s12, s12, {sunit}\ns_lshl_b32 s12, s12, 3' if sunit == 's7' else 's_lshl_b32 s12, s12, 3\ns_add_u32 s12, s12, 512'
    pre = f'''s_mul_i32 s16, {swg}, 9
    s_add_u32 s16, s16, {sunit}
    s_mul_i32 s17, s16, {H0_UNIT}
    s_add_u32 s17, s17, {H0_OFF}
    s_and_b32 s12, {swg}, 7
    {pcalc}
    v_and_b32 v{base+30}, 7, v1
    v_add_u32 v{base+28}, s12, v{base+30}
    v_lshlrev_b32 v{base+30}, 1, v{base+28}
    s_lshr_b32 {sht}, {swg}, 3
    s_mul_i32 {sht}, {sht}, {72*2048}
    s_lshl_b32 s12, s12, 8
    s_add_u32 {sht}, {sht}, s12
    s_add_u32 {sht}, {sht}, {HT_OFF}
    global_load_ushort v{base+25}, v{base+30}, s[18:19]
    global_load_ushort v{base+26}, v{base+30}, s[20:21]
    global_load_ushort v{base+27}, v{base+30}, s[30:31]'''
    bg.push_m(pre, 'fx', 3)
    pre2 = f'''s_lshl_b32 s16, s16, 6
    v_lshrrev_b32 v{base+30}, 4, v1
    v_mul_u32_u24 v{base+30}, {8*4608}, v{base+30}
    v_and_b32 v{base+29}, 15, v1
    v_lshl_add_u32 v{base+29}, v{base+29}, 2, s16
    v_sub_u32 v{base+29}, v{base+29}, v{base+30}
    '''
    for i in range(0, 8, 2):
        t = pre2 if i == 0 else ''
        for k in (i, i+1): t += f'v_subrev_u32 v{base+29}, 4608, v{base+29}\nbuffer_load_dword v{base+17+k}, v{base+29}, s[60:63], 0 offen sc1\n'
        bg.push_m(t, 'fx', 2)
    for k in range(4): bg.push_m(f'buffer_load_dwordx4 {vr(base+4*k,4)}, v3, {WS}, s17 offen offset:{1024*k} sc1', 'fx', 1)
    bg.push_m(f'v_lshlrev_b32 v{base+30}, 2, v1\ns_add_u32 s12, s17, 4096\nbuffer_load_dword v{base+16}, v{base+30}, {WS}, s12 offen sc1', 'fx', 1)
def fix_items():
    t = FT_
    LR, LI, SG = t, t+1, t+2
    PR, PI = t+3, t+4; QR, QI = t+5, t+6; L64R, L64I = t+7, t+8
    it = [('vmw', 'fx')]
    def p1():
        lam_consts(A, FA+25, FA+26, FA+27, LR, LI, 0, 0, t+9, t+10, t+11, t+12, need_coef=False)
        A(f'v_and_b32 v{SG}, 8, v1\nv_lshlrev_b32 v{SG}, 28, v{SG}')
        csq(A, LR, LI, t+23, t+24, t+9)
        csq(A, t+23, t+24, PR, PI, t+9)
        A(f'v_xor_b32 v{t+24}, v{SG}, v{t+24}')
        for _ in range(2): csq(A, PR, PI, PR, PI, t+9)
        A(f'v_mov_b32 v{t+13}, v{PR}\nv_mov_b32 v{t+14}, v{PI}')
        csq(A, PR, PI, PR, PI, t+9)
        cmul(A, PR, PI, t+13, t+14, t+15, t+16)
        A(f'v_lshrrev_b32 v{t+21}, 4, v1\nv_mov_b32 v{QR}, 1.0\nv_mov_b32 v{QI}, 0')
    it += capture(p1)
    for k, (a, b) in enumerate(((t+13, t+14), (PR, PI), (t+15, t+16))):
        it.append(f'v_cmp_eq_u32 vcc, {k+1}, v{t+21}\ns_nop 1\nv_cndmask_b32 v{QR}, v{QR}, v{a}, vcc\nv_cndmask_b32 v{QI}, v{QI}, v{b}, vcc')
    def p2():
        A(f'v_xor_b32 v{QI}, v{SG}, v{QI}')
        csq(A, PR, PI, L64R, L64I, t+9)
        csq(A, L64R, L64I, PR, PI, t+9)
        for _ in range(2): csq(A, PR, PI, PR, PI, t+9)
        A(f'v_xor_b32 v{L64I}, v{SG}, v{L64I}\nv_xor_b32 v{PI}, v{SG}, v{PI}\nv_xor_b32 v{LI}, v{SG}, v{LI}')
        for i in range(6, -1, -1): mapply(A, FA+17+i, FA+17+i+1, L64R, L64I, FA+17+i)
        A(f'''
        v_and_b32 v{t+17}, 15, v1
        v_lshlrev_b32 v{t+17}, 2, v{t+17}
        v_add_u32 v{t+18}, 64, v{t+17}
        v_add_u32 v{t+19}, 128, v{t+17}
        v_add_u32 v{t+20}, 192, v{t+17}
        ''')
    it += capture(p2)
    u = newlab('bp')
    for g in range(4): it.append(('ds', f'ds_bpermute_b32 v{FA+18+g}, v{t+17+g}, v{FA+17}', u))
    it.append(('lgw', u))
    def p3():
        for g in (2, 1, 0): mapply(A, FA+18+g, FA+18+g+1, PR, PI, FA+18+g)
        mapply(A, FA+16, FA+18, QR, QI, FA+16)
        G = [FA+17, FA+18, FA+19, FA+20]
        mapply(A, G[0], FA+16, LR, LI, None)
        mapply(A, G[1], FA+16, t+23, t+24, None)
        for k in range(0, 16, 2):
            a0, a1, b0, b1 = (G[0], G[1], G[2], G[3]) if k % 4 == 0 else (G[2], G[3], G[0], G[1])
            A(f'v_add_f32 v{FA+k}, v{FA+k}, v{a0}')
            if k < 14: A(f'v_mul_f32 v{b0}, v{t+23}, v{a0}\nv_mul_f32 v{b1}, v{t+23}, v{a1}')
            A(f'v_add_f32 v{FA+k+1}, v{FA+k+1}, v{a1}')
            if k < 14: A(f'v_fmac_f32_dpp v{b0}, v{a0}, v{t+24} {DPP8}\nv_fmac_f32_dpp v{b1}, v{a1}, v{t+24} {DPP8}')
        for k in range(8): A(f'v_cvt_pk_bf16_f32 v{FA+k}, v{FA+2*k}, v{FA+2*k+1}')
    it += capture(p3)
    it.append(('vm', f'buffer_store_dwordx4 {vr(FA,4)}, v3, {WS}, s22 offen sc1\nbuffer_store_dwordx4 {vr(FA+4,4)}, v3, {WS}, s22 offen offset:1024 sc1', 'ht', 2))
    return it

def k2_setup():
    A(f'''
    s_load_dwordx4 s[68:71], s[0:1], 40
    s_load_dwordx2 s[56:57], s[0:1], 96
    s_load_dwordx2 s[60:61], s[0:1], 120
    s_mul_i32 s14, s3, 30
    s_add_u32 s14, s14, s4
    s_mul_i32 s44, s14, 1366
    s_lshr_b32 s44, s44, 16
    s_mul_i32 s13, s44, 48
    s_sub_u32 s47, s14, s13
    s_mul_i32 s45, s47, 86
    s_lshr_b32 s45, s45, 8
    s_mul_i32 s13, s45, 3
    s_sub_u32 s46, s47, s13
    s_lshl_b32 s14, s45, 2
    s_lshr_b32 s13, s7, 1
    s_add_u32 s14, s14, s13
    s_mul_i32 s76, s14, 294912
    s_and_b32 s9, s7, 1
    s_lshr_b32 s10, s7, 2
    s_add_u32 s76, s76, {HF_OFF}
    s_mul_i32 s83, s7, 3072
    s_add_u32 s83, s83, 16384
    s_mul_i32 s80, s46, 384
    s_lshr_b32 s14, s45, 1
    s_lshl_b32 s32, s14, 7
    s_add_u32 s32, s32, {FH_OFF}
    s_waitcnt lgkmcnt(0)
    s_mov_b32 s58, {4608*1152}
    s_mov_b32 s59, 0x20000
    s_add_u32 s60, s60, {E_OFF}
    s_addc_u32 s61, s61, 0
    s_mov_b32 s62, {E_BYTES}
    s_mov_b32 s63, 0x20000
    v_lshlrev_b32 v15, 2, v1
    v_and_b32 v15, 127, v15
    s_lshl_b32 s33, s6, 7
    s_add_u32 s33, s33, {FE_OFF}
    ''')
    lg.q = []
    for i in range(3):
        A(f'''
        s_and_b32 s13, s7, 3
        s_mul_i32 s13, s13, 192
        s_add_u32 s13, s13, {64*i}
        v_add_u32 v12, s13, v1
        v_mul_u32_u24 v13, 2731, v12
        v_lshrrev_b32 v13, 16, v13
        v_mul_u32_u24 v14, 24, v13
        v_sub_u32 v14, v12, v14
        v_bfe_u32 v12, v13, 1, 1
        v_lshlrev_b32 v12, 2, v12
        v_xor_b32 v14, v14, v12
        v_mul_u32_u24 v13, 1152, v13
        v_lshl_add_u32 v{8+i}, v14, 4, v13
        ''')
    poll_issue(12, 15, 's32', 'pg0')
    poll_issue(13, 15, 's33', 'pfe')
for n_ in range(240): assert (n_*1366) >> 16 == n_//48
for n_ in range(48): assert (n_*86) >> 8 == n_//3
def k2_dma_ffn(n):
    slot = ((n + 1) % 4) * K2S
    def g0(dst, sel):
        return f'''s_add_u32 {dst}, s44, {5*n}
        s_lshr_b32 s12, {dst}, 2
        s_lshl_b32 {dst}, {dst}, 1
        s_add_u32 {dst}, {dst}, s12
        s_lshl_b32 {dst}, {dst}, 1
        s_add_u32 {dst}, {dst}, {sel}
        '''
    def g1(dst, sel):
        return f'''s_add_u32 {dst}, s44, {5*n-32}
        s_lshr_b32 s13, {dst}, 4
        s_and_b32 {dst}, {dst}, 15
        s_lshl_b32 {dst}, {dst}, 1
        s_add_u32 {dst}, {dst}, {sel}
        s_lshr_b32 s12, {dst}, 2
        s_lshl_b32 {dst}, {dst}, 1
        s_add_u32 {dst}, {dst}, s12
        s_lshl_b32 {dst}, {dst}, 1
        s_add_u32 {dst}, {dst}, s13
        s_add_u32 {dst}, {dst}, 2
        '''
    def g2(dst, sel):
        return f's_add_u32 {dst}, s44, {5*n-64}\ns_mul_i32 {dst}, {dst}, 18\ns_add_u32 {dst}, {dst}, 16\ns_add_u32 {dst}, {dst}, {sel}\n'
    def calc(dst, sel):
        lo, hi = 5*n, 5*n + 4
        if hi < 32: return g0(dst, sel)
        if lo >= 32 and hi < 64: return g1(dst, sel)
        if lo >= 64: return g2(dst, sel)
        f1, f2, th = (g0, g1, 32 - lo) if lo < 32 else (g1, g2, 64 - lo)
        return f1('s14', sel) + f2(dst, sel) + f's_cmp_lt_u32 s44, {th}\ns_cselect_b32 {dst}, s14, {dst}\n'
    preW = calc('s73', 's10') + f's_mul_i32 s73, s73, {32*1152}\ns_add_u32 s73, s73, s80\n'
    preH = calc('s72', 's9') + 's_lshl_b32 s72, s72, 11\ns_add_u32 s72, s72, s76\n'
    for i in range(3): bg.push_m((preW if i == 0 else '') + dma_txt(8+i, 's[56:59]', 's73', f's_add_u32 m0, s83, {slot+1024*i}'), f'k{n}', 1)
    bg.push_m(preH + dma_txt(3, WS, 's72', f's_add_u32 m0, s82, {slot}', sc=LSC), f'k{n}', 1)
    bg.push_m(dma_txt(3, WS, 's72', f's_add_u32 m0, s82, {slot}', imm=1024, sc=LSC), f'k{n}', 1)
def k2_dma_ssm(n, m):
    slot = ((n + 1) % 4) * K2S
    e0 = {14: -2, 15: 3, 16: 9, 17: 14}[n]
    sp = 's_cmp_eq_u32 s44, 3\ns_cselect_b32 s73, 8, s73\ns_min_u32 s73, s73, 17\n' if n == 17 else ''
    pre = f'''s_add_i32 s73, s44, {e0}
    {sp}
    s_cmp_lt_u32 s73, 9
    s_cselect_b32 s64, s68, s70
    s_cselect_b32 s65, s69, s71
    s_cselect_b32 s72, 0, 128
    s_cselect_b32 s12, 0, 9
    s_sub_u32 s73, s73, s12
    s_add_u32 s72, s72, s29
    s_lshl_b32 s12, s73, 14
    s_add_u32 s72, s72, s12
    s_lshl_b32 s73, s73, 7
    s_add_u32 s73, s73, s74
    '''
    for i in range(3):
        bg.push_m((pre if i == 0 else '') + f's_add_u32 s12, s73, {i*8*1152}\n' + dma_txt(5 + (i % 2), 's[64:67]', 's12', f's_add_u32 m0, s83, {slot+1024*i}'), f'k{n}', 1)
    bg.push_m(dma_txt(4, WS, 's72', f's_add_u32 m0, s82, {slot}', sc=LSC), f'k{n}', 1)
    bg.push_m(f's_add_u32 s12, s72, {72*2048}\n' + dma_txt(4, WS, 's12', f's_add_u32 m0, s82, {slot+1024}', sc=LSC), f'k{n}', 1)
def k2_prefetch():
    poll_check(13, 15, 's33', 'pfe')
    poll_check(12, 15, 's32', 'pg0')
    for n in range(3): k2_dma_ffn(n)

def phase_k2():
    ACC2 = 64; AF = 24; BF = 32
    BR = [32, 36, 40, 44, 128, 132]
    RA, RB, SA, SB = 224, 226, 232, 234
    VH, VC, VO, VF = 100+142, 243, 245, 246
    A(f'''
    s_and_b32 s14, s44, 3
    s_lshl_b32 s14, s14, 7
    v_xor_b32 v{RA}, s14, v3
    s_and_b32 s13, s7, 3
    s_lshl_b32 s12, s13, 12
    v_add_u32 v{RA}, s12, v{RA}
    v_add_u32 v{RA+1}, {2*K2S}, v{RA}
    v_lshrrev_b32 v12, 5, v1
    v_lshlrev_b32 v13, 2, v12
    v_bfe_u32 v14, v1, 2, 2
    v_add_u32 v13, v13, v14
    v_mul_u32_u24 v13, 384, v13
    v_bfe_u32 v14, v1, 4, 1
    v_lshl_add_u32 v13, v14, 5, v13
    v_and_b32 v14, 3, v1
    v_lshl_add_u32 v13, v14, 3, v13
    v_add_u32 v13, 16384, v13
    v_bfe_u32 v14, v1, 3, 1
    s_lshr_b32 s77, s7, 2
    s_mul_i32 s77, s77, 3
    ''')
    for jj in range(3):
        A(f's_add_u32 s14, s77, {jj}\nv_xor_b32 v2, s14, v14\nv_lshl_add_u32 v{RB+jj}, v2, 6, v13\nv_add_u32 v{RB+3+jj}, {2*K2S}, v{RB+jj}')
    def setup2():
        A(f'''
        v_lshrrev_b32 v252, 5, v1
        v_lshrrev_b32 v253, 4, v1
        v_lshlrev_b32 v254, 2, v252
        v_and_b32 v255, 7, v1
        v_xor_b32 v254, v254, v255
        v_lshlrev_b32 v254, 4, v254
        v_lshrrev_b32 v255, 3, v1
        v_lshl_add_u32 v4, v255, 8, v254
        v_lshrrev_b32 v254, 3, v1
        v_mul_u32_u24 v254, 1152, v254
        v_and_b32 v255, 7, v1
        v_xor_b32 v255, v255, v253
        v_lshl_add_u32 v5, v255, 4, v254
        s_and_b32 s75, s7, 1
        s_lshl_b32 s75, s75, 6
        v_xor_b32 v5, s75, v5
        v_xor_b32 v6, 64, v5
        s_lshl_b32 s29, s7, 11
        s_mul_i32 s75, s45, {2*72*2048}
        s_add_u32 s29, s29, s75
        s_add_u32 s29, s29, {HT_OFF}
        s_mul_i32 s74, s46, 192
        s_mul_i32 s75, s7, 24
        s_add_u32 s74, s74, s75
        s_mul_i32 s74, s74, 1152
        s_mov_b32 s66, 663552
        s_mov_b32 s67, 0x20000
        s_mov_b32 s64, s68
        s_mov_b32 s65, s69
        v_bfe_u32 v253, v1, 1, 1
        s_and_b32 s75, s44, 1
        v_xor_b32 v253, s75, v253
        v_bfe_u32 v254, v1, 4, 1
        s_bfe_u32 s75, s44, 0x10001
        v_xor_b32 v254, s75, v254
        v_lshlrev_b32 v255, 11, v252
        v_lshl_add_u32 v255, v254, 7, v255
        v_mul_u32_u24 v253, 576, v253
        v_add_u32 v255, v255, v253
        v_bfe_u32 v254, v1, 2, 2
        v_lshl_add_u32 v255, v254, 4, v255
        v_and_b32 v254, 1, v1
        v_lshl_add_u32 v255, v254, 3, v255
        s_bfe_u32 s75, s7, 0x10001
        s_lshl_b32 s75, s75, 10
        v_add_u32 v255, s75, v255
        s_and_b32 s75, s7, 1
        s_lshl_b32 s75, s75, 8
        v_add_u32 v{SA}, s75, v255
        v_add_u32 v{SA+1}, {2*K2S}, v{SA}
        v_xor_b32 v244, 64, v{SA}
        v_xor_b32 v245, 64, v{SA+1}
        v_and_b32 v253, 31, v1
        v_bfe_u32 v254, v1, 1, 3
        v_xor_b32 v254, v254, v252
        v_lshlrev_b32 v254, 4, v254
        v_lshl_add_u32 v253, v253, 7, v254
        s_lshl_b32 s75, s77, 12
        s_add_u32 s75, s75, 16384
        v_add_u32 v253, s75, v253
        ''')
        for sp in range(4): A(f'v_xor_b32 v{SB+sp}, {32*sp}, v253\nv_add_u32 v{SB+4+sp}, {2*K2S}, v{SB+sp}')
        A(f'''
        s_lshl_b32 s75, s45, 2
        s_and_b32 s31, s7, 3
        s_add_u32 s75, s75, s31
        s_lshl_b32 s75, s75, 2
        s_and_b32 s31, s44, 3
        s_add_u32 s75, s75, s31
        s_lshl_b32 s30, s75, 6
        s_add_u32 s30, s30, {STAT_OFF}
        s_mul_i32 s31, s75, {8*2304}
        s_mul_i32 s75, s46, 768
        s_add_u32 s31, s31, s75
        s_lshl_b32 s75, s77, 7
        s_add_u32 s31, s31, s75
        v_mul_u32_u24 v7, {4*2304}, v252
        v_and_b32 v255, 31, v1
        v_lshl_add_u32 v7, v255, 2, v7
        s_lshl_b32 s33, s45, 7
        s_add_u32 s33, s33, {FT_OFF}
        s_add_u32 s28, s33, 64
        v_and_b32 v242, 63, v15
        ''')
    global k2_dma_ssm
    def late_flags():
        flag_store(1, 's_add_u32 s14, s34, 3072', 2)
    def ft_flag():
        flag_store(2, f's_lshr_b32 s14, s11, 4\ns_lshl_b32 s14, s14, 7\ns_and_b32 s12, s11, 15\ns_lshl_b32 s12, s12, 2\ns_add_u32 s14, s14, s12\ns_add_u32 s14, s14, {FT_OFF}', 2)
    S(z='fx')
    bg.flush_m('k0')
    vm.wait('k0')
    A('s_barrier')
    A('s_cmp_lt_u32 s4, 30\ns_cbranch_scc1 K2_GO')
    sv = (list(vm.q), list(lg.q), list(bg.v), list(bg.m))
    A(f'v_lshlrev_b32 v14, 2, v1')
    for k in range(4):
        A(f's_mov_b32 s{24+k}, {FE_OFF+256*k}'); poll_issue(24+k, 14, f's{24+k}', f'pall{k}')
    bg.emit_m(1000); bg.emit_v(10**9)
    vm.wait('h7'); A('s_barrier'); flag_store(0, 's_add_u32 s14, s34, 2048', 2)
    bg.push_v(fix_items()); bg.emit_v(10**9)
    for k in range(4): poll_check(24+k, 14, f's{24+k}', f'pall{k}')
    A('''
    s_lshl_b32 s75, s3, 1
    s_add_u32 s75, s75, s4
    s_sub_u32 s75, s75, 30
    s_lshl_b32 s75, s75, 3
    s_add_u32 s75, s75, s7
    s_lshl_b32 s75, s75, 1
    s_add_u32 s73, s75, 1
    s_mov_b32 s74, 8
    ''')
    fix_loads('s75', 's74'); fix_loads('s73', 's74', 112, 's72'); bg.emit_m(1000)
    vm.wait('h8', 'ht'); A('s_barrier')
    late_flags(); ft_flag()
    A.lab('IDLE_LOOP')
    bg.push_v(fix_items()); bg.emit_v(10**9)
    A('s_cmp_eq_u32 s74, 0\ns_cbranch_scc1 IDLE_DONE\ns_mov_b32 s74, 0\ns_mov_b32 s22, s72')
    for k in range(29): A(f'v_mov_b32 v{FA+k}, v{112+k}')
    A('s_branch IDLE_LOOP')
    A.lab('IDLE_DONE')
    A(f'''
    s_lshr_b32 s14, s75, 4
    s_lshl_b32 s14, s14, 7
    s_and_b32 s12, s75, 15
    s_lshl_b32 s12, s12, 2
    s_add_u32 s14, s14, s12
    s_add_u32 s14, s14, {FT_OFF+64}
    v_mov_b32 v12, {TAG}
    v_mov_b32 v13, {TAG}
    s_mov_b64 exec, 1
    s_waitcnt vmcnt(0)
    buffer_store_dwordx2 v[12:13], off, {WS}, s14 sc1
    s_mov_b64 exec, -1
    s_branch K_FIN
    ''')
    vm.q, lg.q, bg.v, bg.m = sv
    A.lab('K2_GO')
    S(); S(z='k2'); S(z='fx')
    bg.v = [(0, it) for _, it in bg.v]
    fi = fix_items()
    if P('NOFIX', 0): fi = [x for x in fi if not isinstance(x, str) or 'v{}'.format(FT_+22) in x or 'v{},'.format(FT_+21) in x or 'v_add_u32' in x or 'v_and_b32' in x or 'v_lshl' in x]
    bg.push_v(fi); bg.push_v(capture(setup2))
    LK = 3
    def slab_ops(n, typ): return [(n, typ, s, jj) for s in range(4) for jj in range(3)]
    def rd(i, op):
        n, typ, s, jj = op
        slot = (n + 1) % 4; hi = slot // 2; so = (slot % 2) * K2S
        ra = AF + 4*(s % 2); r = BR[i % 6]
        if typ == 'f':
            if jj == 0: A(f'ds_read_b128 {vr(ra,4)}, v{RA+hi} offset:{so+1024*s}'); lg.add(f'q{i}')
            off = so + s*16*384
            A(f'ds_read_b64_tr_b16 {vr(r,2)}, v{RB+3*hi+jj} offset:{off}\nds_read_b64_tr_b16 {vr(r+2,2)}, v{RB+3*hi+jj} offset:{off+8*384}'); lg.add(f'q{i}', 2)
        else:
            if jj == 0:
                A(f'ds_read_b64_tr_b16 {vr(ra,2)}, v{SA+hi} offset:{so+4096*s}\nds_read_b64_tr_b16 {vr(ra+2,2)}, v{244+hi} offset:{so+4096*s}'); lg.add(f'q{i}', 2)
            A(f'ds_read_b128 {vr(r,4)}, v{SB+4*hi+s} offset:{so+4096*jj}'); lg.add(f'q{i}')
    def run(ops, i0, i1, variant):
        N = len(ops)
        for i in range(i0, i1):
            n, typ, s, jj = ops[i]
            j = i + LK
            if j < N:
                if j % 12 == 0: ksync(j // 12, variant)
                rd(j, ops[j])
            lg.wait(f'q{i}')
            a = ACC2 + 16*jj
            A(f'v_mfma_f32_32x32x16_bf16 {vr(a,16)}, {vr(AF+4*(s%2),4)}, {vr(BR[i%6],4)}, {"0" if (n == 0 and s == 0) else vr(a,16)}')
            if i % 2 == 1: bg.emit_m(1)
            bg.emit_v(P('K2RATE', 4), i)
            if i % 24 == 23: S(z='k2')
            if i == 9*12 - 1: S()
    def ksync(n, variant):
        if 3 <= n <= 8: S(z='k2b')
        bg.flush_m(f'k{n}'); vm.wait(f'k{n}')
        if n == 2: vm.wait('h7')
        if n == 5: vm.wait('h8')
        if n == 8: vm.wait('ht')
        A('s_barrier')
        if n == 2: flag_store(0, 's_add_u32 s14, s34, 2048', 2)
        if n == 5: late_flags()
        if n == 8: ft_flag()
        nn = n + 2
        if n <= 11: S(z='k2a')
        if 3 <= n <= 8: S(z='k2b')
        if nn == 6: poll_check(12, 15, 's78', 'pg1')
        if nn == 9: poll_check(12, 15, 's79', 'pg1b')
        if nn == 12: poll_check(12, 15, 's8', 'pg2')
        if nn == 14: poll_check(13, 242, 's33', 'pft')
        if nn == 17:
            sk = newlab('NOF8'); vm.wait('pft8')
            A(f's_cmp_lt_u32 s44, 3\ns_cbranch_scc1 {sk}'); poll_check(13, 242, 's28', 'pft8'); A.lab(sk)
        if nn == 3: pass
        elif nn <= 13 or (nn == 14 and variant == 0): k2_dma_ffn(nn)
        elif nn == 14: k2_dma_ssm(14, 3)
        elif nn <= 17: k2_dma_ssm(nn, nn - 15)
        def pq(*args): bg.m.insert(0, (0, lambda: poll_issue(*args), args[3], 0))
        if n == 3: pq(12, 15, 's78', 'pg1')
        if n == 6: pq(12, 15, 's79', 'pg1b')
        if n == 9: pq(12, 15, 's8', 'pg2')
        if n == 11: assert not bg.v, len(bg.v); pq(13, 242, 's33', 'pft')
        if n == 14: pq(13, 242, 's28', 'pft8')
        if n == 13:
            bg.push_m(f'''s_load_dwordx2 s[24:25], s[0:1], 0
            s_load_dwordx2 s[26:27], s[0:1], 64
            v_add_u32 v176, s31, v7
            v_lshrrev_b32 v176, 1, v176
            v_and_b32 v177, 31, v1
            s_mul_i32 s12, s46, 6
            s_add_u32 s12, s12, s77
            s_lshl_b32 s12, s12, 6
            v_lshl_add_u32 v177, v177, 1, s12
            v_lshrrev_b32 v178, 5, v1
            v_lshlrev_b32 v178, 5, v178
            s_waitcnt lgkmcnt(0)
            buffer_load_dwordx4 v[168:171], v178, {WS}, s30 offen sc1
            buffer_load_dwordx4 v[172:175], v178, {WS}, s30 offen offset:16 sc1''', 'base', 2)
            bg.push_m('\n'.join(f'global_load_ushort v{124+jj}, v177, s[26:27] offset:{64*jj}' for jj in range(3)), 'base', 3)
        if n in (14, 15):
            for e in (2*(n-14), 2*(n-14)+1):
                bg.push_m('\n'.join(f'global_load_ushort v{112+4*jj+e}, v176, s[24:25] offset:{1152*e+64*jj}' for jj in range(3)), 'base', 3)
        if n == 16:
            it = [('vmw', 'base'), 's_mov_b32 s13, 0xffff0000']
            for jj in range(3): it.append(f'v_lshlrev_b32 v{124+jj}, 16, v{124+jj}')
            for jj in range(3):
                for e in (0, 2):
                    a0 = 112+4*jj+e; a1 = a0+1; m0, r0, m1, r1 = 168+2*e, 169+2*e, 170+2*e, 171+2*e
                    un = ['v_cvt_pk_bf16_f32 v181, v180, v181', 'v_lshlrev_b32 v180, 16, v181', 'v_and_b32 v181, s13, v181']
                    it += [f'v_lshlrev_b32 v{a0}, 16, v{a0}', f'v_lshlrev_b32 v{a1}, 16, v{a1}', f'v_sub_f32 v180, v{a0}, v{m0}', f'v_sub_f32 v181, v{a1}, v{m1}'] + un
                    it += [f'v_mul_f32 v180, v180, v{r0}', f'v_mul_f32 v181, v181, v{r1}'] + un
                    it += [f'v_mul_f32 v180, v180, v{124+jj}', f'v_mul_f32 v181, v181, v{124+jj}'] + un
                    it += [f'v_add_f32 v{a0}, v{a0}, v180', f'v_add_f32 v{a1}, v{a1}, v181']
            bg.push_v(it, 16*12 + 4)
    ops0 = sum([slab_ops(n, 'f' if n <= 14 else 's') for n in range(18)], [])
    ops1 = sum([slab_ops(n, 'f' if n <= 13 else 's') for n in range(18)], [])
    A('s_add_u32 s78, s32, 1024\ns_add_u32 s79, s32, 2048\ns_add_u32 s8, s32, 3072')
    k2_dma_ffn(3)
    for i in range(LK): rd(i, ops0[i])
    SPLIT = 12*12 - LK
    run(ops0, 0, SPLIT, 0)
    A('s_cmp_ge_u32 s44, 2\ns_cbranch_scc1 K2_V1')
    sv = (list(vm.q), list(lg.q), list(bg.v), list(bg.m)); ns = nstamp[0]
    run(ops0, SPLIT, 216, 0); bg.emit_m(100); rest = list(bg.v); bg.v = []
    A('s_branch K2_J'); A.lab('K2_V1')
    vm.q, lg.q, bg.v, bg.m = sv; nstamp[0] = ns
    run(ops1, SPLIT, 216, 1); bg.emit_m(100); assert rest == bg.v; bg.v = []
    A.lab('K2_J')
    S()
    A(f'''
    s_mul_i32 s35, s47, {16*12288}
    s_mul_i32 s14, s7, 1536
    s_add_u32 s35, s35, s14
    s_add_u32 s35, s35, {PART_OFF}
    v_lshlrev_b32 v2, 3, v1
    s_and_b32 s12, s44, 3
    s_cmp_eq_u32 s44, 4
    s_cselect_b32 s41, 0, 12288
    s_nop 3
    ''')
    def pub(ap):
        r = 136 + 8*ap
        for jj in range(3):
            a = ACC2 + 16*jj + 4*ap
            A(f'v_cvt_pk_bf16_f32 v{r+2*jj}, v{a}, v{a+1}\nv_cvt_pk_bf16_f32 v{r+2*jj+1}, v{a+2}, v{a+3}')
        A(f's_xor_b32 s14, s12, {ap}\ns_mul_i32 s14, s14, {4*12288}\ns_add_u32 s14, s14, s35\ns_mul_i32 s13, s41, {ap}\ns_add_u32 s14, s14, s13')
        A(f'buffer_store_dwordx4 {vr(r,4)}, v3, {WS}, s14 offen sc1\nbuffer_store_dwordx2 {vr(r+4,2)}, v2, {WS}, s14 offen offset:1024 sc1')
    for ap in (1, 2, 3): pub(ap)
    A('s_cmp_lg_u32 s44, 4\ns_cbranch_scc1 NOPUB0')
    pub(0)
    A.lab('NOPUB0')
    if P('PWF', 0):
        A(f'''
    s_lshl_b32 s33, s47, 3
    s_add_u32 s33, s33, s7
    s_lshl_b32 s33, s33, 7
    s_add_u32 s33, s33, {FP_OFF}
    v_min_u32 v14, 4, v1
    v_lshlrev_b32 v14, 2, v14
    s_lshl_b32 s14, s44, 2
    s_add_u32 s14, s14, s33
    v_mov_b32 v12, {TAG}
    s_mov_b64 exec, 1
    s_waitcnt vmcnt(0)
    buffer_store_dword v12, off, {WS}, s14 sc1
    s_mov_b64 exec, -1
    ''')
        vm.q = []; vm.add('fl')
    else:
        A(f'''
    s_lshl_b32 s33, s47, 7
    s_add_u32 s33, s33, {FP_OFF}
    v_min_u32 v14, 4, v1
    v_lshlrev_b32 v14, 2, v14
    s_waitcnt vmcnt(0)
    s_barrier
    ''')
        vm.q = []
        flag_store(0, 's_lshl_b32 s14, s44, 2\ns_add_u32 s14, s14, s33', 12)
    S()
    A('s_cmp_eq_u32 s44, 4\ns_cbranch_scc1 K_FIN')
    if not P('P1W', 0): poll_issue(13, 14, 's33', 'pp')
    A('s_mov_b32 s13, 0xffff0000')
    bg.v = rest; bg.emit_v(10**9)
    for jj in range(3):
        for e in range(4): A(f'v_add_f32 v{ACC2+16*jj+e}, v{ACC2+16*jj+e}, v{112+4*jj+e}')
    A(f's_mul_i32 s14, s44, {4*12288}\ns_add_u32 s14, s14, s35')
    if P('P1W', 0):
        A('s_cmp_lg_u32 s7, 0\ns_cbranch_scc1 PP_W'); poll_issue(13, 14, 's33', 'pp'); poll_check(13, 14, 's33', 'pp'); A.lab('PP_W'); A('s_barrier'); vm.q = []
    else: poll_check(13, 14, 's33', 'pp')
    S()
    for sl in range(4):
        r = 136 + 8*sl
        A(f'buffer_load_dwordx4 {vr(r,4)}, v3, {WS}, s14 offen sc1\nbuffer_load_dwordx2 {vr(r+4,2)}, v2, {WS}, s14 offen offset:1024 sc1')
        if sl < 3: A('s_add_u32 s14, s14, 12288')
    for sl in range(4):
        A(f's_waitcnt vmcnt({2*(3-sl)})')
        r = 136 + 8*sl
        for jj in range(3):
            for h in range(2):
                a = ACC2 + 16*jj + 2*h; p = r + 2*jj + h
                A(f'v_lshlrev_b32 v12, 16, v{p}\nv_and_b32 v13, s13, v{p}\nv_pk_add_f32 {vr(a,2)}, {vr(a,2)}, v[12:13]')
    for e in range(4):
        A(f's_add_u32 s14, s31, {e*2304}')
        for jj in range(3): A(f'buffer_store_dword v{ACC2+16*jj+e}, v7, {OUT}, s14 offen offset:{128*jj}' + os.environ.get('OSC', ''))
    A.lab('K_FIN')
    if STAMP:
        A('s_waitcnt vmcnt(0)'); nstamp[0] = 14; S(force=True); S(True); Sflush()

def main(path):
    hdr = open('parallel_sum__ssm_conv_s5__geglu_ffn__prompt.s.ref').read().split('; Override launch')[0]
    A.raw(hdr.rstrip())
    A.raw('; @launch grid=(256,1,1) block=(512,1,1) lds=163840')
    A.raw('.amdgcn_target "amdgcn-amd-amdhsa--gfx950"\n.text')
    A.raw(f'.globl {NAME}\n.p2align 8\n.type {NAME},@function\n{NAME}:')
    if STAMP:
        for i in range(16): A(f's_mov_b32 s{86+i}, 0')
    phase_a(); phase_k1(); phase_k2()
    A.lab('K_END')
    A('s_endpgm')
    for c in cold: A.raw(c)
    A.lab('K_LAST')
    A('s_endpgm')
    A.raw(f'''.section .rodata,"a"
.p2align 6
.amdhsa_kernel {NAME}
  .amdhsa_next_free_vgpr 256
  .amdhsa_next_free_sgpr 102
  .amdhsa_accum_offset 256
  .amdhsa_group_segment_fixed_size 0
  .amdhsa_kernarg_size 128
  .amdhsa_user_sgpr_count 2
  .amdhsa_user_sgpr_kernarg_segment_ptr 1
  .amdhsa_system_sgpr_workgroup_id_x 1
  .amdhsa_float_denorm_mode_32 3
.end_amdhsa_kernel''')
    open(path, 'w').write('\n'.join(A.L) + '\n')

if __name__ == '__main__':
    main(sys.argv[1] if len(sys.argv) > 1 else 'k3.s')
```

```python
import sys, struct, os
from layout import *
from gen_v1 import f32, LOG2E, INV2PI, Asm, vr, sr, srd, lam_consts, csq, cmul, DPP8, mapply

STAMP = int(os.environ.get('STAMP', '0'))
DBGT = int(os.environ.get('DBGT', '0'))
LSC = ' sc1' if int(os.environ.get('LSC', '1')) else ''
ZOOM = os.environ.get('ZOOM', '')
def P(name, d): return int(os.environ.get(name, d))
A = Asm()
NAME = 'parallel_sum__ssm_conv_s5__geglu_ffn__prompt_kernel'

class Cnt:
    def __init__(self, name, mx): self.q = []; self.ever = set(); self.name = name; self.mx = mx
    def add(self, tag, n=1, virt=False): self.q += [(tag, not virt)]*n; self.ever.add(tag)
    def wait(self, *tags):
        for t in tags: assert t in self.ever, t
        idx = [i for i, t in enumerate(self.q) if t[0] in tags]
        if not idx: return
        last = max(idx); n = sum(1 for t in self.q[last+1:] if t[1])
        if n > self.mx:
            if self.name == 'vmcnt': self.q = self.q[last+1:]; return
            n = self.mx; last = len(self.q) - 1 - n
        A(f's_waitcnt {self.name}({n})')
        self.q = self.q[last+1:]
    def drain(self):
        A(f's_waitcnt {self.name}(0)'); self.q = []
vm = Cnt('vmcnt', 63); lg = Cnt('lgkmcnt', 15)
nstamp = [0]
def S(real=False, z='', force=False):
    if not STAMP: return
    if not (real or force) and z != ZOOM: return
    A(f'{"s_memrealtime" if (real or DBGT) else "s_memtime"} s[84:85]\ns_waitcnt lgkmcnt(0)\ns_mov_b32 s{86+nstamp[0]}, s84')
    nstamp[0] += 1
    assert nstamp[0] <= 16
def Sflush():
    if DBGT:
        A(f's_mov_b64 exec, 1\ns_load_dwordx2 s[72:73], s[0:1], 112\ns_mov_b32 s74, 256\ns_mov_b32 s75, 0x20000\nv_mov_b32 v2, s101\nv_mov_b32 v1, 0\ns_waitcnt lgkmcnt(0)\nbuffer_atomic_umax v2, v1, s[72:75], 0 offen offset:60 sc1')
        A('s_cmp_lg_u32 s2, 5\ns_cbranch_scc1 NODBG\ns_cmp_lg_u32 s7, 0\ns_cbranch_scc1 NODBG')
        for i in range(14): A(f'v_mov_b32 v2, s{87+i}\nbuffer_store_dword v2, v1, s[72:75], 0 offen offset:{4+4*i}')
        A.lab('NODBG')
        return
    A(f's_mov_b64 exec, -1\ns_lshl_b32 s84, s2, 3\ns_add_u32 s84, s84, s7\ns_lshl_b32 s84, s84, 6\ns_add_u32 s84, s84, {STAMP_OFF}\nv_mov_b32 v1, 0')
    for i in range(16):
        A(f'v_mov_b32 v2, s{86+i}\nbuffer_store_dword v2, v1, s[48:51], s84 offen offset:{4*i}')
uid = [0]
def newlab(p):
    uid[0] += 1; return f'{p}_{uid[0]}'

WS = 's[48:51]'; OUT = 's[52:55]'; DBG = 's[72:75]'
TAG = 's15'
cold = []
def poll_issue(vdst, vaddr, soff, tag):
    A(f'buffer_load_dword v{vdst}, v{vaddr}, {WS}, {soff} offen sc1'); vm.add(tag)
def poll_check(vdst, vaddr, soff, tag):
    vm.wait(tag)
    slow = newlab('SLOW'); back = newlab('BACK')
    A(f'v_cmp_ne_u32 vcc, {TAG}, v{vdst}\ns_cbranch_vccnz {slow}')
    A.lab(back)
    cold.append(f'''{slow}:
    s_sub_u32 s23, s23, 1
    s_cbranch_scc1 {back}
    s_sleep {P('SLP', 1)}
    buffer_load_dword v{vdst}, v{vaddr}, {WS}, {soff} offen sc1
    s_waitcnt vmcnt(0)
    v_cmp_ne_u32 vcc, {TAG}, v{vdst}
    s_cbranch_vccnz {slow}
    s_branch {back}''')
def flag_store(wave, spre, vtmp):
    sk = newlab('NOFLAG')
    A(f's_cmp_lg_u32 s7, {wave}\ns_cbranch_scc1 {sk}\n{spre}\nv_mov_b32 v{vtmp}, {TAG}\ns_mov_b64 exec, 1\nbuffer_store_dword v{vtmp}, off, {WS}, s14 sc1\ns_mov_b64 exec, -1')
    A.lab(sk)
def dma_txt(voff, srdn, soff, m0expr, imm=0, sc=''):
    return f'{m0expr}\ns_nop 0\nbuffer_load_dwordx4 v{voff}, {srdn}, {soff} offen{" offset:%d" % imm if imm else ""}{sc} lds'

def capture(f, group=1):
    n0 = len(A.L); f(); out = A.L[n0:]; del A.L[n0:]
    return [l.strip() for l in out]

class BG:
    def __init__(self): self.v = []; self.m = []; self.l = []; self.stag = 0
    def push_v(self, items, ready=0): self.v += [(ready, it) for it in items]
    def push_m(self, text, tag, n=1, ready=0): self.m.append((ready, text, tag, n))
    def emit_v(self, k, now=10**9):
        while k > 0 and self.v and self.v[0][0] <= now:
            it = self.v.pop(0)[1]
            if isinstance(it, str): A(it); k -= it.count('\n') + 1
            elif it[0] == 'vm': A(it[1]); vm.add(it[2], it[3]); k -= 2
            elif it[0] == 'ds': A(it[1]); lg.add(it[2]); k -= 1
            elif it[0] == 'lgw': lg.wait(it[1])
            elif it[0] == 'vmw': self.flush_m(it[1]); vm.wait(it[1])
            elif it[0] == 'call': it[1]()
    def _txt(self, text):
        for part in text.split('@@'):
            if part.startswith('LAB '): A.lab(part[4:])
            else: A(part)
    def emit_late(self, now=10**9):
        while self.l and self.l[0][0] <= now:
            _, text, tag, n = self.l.pop(0)
            sk = newlab('SB'); A(f's_cmp_lt_u32 s7, 4\ns_cbranch_scc1 {sk}'); self._txt(text); A.lab(sk)
            vm.add(tag, 1, virt=True)
    def emit_m(self, k=1, now=10**9):
        self.emit_late(now)
        while k > 0 and self.m and self.m[0][0] <= now:
            _, text, tag, n = self.m.pop(0)
            if callable(text): text()
            elif self.stag and now < 10**9 and n and '@@' not in text and ' lds' in text and not self.nostag(tag):
                sk = newlab('SA'); A(f's_cmp_ge_u32 s7, 4\ns_cbranch_scc1 {sk}'); self._txt(text); A.lab(sk)
                self.l.append((now + self.stag, text, tag, n)); k -= 1; continue
            else: self._txt(text)
            if n: vm.add(tag, n)
            k -= 1
    def nostag(self, tag): return False
    def flush_m(self, *tags):
        while any(t[2] in tags for t in self.m): self.emit_m(1)
        while any(t[2] in tags for t in self.l): self.emit_late(self.l[0][0])
bg = BG()
def valu_with_vmem(lines, every=8):
    for i, l in enumerate(lines):
        if l.endswith(':'): A.lab(l[:-1])
        else: A(l)
        if i % every == every - 1 and not l.startswith('v_cmp') and not l.startswith('s_nop') and not l.startswith('s_'): bg.emit_m(1, 0)

UREG = 73760
A2_B = [16384, 90144, 34816, 108672]
A2_X = [53248, 127104, 61440, 135296]
TB = 147584
EX_T = 147584; EX_B = EX_T + 8192; EX_S = EX_B + 2048; EX_R = 69632
G2U = 18560
K2S = 40960
XR = 112; ACC = 48; WR = 24; NW = 6; TMP = 16
CONSTS = (244, 245, 246, 247, 248, 249)

def ln_stats(r, t):
    inv = f32(1.0/576.0)
    A(f'''
    v_mul_f32 v{r}, {inv}, v{r}
    v_mul_f32 v{r+1}, {inv}, v{r+1}
    v_fma_f32 v{r+1}, -v{r}, v{r}, v{r+1}
    v_max_f32 v{r+1}, 0, v{r+1}
    v_cvt_pk_bf16_f32 v{t}, v{r}, v{r+1}
    v_lshlrev_b32 v{r}, 16, v{t}
    v_and_b32 v{r+1}, 0xffff0000, v{t}
    v_add_f32 v{r+1}, {f32(1e-5)}, v{r+1}
    v_cvt_pk_bf16_f32 v{r+1}, v{r+1}, v{r+1}
    v_lshlrev_b32 v{r+1}, 16, v{r+1}
    v_sqrt_f32 v{r+1}, v{r+1}
    s_nop 0
    v_cvt_pk_bf16_f32 v{r+1}, v{r+1}, v{r+1}
    v_lshlrev_b32 v{r+1}, 16, v{r+1}
    v_rcp_f32 v{r+1}, v{r+1}
    s_nop 0
    ''')
def unit_consts(p, t=232):
    LR, SLI, A1, A2c, L16R, SL16I = CONSTS
    lam_consts(A, p, p+1, p+2, LR, t, t+1, t+2, t+3, t+4, t+5, t+6)
    A(f'''
    v_and_b32 v{t+7}, 8, v1
    v_lshlrev_b32 v{t+7}, 28, v{t+7}
    v_xor_b32 v{SLI}, v{t+7}, v{t}
    v_add_f32 v{A1}, v{t+1}, v{t+1}
    v_xor_b32 v{A1}, v{t+7}, v{A1}
    v_mul_f32 v{A2c}, -2.0, v{t+2}
    ''')
    csq(A, LR, t, L16R, SL16I, t+3)
    for _ in range(3): csq(A, L16R, SL16I, L16R, SL16I, t+3)
    A(f'v_xor_b32 v{SL16I}, v{t+7}, v{SL16I}')
def get_tag():
    vm.wait('tag')
    slow = newlab('TAGSLOW'); back = newlab('TAGBACK')
    A(f'v_readfirstlane_b32 {TAG}, v15\ns_cmp_eq_u32 {TAG}, 0\ns_cbranch_scc1 {slow}')
    A.lab(back)
    cold.append(f'''{slow}:
    s_sub_u32 s23, s23, 1
    s_cbranch_scc1 {back}
    s_sleep {P('SLP', 1)}
    buffer_load_dword v15, off, {DBG}, 0 sc1
    s_waitcnt vmcnt(0)
    v_readfirstlane_b32 {TAG}, v15
    s_cmp_eq_u32 {TAG}, 0
    s_cbranch_scc1 {slow}
    s_branch {back}''')

def k1_dma(g, n, ready=0):
    pre = f's_add_u32 s12, s32, {n*64*9216 + g*128}\n'
    bg.push_m(pre + dma_txt(0, 's[24:27]', 's12', f's_add_u32 m0, s81, {8192*n}'), f'w{g}_{n}', 1, ready)
    bg.push_m(pre + dma_txt(0, 's[36:39]', 's12', f's_add_u32 m0, s81, {UREG+8192*n}'), f'w{g}_{n}', 1, ready)
def k1_xload(ks, ready=0):
    if ks < 4: t = f'buffer_load_dwordx4 {vr(XR+4*ks,4)}, v3, {WS}, s40 offen offset:{ks*1024}{LSC}'
    else: t = f's_add_u32 s12, s40, {ks*1024}\nbuffer_load_dwordx4 {vr(XR+4*ks,4)}, v3, {WS}, s12 offen{LSC}'
    bg.push_m(t, f'x{ks}', 1, ready)
def k1_dma_g2(part, ready=0):
    sd = 's[24:27]' if part == 0 else 's[36:39]'
    base = 0 if part == 0 else G2U
    sk = newlab('G2X')
    bg.push_m(f's_cmp_ge_u32 s7, 2\ns_cbranch_scc1 {sk}\ns_add_u32 s12, s41, {16*32*9216}\n' + dma_txt(4, sd, 's12', f's_add_u32 m0, s81, {base+16384}') + f'@@LAB {sk}', f'g2_{part}', 0, ready)
    for i in range(2):
        bg.push_m(f's_add_u32 s12, s41, {i*8*32*9216}\n' + dma_txt(4, sd, 's12', f's_add_u32 m0, s81, {base+8192*i}'), f'g2_{part}', 1, ready)


XS = [16384, 90144, 24576, 98336, 32768, 106528, 40960, 114720, 49152]
B8L = 122912; STG = 57344
U = 208; CR = 224; XA = 224; BS8 = 228; STT = 232; ONES = 236; BS = 240; PAR = 250
scan_items = []
def phase_a():
    A(f"""
    s_cmp_ge_u32 s2, 256
    s_cbranch_scc1 K_END
    {"s_lshr_b32 s3, s2, 5" if P('SCR', 0) else ""}
    {"s_lshl_b32 s2, s2, 3" if P('SCR', 0) else ""}
    {"s_or_b32 s2, s2, s3" if P('SCR', 0) else ""}
    {"s_and_b32 s2, s2, 255" if P('SCR', 0) else ""}
    s_load_dwordx16 s[16:31], s[0:1], 0
    s_load_dwordx8 s[36:43], s[0:1], 80
    s_load_dwordx4 s[44:47], s[0:1], 112
    v_and_b32 v1, 63, v0
    v_lshrrev_b32 v2, 6, v0
    s_and_b32 s3, s2, 7
    s_lshr_b32 s4, s2, 3
    v_readfirstlane_b32 s7, v2
    s_lshr_b32 s5, s4, 3
    s_lshl_b32 s8, s3, 2
    s_add_u32 s5, s5, s8
    s_and_b32 s6, s4, 7
    s_lshr_b32 s8, s3, 2
    s_lshl_b32 s8, s8, 2
    s_lshr_b32 s9, s4, 3
    s_add_u32 s8, s8, s9
    s_and_b32 s9, s3, 3
    s_lshl_b32 s9, s9, 3
    s_add_u32 s9, s9, s6
    s_lshl_b32 s10, s8, 3
    s_add_u32 s10, s10, s7
    v_lshlrev_b32 v3, 4, v1
    v_lshrrev_b32 v4, 3, v1
    v_and_b32 v5, 7, v1
    v_add_u32 v6, 1024, v3
    v_cmp_gt_u32 vcc, 8, v1
    v_mov_b32 v7, 0x3ffffff0
    s_lshl_b32 s11, s5, 3
    s_add_u32 s11, s11, s6
    v_cndmask_b32 v6, v7, v6, vcc
    s_lshl_b32 s33, s11, 3
    s_add_u32 s33, s33, s7
    s_mul_i32 s13, s33, 1152
    v_mul_u32_u24 v8, 1152, v4
    v_bfe_u32 v9, v4, 1, 1
    s_and_b32 s14, s7, 6
    v_xor_b32 v9, s14, v9
    v_xor_b32 v9, v9, v5
    v_lshl_add_u32 v9, v9, 4, v8
    v_lshrrev_b32 v10, 1, v4
    v_xor_b32 v10, v10, v5
    v_lshl_add_u32 v10, v10, 4, v8
    v_xor_b32 v11, 64, v10
    s_lshl_b32 s14, s7, 6
    s_and_b32 s14, s14, 64
    v_xor_b32 v12, s14, v10
    s_lshl_b32 s14, s5, 3
    s_add_u32 s14, s14, s7
    s_mul_i32 s34, s14, {8*1152}
    s_lshl_b32 s14, s6, 3
    s_add_u32 s35, s14, s7
    s_mul_i32 s35, s35, {8*1152}
    s_add_u32 s80, s6, 64
    s_mul_i32 s80, s80, {8*1152}
    s_lshr_b32 s14, s7, 1
    s_lshl_b32 s14, s14, 7
    s_add_u32 s80, s80, s14
    s_lshl_b32 s81, s7, 10
    s_lshl_b32 s82, s7, 11
    s_waitcnt lgkmcnt(0)
    """)
    S(True); S(force=True)
    if P('PRIO', 0): A(f"s_cmp_{'ge' if P('PRIO',0)==1 else 'lt'}_u32 s7, 4\ns_cbranch_scc0 NOPRIO\ns_setprio 1"); A.lab('NOPRIO')
    XRW = 80; XNR = 88; MR_ = 96; T0 = 100
    srd(A, 56, 16, 2359296)
    A(f'buffer_load_dwordx4 {vr(XRW,4)}, v3, s[56:59], s13 offen\nbuffer_load_dwordx4 {vr(XRW+4,4)}, v6, s[56:59], s13 offen')
    vm.add('xr', 2)
    srd(A, 60, 22, 663552); srd(A, 64, 24, 663552)
    A("""
    s_and_b32 s14, s7, 1
    s_cselect_b32 s68, s24, s22
    s_cselect_b32 s69, s25, s23
    s_mov_b32 s70, 663552
    s_mov_b32 s71, 0x20000
    s_mov_b32 s23, 100000
    """)
    def bsg(n): return 112 + 8*n if n < 8 else 88
    def b8(i):
        t = f's_add_u32 s12, s80, {512*i}\n' + dma_txt(12, 's[68:71]', 's12', f's_add_u32 m0, s81, {B8L+8192*i}')
        if i < 2: bg.push_m(t, f'b8_{i}', 1)
        else:
            sk = newlab('B8X'); bg.push_m(f's_cmp_ge_u32 s7, 2\ns_cbranch_scc1 {sk}\n' + t + f'@@LAB {sk}', 'b8_2', 0)
    def a2q(n):
        bg.push_m(f's_add_u32 s12, s34, {128*n}\n' + dma_txt(9, 's[56:59]', 's12', f's_add_u32 m0, s81, {XS[n]}'), f'ax{n}', 1)
        bg.push_m(f'buffer_load_dwordx4 {vr(bsg(n),4)}, v10, s[60:63], s35 offen offset:{128*n}', f'ab{n}', 1, 2 if n == 8 else 0)
        bg.push_m(f'buffer_load_dwordx4 {vr(bsg(n)+4,4)}, v11, s[64:67], s35 offen offset:{128*n}', f'ab{n}', 1)
    if P('BT', 1):
        A(f"""
        s_cmp_lt_u32 s2, 128
        s_cselect_b32 s76, s60, s64
        s_cselect_b32 s77, s61, s65
        s_mov_b32 s78, 663552
        s_mov_b32 s79, 0x20000
        s_and_b32 s12, s2, 127
        s_lshl_b32 s12, s12, 3
        s_add_u32 s12, s12, s7
        s_mul_i32 s12, s12, 648
        s_and_b32 s12, s12, 0xffffff80
        v_lshlrev_b32 v13, 7, v1
        s_mov_b64 exec, 0x7f
        buffer_load_dword v111, v13, s[76:79], s12 offen
        s_mov_b64 exec, -1
        """)
        vm.add('bt')
    a2q(0); b8(0); a2q(1)
    bg.emit_m(4)
    if P('CPF', 1):
        A(f"""
        s_cmp_lg_u32 s7, 5
        s_cbranch_scc1 NOCPF
        s_getpc_b64 s[76:77]
        """)
        A.lab('PCREF')
        A(f"""
        s_and_b32 s76, s76, 0xffffff80
        s_mov_b32 s78, K_LAST-PCREF
        s_mov_b32 s79, 0x20000
        s_lshl_b32 s14, s4, 11
        v_lshlrev_b32 v13, 7, v1
        s_mov_b64 exec, 0xffff
        buffer_load_dword v111, v13, s[76:79], s14 offen
        s_mov_b64 exec, -1
        """)
        A.lab('NOCPF')
    srd(A, 72, 44, 256)
    A(f"""
    s_or_b32 s14, s2, s7
    s_cmp_lg_u32 s14, 0
    s_cbranch_scc1 NOTAG
    s_memrealtime s[84:85]
    s_waitcnt lgkmcnt(0)
    s_mul_i32 s14, s84, 0x9E3779B1
    s_or_b32 s14, s14, 1
    v_mov_b32 v8, s14
    s_mov_b64 exec, 1
    buffer_store_dword v8, off, {DBG}, 0 sc1
    s_mov_b64 exec, -1
    """)
    A.lab('NOTAG')
    srd(A, 48, 46, 0x10000000); srd(A, 52, 42, 4718592)
    if P('TLB', 0):
        sh = P('TLB', 0)
        A(f"""
        s_cmp_lg_u32 s7, 4
        s_cbranch_scc1 NOTLB
        v_lshlrev_b32 v13, {sh}, v1
        s_lshl_b32 s14, s4, {sh+6}
        s_and_b32 s14, s14, 0x3ffffff
        buffer_load_dword v111, v13, {WS}, s14 offen
        buffer_load_dword v111, v13, {OUT}, s14 offen
        """)
        A.lab('NOTLB')
    U1 = 224; BS1 = 240
    AD = 196
    def setup():
        A(f"""
        v_and_b32 v13, 15, v1
        v_lshrrev_b32 v14, 4, v1
        v_bfe_u32 v2, v1, 1, 3
        v_xor_b32 v2, v2, v14
        v_lshlrev_b32 v2, 4, v2
        v_lshl_add_u32 v8, v13, 7, v2
        v_bfe_u32 v14, v1, 2, 2
        v_lshlrev_b32 v14, 11, v14
        v_and_b32 v13, 3, v1
        v_lshl_add_u32 v14, v13, 7, v14
        v_add_u32 v{AD}, v14, v2
        v_xor_b32 v{AD+1}, 64, v{AD}
        v_add_u32 v{AD+2}, 90144, v{AD}
        v_add_u32 v{AD+3}, 90144, v{AD+1}
        s_lshr_b32 s14, s7, 2
        s_lshl_b32 s14, s14, 6
        v_xor_b32 v{AD+8}, s14, v8
        v_add_u32 v{AD+8}, {B8L}, v{AD+8}
        v_xor_b32 v{AD+4}, s14, v{AD}
        s_and_b32 s14, s7, 3
        s_lshl_b32 s14, s14, 9
        v_add_u32 v{AD+4}, s14, v{AD+4}
        v_add_u32 v{AD+5}, 90144, v{AD+4}
        s_add_u32 s14, s82, {STG}
        v_add_u32 v192, s14, v8
        v_xor_b32 v193, 64, v192
        v_add_u32 v194, s14, v3
        v_mov_b32 v{ONES}, 0x3f803f80
        v_mov_b32 v{ONES+1}, 0x3f803f80
        v_mov_b32 v{ONES+2}, 0x3f803f80
        v_mov_b32 v{ONES+3}, 0x3f803f80
        s_mov_b32 s83, 0x3f803f80
        s_lshl_b32 s14, s6, 3
        v_add_u32 v14, s14, v5
        v_add_u32 v14, 512, v14
        s_add_u32 s14, s14, s7
        s_lshl_b32 s14, s14, 3
        v_add_u32 v13, s14, v5
        v_lshlrev_b32 v108, 1, v13
        v_lshlrev_b32 v109, 1, v14
        s_lshr_b32 s14, s9, 2
        s_mul_i32 s14, s14, 1152
        s_cmp_lt_u32 s2, 128
        s_cselect_b32 s76, s36, s38
        s_cselect_b32 s77, s37, s39
        s_mov_b32 s78, {576*9216}
        s_mov_b32 s79, 0x20000
        s_add_u32 s24, s36, s14
        s_addc_u32 s25, s37, 0
        s_sub_u32 s26, {576*9216}, s14
        s_mov_b32 s27, 0x20000
        s_add_u32 s36, s38, s14
        s_addc_u32 s37, s39, 0
        s_mov_b32 s38, s26
        s_mov_b32 s39, 0x20000
        s_and_b32 s14, s9, 3
        s_lshl_b32 s32, s14, 8
        s_mul_i32 s41, s7, {8*9216}
        s_add_u32 s32, s32, s41
        s_mul_i32 s40, s10, 36864
        v_bfe_u32 v0, v1, 2, 3
        v_mul_u32_u24 v0, 9216, v0
        v_lshrrev_b32 v13, 5, v1
        v_lshl_add_u32 v0, v13, 6, v0
        v_and_b32 v13, 3, v1
        v_lshl_add_u32 v0, v13, 4, v0
        v_lshlrev_b32 v110, 7, v1
        v_min_u32 v110, {14*128 if P('TOUCH', 1) == 4 else 41*128}, v110
        s_and_b32 s14, s2, 127
        s_lshl_b32 s14, s14, 3
        s_add_u32 s14, s14, s7
        s_mul_i32 s41, s14, {1728 if P('TOUCH', 1) == 4 else 5184}
        s_and_b32 s41, s41, 0xffffff80
        s_lshl_b32 s14, s7, 4
        s_add_u32 s14, s14, {TB}
        v_lshl_add_u32 v{AD+6}, v1, 7, s14
        s_add_u32 s14, s81, {TB}
        v_add_u32 v{AD+7}, s14, v3
        v_lshlrev_b32 v{AD+9}, 9, v4
        v_lshl_add_u32 v{AD+9}, v5, 4, v{AD+9}
        s_lshr_b32 s42, s11, 2
        s_mul_i32 s42, s42, 36864
        s_and_b32 s14, s6, 3
        s_lshl_b32 s14, s14, 7
        s_add_u32 s42, s42, s14
        s_lshl_b32 s14, s7, 12
        s_add_u32 s42, s42, s14
        s_lshl_b32 s43, s33, 3
        s_add_u32 s43, s43, {STAT_OFF}
        v_lshlrev_b32 v17, 2, v1
        v_and_b32 v16, 31, v17
        v_and_b32 v17, 127, v17
        s_lshl_b32 s14, s8, 7
        v_add_u32 v17, s14, v17
        s_lshl_b32 s14, s5, 5
        v_add_u32 v16, s14, v16
        v_cmp_lt_u32 vcc, 31, v1
        s_mov_b32 s33, {FX_OFF}
        s_nop 0
        v_cndmask_b32 v17, v17, v16, vcc
        """)
    a2q(2); a2q(3)
    valu_with_vmem(capture(setup), every=P('A0EVERY', 10))
    b8(1)
    bg.push_m(f'global_load_ushort v{PAR}, v108, s[18:19]\nglobal_load_ushort v{PAR+1}, v108, s[20:21]\nglobal_load_ushort v{PAR+2}, v108, s[30:31]', 'par', 3)
    bg.push_m(f'global_load_ushort v{PAR+3}, v109, s[18:19]\nglobal_load_ushort v{PAR+4}, v109, s[20:21]\nglobal_load_ushort v{PAR+5}, v109, s[30:31]', 'par', 3)
    bg.push_m(f'buffer_load_dword v15, off, {DBG}, 0 sc1', 'tag', 1)
    def tpart(i): bg.push_m(f's_add_u32 s12, s41, {i*192*9216}\ns_mov_b64 exec, 0x7fff\nbuffer_load_dword v111, v110, s[76:79], s12 offen\ns_mov_b64 exec, -1', 'touch', 1)
    T4 = P('TOUCH', 1) == 4; TP = os.environ.get('TP', '047')
    for n_ in range(4, 9):
        if T4 and str(n_ - 4) in TP: tpart((2, 1, 0)[TP.index(str(n_ - 4))])
        if n_ == 8: b8(2)
        a2q(n_)
    if T4 and '5' in TP: tpart((2, 1, 0)[TP.index('5')])
    k1_dma(0, 0)
    if T4 and '6' in TP: tpart((2, 1, 0)[TP.index('6')])
    k1_dma(0, 1)
    if T4 and '7' in TP: tpart((2, 1, 0)[TP.index('7')])
    if P('TOUCH', 1) == 1: bg.push_m('buffer_load_dword v111, v110, s[76:79], s41 offen', 'touch', 1)
    if P('TOUCH', 1) == 2: bg.m.insert(0, (0, 'buffer_load_dword v111, v110, s[76:79], s41 offen', 'touch', 1))
    def a1():
        for q in range(8):
            c0 = '0' if q == 0 else f'v{MR_}'; c1 = '0' if q == 0 else f'v{MR_+1}'
            A(f'v_dot2_f32_bf16 v{MR_}, v{XRW+q}, s83, {c0}\nv_dot2_f32_bf16 v{MR_+1}, v{XRW+q}, v{XRW+q}, {c1}')
        A('s_nop 2')
        for pat in ('quad_perm:[1,0,3,2] row_mask:0xf', 'quad_perm:[2,3,0,1] row_mask:0xf', 'row_half_mirror row_mask:0xf', 'row_mirror row_mask:0xf',
                    'row_bcast:15 row_mask:0xa', 'row_bcast:31 row_mask:0xc'):
            A(f'v_add_f32_dpp v{MR_}, v{MR_}, v{MR_} {pat} bank_mask:0xf\nv_add_f32_dpp v{MR_+1}, v{MR_+1}, v{MR_+1} {pat} bank_mask:0xf\ns_nop 0')
        A(f'v_readlane_b32 s44, v{MR_}, 63\nv_readlane_b32 s45, v{MR_+1}, 63\ns_nop 1\nv_mov_b32 v{MR_}, s44\nv_mov_b32 v{MR_+1}, s45')
        ln_stats(MR_, MR_+2)
        A(f's_mov_b32 s44, 0xffff0000\nv_sub_f32 v18, 0, v{MR_}\nv_sub_f32 v19, 0, v{MR_}\nv_mov_b32 v20, v{MR_+1}\nv_mov_b32 v21, v{MR_+1}')
        for h in range(2):
            for q in range(4):
                x = XRW+4*h+q; a = T0+2*q
                A(f'v_lshlrev_b32 v{a}, 16, v{x}\nv_and_b32 v{a+1}, s44, v{x}')
            for q in range(4):
                a = T0+2*q; A(f'v_pk_add_f32 {vr(a,2)}, {vr(a,2)}, v[18:19]')
            for q in range(4):
                a = T0+2*q; A(f'v_cvt_pk_bf16_f32 v{a+1}, v{a}, v{a+1}')
            for q in range(4):
                a = T0+2*q; A(f'v_lshlrev_b32 v{a}, 16, v{a+1}\nv_and_b32 v{a+1}, s44, v{a+1}')
            for q in range(4):
                a = T0+2*q; A(f'v_pk_mul_f32 {vr(a,2)}, {vr(a,2)}, v[20:21]')
            for q in range(4):
                a = T0+2*q; A(f'v_cvt_pk_bf16_f32 v{XNR+4*h+q}, v{a}, v{a+1}')
    vm.wait('xr'); S(z='a2')
    a1l = capture(a1)
    NPRE = P('A1PRE', 1000); TBN = P('TBN', 0); FLN = P('FLN', 4)
    valu_with_vmem(a1l[:NPRE], every=P('A1EVERY', 12))
    it = a1l[NPRE:]
    it.append(('ds', f'ds_write_b128 v{AD+6}, {vr(XNR,4)}', 'tbw'))
    it.append(('ds', f's_mov_b64 exec, 0xff\nds_write_b128 v{AD+6}, {vr(XNR+4,4)} offset:8192\ns_mov_b64 exec, -1', 'tbw'))
    it.append(('vm', f's_mov_b64 exec, 1\nbuffer_store_dwordx2 {vr(MR_,2)}, off, {WS}, s43 sc1\ns_mov_b64 exec, -1', 'xn', 1))
    bg.push_v(it)
    E = 72
    def reads(sg):
        n = sg // 2; sp = sg % 2; F = 24 + 16*(sg % 3)
        xo = XS[n] if n % 2 == 0 else XS[n] - 90144
        for t in range(4): A(f'ds_read_b128 {vr(F+4*t,4)}, v{AD+2*(n%2)+sp} offset:{xo+512*t}')
        lg.add(f'r{sg}', 4)
    def ereads(n):
        xo = XS[n] if n % 2 == 0 else XS[n] - 90144
        A(f'ds_read_b128 {vr(E,4)}, v{AD+4+(n%2)} offset:{xo}\nds_read_b128 {vr(E+4,4)}, v{AD+8} offset:{2048*n}'); lg.add(f'e{n}', 2)
    def bswap(n):
        bg.flush_m(f'ab{n}'); vm.wait(f'ab{n}')
        Fb = 176 + 8*(n % 2)
        A(f'ds_write_b128 v194, {vr(bsg(n),4)}\nds_write_b128 v194, {vr(bsg(n)+4,4)} offset:1024')
        A(f'ds_read_b128 {vr(Fb,4)}, v192\nds_read_b128 {vr(Fb+4,4)}, v193'); lg.add(f'b{n}', 4)
    def xn_out():
        sk = newlab('NOXN8')
        A(f'ds_read_b128 {vr(XRW,4)}, v{AD+7}'); lg.add('tbr')
        A(f's_cmp_lg_u32 s7, 0\ns_cbranch_scc1 {sk}\nds_read_b128 {vr(XRW+4,4)}, v{AD+7} offset:8192\ns_add_u32 s12, s42, 32768\ns_waitcnt lgkmcnt(0)\nbuffer_store_dwordx4 {vr(XRW+4,4)}, v{AD+9}, {WS}, s12 offen sc1')
        A.lab(sk)
        bg.push_v([('lgw', 'tbr'), ('vm', f'buffer_store_dwordx4 {vr(XRW,4)}, v{AD+9}, {WS}, s42 offen sc1', 'xn', 1)])
        bg.push_v([('vmw', 'par')] + capture(lambda: unit_consts(PAR, T0)), 7)
    if TBN == 0: bg.emit_v(10**9); lg.wait('tbw')
    bg.flush_m('ax0', 'ax1', 'b8_0'); vm.wait('ax0', 'ax1', 'b8_0')
    A('s_barrier'); S(); S(z='a2')
    if TBN == 0: xn_out()
    bswap(0); reads(0); reads(1)
    VG = P('A2VG', 2); PXS = P('PXS', 15)
    for sg in range(18):
        n = sg // 2; sp = sg % 2; F = 24 + 16*(sg % 3)
        if sg < 16:
            n1 = (sg + 2) // 2
            if (sg + 2) % 4 == 0:
                tags = [f'ax{n1}'] + ([f'ax{n1+1}'] if n1 < 8 else []) + (['b8_1'] if n1 == 4 else [])
                if n1 == TBN: bg.emit_v(10**9); lg.wait('tbw')
                bg.flush_m(*tags, 'b8_2' if n1 == 8 else 'zz'); vm.wait(*tags)
                if n1 == FLN: bg.flush_m('tag'); vm.wait('xn'); get_tag()
                A('s_barrier'); S(z='a2')
                if n1 == TBN: xn_out()
                if n1 == FLN: flag_store(6, f's_lshl_b32 s14, s11, 2\ns_add_u32 s14, s14, {FX_OFF}', 13)
                if n1 >= 4: k1_dma(0, n1 // 2)
            reads(sg + 2)
        if sp == 0: ereads(n)
        lg.wait(f'r{sg}')
        z = (sg == 0)
        if sp == 0: lg.wait(f'b{n}')
        def c(rg, zz=z): return '0' if zz else vr(rg, 4)
        UU = U; BB = BS; BF_ = 176 + 8*(n % 2) + 4*sp
        ms = [f'v_mfma_f32_16x16x32_bf16 {vr(UU+4*t,4)}, {vr(F+4*t,4)}, {vr(BF_,4)}, {c(UU+4*t)}' for t in range(4)]
        ms += [f'v_mfma_f32_16x16x32_bf16 {vr(BB,4)}, {vr(ONES,4)}, {vr(BF_,4)}, {c(BB)}']
        if sp == 1:
            lg.wait(f'e{n}')
            ms += [f'v_mfma_f32_16x16x32_bf16 {vr(XA,4)}, {vr(E,4)}, {vr(E+4,4)}, {c(XA, sg == 1)}', f'v_mfma_f32_16x16x32_bf16 {vr(BS8,4)}, {vr(ONES,4)}, {vr(E+4,4)}, {c(BS8, sg == 1)}']
        for i, m in enumerate(ms):
            A(m)
            bg.emit_v(2, sg)
            if sp == 0 and i == 4 and n < 8: bswap(n + 1)
            if i % VG == VG - 1: bg.emit_m(1, sg)
        if sg == PXS: bg.m.insert(0, (0, lambda: poll_issue(16, 17, 's33', 'pfx'), 'pfx', 0))
        if sg == PXS + 2:
            bg.flush_m('pfx'); poll_check(16, 17, 's33', 'pfx')
            A(f'v_lshlrev_b32 v22, 3, v1\ns_lshl_b32 s12, s5, 9\ns_add_u32 s12, s12, {STAT_OFF}\nbuffer_load_dwordx2 v[18:19], v22, {WS}, s12 offen sc1'); vm.add('stl')
            for ks in range(16): k1_xload(ks, 2*(ks//2) - 1)
    bg.emit_v(10**9)
    S(); S(z='a2')
    A(f"""
    s_nop 3
    s_add_u32 s14, s81, {EX_T}
    v_add_u32 v14, s14, v3
    s_lshl_b32 s14, s7, 8
    s_add_u32 s14, s14, {EX_B}
    v_lshl_add_u32 v2, v1, 2, s14
    ds_write_b128 v14, {vr(XA,4)}
    ds_write_b32 v2, v{BS8}
    """)
    bg.flush_m('w0_0', 'w0_1', 'touch'); vm.wait('w0_0', 'w0_1'); vm.wait('touch') if P('TOUCH', 1) in (1, 2, 4) else None
    A('s_waitcnt lgkmcnt(0)\ns_barrier'); lg.q = []
    S(z='a3')
    k1_dma(0, 5); k1_dma(0, 6)
    bg.m = [(0,) + tuple(t[1:]) for t in bg.m]
    bg.emit_m(2)
    LR, SLI, A1, A2c, L16R, SL16I = CONSTS
    E0 = 16; T2, T3, EE = 20, 21, 15; W0, W1, W2 = 241, 242, 243; TA, TB_ = 22, 23
    def st2():
        A(f"""
        v_mul_f32 v18, -v18, v19
        s_lshl_b32 s44, s7, 9
        s_add_u32 s44, s44, {EX_R}
        v_lshl_add_u32 v{W0}, v1, 3, s44
        v_lshrrev_b32 v{W1}, 4, v1
        v_lshl_add_u32 v{W2}, v{W1}, 7, s44
        """)
    def fin_items(tg, sc):
        it = []
        for hf in range(2):
            it += [('ds', f'ds_read_b128 {vr(CR+4*k,4)}, v{W2} offset:{64*hf+16*k}', f'{tg}cr{hf}') for k in range(4)]
            if hf == 0 and tg == '':
                it += capture(lambda: A("""
                v_and_b32 v8, 15, v1
                v_lshlrev_b32 v8, 2, v8
                v_add_u32 v9, 64, v8
                v_add_u32 v10, 128, v8
                v_add_u32 v12, 192, v8
                s_mul_i32 s83, s11, 9
                s_add_u32 s83, s83, s7
                """))
            it.append(('lgw', f'{tg}cr{hf}'))
            it += [f'v_mul_f32 v{U+8*hf+k}, v{CR+1+2*k}, v{U+8*hf+k}' for k in range(8)]
            it += [f'v_fmac_f32 v{U+8*hf+k}, v{CR+2*k}, v{BS}' for k in range(8)]
        tt = (TA, TB_)
        it += [f'v_mul_f32 v{tt[0]}, v{A1}, v{U}', f'v_fmac_f32_dpp v{tt[0]}, v{U}, v{A2c} {DPP8}',
               f'v_mul_f32 v{tt[1]}, v{A1}, v{U+1}', f'v_fmac_f32_dpp v{tt[1]}, v{U+1}, v{A2c} {DPP8}', f'v_mov_b32 v{U}, v{tt[0]}']
        for k in range(1, 16):
            t_ = tt[k % 2]; o_ = tt[(k+1) % 2]
            it.append(f'v_fma_f32 v{U+k}, v{LR}, v{U+k-1}, v{t_}')
            if k < 15: it.append(f'v_mul_f32 v{o_}, v{A1}, v{U+k+1}')
            else: it.append('s_nop 0')
            it.append(f'v_fmac_f32_dpp v{U+k}, v{U+k-1}, v{SLI} {DPP8}')
            if k < 15: it.append(f'v_fmac_f32_dpp v{o_}, v{U+k+1}, v{A2c} {DPP8}')
        it += [('ds', f'ds_bpermute_b32 v{E0+g}, v{(8,9,10,12)[g]}, v{U+15}', tg+'bp') for g in range(4)]
        it.append(f's_mul_i32 s45, s83, {H0_UNIT}\ns_add_u32 s45, s45, {H0_OFF}')
        it += [('vm', f'buffer_store_dwordx4 {vr(U+4*k,4)}, v3, {WS}, s45 offen offset:{1024*k}{sc}', tg+'h0', 1) for k in range(4)]
        it.append(('lgw', tg+'bp'))
        ee = EE if tg == '' else 14
        def part2():
            mapply(A, T2, E0, L16R, SL16I, E0+1); mapply(A, T3, T2, L16R, SL16I, E0+2); mapply(A, ee, T3, L16R, SL16I, E0+3)
            A(f'v_mov_b32 v{W0}, 0')
        it += capture(part2)
        for k, r in enumerate((E0, T2, T3)): it.append(f'v_cmp_eq_u32 vcc, {k+1}, v{W1}\ns_nop 1\nv_cndmask_b32 v{W0}, v{W0}, v{r}, vcc')
        it.append(('vm', f'v_lshlrev_b32 v{E0}, 2, v1\ns_add_u32 s12, s45, 4096\nbuffer_store_dword v{W0}, v{E0}, {WS}, s12 offen{sc}', tg+'h0', 1))
        return it
    it = [('vmw', 'stl')] + capture(st2)
    it.append(('ds', f'ds_write_b64 v{W0}, v[18:19]', 'crw'))
    it += fin_items('', os.environ.get('HSC', ''))
    def unit8():
        sv = (list(vm.q), list(bg.v))
        A(f"""
        s_cmp_lg_u32 s7, 7
        s_cbranch_scc1 UNIT_DONE
        s_add_u32 s83, s83, 1
        v_add_u32 v{W0}, {EX_T}, v3
        v_lshlrev_b32 v{E0}, 2, v1
        v_add_u32 v{E0}, {EX_B}, v{E0}
        """)
        for t in range(4):
            A(f'ds_read_b128 {vr(U+4*t,4)}, v{W0} offset:{1024*t}\nds_read_b128 {vr(CR+4*t,4)}, v{W0} offset:{1024*(t+4)}')
        A(f'ds_read_b32 v{BS}, v{E0}\nds_read_b32 v{W0}, v{E0} offset:1024')
        unit_consts(PAR+3, 16)
        A('s_waitcnt lgkmcnt(0)')
        for k in range(16): A(f'v_add_f32 v{U+k}, v{U+k}, v{CR+k}')
        A(f'v_add_f32 v{BS}, v{BS}, v{W0}')
        lq = list(lg.q); lg.q = []
        bg.v = []; bg.push_v(fin_items('u8', ' sc1')); bg.emit_v(10**9)
        A('s_sub_u32 s83, s83, 1')
        A.lab('UNIT_DONE')
        lg.q = lq; vm.q, bg.v = sv
    if not P('NOU8', 0): it.append(('call', unit8))
    if P('NOSCAN', 0): it = [x for x in it if not isinstance(x, str) or x.startswith('s_') or 'v_lshl' in x or 'v_and_b32 v8' in x or 'v_add_u32' in x or 'v_lshr' in x]
    it.append(('call', lambda: scan_done.append(1)))
    scan_items.extend(it)
    S(); S(z='a3')
scan_done = []

FA = 168; FT_ = 199
def phase_k1():
    KS1 = P('KS1', 24); HD = 4; LOOK = 4
    seq = [(ks, fb) for ks in range(KS1) for fb in range(4)]
    seq += [(ks, fb) for fb in range(4) for ks in range(KS1, 36)]
    seq += [(ks, fb) for fb in (4, 5) for ks in range(24)] + [(ks, fb) for fb in (4, 5) for ks in range(24, 36)]
    seq += [(ks, fb) for fb in (6, 7) for ks in range(24)] + [(ks, fb) for fb in (6, 7) for ks in range(24, 36)]
    seq += [(ks, 8) for ks in range(36)]
    N = len(seq)
    P2 = 4*KS1; P3 = P2 + 2*(36-KS1); P4, P5, P6 = 144, 216, 288
    A(f'''
    v_bfe_u32 v13, v1, 4, 1
    v_lshrrev_b32 v14, 5, v1
    v_and_b32 v2, 15, v1
    v_lshlrev_b32 v2, 3, v2
    v_mul_u32_u24 v5, {UREG}, v13
    v_lshl_add_u32 v5, v14, 10, v5
    v_add_u32 v5, v5, v2
    v_and_b32 v6, 12, v1
    v_lshl_add_u32 v5, v6, 3, v5
    v_add_u32 v6, 36864, v5
    ''')
    A(f'v_mul_u32_u24 v7, {G2U}, v13\nv_lshl_add_u32 v7, v14, 8, v7\nv_add_u32 v7, v7, v2')
    setup2 = capture(lambda: A(f'''
    v_lshrrev_b32 v4, 1, v1
    v_mul_u32_u24 v4, 9216, v4
    v_and_b32 v13, 1, v1
    v_lshl_add_u32 v4, v13, 4, v4
    s_mul_i32 s41, s7, {32*9216}
    s_and_b32 s13, s9, 3
    s_lshl_b32 s13, s13, 5
    s_add_u32 s41, s41, s13
    s_add_u32 s41, s41, 1024
    s_mov_b32 s42, {f32(-2.302208198*0.044715)}
    v_mov_b32 v11, {f32(-2.302208198)}
    s_lshr_b32 s14, s9, 2
    s_mul_i32 s14, s14, 9
    s_and_b32 s13, s9, 3
    s_lshl_b32 s34, s13, 1
    s_add_u32 s34, s34, s14
    s_lshl_b32 s34, s34, 12
    s_mul_i32 s43, s10, 294912
    s_add_u32 s43, s43, {HF_OFF}
    s_add_u32 s14, s14, 8
    s_lshl_b32 s14, s14, 12
    s_lshl_b32 s13, s13, 10
    s_add_u32 s14, s14, s13
    s_add_u32 s35, s43, s14
    s_add_u32 s43, s43, s34
    s_lshl_b32 s34, s8, 5
    s_add_u32 s34, s34, s9
    s_lshl_b32 s34, s34, 2
    s_add_u32 s34, s34, {FH_OFF}
    '''))
    bg.push_v(scan_items); bg.push_v(setup2)
    for k in range(16, 24): k1_xload(k)
    if P('TOUCH', 1) == 3: A('v_mov_b32 v13, v110\ns_mov_b32 s46, s41'); bg.push_m('buffer_load_dword v2, v13, s[76:79], s46 offen', 'touch', 1)
    def wread(m):
        ks, fb = seq[m]
        r = WR + 4*(m % NW)
        if fb < 8: ad = 5 if ks < 18 else 6; off = (ks % 18)*2048 + ((fb % 4) >> 1)*512 + (fb & 1)*32; o2 = 256
        else: ad = 7; off = ks*512; o2 = 128
        A(f'ds_read_b64_tr_b16 {vr(r,2)}, v{ad} offset:{off}\nds_read_b64_tr_b16 {vr(r+2,2)}, v{ad} offset:{off+o2}')
        lg.add(f'm{m}', 2)
    busy = set()
    def make_epi(fb):
        a = ACC + 16*(fb % 4); t = TMP
        out = []
        for half in range(2):
            es = range(4*half, 4*half+4)
            for e in es: out.append(f'v_mul_f32 v{t+e%4}, v{a+e}, v{a+e}')
            for e in es: out.append(f'v_fma_f32 v{t+e%4}, v{t+e%4}, s42, v11')
            for e in es: out.append(f'v_mul_f32 v{t+e%4}, v{t+e%4}, v{a+e}')
            for e in es: out.append(f'v_exp_f32 v{t+e%4}, v{t+e%4}')
            for e in es: out.append(f'v_mul_f32 v{a+e}, v{a+e}, v{a+8+e}')
            for e in es: out.append(f'v_add_f32 v{t+e%4}, 1.0, v{t+e%4}')
            for e in es: out.append(f'v_rcp_f32 v{t+e%4}, v{t+e%4}')
            out.append('s_nop 0')
            for e in es: out.append(f'v_mul_f32 v{a+e}, v{a+e}, v{t+e%4}')
            out.append(f'v_cvt_pk_bf16_f32 v{t+4+2*half}, v{a+4*half}, v{a+4*half+1}')
            out.append(f'v_cvt_pk_bf16_f32 v{t+5+2*half}, v{a+4*half+2}, v{a+4*half+3}')
        out.append(('call', lambda: busy.discard(fb % 4)))
        if fb < 4: st = f'buffer_store_dwordx4 {vr(t+4,4)}, v3, {WS}, s43 offen offset:{fb*1024} sc1'
        elif fb < 8: st = f's_add_u32 s12, s43, 4096\nbuffer_store_dwordx4 {vr(t+4,4)}, v3, {WS}, s12 offen offset:{(fb-4)*1024} sc1'
        else: st = f'buffer_store_dwordx4 {vr(t+4,4)}, v3, {WS}, s35 offen sc1'
        out.append(('vm', st, f'h{fb}', 1))
        return out
    def flagH(g): return lambda: flag_store(0, f's_add_u32 s14, s34, {1024*g}', 2)
    def flagE(): flag_store(1, f's_lshl_b32 s14, s6, 5\ns_add_u32 s14, s14, s5\ns_lshl_b32 s14, s14, 2\ns_add_u32 s14, s14, {FE_OFF}', 2)
    def xl(a, b): return lambda: [k1_xload(k) for k in range(a, b)]
    def wd(g, *ns): return lambda: [k1_dma(g, n) for n in ns]
    assert KS1 == 24
    def chk_scan(): assert scan_done
    def estore():
        sk = newlab('E8')
        bg.push_m(f's_lshl_b32 s12, s83, 6\ns_add_u32 s12, s12, {E_OFF}\ns_cmp_lg_u32 s7, 7\ns_cbranch_scc1 {sk}\nbuffer_store_dword v14, v8, {WS}, s12 offen offset:64 sc1@@LAB {sk}@@buffer_store_dword v15, v8, {WS}, s12 offen sc1', 'est', 1)
    def touch2():
        if not P('TOUCH', 1): return
        bg.push_m(f'''s_load_dwordx2 s[76:77], s[0:1], 96
        v_lshlrev_b32 v13, 7, v1
        v_min_u32 v13, {21*128}, v13
        s_lshl_b32 s12, s2, 3
        s_add_u32 s12, s12, s7
        s_mul_i32 s12, s12, 2592
        s_and_b32 s12, s12, 0xffffff80
        s_mov_b32 s78, {4608*1152}
        s_mov_b32 s79, 0x20000
        s_waitcnt lgkmcnt(0)
        buffer_load_dword v9, v13, s[76:79], s12 offen''', 'touch2', 1)
        bg.push_m(f'''s_lshr_b32 s12, s2, 7
        s_lshl_b32 s12, s12, 3
        s_add_u32 s76, s0, s12
        s_addc_u32 s77, s1, 0
        s_load_dwordx2 s[76:77], s[76:77], 40
        v_min_u32 v13, {6*128}, v13
        s_and_b32 s12, s2, 127
        s_lshl_b32 s12, s12, 3
        s_add_u32 s12, s12, s7
        s_mul_i32 s12, s12, 648
        s_and_b32 s12, s12, 0xffffff80
        s_mov_b32 s78, 663552
        s_waitcnt lgkmcnt(0)
        buffer_load_dword v10, v13, s[76:79], s12 offen''', 'touch2', 1)
    sync = {
        32:  (['w0_2', 'w0_3'], [wd(0, 7)]),
        64:  (['w0_4', 'w0_5'], [chk_scan, xl(24, 28), wd(0, 8), xl(28, 36), wd(1, 0, 1, 2)]),
        96:  (['w0_6', 'w0_7'], [wd(1, 3, 4)]),
        104: (['w0_8'], [wd(1, 5), estore, touch2]),
        144: (['w1_0', 'w1_1', 'w1_2', 'w1_3', 'w1_4', 'w1_5'], [wd(1, 6, 7)]),
        150: ([], [wd(1, 8)]),
        192: (['w1_6', 'w1_7', 'w1_8', 'est'], [flagE]),
        P5+20: (['h3'], [flagH(0)]),
        P5+40: ([], [lambda: k1_dma_g2(0)]),
        P5+48: ([], [lambda: k1_dma_g2(1)]),
        P6:  (['g2_0', 'g2_1'], []),
        P6+4: (['h5'], [flagH(1), k2_prefetch]),
    }
    def do_sync(m):
        if m in sync:
            tags, acts = sync[m]
            bg.flush_m(*tags); vm.wait(*tags); A('s_barrier')
            for f in acts: f()
    seen_x = set()
    S()
    for m in range(LOOK): wread(m)
    for n in range(N):
        ks, fb = seq[n]
        if n in (P4, P6): S()
        if n % 32 == 0: S(z='k1')
        if n == P5 + 56: k2_setup()
        if n + LOOK < N:
            do_sync(n + LOOK); wread(n + LOOK)
        if ks not in seen_x:
            seen_x.add(ks); bg.flush_m(f'x{ks}'); vm.wait(f'x{ks}')
        first = (ks == 0)
        if first: assert (fb % 4) not in busy, (n, fb)
        lg.wait(f'm{n}')
        a = ACC + 16*(fb % 4)
        A(f'v_mfma_f32_32x32x16_bf16 {vr(a,16)}, {vr(WR+4*(n%NW),4)}, {vr(XR+4*ks,4)}, {"0" if first else vr(a,16)}')
        if ks == 35:
            busy.add(fb % 4); bg.push_v(make_epi(fb), n + 4)
        if n == P6 + 22: fix_loads('s11', 's7')
        gap = P('G1', 2) if n < P2 else (P('G2', 2) if n < P6 else 1)
        bg.stag = P('STAG', 0) if (n >= P('STAG0', 0) and n < P6) else 0
        if n % gap == gap - 1: bg.emit_m(1, n)
        else: bg.emit_late(n)
        rate = P('R0', 5) if n < 64 else (P('R1', 3) if n < P6 else P('P6RATE', 4))
        bg.emit_v(rate, n)
    bg.emit_late(); bg.stag = 0
    assert not bg.m
    while busy - {0}: bg.emit_v(4)
    S(); S(z='fx')

def fix_loads(swg, sunit, base=None, sht='s22'):
    base = FA if base is None else base
    pcalc = f's_lshl_b32 s12, s12, 3\ns_add_u32 s12, s12, {sunit}\ns_lshl_b32 s12, s12, 3' if sunit == 's7' else 's_lshl_b32 s12, s12, 3\ns_add_u32 s12, s12, 512'
    pre = f'''s_mul_i32 s16, {swg}, 9
    s_add_u32 s16, s16, {sunit}
    s_mul_i32 s17, s16, {H0_UNIT}
    s_add_u32 s17, s17, {H0_OFF}
    s_and_b32 s12, {swg}, 7
    {pcalc}
    v_and_b32 v{base+30}, 7, v1
    v_add_u32 v{base+28}, s12, v{base+30}
    v_lshlrev_b32 v{base+30}, 1, v{base+28}
    s_lshr_b32 {sht}, {swg}, 3
    s_mul_i32 {sht}, {sht}, {72*2048}
    s_lshl_b32 s12, s12, 8
    s_add_u32 {sht}, {sht}, s12
    s_add_u32 {sht}, {sht}, {HT_OFF}
    global_load_ushort v{base+25}, v{base+30}, s[18:19]
    global_load_ushort v{base+26}, v{base+30}, s[20:21]
    global_load_ushort v{base+27}, v{base+30}, s[30:31]'''
    bg.push_m(pre, 'fx', 3)
    pre2 = f'''s_lshl_b32 s16, s16, 6
    v_lshrrev_b32 v{base+30}, 4, v1
    v_mul_u32_u24 v{base+30}, {8*4608}, v{base+30}
    v_and_b32 v{base+29}, 15, v1
    v_lshl_add_u32 v{base+29}, v{base+29}, 2, s16
    v_sub_u32 v{base+29}, v{base+29}, v{base+30}
    '''
    for i in range(0, 8, 2):
        t = pre2 if i == 0 else ''
        for k in (i, i+1): t += f'v_subrev_u32 v{base+29}, 4608, v{base+29}\nbuffer_load_dword v{base+17+k}, v{base+29}, s[60:63], 0 offen sc1\n'
        bg.push_m(t, 'fx', 2)
    for k in range(4): bg.push_m(f'buffer_load_dwordx4 {vr(base+4*k,4)}, v3, {WS}, s17 offen offset:{1024*k} sc1', 'fx', 1)
    bg.push_m(f'v_lshlrev_b32 v{base+30}, 2, v1\ns_add_u32 s12, s17, 4096\nbuffer_load_dword v{base+16}, v{base+30}, {WS}, s12 offen sc1', 'fx', 1)
def fix_items():
    t = FT_
    LR, LI, SG = t, t+1, t+2
    PR, PI = t+3, t+4; QR, QI = t+5, t+6; L64R, L64I = t+7, t+8
    it = [('vmw', 'fx')]
    def p1():
        lam_consts(A, FA+25, FA+26, FA+27, LR, LI, 0, 0, t+9, t+10, t+11, t+12, need_coef=False)
        A(f'v_and_b32 v{SG}, 8, v1\nv_lshlrev_b32 v{SG}, 28, v{SG}')
        csq(A, LR, LI, t+23, t+24, t+9)
        csq(A, t+23, t+24, PR, PI, t+9)
        A(f'v_xor_b32 v{t+24}, v{SG}, v{t+24}')
        for _ in range(2): csq(A, PR, PI, PR, PI, t+9)
        A(f'v_mov_b32 v{t+13}, v{PR}\nv_mov_b32 v{t+14}, v{PI}')
        csq(A, PR, PI, PR, PI, t+9)
        cmul(A, PR, PI, t+13, t+14, t+15, t+16)
        A(f'v_lshrrev_b32 v{t+21}, 4, v1\nv_mov_b32 v{QR}, 1.0\nv_mov_b32 v{QI}, 0')
    it += capture(p1)
    for k, (a, b) in enumerate(((t+13, t+14), (PR, PI), (t+15, t+16))):
        it.append(f'v_cmp_eq_u32 vcc, {k+1}, v{t+21}\ns_nop 1\nv_cndmask_b32 v{QR}, v{QR}, v{a}, vcc\nv_cndmask_b32 v{QI}, v{QI}, v{b}, vcc')
    def p2():
        A(f'v_xor_b32 v{QI}, v{SG}, v{QI}')
        csq(A, PR, PI, L64R, L64I, t+9)
        csq(A, L64R, L64I, PR, PI, t+9)
        for _ in range(2): csq(A, PR, PI, PR, PI, t+9)
        A(f'v_xor_b32 v{L64I}, v{SG}, v{L64I}\nv_xor_b32 v{PI}, v{SG}, v{PI}\nv_xor_b32 v{LI}, v{SG}, v{LI}')
        for i in range(6, -1, -1): mapply(A, FA+17+i, FA+17+i+1, L64R, L64I, FA+17+i)
        A(f'''
        v_and_b32 v{t+17}, 15, v1
        v_lshlrev_b32 v{t+17}, 2, v{t+17}
        v_add_u32 v{t+18}, 64, v{t+17}
        v_add_u32 v{t+19}, 128, v{t+17}
        v_add_u32 v{t+20}, 192, v{t+17}
        ''')
    it += capture(p2)
    u = newlab('bp')
    for g in range(4): it.append(('ds', f'ds_bpermute_b32 v{FA+18+g}, v{t+17+g}, v{FA+17}', u))
    it.append(('lgw', u))
    def p3():
        for g in (2, 1, 0): mapply(A, FA+18+g, FA+18+g+1, PR, PI, FA+18+g)
        mapply(A, FA+16, FA+18, QR, QI, FA+16)
        G = [FA+17, FA+18, FA+19, FA+20]
        mapply(A, G[0], FA+16, LR, LI, None)
        mapply(A, G[1], FA+16, t+23, t+24, None)
        for k in range(0, 16, 2):
            a0, a1, b0, b1 = (G[0], G[1], G[2], G[3]) if k % 4 == 0 else (G[2], G[3], G[0], G[1])
            A(f'v_add_f32 v{FA+k}, v{FA+k}, v{a0}')
            if k < 14: A(f'v_mul_f32 v{b0}, v{t+23}, v{a0}\nv_mul_f32 v{b1}, v{t+23}, v{a1}')
            A(f'v_add_f32 v{FA+k+1}, v{FA+k+1}, v{a1}')
            if k < 14: A(f'v_fmac_f32_dpp v{b0}, v{a0}, v{t+24} {DPP8}\nv_fmac_f32_dpp v{b1}, v{a1}, v{t+24} {DPP8}')
        for k in range(8): A(f'v_cvt_pk_bf16_f32 v{FA+k}, v{FA+2*k}, v{FA+2*k+1}')
    it += capture(p3)
    it.append(('vm', f'buffer_store_dwordx4 {vr(FA,4)}, v3, {WS}, s22 offen sc1\nbuffer_store_dwordx4 {vr(FA+4,4)}, v3, {WS}, s22 offen offset:1024 sc1', 'ht', 2))
    return it

def k2_setup():
    A(f'''
    s_load_dwordx4 s[68:71], s[0:1], 40
    s_load_dwordx2 s[56:57], s[0:1], 96
    s_load_dwordx2 s[60:61], s[0:1], 120
    s_mul_i32 s14, s3, 30
    s_add_u32 s14, s14, s4
    s_mul_i32 s44, s14, 1366
    s_lshr_b32 s44, s44, 16
    s_mul_i32 s13, s44, 48
    s_sub_u32 s47, s14, s13
    s_mul_i32 s45, s47, 86
    s_lshr_b32 s45, s45, 8
    s_mul_i32 s13, s45, 3
    s_sub_u32 s46, s47, s13
    s_lshl_b32 s14, s45, 2
    s_lshr_b32 s13, s7, 1
    s_add_u32 s14, s14, s13
    s_mul_i32 s76, s14, 294912
    s_and_b32 s9, s7, 1
    s_lshr_b32 s10, s7, 2
    s_add_u32 s76, s76, {HF_OFF}
    s_mul_i32 s83, s7, 3072
    s_add_u32 s83, s83, 16384
    s_mul_i32 s80, s46, 384
    s_lshr_b32 s14, s45, 1
    s_lshl_b32 s32, s14, 7
    s_add_u32 s32, s32, {FH_OFF}
    s_waitcnt lgkmcnt(0)
    s_mov_b32 s58, {4608*1152}
    s_mov_b32 s59, 0x20000
    s_add_u32 s60, s60, {E_OFF}
    s_addc_u32 s61, s61, 0
    s_mov_b32 s62, {E_BYTES}
    s_mov_b32 s63, 0x20000
    v_lshlrev_b32 v15, 2, v1
    v_and_b32 v15, 127, v15
    s_lshl_b32 s33, s6, 7
    s_add_u32 s33, s33, {FE_OFF}
    ''')
    lg.q = []
    for i in range(3):
        A(f'''
        s_and_b32 s13, s7, 3
        s_mul_i32 s13, s13, 192
        s_add_u32 s13, s13, {64*i}
        v_add_u32 v12, s13, v1
        v_mul_u32_u24 v13, 2731, v12
        v_lshrrev_b32 v13, 16, v13
        v_mul_u32_u24 v14, 24, v13
        v_sub_u32 v14, v12, v14
        v_bfe_u32 v12, v13, 1, 1
        v_lshlrev_b32 v12, 2, v12
        v_xor_b32 v14, v14, v12
        v_mul_u32_u24 v13, 1152, v13
        v_lshl_add_u32 v{8+i}, v14, 4, v13
        ''')
    poll_issue(12, 15, 's32', 'pg0')
    poll_issue(13, 15, 's33', 'pfe')
for n_ in range(240): assert (n_*1366) >> 16 == n_//48
for n_ in range(48): assert (n_*86) >> 8 == n_//3
def k2_dma_ffn(n):
    slot = ((n + 1) % 4) * K2S
    def g0(dst, sel):
        return f'''s_add_u32 {dst}, s44, {5*n}
        s_lshr_b32 s12, {dst}, 2
        s_lshl_b32 {dst}, {dst}, 1
        s_add_u32 {dst}, {dst}, s12
        s_lshl_b32 {dst}, {dst}, 1
        s_add_u32 {dst}, {dst}, {sel}
        '''
    def g1(dst, sel):
        return f'''s_add_u32 {dst}, s44, {5*n-32}
        s_lshr_b32 s13, {dst}, 4
        s_and_b32 {dst}, {dst}, 15
        s_lshl_b32 {dst}, {dst}, 1
        s_add_u32 {dst}, {dst}, {sel}
        s_lshr_b32 s12, {dst}, 2
        s_lshl_b32 {dst}, {dst}, 1
        s_add_u32 {dst}, {dst}, s12
        s_lshl_b32 {dst}, {dst}, 1
        s_add_u32 {dst}, {dst}, s13
        s_add_u32 {dst}, {dst}, 2
        '''
    def g2(dst, sel):
        return f's_add_u32 {dst}, s44, {5*n-64}\ns_mul_i32 {dst}, {dst}, 18\ns_add_u32 {dst}, {dst}, 16\ns_add_u32 {dst}, {dst}, {sel}\n'
    def calc(dst, sel):
        lo, hi = 5*n, 5*n + 4
        if hi < 32: return g0(dst, sel)
        if lo >= 32 and hi < 64: return g1(dst, sel)
        if lo >= 64: return g2(dst, sel)
        f1, f2, th = (g0, g1, 32 - lo) if lo < 32 else (g1, g2, 64 - lo)
        return f1('s14', sel) + f2(dst, sel) + f's_cmp_lt_u32 s44, {th}\ns_cselect_b32 {dst}, s14, {dst}\n'
    preW = calc('s73', 's10') + f's_mul_i32 s73, s73, {32*1152}\ns_add_u32 s73, s73, s80\n'
    preH = calc('s72', 's9') + 's_lshl_b32 s72, s72, 11\ns_add_u32 s72, s72, s76\n'
    for i in range(3): bg.push_m((preW if i == 0 else '') + dma_txt(8+i, 's[56:59]', 's73', f's_add_u32 m0, s83, {slot+1024*i}'), f'k{n}', 1)
    bg.push_m(preH + dma_txt(3, WS, 's72', f's_add_u32 m0, s82, {slot}', sc=LSC), f'k{n}', 1)
    bg.push_m(dma_txt(3, WS, 's72', f's_add_u32 m0, s82, {slot}', imm=1024, sc=LSC), f'k{n}', 1)
def k2_dma_ssm(n, m):
    slot = ((n + 1) % 4) * K2S
    e0 = {14: -2, 15: 3, 16: 9, 17: 14}[n]
    sp = 's_cmp_eq_u32 s44, 3\ns_cselect_b32 s73, 8, s73\ns_min_u32 s73, s73, 17\n' if n == 17 else ''
    pre = f'''s_add_i32 s73, s44, {e0}
    {sp}
    s_cmp_lt_u32 s73, 9
    s_cselect_b32 s64, s68, s70
    s_cselect_b32 s65, s69, s71
    s_cselect_b32 s72, 0, 128
    s_cselect_b32 s12, 0, 9
    s_sub_u32 s73, s73, s12
    s_add_u32 s72, s72, s29
    s_lshl_b32 s12, s73, 14
    s_add_u32 s72, s72, s12
    s_lshl_b32 s73, s73, 7
    s_add_u32 s73, s73, s74
    '''
    for i in range(3):
        bg.push_m((pre if i == 0 else '') + f's_add_u32 s12, s73, {i*8*1152}\n' + dma_txt(5 + (i % 2), 's[64:67]', 's12', f's_add_u32 m0, s83, {slot+1024*i}'), f'k{n}', 1)
    bg.push_m(dma_txt(4, WS, 's72', f's_add_u32 m0, s82, {slot}', sc=LSC), f'k{n}', 1)
    bg.push_m(f's_add_u32 s12, s72, {72*2048}\n' + dma_txt(4, WS, 's12', f's_add_u32 m0, s82, {slot+1024}', sc=LSC), f'k{n}', 1)
def k2_prefetch():
    poll_check(13, 15, 's33', 'pfe')
    poll_check(12, 15, 's32', 'pg0')
    for n in range(3): k2_dma_ffn(n)

def phase_k2():
    ACC2 = 64; AF = 24; BF = 32
    BR = [32, 36, 40, 44, 128, 132]
    RA, RB, SA, SB = 224, 226, 232, 234
    VH, VC, VO, VF = 100+142, 243, 245, 246
    A(f'''
    s_and_b32 s14, s44, 3
    s_lshl_b32 s14, s14, 7
    v_xor_b32 v{RA}, s14, v3
    s_and_b32 s13, s7, 3
    s_lshl_b32 s12, s13, 12
    v_add_u32 v{RA}, s12, v{RA}
    v_add_u32 v{RA+1}, {2*K2S}, v{RA}
    v_lshrrev_b32 v12, 5, v1
    v_lshlrev_b32 v13, 2, v12
    v_bfe_u32 v14, v1, 2, 2
    v_add_u32 v13, v13, v14
    v_mul_u32_u24 v13, 384, v13
    v_bfe_u32 v14, v1, 4, 1
    v_lshl_add_u32 v13, v14, 5, v13
    v_and_b32 v14, 3, v1
    v_lshl_add_u32 v13, v14, 3, v13
    v_add_u32 v13, 16384, v13
    v_bfe_u32 v14, v1, 3, 1
    s_lshr_b32 s77, s7, 2
    s_mul_i32 s77, s77, 3
    ''')
    for jj in range(3):
        A(f's_add_u32 s14, s77, {jj}\nv_xor_b32 v2, s14, v14\nv_lshl_add_u32 v{RB+jj}, v2, 6, v13\nv_add_u32 v{RB+3+jj}, {2*K2S}, v{RB+jj}')
    def setup2():
        A(f'''
        v_lshrrev_b32 v252, 5, v1
        v_lshrrev_b32 v253, 4, v1
        v_lshlrev_b32 v254, 2, v252
        v_and_b32 v255, 7, v1
        v_xor_b32 v254, v254, v255
        v_lshlrev_b32 v254, 4, v254
        v_lshrrev_b32 v255, 3, v1
        v_lshl_add_u32 v4, v255, 8, v254
        v_lshrrev_b32 v254, 3, v1
        v_mul_u32_u24 v254, 1152, v254
        v_and_b32 v255, 7, v1
        v_xor_b32 v255, v255, v253
        v_lshl_add_u32 v5, v255, 4, v254
        s_and_b32 s75, s7, 1
        s_lshl_b32 s75, s75, 6
        v_xor_b32 v5, s75, v5
        v_xor_b32 v6, 64, v5
        s_lshl_b32 s29, s7, 11
        s_mul_i32 s75, s45, {2*72*2048}
        s_add_u32 s29, s29, s75
        s_add_u32 s29, s29, {HT_OFF}
        s_mul_i32 s74, s46, 192
        s_mul_i32 s75, s7, 24
        s_add_u32 s74, s74, s75
        s_mul_i32 s74, s74, 1152
        s_mov_b32 s66, 663552
        s_mov_b32 s67, 0x20000
        s_mov_b32 s64, s68
        s_mov_b32 s65, s69
        v_bfe_u32 v253, v1, 1, 1
        s_and_b32 s75, s44, 1
        v_xor_b32 v253, s75, v253
        v_bfe_u32 v254, v1, 4, 1
        s_bfe_u32 s75, s44, 0x10001
        v_xor_b32 v254, s75, v254
        v_lshlrev_b32 v255, 11, v252
        v_lshl_add_u32 v255, v254, 7, v255
        v_mul_u32_u24 v253, 576, v253
        v_add_u32 v255, v255, v253
        v_bfe_u32 v254, v1, 2, 2
        v_lshl_add_u32 v255, v254, 4, v255
        v_and_b32 v254, 1, v1
        v_lshl_add_u32 v255, v254, 3, v255
        s_bfe_u32 s75, s7, 0x10001
        s_lshl_b32 s75, s75, 10
        v_add_u32 v255, s75, v255
        s_and_b32 s75, s7, 1
        s_lshl_b32 s75, s75, 8
        v_add_u32 v{SA}, s75, v255
        v_add_u32 v{SA+1}, {2*K2S}, v{SA}
        v_xor_b32 v244, 64, v{SA}
        v_xor_b32 v245, 64, v{SA+1}
        v_and_b32 v253, 31, v1
        v_bfe_u32 v254, v1, 1, 3
        v_xor_b32 v254, v254, v252
        v_lshlrev_b32 v254, 4, v254
        v_lshl_add_u32 v253, v253, 7, v254
        s_lshl_b32 s75, s77, 12
        s_add_u32 s75, s75, 16384
        v_add_u32 v253, s75, v253
        ''')
        for sp in range(4): A(f'v_xor_b32 v{SB+sp}, {32*sp}, v253\nv_add_u32 v{SB+4+sp}, {2*K2S}, v{SB+sp}')
        A(f'''
        s_lshl_b32 s75, s45, 2
        s_and_b32 s31, s7, 3
        s_add_u32 s75, s75, s31
        s_lshl_b32 s75, s75, 2
        s_and_b32 s31, s44, 3
        s_add_u32 s75, s75, s31
        s_lshl_b32 s30, s75, 6
        s_add_u32 s30, s30, {STAT_OFF}
        s_mul_i32 s31, s75, {8*2304}
        s_mul_i32 s75, s46, 768
        s_add_u32 s31, s31, s75
        s_lshl_b32 s75, s77, 7
        s_add_u32 s31, s31, s75
        v_mul_u32_u24 v7, {4*2304}, v252
        v_and_b32 v255, 31, v1
        v_lshl_add_u32 v7, v255, 2, v7
        s_lshl_b32 s33, s45, 7
        s_add_u32 s33, s33, {FT_OFF}
        s_add_u32 s28, s33, 64
        v_and_b32 v242, 63, v15
        ''')
    global k2_dma_ssm
    def late_flags():
        flag_store(1, 's_add_u32 s14, s34, 3072', 2)
    def ft_flag():
        flag_store(2, f's_lshr_b32 s14, s11, 4\ns_lshl_b32 s14, s14, 7\ns_and_b32 s12, s11, 15\ns_lshl_b32 s12, s12, 2\ns_add_u32 s14, s14, s12\ns_add_u32 s14, s14, {FT_OFF}', 2)
    S(z='fx')
    bg.flush_m('k0')
    vm.wait('k0')
    A('s_barrier')
    A('s_cmp_lt_u32 s4, 30\ns_cbranch_scc1 K2_GO')
    sv = (list(vm.q), list(lg.q), list(bg.v), list(bg.m))
    A(f'v_lshlrev_b32 v14, 2, v1')
    for k in range(4):
        A(f's_mov_b32 s{24+k}, {FE_OFF+256*k}'); poll_issue(24+k, 14, f's{24+k}', f'pall{k}')
    bg.emit_m(1000); bg.emit_v(10**9)
    vm.wait('h7'); A('s_barrier'); flag_store(0, 's_add_u32 s14, s34, 2048', 2)
    bg.push_v(fix_items()); bg.emit_v(10**9)
    for k in range(4): poll_check(24+k, 14, f's{24+k}', f'pall{k}')
    A('''
    s_lshl_b32 s75, s3, 1
    s_add_u32 s75, s75, s4
    s_sub_u32 s75, s75, 30
    s_lshl_b32 s75, s75, 3
    s_add_u32 s75, s75, s7
    s_lshl_b32 s75, s75, 1
    s_add_u32 s73, s75, 1
    s_mov_b32 s74, 8
    ''')
    fix_loads('s75', 's74'); fix_loads('s73', 's74', 112, 's72'); bg.emit_m(1000)
    vm.wait('h8', 'ht'); A('s_barrier')
    late_flags(); ft_flag()
    A.lab('IDLE_LOOP')
    bg.push_v(fix_items()); bg.emit_v(10**9)
    A('s_cmp_eq_u32 s74, 0\ns_cbranch_scc1 IDLE_DONE\ns_mov_b32 s74, 0\ns_mov_b32 s22, s72')
    for k in range(29): A(f'v_mov_b32 v{FA+k}, v{112+k}')
    A('s_branch IDLE_LOOP')
    A.lab('IDLE_DONE')
    A(f'''
    s_lshr_b32 s14, s75, 4
    s_lshl_b32 s14, s14, 7
    s_and_b32 s12, s75, 15
    s_lshl_b32 s12, s12, 2
    s_add_u32 s14, s14, s12
    s_add_u32 s14, s14, {FT_OFF+64}
    v_mov_b32 v12, {TAG}
    v_mov_b32 v13, {TAG}
    s_mov_b64 exec, 1
    s_waitcnt vmcnt(0)
    buffer_store_dwordx2 v[12:13], off, {WS}, s14 sc1
    s_mov_b64 exec, -1
    s_branch K_FIN
    ''')
    vm.q, lg.q, bg.v, bg.m = sv
    A.lab('K2_GO')
    S(); S(z='k2'); S(z='fx')
    bg.v = [(0, it) for _, it in bg.v]
    fi = fix_items()
    if P('NOFIX', 0): fi = [x for x in fi if not isinstance(x, str) or 'v{}'.format(FT_+22) in x or 'v{},'.format(FT_+21) in x or 'v_add_u32' in x or 'v_and_b32' in x or 'v_lshl' in x]
    bg.push_v(fi); bg.push_v(capture(setup2))
    LK = P('LK', 3)
    def AFR(i): return (24, 28, 248)[(i // 3) % 3] if LK > 3 else AF + 4*((i // 3) % 2)
    def slab_ops(n, typ): return [(n, typ, s, jj) for s in range(4) for jj in range(3)]
    def rd(i, op):
        n, typ, s, jj = op
        slot = (n + 1) % 4; hi = slot // 2; so = (slot % 2) * K2S
        ra = AFR(i); r = BR[i % 6]
        if typ == 'f':
            if jj == 0: A(f'ds_read_b128 {vr(ra,4)}, v{RA+hi} offset:{so+1024*s}'); lg.add(f'q{i}')
            off = so + s*16*384
            A(f'ds_read_b64_tr_b16 {vr(r,2)}, v{RB+3*hi+jj} offset:{off}\nds_read_b64_tr_b16 {vr(r+2,2)}, v{RB+3*hi+jj} offset:{off+8*384}'); lg.add(f'q{i}', 2)
        else:
            if jj == 0:
                A(f'ds_read_b64_tr_b16 {vr(ra,2)}, v{SA+hi} offset:{so+4096*s}\nds_read_b64_tr_b16 {vr(ra+2,2)}, v{244+hi} offset:{so+4096*s}'); lg.add(f'q{i}', 2)
            A(f'ds_read_b128 {vr(r,4)}, v{SB+4*hi+s} offset:{so+4096*jj}'); lg.add(f'q{i}')
    def run(ops, i0, i1, variant):
        N = len(ops)
        for i in range(i0, i1):
            n, typ, s, jj = ops[i]
            j = i + LK
            if j < N:
                if j % 12 == 0: ksync(j // 12, variant)
                rd(j, ops[j])
            lg.wait(f'q{i}')
            a = ACC2 + 16*jj
            A(f'v_mfma_f32_32x32x16_bf16 {vr(a,16)}, {vr(AFR(i),4)}, {vr(BR[i%6],4)}, {"0" if (n == 0 and s == 0) else vr(a,16)}')
            if i % 2 == 1: bg.emit_m(1)
            bg.emit_v(P('K2RATE', 4), i)
            if i % 24 == 23: S(z='k2')
            if i == 9*12 - 1: S()
    def ksync(n, variant):
        if 3 <= n <= 8: S(z='k2b')
        bg.flush_m(f'k{n}'); vm.wait(f'k{n}')
        if n == 2: vm.wait('h7')
        if n == 5: vm.wait('h8')
        if n == 8: vm.wait('ht')
        A('s_barrier')
        if n == 2: flag_store(0, 's_add_u32 s14, s34, 2048', 2)
        if n == 5: late_flags()
        if n == 8: ft_flag()
        nn = n + 2
        if n <= 11: S(z='k2a')
        if 3 <= n <= 8: S(z='k2b')
        if nn == 6: poll_check(12, 15, 's78', 'pg1')
        if nn == 9: poll_check(12, 15, 's79', 'pg1b')
        if nn == 12: poll_check(12, 15, 's8', 'pg2')
        if nn == 14: poll_check(13, 242, 's33', 'pft')
        if nn == 17:
            sk = newlab('NOF8'); vm.wait('pft8')
            A(f's_cmp_lt_u32 s44, 3\ns_cbranch_scc1 {sk}'); poll_check(13, 242, 's28', 'pft8'); A.lab(sk)
        if nn == 3: pass
        elif nn <= 13 or (nn == 14 and variant == 0): k2_dma_ffn(nn)
        elif nn == 14: k2_dma_ssm(14, 3)
        elif nn <= 17: k2_dma_ssm(nn, nn - 15)
        def pq(*args): bg.m.insert(0, (0, lambda: poll_issue(*args), args[3], 0))
        if n == 3: pq(12, 15, 's78', 'pg1')
        if n == 6: pq(12, 15, 's79', 'pg1b')
        if n == 9: pq(12, 15, 's8', 'pg2')
        if n == 11: assert not bg.v, len(bg.v); pq(13, 242, 's33', 'pft')
        if n == 14: pq(13, 242, 's28', 'pft8')
        if n == 13:
            bg.push_m(f'''s_load_dwordx2 s[24:25], s[0:1], 0
            s_load_dwordx2 s[26:27], s[0:1], 64
            v_add_u32 v176, s31, v7
            v_lshrrev_b32 v176, 1, v176
            v_and_b32 v177, 31, v1
            s_mul_i32 s12, s46, 6
            s_add_u32 s12, s12, s77
            s_lshl_b32 s12, s12, 6
            v_lshl_add_u32 v177, v177, 1, s12
            v_lshrrev_b32 v178, 5, v1
            v_lshlrev_b32 v178, 5, v178
            s_waitcnt lgkmcnt(0)
            buffer_load_dwordx4 v[168:171], v178, {WS}, s30 offen sc1
            buffer_load_dwordx4 v[172:175], v178, {WS}, s30 offen offset:16 sc1''', 'base', 2)
            bg.push_m('\n'.join(f'global_load_ushort v{124+jj}, v177, s[26:27] offset:{64*jj}' for jj in range(3)), 'base', 3)
        if n in (14, 15):
            for e in (2*(n-14), 2*(n-14)+1):
                bg.push_m('\n'.join(f'global_load_ushort v{112+4*jj+e}, v176, s[24:25] offset:{1152*e+64*jj}' for jj in range(3)), 'base', 3)
        if n == 16:
            it = [('vmw', 'base'), 's_mov_b32 s13, 0xffff0000']
            for jj in range(3): it.append(f'v_lshlrev_b32 v{124+jj}, 16, v{124+jj}')
            for jj in range(3):
                for e in (0, 2):
                    a0 = 112+4*jj+e; a1 = a0+1; m0, r0, m1, r1 = 168+2*e, 169+2*e, 170+2*e, 171+2*e
                    un = ['v_cvt_pk_bf16_f32 v181, v180, v181', 'v_lshlrev_b32 v180, 16, v181', 'v_and_b32 v181, s13, v181']
                    it += [f'v_lshlrev_b32 v{a0}, 16, v{a0}', f'v_lshlrev_b32 v{a1}, 16, v{a1}', f'v_sub_f32 v180, v{a0}, v{m0}', f'v_sub_f32 v181, v{a1}, v{m1}'] + un
                    it += [f'v_mul_f32 v180, v180, v{r0}', f'v_mul_f32 v181, v181, v{r1}'] + un
                    it += [f'v_mul_f32 v180, v180, v{124+jj}', f'v_mul_f32 v181, v181, v{124+jj}'] + un
                    it += [f'v_add_f32 v{a0}, v{a0}, v180', f'v_add_f32 v{a1}, v{a1}, v181']
            bg.push_v(it, 16*12 + 4)
    ops0 = sum([slab_ops(n, 'f' if n <= 14 else 's') for n in range(18)], [])
    ops1 = sum([slab_ops(n, 'f' if n <= 13 else 's') for n in range(18)], [])
    A('s_add_u32 s78, s32, 1024\ns_add_u32 s79, s32, 2048\ns_add_u32 s8, s32, 3072')
    k2_dma_ffn(3)
    for i in range(LK): rd(i, ops0[i])
    SPLIT = 12*12 - LK
    run(ops0, 0, SPLIT, 0)
    A('s_cmp_ge_u32 s44, 2\ns_cbranch_scc1 K2_V1')
    sv = (list(vm.q), list(lg.q), list(bg.v), list(bg.m)); ns = nstamp[0]
    run(ops0, SPLIT, 216, 0); bg.emit_m(100); rest = list(bg.v); bg.v = []
    A('s_branch K2_J'); A.lab('K2_V1')
    vm.q, lg.q, bg.v, bg.m = sv; nstamp[0] = ns
    run(ops1, SPLIT, 216, 1); bg.emit_m(100); assert rest == bg.v; bg.v = []
    A.lab('K2_J')
    S()
    A(f'''
    s_mul_i32 s35, s47, {16*12288}
    s_mul_i32 s14, s7, 1536
    s_add_u32 s35, s35, s14
    s_add_u32 s35, s35, {PART_OFF}
    v_lshlrev_b32 v2, 3, v1
    s_and_b32 s12, s44, 3
    s_cmp_eq_u32 s44, 4
    s_cselect_b32 s41, 0, 12288
    s_nop 3
    ''')
    def pub(ap):
        r = 136 + 8*ap
        for jj in range(3):
            a = ACC2 + 16*jj + 4*ap
            A(f'v_cvt_pk_bf16_f32 v{r+2*jj}, v{a}, v{a+1}\nv_cvt_pk_bf16_f32 v{r+2*jj+1}, v{a+2}, v{a+3}')
        A(f's_xor_b32 s14, s12, {ap}\ns_mul_i32 s14, s14, {4*12288}\ns_add_u32 s14, s14, s35\ns_mul_i32 s13, s41, {ap}\ns_add_u32 s14, s14, s13')
        A(f'buffer_store_dwordx4 {vr(r,4)}, v3, {WS}, s14 offen sc1\nbuffer_store_dwordx2 {vr(r+4,2)}, v2, {WS}, s14 offen offset:1024 sc1')
    for ap in (1, 2, 3): pub(ap)
    A('s_cmp_lg_u32 s44, 4\ns_cbranch_scc1 NOPUB0')
    pub(0)
    A.lab('NOPUB0')
    if P('PWF', 0):
        A(f'''
    s_lshl_b32 s33, s47, 3
    s_add_u32 s33, s33, s7
    s_lshl_b32 s33, s33, 7
    s_add_u32 s33, s33, {FP_OFF}
    v_min_u32 v14, 4, v1
    v_lshlrev_b32 v14, 2, v14
    s_lshl_b32 s14, s44, 2
    s_add_u32 s14, s14, s33
    v_mov_b32 v12, {TAG}
    s_mov_b64 exec, 1
    s_waitcnt vmcnt(0)
    buffer_store_dword v12, off, {WS}, s14 sc1
    s_mov_b64 exec, -1
    ''')
        vm.q = []; vm.add('fl')
    else:
        A(f'''
    s_lshl_b32 s33, s47, 7
    s_add_u32 s33, s33, {FP_OFF}
    v_min_u32 v14, 4, v1
    v_lshlrev_b32 v14, 2, v14
    s_waitcnt vmcnt(0)
    s_barrier
    ''')
        vm.q = []
        flag_store(0, 's_lshl_b32 s14, s44, 2\ns_add_u32 s14, s14, s33', 12)
    S()
    A('s_cmp_eq_u32 s44, 4\ns_cbranch_scc1 K_FIN')
    if not P('P1W', 0): poll_issue(13, 14, 's33', 'pp')
    A('s_mov_b32 s13, 0xffff0000')
    bg.v = rest; bg.emit_v(10**9)
    for jj in range(3):
        for e in range(4): A(f'v_add_f32 v{ACC2+16*jj+e}, v{ACC2+16*jj+e}, v{112+4*jj+e}')
    A(f's_mul_i32 s14, s44, {4*12288}\ns_add_u32 s14, s14, s35')
    if P('P1W', 0):
        A('s_cmp_lg_u32 s7, 0\ns_cbranch_scc1 PP_W'); poll_issue(13, 14, 's33', 'pp'); poll_check(13, 14, 's33', 'pp'); A.lab('PP_W'); A('s_barrier'); vm.q = []
    else: poll_check(13, 14, 's33', 'pp')
    S()
    for sl in range(4):
        r = 136 + 8*sl
        A(f'buffer_load_dwordx4 {vr(r,4)}, v3, {WS}, s14 offen sc1\nbuffer_load_dwordx2 {vr(r+4,2)}, v2, {WS}, s14 offen offset:1024 sc1')
        if sl < 3: A('s_add_u32 s14, s14, 12288')
    for sl in range(4):
        A(f's_waitcnt vmcnt({2*(3-sl)})')
        r = 136 + 8*sl
        for jj in range(3):
            for h in range(2):
                a = ACC2 + 16*jj + 2*h; p = r + 2*jj + h
                A(f'v_lshlrev_b32 v12, 16, v{p}\nv_and_b32 v13, s13, v{p}\nv_pk_add_f32 {vr(a,2)}, {vr(a,2)}, v[12:13]')
    for e in range(4):
        A(f's_add_u32 s14, s31, {e*2304}')
        for jj in range(3): A(f'buffer_store_dword v{ACC2+16*jj+e}, v7, {OUT}, s14 offen offset:{128*jj}' + os.environ.get('OSC', ''))
    A.lab('K_FIN')
    if STAMP:
        A('s_waitcnt vmcnt(0)'); nstamp[0] = 14; S(force=True); S(True); Sflush()

def main(path):
    hdr = open('parallel_sum__ssm_conv_s5__geglu_ffn__prompt.s.ref').read().split('; Override launch')[0]
    A.raw(hdr.rstrip())
    A.raw('; @launch grid=(256,1,1) block=(512,1,1) lds=163840')
    A.raw('.amdgcn_target "amdgcn-amd-amdhsa--gfx950"\n.text')
    A.raw(f'.globl {NAME}\n.p2align 8\n.type {NAME},@function\n{NAME}:')
    if STAMP:
        for i in range(16): A(f's_mov_b32 s{86+i}, 0')
    phase_a(); phase_k1(); phase_k2()
    A.lab('K_END')
    A('s_endpgm')
    for c in cold: A.raw(c)
    A.lab('K_LAST')
    A('s_endpgm')
    A.raw(f'''.section .rodata,"a"
.p2align 6
.amdhsa_kernel {NAME}
  .amdhsa_next_free_vgpr 256
  .amdhsa_next_free_sgpr 102
  .amdhsa_accum_offset 256
  .amdhsa_group_segment_fixed_size 0
  .amdhsa_kernarg_size 128
  .amdhsa_user_sgpr_count 2
  .amdhsa_user_sgpr_kernarg_segment_ptr 1
  .amdhsa_system_sgpr_workgroup_id_x 1
  .amdhsa_float_denorm_mode_32 3
.end_amdhsa_kernel''')
    open(path, 'w').write('\n'.join(A.L) + '\n')

if __name__ == '__main__':
    main(sys.argv[1] if len(sys.argv) > 1 else 'k3.s')
```

```python
import sys, struct, os
from layout import *
from gen_v1 import f32, LOG2E, INV2PI, Asm, vr, sr, srd, lam_consts, csq, cmul, DPP8, mapply

STAMP = int(os.environ.get('STAMP', '0'))
DBGT = int(os.environ.get('DBGT', '0'))
LSC = ' sc1' if int(os.environ.get('LSC', '1')) else ''
ZOOM = os.environ.get('ZOOM', '')
def P(name, d): return int(os.environ.get(name, d))
A = Asm()
NAME = 'parallel_sum__ssm_conv_s5__geglu_ffn__prompt_kernel'

class Cnt:
    def __init__(self, name, mx): self.q = []; self.ever = set(); self.name = name; self.mx = mx
    def add(self, tag, n=1): self.q += [tag]*n; self.ever.add(tag)
    def wait(self, *tags):
        for t in tags: assert t in self.ever, t
        idx = [i for i, t in enumerate(self.q) if t in tags]
        if not idx: return
        last = max(idx); n = len(self.q) - 1 - last
        if n > self.mx:
            if self.name == 'vmcnt': self.q = self.q[last+1:]; return
            n = self.mx; last = len(self.q) - 1 - n
        A(f's_waitcnt {self.name}({n})')
        self.q = self.q[last+1:]
    def drain(self):
        A(f's_waitcnt {self.name}(0)'); self.q = []
vm = Cnt('vmcnt', 63); lg = Cnt('lgkmcnt', 15)
nstamp = [0]
def S(real=False, z='', force=False):
    if not STAMP: return
    if not (real or force) and z != ZOOM: return
    A(f'{"s_memrealtime" if (real or DBGT) else "s_memtime"} s[84:85]\ns_waitcnt lgkmcnt(0)\ns_mov_b32 s{86+nstamp[0]}, s84')
    nstamp[0] += 1
    assert nstamp[0] <= 16
def Sflush():
    if DBGT:
        A(f's_mov_b64 exec, 1\ns_load_dwordx2 s[72:73], s[0:1], 112\ns_mov_b32 s74, 256\ns_mov_b32 s75, 0x20000\nv_mov_b32 v2, s101\nv_mov_b32 v1, 0\ns_waitcnt lgkmcnt(0)\nbuffer_atomic_umax v2, v1, s[72:75], 0 offen offset:60 sc1')
        A('s_cmp_lg_u32 s2, 5\ns_cbranch_scc1 NODBG\ns_cmp_lg_u32 s7, 0\ns_cbranch_scc1 NODBG')
        for i in range(14): A(f'v_mov_b32 v2, s{87+i}\nbuffer_store_dword v2, v1, s[72:75], 0 offen offset:{4+4*i}')
        A.lab('NODBG')
        return
    A(f's_mov_b64 exec, -1\ns_lshl_b32 s84, s2, 3\ns_add_u32 s84, s84, s7\ns_lshl_b32 s84, s84, 6\ns_add_u32 s84, s84, {STAMP_OFF}\nv_mov_b32 v1, 0')
    for i in range(16):
        A(f'v_mov_b32 v2, s{86+i}\nbuffer_store_dword v2, v1, s[48:51], s84 offen offset:{4*i}')
uid = [0]
def newlab(p):
    uid[0] += 1; return f'{p}_{uid[0]}'

WS = 's[48:51]'; OUT = 's[52:55]'; DBG = 's[72:75]'
TAG = 's15'
cold = []
def poll_issue(vdst, vaddr, soff, tag):
    A(f'buffer_load_dword v{vdst}, v{vaddr}, {WS}, {soff} offen sc1'); vm.add(tag)
def poll_check(vdst, vaddr, soff, tag):
    vm.wait(tag)
    slow = newlab('SLOW'); back = newlab('BACK')
    A(f'v_cmp_ne_u32 vcc, {TAG}, v{vdst}\ns_cbranch_vccnz {slow}')
    A.lab(back)
    cold.append(f'''{slow}:
    s_sub_u32 s23, s23, 1
    s_cbranch_scc1 {back}
    s_sleep {P('SLP', 1)}
    buffer_load_dword v{vdst}, v{vaddr}, {WS}, {soff} offen sc1
    s_waitcnt vmcnt(0)
    v_cmp_ne_u32 vcc, {TAG}, v{vdst}
    s_cbranch_vccnz {slow}
    s_branch {back}''')
def flag_store(wave, spre, vtmp):
    sk = newlab('NOFLAG')
    A(f's_cmp_lg_u32 s7, {wave}\ns_cbranch_scc1 {sk}\n{spre}\nv_mov_b32 v{vtmp}, {TAG}\ns_mov_b64 exec, 1\nbuffer_store_dword v{vtmp}, off, {WS}, s14 sc1\ns_mov_b64 exec, -1')
    A.lab(sk)
def dma_txt(voff, srdn, soff, m0expr, imm=0, sc=''):
    return f'{m0expr}\ns_nop 0\nbuffer_load_dwordx4 v{voff}, {srdn}, {soff} offen{" offset:%d" % imm if imm else ""}{sc} lds'

def capture(f, group=1):
    n0 = len(A.L); f(); out = A.L[n0:]; del A.L[n0:]
    return [l.strip() for l in out]

class BG:
    def __init__(self): self.v = []; self.m = []
    def push_v(self, items, ready=0): self.v += [(ready, it) for it in items]
    def push_m(self, text, tag, n=1, ready=0): self.m.append((ready, text, tag, n))
    def emit_v(self, k, now=10**9):
        while k > 0 and self.v and self.v[0][0] <= now:
            it = self.v.pop(0)[1]
            if isinstance(it, str): A(it); k -= it.count('\n') + 1
            elif it[0] == 'vm': A(it[1]); vm.add(it[2], it[3]); k -= 2
            elif it[0] == 'ds': A(it[1]); lg.add(it[2]); k -= 1
            elif it[0] == 'lgw': lg.wait(it[1])
            elif it[0] == 'vmw': self.flush_m(it[1]); vm.wait(it[1])
            elif it[0] == 'call': it[1]()
    def emit_m(self, k=1, now=10**9):
        while k > 0 and self.m and self.m[0][0] <= now:
            _, text, tag, n = self.m.pop(0)
            if callable(text): text()
            else:
                for part in text.split('@@'):
                    if part.startswith('LAB '): A.lab(part[4:])
                    else: A(part)
            if n: vm.add(tag, n)
            k -= 1
    def flush_m(self, *tags):
        while any(t[2] in tags for t in self.m): self.emit_m(1)
bg = BG()
def valu_with_vmem(lines, every=8):
    for i, l in enumerate(lines):
        if l.endswith(':'): A.lab(l[:-1])
        else: A(l)
        if i % every == every - 1 and not l.startswith('v_cmp') and not l.startswith('s_nop') and not l.startswith('s_'): bg.emit_m(1, 0)

UREG = 73760
A2_B = [16384, 90144, 34816, 108672]
A2_X = [53248, 127104, 61440, 135296]
TB = 147584
EX_T = 147584; EX_B = EX_T + 8192; EX_S = EX_B + 2048; EX_R = 69632
G2U = 18560
K2S = 40960
XR = 112; ACC = 48; WR = 24; NW = 6; TMP = 16
CONSTS = (244, 245, 246, 247, 248, 249)

def ln_stats(r, t):
    inv = f32(1.0/576.0)
    A(f'''
    v_mul_f32 v{r}, {inv}, v{r}
    v_mul_f32 v{r+1}, {inv}, v{r+1}
    v_fma_f32 v{r+1}, -v{r}, v{r}, v{r+1}
    v_max_f32 v{r+1}, 0, v{r+1}
    v_cvt_pk_bf16_f32 v{t}, v{r}, v{r+1}
    v_lshlrev_b32 v{r}, 16, v{t}
    v_and_b32 v{r+1}, 0xffff0000, v{t}
    v_add_f32 v{r+1}, {f32(1e-5)}, v{r+1}
    v_cvt_pk_bf16_f32 v{r+1}, v{r+1}, v{r+1}
    v_lshlrev_b32 v{r+1}, 16, v{r+1}
    v_sqrt_f32 v{r+1}, v{r+1}
    s_nop 0
    v_cvt_pk_bf16_f32 v{r+1}, v{r+1}, v{r+1}
    v_lshlrev_b32 v{r+1}, 16, v{r+1}
    v_rcp_f32 v{r+1}, v{r+1}
    s_nop 0
    ''')
def unit_consts(p, t=232):
    LR, SLI, A1, A2c, L16R, SL16I = CONSTS
    lam_consts(A, p, p+1, p+2, LR, t, t+1, t+2, t+3, t+4, t+5, t+6)
    A(f'''
    v_and_b32 v{t+7}, 8, v1
    v_lshlrev_b32 v{t+7}, 28, v{t+7}
    v_xor_b32 v{SLI}, v{t+7}, v{t}
    v_add_f32 v{A1}, v{t+1}, v{t+1}
    v_xor_b32 v{A1}, v{t+7}, v{A1}
    v_mul_f32 v{A2c}, -2.0, v{t+2}
    ''')
    csq(A, LR, t, L16R, SL16I, t+3)
    for _ in range(3): csq(A, L16R, SL16I, L16R, SL16I, t+3)
    A(f'v_xor_b32 v{SL16I}, v{t+7}, v{SL16I}')
def get_tag():
    vm.wait('tag')
    slow = newlab('TAGSLOW'); back = newlab('TAGBACK')
    A(f'v_readfirstlane_b32 {TAG}, v15\ns_cmp_eq_u32 {TAG}, 0\ns_cbranch_scc1 {slow}')
    A.lab(back)
    cold.append(f'''{slow}:
    s_sub_u32 s23, s23, 1
    s_cbranch_scc1 {back}
    s_sleep {P('SLP', 1)}
    buffer_load_dword v15, off, {DBG}, 0 sc1
    s_waitcnt vmcnt(0)
    v_readfirstlane_b32 {TAG}, v15
    s_cmp_eq_u32 {TAG}, 0
    s_cbranch_scc1 {slow}
    s_branch {back}''')

def k1_dma(g, n, ready=0):
    pre = f's_add_u32 s12, s32, {n*64*9216 + g*128}\n'
    bg.push_m(pre + dma_txt(0, 's[24:27]', 's12', f's_add_u32 m0, s81, {8192*n}'), f'w{g}_{n}', 1, ready)
    bg.push_m(pre + dma_txt(0, 's[36:39]', 's12', f's_add_u32 m0, s81, {UREG+8192*n}'), f'w{g}_{n}', 1, ready)
def k1_xload(ks, ready=0):
    if ks < 4: t = f'buffer_load_dwordx4 {vr(XR+4*ks,4)}, v3, {WS}, s40 offen offset:{ks*1024}{LSC}'
    else: t = f's_add_u32 s12, s40, {ks*1024}\nbuffer_load_dwordx4 {vr(XR+4*ks,4)}, v3, {WS}, s12 offen{LSC}'
    bg.push_m(t, f'x{ks}', 1, ready)
def k1_dma_g2(part, ready=0):
    sd = 's[24:27]' if part == 0 else 's[36:39]'
    base = 0 if part == 0 else G2U
    sk = newlab('G2X')
    bg.push_m(f's_cmp_ge_u32 s7, 2\ns_cbranch_scc1 {sk}\ns_add_u32 s12, s41, {16*32*9216}\n' + dma_txt(4, sd, 's12', f's_add_u32 m0, s81, {base+16384}') + f'@@LAB {sk}', f'g2_{part}', 0, ready)
    for i in range(2):
        bg.push_m(f's_add_u32 s12, s41, {i*8*32*9216}\n' + dma_txt(4, sd, 's12', f's_add_u32 m0, s81, {base+8192*i}'), f'g2_{part}', 1, ready)


XS = [16384, 90144, 24576, 98336, 32768, 106528, 40960, 114720, 49152]
B8L = 122912; STG = 57344
U = 208; CR = 224; XA = 224; BS8 = 228; STT = 232; ONES = 236; BS = 240; PAR = 250
scan_items = []
CPF2 = ""
if P('CPF', 1) >= 2:
    nl = {2: 16, 3: 64}[P('CPF', 1)]
    CPF2 = f"""v_lshlrev_b32 v13, 7, v1
    s_cmp_lg_u32 s7, 0
    s_cbranch_scc1 NOCPF
    s_getpc_b64 s[76:77]
PCREF:
    s_and_b32 s76, s76, 0xffffff80
    s_mov_b32 s78, K_LAST-PCREF
    s_mov_b32 s79, 0x20000
    {"s_lshl_b32 s14, s4, 11" if nl == 16 else "s_and_b32 s14, s4, 7"}
    {"s_mov_b64 exec, 0xffff" if nl == 16 else "s_lshl_b32 s14, s14, 13"}
    buffer_load_dword v111, v13, s[76:79], s14 offen
    s_mov_b64 exec, -1
NOCPF:"""
def phase_a():
    A(f"""
    s_cmp_ge_u32 s2, 256
    s_cbranch_scc1 K_END
    {"s_lshr_b32 s3, s2, 5" if P('SCR', 0) else ""}
    {"s_lshl_b32 s2, s2, 3" if P('SCR', 0) else ""}
    {"s_or_b32 s2, s2, s3" if P('SCR', 0) else ""}
    {"s_and_b32 s2, s2, 255" if P('SCR', 0) else ""}
    s_load_dwordx16 s[16:31], s[0:1], 0
    s_load_dwordx8 s[36:43], s[0:1], 80
    s_load_dwordx4 s[44:47], s[0:1], 112
    v_and_b32 v1, 63, v0
    v_lshrrev_b32 v2, 6, v0
    s_and_b32 s3, s2, 7
    s_lshr_b32 s4, s2, 3
    v_readfirstlane_b32 s7, v2
    {CPF2}
    s_lshr_b32 s5, s4, 3
    s_lshl_b32 s8, s3, 2
    s_add_u32 s5, s5, s8
    s_and_b32 s6, s4, 7
    s_lshr_b32 s8, s3, 2
    s_lshl_b32 s8, s8, 2
    s_lshr_b32 s9, s4, 3
    s_add_u32 s8, s8, s9
    s_and_b32 s9, s3, 3
    s_lshl_b32 s9, s9, 3
    s_add_u32 s9, s9, s6
    s_lshl_b32 s10, s8, 3
    s_add_u32 s10, s10, s7
    v_lshlrev_b32 v3, 4, v1
    v_lshrrev_b32 v4, 3, v1
    v_and_b32 v5, 7, v1
    v_add_u32 v6, 1024, v3
    v_cmp_gt_u32 vcc, 8, v1
    v_mov_b32 v7, 0x3ffffff0
    s_lshl_b32 s11, s5, 3
    s_add_u32 s11, s11, s6
    v_cndmask_b32 v6, v7, v6, vcc
    s_lshl_b32 s33, s11, 3
    s_add_u32 s33, s33, s7
    s_mul_i32 s13, s33, 1152
    v_mul_u32_u24 v8, 1152, v4
    v_bfe_u32 v9, v4, 1, 1
    s_and_b32 s14, s7, 6
    v_xor_b32 v9, s14, v9
    v_xor_b32 v9, v9, v5
    v_lshl_add_u32 v9, v9, 4, v8
    v_lshrrev_b32 v10, 1, v4
    v_xor_b32 v10, v10, v5
    v_lshl_add_u32 v10, v10, 4, v8
    v_xor_b32 v11, 64, v10
    s_lshl_b32 s14, s7, 6
    s_and_b32 s14, s14, 64
    v_xor_b32 v12, s14, v10
    s_lshl_b32 s14, s5, 3
    s_add_u32 s14, s14, s7
    s_mul_i32 s34, s14, {8*1152}
    s_lshl_b32 s14, s6, 3
    s_add_u32 s35, s14, s7
    s_mul_i32 s35, s35, {8*1152}
    s_add_u32 s80, s6, 64
    s_mul_i32 s80, s80, {8*1152}
    s_lshr_b32 s14, s7, 1
    s_lshl_b32 s14, s14, 7
    s_add_u32 s80, s80, s14
    s_lshl_b32 s81, s7, 10
    s_lshl_b32 s82, s7, 11
    s_waitcnt lgkmcnt(0)
    """)
    S(True); S(force=True)
    if P('PRIO', 0): A(f"s_cmp_{'ge' if P('PRIO',0)==1 else 'lt'}_u32 s7, 4\ns_cbranch_scc0 NOPRIO\ns_setprio 1"); A.lab('NOPRIO')
    XRW = 80; XNR = 88; MR_ = 96; T0 = 100
    srd(A, 56, 16, 2359296)
    A(f'buffer_load_dwordx4 {vr(XRW,4)}, v3, s[56:59], s13 offen\nbuffer_load_dwordx4 {vr(XRW+4,4)}, v6, s[56:59], s13 offen')
    vm.add('xr', 2)
    srd(A, 60, 22, 663552); srd(A, 64, 24, 663552)
    A("""
    s_and_b32 s14, s7, 1
    s_cselect_b32 s68, s24, s22
    s_cselect_b32 s69, s25, s23
    s_mov_b32 s70, 663552
    s_mov_b32 s71, 0x20000
    s_mov_b32 s23, 100000
    """)
    def bsg(n): return 112 + 8*n if n < 8 else 88
    def b8(i):
        t = f's_add_u32 s12, s80, {512*i}\n' + dma_txt(12, 's[68:71]', 's12', f's_add_u32 m0, s81, {B8L+8192*i}')
        if i < 2: bg.push_m(t, f'b8_{i}', 1)
        else:
            sk = newlab('B8X'); bg.push_m(f's_cmp_ge_u32 s7, 2\ns_cbranch_scc1 {sk}\n' + t + f'@@LAB {sk}', 'b8_2', 0)
    def a2q(n):
        bg.push_m(f's_add_u32 s12, s34, {128*n}\n' + dma_txt(9, 's[56:59]', 's12', f's_add_u32 m0, s81, {XS[n]}'), f'ax{n}', 1)
        bg.push_m(f'buffer_load_dwordx4 {vr(bsg(n),4)}, v10, s[60:63], s35 offen offset:{128*n}', f'ab{n}', 1, 2 if n == 8 else 0)
        bg.push_m(f'buffer_load_dwordx4 {vr(bsg(n)+4,4)}, v11, s[64:67], s35 offen offset:{128*n}', f'ab{n}', 1)
    if P('BT', 1):
        A(f"""
        s_cmp_lt_u32 s2, 128
        s_cselect_b32 s76, s60, s64
        s_cselect_b32 s77, s61, s65
        s_mov_b32 s78, 663552
        s_mov_b32 s79, 0x20000
        s_and_b32 s12, s2, 127
        s_lshl_b32 s12, s12, 3
        s_add_u32 s12, s12, s7
        s_mul_i32 s12, s12, 648
        s_and_b32 s12, s12, 0xffffff80
        v_lshlrev_b32 v13, 7, v1
        s_mov_b64 exec, 0x7f
        buffer_load_dword v111, v13, s[76:79], s12 offen
        s_mov_b64 exec, -1
        """)
        vm.add('bt')
    a2q(0); b8(0); a2q(1)
    bg.emit_m(4)
    if P('CPF', 1) == 1:
        A(f"""
        s_cmp_lg_u32 s7, 5
        s_cbranch_scc1 NOCPF
        s_getpc_b64 s[76:77]
        """)
        A.lab('PCREF')
        A(f"""
        s_and_b32 s76, s76, 0xffffff80
        s_mov_b32 s78, K_LAST-PCREF
        s_mov_b32 s79, 0x20000
        s_lshl_b32 s14, s4, 11
        v_lshlrev_b32 v13, 7, v1
        s_mov_b64 exec, 0xffff
        buffer_load_dword v111, v13, s[76:79], s14 offen
        s_mov_b64 exec, -1
        """)
        A.lab('NOCPF')
    srd(A, 72, 44, 256)
    A(f"""
    s_or_b32 s14, s2, s7
    s_cmp_lg_u32 s14, 0
    s_cbranch_scc1 NOTAG
    s_memrealtime s[84:85]
    s_waitcnt lgkmcnt(0)
    s_mul_i32 s14, s84, 0x9E3779B1
    s_or_b32 s14, s14, 1
    v_mov_b32 v8, s14
    s_mov_b64 exec, 1
    buffer_store_dword v8, off, {DBG}, 0 sc1
    s_mov_b64 exec, -1
    """)
    A.lab('NOTAG')
    srd(A, 48, 46, 0x10000000); srd(A, 52, 42, 4718592)
    if P('TLB', 0):
        sh = P('TLB', 0)
        A(f"""
        s_cmp_lg_u32 s7, 4
        s_cbranch_scc1 NOTLB
        v_lshlrev_b32 v13, {sh}, v1
        s_lshl_b32 s14, s4, {sh+6}
        s_and_b32 s14, s14, 0x3ffffff
        buffer_load_dword v111, v13, {WS}, s14 offen
        buffer_load_dword v111, v13, {OUT}, s14 offen
        """)
        A.lab('NOTLB')
    U1 = 224; BS1 = 240
    AD = 196
    def setup():
        A(f"""
        v_and_b32 v13, 15, v1
        v_lshrrev_b32 v14, 4, v1
        v_bfe_u32 v2, v1, 1, 3
        v_xor_b32 v2, v2, v14
        v_lshlrev_b32 v2, 4, v2
        v_lshl_add_u32 v8, v13, 7, v2
        v_bfe_u32 v14, v1, 2, 2
        v_lshlrev_b32 v14, 11, v14
        v_and_b32 v13, 3, v1
        v_lshl_add_u32 v14, v13, 7, v14
        v_add_u32 v{AD}, v14, v2
        v_xor_b32 v{AD+1}, 64, v{AD}
        v_add_u32 v{AD+2}, 90144, v{AD}
        v_add_u32 v{AD+3}, 90144, v{AD+1}
        s_lshr_b32 s14, s7, 2
        s_lshl_b32 s14, s14, 6
        v_xor_b32 v{AD+8}, s14, v8
        v_add_u32 v{AD+8}, {B8L}, v{AD+8}
        v_xor_b32 v{AD+4}, s14, v{AD}
        s_and_b32 s14, s7, 3
        s_lshl_b32 s14, s14, 9
        v_add_u32 v{AD+4}, s14, v{AD+4}
        v_add_u32 v{AD+5}, 90144, v{AD+4}
        s_add_u32 s14, s82, {STG}
        v_add_u32 v192, s14, v8
        v_xor_b32 v193, 64, v192
        v_add_u32 v194, s14, v3
        v_mov_b32 v{ONES}, 0x3f803f80
        v_mov_b32 v{ONES+1}, 0x3f803f80
        v_mov_b32 v{ONES+2}, 0x3f803f80
        v_mov_b32 v{ONES+3}, 0x3f803f80
        s_mov_b32 s83, 0x3f803f80
        s_lshl_b32 s14, s6, 3
        v_add_u32 v14, s14, v5
        v_add_u32 v14, 512, v14
        s_add_u32 s14, s14, s7
        s_lshl_b32 s14, s14, 3
        v_add_u32 v13, s14, v5
        v_lshlrev_b32 v108, 1, v13
        v_lshlrev_b32 v109, 1, v14
        s_lshr_b32 s14, s9, 2
        s_mul_i32 s14, s14, 1152
        s_cmp_lt_u32 s2, 128
        s_cselect_b32 s76, s36, s38
        s_cselect_b32 s77, s37, s39
        s_mov_b32 s78, {576*9216}
        s_mov_b32 s79, 0x20000
        s_add_u32 s24, s36, s14
        s_addc_u32 s25, s37, 0
        s_sub_u32 s26, {576*9216}, s14
        s_mov_b32 s27, 0x20000
        s_add_u32 s36, s38, s14
        s_addc_u32 s37, s39, 0
        s_mov_b32 s38, s26
        s_mov_b32 s39, 0x20000
        s_and_b32 s14, s9, 3
        s_lshl_b32 s32, s14, 8
        s_mul_i32 s41, s7, {8*9216}
        s_add_u32 s32, s32, s41
        s_mul_i32 s40, s10, 36864
        v_bfe_u32 v0, v1, 2, 3
        v_mul_u32_u24 v0, 9216, v0
        v_lshrrev_b32 v13, 5, v1
        v_lshl_add_u32 v0, v13, 6, v0
        v_and_b32 v13, 3, v1
        v_lshl_add_u32 v0, v13, 4, v0
        v_lshlrev_b32 v110, 7, v1
        v_min_u32 v110, {14*128 if P('TOUCH', 1) == 4 else 41*128}, v110
        s_and_b32 s14, s2, 127
        s_lshl_b32 s14, s14, 3
        s_add_u32 s14, s14, s7
        s_mul_i32 s41, s14, {1728 if P('TOUCH', 1) == 4 else 5184}
        s_and_b32 s41, s41, 0xffffff80
        s_lshl_b32 s14, s7, 4
        s_add_u32 s14, s14, {TB}
        v_lshl_add_u32 v{AD+6}, v1, 7, s14
        s_add_u32 s14, s81, {TB}
        v_add_u32 v{AD+7}, s14, v3
        v_lshlrev_b32 v{AD+9}, 9, v4
        v_lshl_add_u32 v{AD+9}, v5, 4, v{AD+9}
        s_lshr_b32 s42, s11, 2
        s_mul_i32 s42, s42, 36864
        s_and_b32 s14, s6, 3
        s_lshl_b32 s14, s14, 7
        s_add_u32 s42, s42, s14
        s_lshl_b32 s14, s7, 12
        s_add_u32 s42, s42, s14
        s_lshl_b32 s43, s33, 3
        s_add_u32 s43, s43, {STAT_OFF}
        v_lshlrev_b32 v17, 2, v1
        v_and_b32 v16, 31, v17
        v_and_b32 v17, 127, v17
        s_lshl_b32 s14, s8, 7
        v_add_u32 v17, s14, v17
        s_lshl_b32 s14, s5, 5
        v_add_u32 v16, s14, v16
        v_cmp_lt_u32 vcc, 31, v1
        s_mov_b32 s33, {FX_OFF}
        s_nop 0
        v_cndmask_b32 v17, v17, v16, vcc
        """)
    a2q(2); a2q(3)
    valu_with_vmem(capture(setup), every=P('A0EVERY', 10))
    b8(1)
    bg.push_m(f'global_load_ushort v{PAR}, v108, s[18:19]\nglobal_load_ushort v{PAR+1}, v108, s[20:21]\nglobal_load_ushort v{PAR+2}, v108, s[30:31]', 'par', 3)
    bg.push_m(f'global_load_ushort v{PAR+3}, v109, s[18:19]\nglobal_load_ushort v{PAR+4}, v109, s[20:21]\nglobal_load_ushort v{PAR+5}, v109, s[30:31]', 'par', 3)
    bg.push_m(f'buffer_load_dword v15, off, {DBG}, 0 sc1', 'tag', 1)
    def tpart(i): bg.push_m(f's_add_u32 s12, s41, {i*192*9216}\ns_mov_b64 exec, 0x7fff\nbuffer_load_dword v111, v110, s[76:79], s12 offen\ns_mov_b64 exec, -1', 'touch', 1)
    T4 = P('TOUCH', 1) == 4; TP = os.environ.get('TP', '047')
    for n_ in range(4, 9):
        if T4 and str(n_ - 4) in TP: tpart((2, 1, 0)[TP.index(str(n_ - 4))])
        if n_ == 8: b8(2)
        a2q(n_)
    if T4 and '5' in TP: tpart((2, 1, 0)[TP.index('5')])
    k1_dma(0, 0)
    if T4 and '6' in TP: tpart((2, 1, 0)[TP.index('6')])
    k1_dma(0, 1)
    if T4 and '7' in TP: tpart((2, 1, 0)[TP.index('7')])
    if P('TOUCH', 1) == 1: bg.push_m('buffer_load_dword v111, v110, s[76:79], s41 offen', 'touch', 1)
    if P('TOUCH', 1) == 2: bg.m.insert(0, (0, 'buffer_load_dword v111, v110, s[76:79], s41 offen', 'touch', 1))
    def a1():
        for q in range(8):
            c0 = '0' if q == 0 else f'v{MR_}'; c1 = '0' if q == 0 else f'v{MR_+1}'
            A(f'v_dot2_f32_bf16 v{MR_}, v{XRW+q}, s83, {c0}\nv_dot2_f32_bf16 v{MR_+1}, v{XRW+q}, v{XRW+q}, {c1}')
        A('s_nop 2')
        for pat in ('quad_perm:[1,0,3,2] row_mask:0xf', 'quad_perm:[2,3,0,1] row_mask:0xf', 'row_half_mirror row_mask:0xf', 'row_mirror row_mask:0xf',
                    'row_bcast:15 row_mask:0xa', 'row_bcast:31 row_mask:0xc'):
            A(f'v_add_f32_dpp v{MR_}, v{MR_}, v{MR_} {pat} bank_mask:0xf\nv_add_f32_dpp v{MR_+1}, v{MR_+1}, v{MR_+1} {pat} bank_mask:0xf\ns_nop 0')
        A(f'v_readlane_b32 s44, v{MR_}, 63\nv_readlane_b32 s45, v{MR_+1}, 63\ns_nop 1\nv_mov_b32 v{MR_}, s44\nv_mov_b32 v{MR_+1}, s45')
        ln_stats(MR_, MR_+2)
        A(f's_mov_b32 s44, 0xffff0000\nv_sub_f32 v18, 0, v{MR_}\nv_sub_f32 v19, 0, v{MR_}\nv_mov_b32 v20, v{MR_+1}\nv_mov_b32 v21, v{MR_+1}')
        for h in range(2):
            for q in range(4):
                x = XRW+4*h+q; a = T0+2*q
                A(f'v_lshlrev_b32 v{a}, 16, v{x}\nv_and_b32 v{a+1}, s44, v{x}')
            for q in range(4):
                a = T0+2*q; A(f'v_pk_add_f32 {vr(a,2)}, {vr(a,2)}, v[18:19]')
            for q in range(4):
                a = T0+2*q; A(f'v_cvt_pk_bf16_f32 v{a+1}, v{a}, v{a+1}')
            for q in range(4):
                a = T0+2*q; A(f'v_lshlrev_b32 v{a}, 16, v{a+1}\nv_and_b32 v{a+1}, s44, v{a+1}')
            for q in range(4):
                a = T0+2*q; A(f'v_pk_mul_f32 {vr(a,2)}, {vr(a,2)}, v[20:21]')
            for q in range(4):
                a = T0+2*q; A(f'v_cvt_pk_bf16_f32 v{XNR+4*h+q}, v{a}, v{a+1}')
    vm.wait('xr'); S(z='a2')
    a1l = capture(a1)
    NPRE = P('A1PRE', 1000); TBN = P('TBN', 0); FLN = P('FLN', 4)
    valu_with_vmem(a1l[:NPRE], every=P('A1EVERY', 12))
    it = a1l[NPRE:]
    it.append(('ds', f'ds_write_b128 v{AD+6}, {vr(XNR,4)}', 'tbw'))
    it.append(('ds', f's_mov_b64 exec, 0xff\nds_write_b128 v{AD+6}, {vr(XNR+4,4)} offset:8192\ns_mov_b64 exec, -1', 'tbw'))
    it.append(('vm', f's_mov_b64 exec, 1\nbuffer_store_dwordx2 {vr(MR_,2)}, off, {WS}, s43 sc1\ns_mov_b64 exec, -1', 'xn', 1))
    bg.push_v(it)
    E = 72
    def reads(sg):
        n = sg // 2; sp = sg % 2; F = 24 + 16*(sg % 3)
        xo = XS[n] if n % 2 == 0 else XS[n] - 90144
        for t in range(4): A(f'ds_read_b128 {vr(F+4*t,4)}, v{AD+2*(n%2)+sp} offset:{xo+512*t}')
        lg.add(f'r{sg}', 4)
    def ereads(n):
        xo = XS[n] if n % 2 == 0 else XS[n] - 90144
        A(f'ds_read_b128 {vr(E,4)}, v{AD+4+(n%2)} offset:{xo}\nds_read_b128 {vr(E+4,4)}, v{AD+8} offset:{2048*n}'); lg.add(f'e{n}', 2)
    def bswap(n):
        bg.flush_m(f'ab{n}'); vm.wait(f'ab{n}')
        Fb = 176 + 8*(n % 2)
        A(f'ds_write_b128 v194, {vr(bsg(n),4)}\nds_write_b128 v194, {vr(bsg(n)+4,4)} offset:1024')
        A(f'ds_read_b128 {vr(Fb,4)}, v192\nds_read_b128 {vr(Fb+4,4)}, v193'); lg.add(f'b{n}', 4)
    def xn_out():
        sk = newlab('NOXN8')
        A(f'ds_read_b128 {vr(XRW,4)}, v{AD+7}'); lg.add('tbr')
        A(f's_cmp_lg_u32 s7, 0\ns_cbranch_scc1 {sk}\nds_read_b128 {vr(XRW+4,4)}, v{AD+7} offset:8192\ns_add_u32 s12, s42, 32768\ns_waitcnt lgkmcnt(0)\nbuffer_store_dwordx4 {vr(XRW+4,4)}, v{AD+9}, {WS}, s12 offen sc1')
        A.lab(sk)
        bg.push_v([('lgw', 'tbr'), ('vm', f'buffer_store_dwordx4 {vr(XRW,4)}, v{AD+9}, {WS}, s42 offen sc1', 'xn', 1)])
        bg.push_v([('vmw', 'par')] + capture(lambda: unit_consts(PAR, T0)), 7)
    if TBN == 0: bg.emit_v(10**9); lg.wait('tbw')
    bg.flush_m('ax0', 'ax1', 'b8_0'); vm.wait('ax0', 'ax1', 'b8_0')
    A('s_barrier'); S(); S(z='a2')
    if TBN == 0: xn_out()
    bswap(0); reads(0); reads(1)
    VG = P('A2VG', 2); PXS = P('PXS', 15)
    for sg in range(18):
        n = sg // 2; sp = sg % 2; F = 24 + 16*(sg % 3)
        if sg < 16:
            n1 = (sg + 2) // 2
            if (sg + 2) % 4 == 0:
                tags = [f'ax{n1}'] + ([f'ax{n1+1}'] if n1 < 8 else []) + (['b8_1'] if n1 == 4 else [])
                if n1 == TBN: bg.emit_v(10**9); lg.wait('tbw')
                bg.flush_m(*tags, 'b8_2' if n1 == 8 else 'zz'); vm.wait(*tags)
                if n1 == FLN: bg.flush_m('tag'); vm.wait('xn'); get_tag()
                A('s_barrier'); S(z='a2')
                if n1 == TBN: xn_out()
                if n1 == FLN: flag_store(6, f's_lshl_b32 s14, s11, 2\ns_add_u32 s14, s14, {FX_OFF}', 13)
                if n1 >= 4: k1_dma(0, n1 // 2)
            reads(sg + 2)
        if sp == 0: ereads(n)
        lg.wait(f'r{sg}')
        z = (sg == 0)
        if sp == 0: lg.wait(f'b{n}')
        def c(rg, zz=z): return '0' if zz else vr(rg, 4)
        UU = U; BB = BS; BF_ = 176 + 8*(n % 2) + 4*sp
        ms = [f'v_mfma_f32_16x16x32_bf16 {vr(UU+4*t,4)}, {vr(F+4*t,4)}, {vr(BF_,4)}, {c(UU+4*t)}' for t in range(4)]
        ms += [f'v_mfma_f32_16x16x32_bf16 {vr(BB,4)}, {vr(ONES,4)}, {vr(BF_,4)}, {c(BB)}']
        if sp == 1:
            lg.wait(f'e{n}')
            ms += [f'v_mfma_f32_16x16x32_bf16 {vr(XA,4)}, {vr(E,4)}, {vr(E+4,4)}, {c(XA, sg == 1)}', f'v_mfma_f32_16x16x32_bf16 {vr(BS8,4)}, {vr(ONES,4)}, {vr(E+4,4)}, {c(BS8, sg == 1)}']
        for i, m in enumerate(ms):
            A(m)
            bg.emit_v(2, sg)
            if sp == 0 and i == 4 and n < 8: bswap(n + 1)
            if i % VG == VG - 1: bg.emit_m(1, sg)
        if sg == PXS: bg.m.insert(0, (0, lambda: poll_issue(16, 17, 's33', 'pfx'), 'pfx', 0))
        if sg == PXS + 2:
            bg.flush_m('pfx'); poll_check(16, 17, 's33', 'pfx')
            A(f'v_lshlrev_b32 v22, 3, v1\ns_lshl_b32 s12, s5, 9\ns_add_u32 s12, s12, {STAT_OFF}\nbuffer_load_dwordx2 v[18:19], v22, {WS}, s12 offen sc1'); vm.add('stl')
            for ks in range(16): k1_xload(ks, 2*(ks//2) - 1)
    bg.emit_v(10**9)
    S(); S(z='a2')
    A(f"""
    s_nop 3
    s_add_u32 s14, s81, {EX_T}
    v_add_u32 v14, s14, v3
    s_lshl_b32 s14, s7, 8
    s_add_u32 s14, s14, {EX_B}
    v_lshl_add_u32 v2, v1, 2, s14
    ds_write_b128 v14, {vr(XA,4)}
    ds_write_b32 v2, v{BS8}
    """)
    bg.flush_m('w0_0', 'w0_1', 'touch'); vm.wait('w0_0', 'w0_1'); vm.wait('touch') if P('TOUCH', 1) in (1, 2, 4) else None
    A('s_waitcnt lgkmcnt(0)\ns_barrier'); lg.q = []
    S(z='a3')
    k1_dma(0, 5); k1_dma(0, 6)
    bg.m = [(0,) + tuple(t[1:]) for t in bg.m]
    bg.emit_m(2)
    LR, SLI, A1, A2c, L16R, SL16I = CONSTS
    E0 = 16; T2, T3, EE = 20, 21, 15; W0, W1, W2 = 241, 242, 243; TA, TB_ = 22, 23
    def st2():
        A(f"""
        v_mul_f32 v18, -v18, v19
        s_lshl_b32 s44, s7, 9
        s_add_u32 s44, s44, {EX_R}
        v_lshl_add_u32 v{W0}, v1, 3, s44
        v_lshrrev_b32 v{W1}, 4, v1
        v_lshl_add_u32 v{W2}, v{W1}, 7, s44
        """)
    def fin_items(tg, sc):
        it = []
        for hf in range(2):
            it += [('ds', f'ds_read_b128 {vr(CR+4*k,4)}, v{W2} offset:{64*hf+16*k}', f'{tg}cr{hf}') for k in range(4)]
            if hf == 0 and tg == '':
                it += capture(lambda: A("""
                v_and_b32 v8, 15, v1
                v_lshlrev_b32 v8, 2, v8
                v_add_u32 v9, 64, v8
                v_add_u32 v10, 128, v8
                v_add_u32 v12, 192, v8
                s_mul_i32 s83, s11, 9
                s_add_u32 s83, s83, s7
                """))
            it.append(('lgw', f'{tg}cr{hf}'))
            it += [f'v_mul_f32 v{U+8*hf+k}, v{CR+1+2*k}, v{U+8*hf+k}' for k in range(8)]
            it += [f'v_fmac_f32 v{U+8*hf+k}, v{CR+2*k}, v{BS}' for k in range(8)]
        tt = (TA, TB_)
        it += [f'v_mul_f32 v{tt[0]}, v{A1}, v{U}', f'v_fmac_f32_dpp v{tt[0]}, v{U}, v{A2c} {DPP8}',
               f'v_mul_f32 v{tt[1]}, v{A1}, v{U+1}', f'v_fmac_f32_dpp v{tt[1]}, v{U+1}, v{A2c} {DPP8}', f'v_mov_b32 v{U}, v{tt[0]}']
        for k in range(1, 16):
            t_ = tt[k % 2]; o_ = tt[(k+1) % 2]
            it.append(f'v_fma_f32 v{U+k}, v{LR}, v{U+k-1}, v{t_}')
            if k < 15: it.append(f'v_mul_f32 v{o_}, v{A1}, v{U+k+1}')
            else: it.append('s_nop 0')
            it.append(f'v_fmac_f32_dpp v{U+k}, v{U+k-1}, v{SLI} {DPP8}')
            if k < 15: it.append(f'v_fmac_f32_dpp v{o_}, v{U+k+1}, v{A2c} {DPP8}')
        it += [('ds', f'ds_bpermute_b32 v{E0+g}, v{(8,9,10,12)[g]}, v{U+15}', tg+'bp') for g in range(4)]
        it.append(f's_mul_i32 s45, s83, {H0_UNIT}\ns_add_u32 s45, s45, {H0_OFF}')
        it += [('vm', f'buffer_store_dwordx4 {vr(U+4*k,4)}, v3, {WS}, s45 offen offset:{1024*k}{sc}', tg+'h0', 1) for k in range(4)]
        it.append(('lgw', tg+'bp'))
        ee = EE if tg == '' else 14
        def part2():
            mapply(A, T2, E0, L16R, SL16I, E0+1); mapply(A, T3, T2, L16R, SL16I, E0+2); mapply(A, ee, T3, L16R, SL16I, E0+3)
            A(f'v_mov_b32 v{W0}, 0')
        it += capture(part2)
        for k, r in enumerate((E0, T2, T3)): it.append(f'v_cmp_eq_u32 vcc, {k+1}, v{W1}\ns_nop 1\nv_cndmask_b32 v{W0}, v{W0}, v{r}, vcc')
        it.append(('vm', f'v_lshlrev_b32 v{E0}, 2, v1\ns_add_u32 s12, s45, 4096\nbuffer_store_dword v{W0}, v{E0}, {WS}, s12 offen{sc}', tg+'h0', 1))
        return it
    it = [('vmw', 'stl')] + capture(st2)
    it.append(('ds', f'ds_write_b64 v{W0}, v[18:19]', 'crw'))
    it += fin_items('', os.environ.get('HSC', ''))
    def unit8():
        sv = (list(vm.q), list(bg.v))
        A(f"""
        s_cmp_lg_u32 s7, 7
        s_cbranch_scc1 UNIT_DONE
        s_add_u32 s83, s83, 1
        v_add_u32 v{W0}, {EX_T}, v3
        v_lshlrev_b32 v{E0}, 2, v1
        v_add_u32 v{E0}, {EX_B}, v{E0}
        """)
        for t in range(4):
            A(f'ds_read_b128 {vr(U+4*t,4)}, v{W0} offset:{1024*t}\nds_read_b128 {vr(CR+4*t,4)}, v{W0} offset:{1024*(t+4)}')
        A(f'ds_read_b32 v{BS}, v{E0}\nds_read_b32 v{W0}, v{E0} offset:1024')
        unit_consts(PAR+3, 16)
        A('s_waitcnt lgkmcnt(0)')
        for k in range(16): A(f'v_add_f32 v{U+k}, v{U+k}, v{CR+k}')
        A(f'v_add_f32 v{BS}, v{BS}, v{W0}')
        lq = list(lg.q); lg.q = []
        bg.v = []; bg.push_v(fin_items('u8', ' sc1')); bg.emit_v(10**9)
        A('s_sub_u32 s83, s83, 1')
        A.lab('UNIT_DONE')
        lg.q = lq; vm.q, bg.v = sv
    if not P('NOU8', 0): it.append(('call', unit8))
    if P('NOSCAN', 0): it = [x for x in it if not isinstance(x, str) or x.startswith('s_') or 'v_lshl' in x or 'v_and_b32 v8' in x or 'v_add_u32' in x or 'v_lshr' in x]
    it.append(('call', lambda: scan_done.append(1)))
    scan_items.extend(it)
    S(); S(z='a3')
scan_done = []

FA = 168; FT_ = 199
def phase_k1():
    KS1 = P('KS1', 24); HD = 4; LOOK = 4
    seq = [(ks, fb) for ks in range(KS1) for fb in range(4)]
    seq += [(ks, fb) for fb in range(4) for ks in range(KS1, 36)]
    seq += [(ks, fb) for fb in (4, 5) for ks in range(24)] + [(ks, fb) for fb in (4, 5) for ks in range(24, 36)]
    seq += [(ks, fb) for fb in (6, 7) for ks in range(24)] + [(ks, fb) for fb in (6, 7) for ks in range(24, 36)]
    seq += [(ks, 8) for ks in range(36)]
    N = len(seq)
    P2 = 4*KS1; P3 = P2 + 2*(36-KS1); P4, P5, P6 = 144, 216, 288
    A(f'''
    v_bfe_u32 v13, v1, 4, 1
    v_lshrrev_b32 v14, 5, v1
    v_and_b32 v2, 15, v1
    v_lshlrev_b32 v2, 3, v2
    v_mul_u32_u24 v5, {UREG}, v13
    v_lshl_add_u32 v5, v14, 10, v5
    v_add_u32 v5, v5, v2
    v_and_b32 v6, 12, v1
    v_lshl_add_u32 v5, v6, 3, v5
    v_add_u32 v6, 36864, v5
    ''')
    A(f'v_mul_u32_u24 v7, {G2U}, v13\nv_lshl_add_u32 v7, v14, 8, v7\nv_add_u32 v7, v7, v2')
    setup2 = capture(lambda: A(f'''
    v_lshrrev_b32 v4, 1, v1
    v_mul_u32_u24 v4, 9216, v4
    v_and_b32 v13, 1, v1
    v_lshl_add_u32 v4, v13, 4, v4
    s_mul_i32 s41, s7, {32*9216}
    s_and_b32 s13, s9, 3
    s_lshl_b32 s13, s13, 5
    s_add_u32 s41, s41, s13
    s_add_u32 s41, s41, 1024
    s_mov_b32 s42, {f32(-2.302208198*0.044715)}
    v_mov_b32 v11, {f32(-2.302208198)}
    s_lshr_b32 s14, s9, 2
    s_mul_i32 s14, s14, 9
    s_and_b32 s13, s9, 3
    s_lshl_b32 s34, s13, 1
    s_add_u32 s34, s34, s14
    s_lshl_b32 s34, s34, 12
    s_mul_i32 s43, s10, 294912
    s_add_u32 s43, s43, {HF_OFF}
    s_add_u32 s14, s14, 8
    s_lshl_b32 s14, s14, 12
    s_lshl_b32 s13, s13, 10
    s_add_u32 s14, s14, s13
    s_add_u32 s35, s43, s14
    s_add_u32 s43, s43, s34
    s_lshl_b32 s34, s8, 5
    s_add_u32 s34, s34, s9
    s_lshl_b32 s34, s34, 2
    s_add_u32 s34, s34, {FH_OFF}
    '''))
    bg.push_v(scan_items); bg.push_v(setup2)
    for k in range(16, 24): k1_xload(k)
    if P('TOUCH', 1) == 3: A('v_mov_b32 v13, v110\ns_mov_b32 s46, s41'); bg.push_m('buffer_load_dword v2, v13, s[76:79], s46 offen', 'touch', 1)
    def wread(m):
        ks, fb = seq[m]
        r = WR + 4*(m % NW)
        if fb < 8: ad = 5 if ks < 18 else 6; off = (ks % 18)*2048 + ((fb % 4) >> 1)*512 + (fb & 1)*32; o2 = 256
        else: ad = 7; off = ks*512; o2 = 128
        A(f'ds_read_b64_tr_b16 {vr(r,2)}, v{ad} offset:{off}\nds_read_b64_tr_b16 {vr(r+2,2)}, v{ad} offset:{off+o2}')
        lg.add(f'm{m}', 2)
    busy = set()
    def make_epi(fb):
        a = ACC + 16*(fb % 4); t = TMP
        out = []
        for half in range(2):
            es = range(4*half, 4*half+4)
            for e in es: out.append(f'v_mul_f32 v{t+e%4}, v{a+e}, v{a+e}')
            for e in es: out.append(f'v_fma_f32 v{t+e%4}, v{t+e%4}, s42, v11')
            for e in es: out.append(f'v_mul_f32 v{t+e%4}, v{t+e%4}, v{a+e}')
            for e in es: out.append(f'v_exp_f32 v{t+e%4}, v{t+e%4}')
            for e in es: out.append(f'v_mul_f32 v{a+e}, v{a+e}, v{a+8+e}')
            for e in es: out.append(f'v_add_f32 v{t+e%4}, 1.0, v{t+e%4}')
            for e in es: out.append(f'v_rcp_f32 v{t+e%4}, v{t+e%4}')
            out.append('s_nop 0')
            for e in es: out.append(f'v_mul_f32 v{a+e}, v{a+e}, v{t+e%4}')
            out.append(f'v_cvt_pk_bf16_f32 v{t+4+2*half}, v{a+4*half}, v{a+4*half+1}')
            out.append(f'v_cvt_pk_bf16_f32 v{t+5+2*half}, v{a+4*half+2}, v{a+4*half+3}')
        out.append(('call', lambda: busy.discard(fb % 4)))
        if fb < 4: st = f'buffer_store_dwordx4 {vr(t+4,4)}, v3, {WS}, s43 offen offset:{fb*1024} sc1'
        elif fb < 8: st = f's_add_u32 s12, s43, 4096\nbuffer_store_dwordx4 {vr(t+4,4)}, v3, {WS}, s12 offen offset:{(fb-4)*1024} sc1'
        else: st = f'buffer_store_dwordx4 {vr(t+4,4)}, v3, {WS}, s35 offen sc1'
        out.append(('vm', st, f'h{fb}', 1))
        return out
    def flagH(g): return lambda: flag_store(0, f's_add_u32 s14, s34, {1024*g}', 2)
    def flagE(): flag_store(1, f's_lshl_b32 s14, s6, 5\ns_add_u32 s14, s14, s5\ns_lshl_b32 s14, s14, 2\ns_add_u32 s14, s14, {FE_OFF}', 2)
    def xl(a, b): return lambda: [k1_xload(k) for k in range(a, b)]
    def wd(g, *ns): return lambda: [k1_dma(g, n) for n in ns]
    assert KS1 == 24
    def chk_scan(): assert scan_done
    def estore():
        sk = newlab('E8')
        bg.push_m(f's_lshl_b32 s12, s83, 6\ns_add_u32 s12, s12, {E_OFF}\ns_cmp_lg_u32 s7, 7\ns_cbranch_scc1 {sk}\nbuffer_store_dword v14, v8, {WS}, s12 offen offset:64 sc1@@LAB {sk}@@buffer_store_dword v15, v8, {WS}, s12 offen sc1', 'est', 1)
    def touch2():
        if not P('TOUCH', 1): return
        bg.push_m(f'''s_load_dwordx2 s[76:77], s[0:1], 96
        v_lshlrev_b32 v13, 7, v1
        v_min_u32 v13, {21*128}, v13
        s_lshl_b32 s12, s2, 3
        s_add_u32 s12, s12, s7
        s_mul_i32 s12, s12, 2592
        s_and_b32 s12, s12, 0xffffff80
        s_mov_b32 s78, {4608*1152}
        s_mov_b32 s79, 0x20000
        s_waitcnt lgkmcnt(0)
        buffer_load_dword v9, v13, s[76:79], s12 offen''', 'touch2', 1)
        bg.push_m(f'''s_lshr_b32 s12, s2, 7
        s_lshl_b32 s12, s12, 3
        s_add_u32 s76, s0, s12
        s_addc_u32 s77, s1, 0
        s_load_dwordx2 s[76:77], s[76:77], 40
        v_min_u32 v13, {6*128}, v13
        s_and_b32 s12, s2, 127
        s_lshl_b32 s12, s12, 3
        s_add_u32 s12, s12, s7
        s_mul_i32 s12, s12, 648
        s_and_b32 s12, s12, 0xffffff80
        s_mov_b32 s78, 663552
        s_waitcnt lgkmcnt(0)
        buffer_load_dword v10, v13, s[76:79], s12 offen''', 'touch2', 1)
    sync = {
        32:  (['w0_2', 'w0_3'], [wd(0, 7)]),
        64:  (['w0_4', 'w0_5'], [chk_scan, xl(24, 28), wd(0, 8), xl(28, 36), wd(1, 0, 1, 2)]),
        96:  (['w0_6', 'w0_7'], [wd(1, 3, 4)]),
        104: (['w0_8'], [wd(1, 5), estore, touch2]),
        144: (['w1_0', 'w1_1', 'w1_2', 'w1_3', 'w1_4', 'w1_5'], [wd(1, 6, 7)]),
        150: ([], [wd(1, 8)]),
        192: (['w1_6', 'w1_7', 'w1_8', 'est'], [flagE]),
        P5+20: (['h3'], [flagH(0)]),
        P5+40: ([], [lambda: k1_dma_g2(0)]),
        P5+48: ([], [lambda: k1_dma_g2(1)]),
        P6:  (['g2_0', 'g2_1'], []),
        P6+4: (['h5'], [flagH(1), k2_prefetch]),
    }
    def do_sync(m):
        if m in sync:
            tags, acts = sync[m]
            bg.flush_m(*tags); vm.wait(*tags); A('s_barrier')
            for f in acts: f()
    seen_x = set()
    S()
    for m in range(LOOK): wread(m)
    for n in range(N):
        ks, fb = seq[n]
        if n in (P4, P6): S()
        if n % 32 == 0: S(z='k1')
        if n == P5 + 56: k2_setup()
        if n + LOOK < N:
            do_sync(n + LOOK); wread(n + LOOK)
        if ks not in seen_x:
            seen_x.add(ks); bg.flush_m(f'x{ks}'); vm.wait(f'x{ks}')
        first = (ks == 0)
        if first: assert (fb % 4) not in busy, (n, fb)
        lg.wait(f'm{n}')
        a = ACC + 16*(fb % 4)
        A(f'v_mfma_f32_32x32x16_bf16 {vr(a,16)}, {vr(WR+4*(n%NW),4)}, {vr(XR+4*ks,4)}, {"0" if first else vr(a,16)}')
        if ks == 35:
            busy.add(fb % 4); bg.push_v(make_epi(fb), n + 4)
        if n == P6 + 22: fix_loads('s11', 's7')
        gap = P('G1', 2) if n < P2 else (P('G2', 2) if n < P6 else 1)
        if n % gap == gap - 1: bg.emit_m(1, n)
        rate = P('R0', 5) if n < 64 else (P('R1', 3) if n < P6 else P('P6RATE', 4))
        bg.emit_v(rate, n)
    assert not bg.m
    while busy - {0}: bg.emit_v(4)
    S(); S(z='fx')

def fix_loads(swg, sunit, base=None, sht='s22'):
    base = FA if base is None else base
    pcalc = f's_lshl_b32 s12, s12, 3\ns_add_u32 s12, s12, {sunit}\ns_lshl_b32 s12, s12, 3' if sunit == 's7' else 's_lshl_b32 s12, s12, 3\ns_add_u32 s12, s12, 512'
    pre = f'''s_mul_i32 s16, {swg}, 9
    s_add_u32 s16, s16, {sunit}
    s_mul_i32 s17, s16, {H0_UNIT}
    s_add_u32 s17, s17, {H0_OFF}
    s_and_b32 s12, {swg}, 7
    {pcalc}
    v_and_b32 v{base+30}, 7, v1
    v_add_u32 v{base+28}, s12, v{base+30}
    v_lshlrev_b32 v{base+30}, 1, v{base+28}
    s_lshr_b32 {sht}, {swg}, 3
    s_mul_i32 {sht}, {sht}, {72*2048}
    s_lshl_b32 s12, s12, 8
    s_add_u32 {sht}, {sht}, s12
    s_add_u32 {sht}, {sht}, {HT_OFF}
    global_load_ushort v{base+25}, v{base+30}, s[18:19]
    global_load_ushort v{base+26}, v{base+30}, s[20:21]
    global_load_ushort v{base+27}, v{base+30}, s[30:31]'''
    bg.push_m(pre, 'fx', 3)
    pre2 = f'''s_lshl_b32 s16, s16, 6
    v_lshrrev_b32 v{base+30}, 4, v1
    v_mul_u32_u24 v{base+30}, {8*4608}, v{base+30}
    v_and_b32 v{base+29}, 15, v1
    v_lshl_add_u32 v{base+29}, v{base+29}, 2, s16
    v_sub_u32 v{base+29}, v{base+29}, v{base+30}
    '''
    for i in range(0, 8, 2):
        t = pre2 if i == 0 else ''
        for k in (i, i+1): t += f'v_subrev_u32 v{base+29}, 4608, v{base+29}\nbuffer_load_dword v{base+17+k}, v{base+29}, s[60:63], 0 offen sc1\n'
        bg.push_m(t, 'fx', 2)
    for k in range(4): bg.push_m(f'buffer_load_dwordx4 {vr(base+4*k,4)}, v3, {WS}, s17 offen offset:{1024*k} sc1', 'fx', 1)
    bg.push_m(f'v_lshlrev_b32 v{base+30}, 2, v1\ns_add_u32 s12, s17, 4096\nbuffer_load_dword v{base+16}, v{base+30}, {WS}, s12 offen sc1', 'fx', 1)
def fix_items():
    t = FT_
    LR, LI, SG = t, t+1, t+2
    PR, PI = t+3, t+4; QR, QI = t+5, t+6; L64R, L64I = t+7, t+8
    it = [('vmw', 'fx')]
    def p1():
        lam_consts(A, FA+25, FA+26, FA+27, LR, LI, 0, 0, t+9, t+10, t+11, t+12, need_coef=False)
        A(f'v_and_b32 v{SG}, 8, v1\nv_lshlrev_b32 v{SG}, 28, v{SG}')
        csq(A, LR, LI, t+23, t+24, t+9)
        csq(A, t+23, t+24, PR, PI, t+9)
        A(f'v_xor_b32 v{t+24}, v{SG}, v{t+24}')
        for _ in range(2): csq(A, PR, PI, PR, PI, t+9)
        A(f'v_mov_b32 v{t+13}, v{PR}\nv_mov_b32 v{t+14}, v{PI}')
        csq(A, PR, PI, PR, PI, t+9)
        cmul(A, PR, PI, t+13, t+14, t+15, t+16)
        A(f'v_lshrrev_b32 v{t+21}, 4, v1\nv_mov_b32 v{QR}, 1.0\nv_mov_b32 v{QI}, 0')
    it += capture(p1)
    for k, (a, b) in enumerate(((t+13, t+14), (PR, PI), (t+15, t+16))):
        it.append(f'v_cmp_eq_u32 vcc, {k+1}, v{t+21}\ns_nop 1\nv_cndmask_b32 v{QR}, v{QR}, v{a}, vcc\nv_cndmask_b32 v{QI}, v{QI}, v{b}, vcc')
    def p2():
        A(f'v_xor_b32 v{QI}, v{SG}, v{QI}')
        csq(A, PR, PI, L64R, L64I, t+9)
        csq(A, L64R, L64I, PR, PI, t+9)
        for _ in range(2): csq(A, PR, PI, PR, PI, t+9)
        A(f'v_xor_b32 v{L64I}, v{SG}, v{L64I}\nv_xor_b32 v{PI}, v{SG}, v{PI}\nv_xor_b32 v{LI}, v{SG}, v{LI}')
        for i in range(6, -1, -1): mapply(A, FA+17+i, FA+17+i+1, L64R, L64I, FA+17+i)
        A(f'''
        v_and_b32 v{t+17}, 15, v1
        v_lshlrev_b32 v{t+17}, 2, v{t+17}
        v_add_u32 v{t+18}, 64, v{t+17}
        v_add_u32 v{t+19}, 128, v{t+17}
        v_add_u32 v{t+20}, 192, v{t+17}
        ''')
    it += capture(p2)
    u = newlab('bp')
    for g in range(4): it.append(('ds', f'ds_bpermute_b32 v{FA+18+g}, v{t+17+g}, v{FA+17}', u))
    it.append(('lgw', u))
    def p3():
        for g in (2, 1, 0): mapply(A, FA+18+g, FA+18+g+1, PR, PI, FA+18+g)
        mapply(A, FA+16, FA+18, QR, QI, FA+16)
        G = [FA+17, FA+18, FA+19, FA+20]
        mapply(A, G[0], FA+16, LR, LI, None)
        mapply(A, G[1], FA+16, t+23, t+24, None)
        for k in range(0, 16, 2):
            a0, a1, b0, b1 = (G[0], G[1], G[2], G[3]) if k % 4 == 0 else (G[2], G[3], G[0], G[1])
            A(f'v_add_f32 v{FA+k}, v{FA+k}, v{a0}')
            if k < 14: A(f'v_mul_f32 v{b0}, v{t+23}, v{a0}\nv_mul_f32 v{b1}, v{t+23}, v{a1}')
            A(f'v_add_f32 v{FA+k+1}, v{FA+k+1}, v{a1}')
            if k < 14: A(f'v_fmac_f32_dpp v{b0}, v{a0}, v{t+24} {DPP8}\nv_fmac_f32_dpp v{b1}, v{a1}, v{t+24} {DPP8}')
        for k in range(8): A(f'v_cvt_pk_bf16_f32 v{FA+k}, v{FA+2*k}, v{FA+2*k+1}')
    it += capture(p3)
    it.append(('vm', f'buffer_store_dwordx4 {vr(FA,4)}, v3, {WS}, s22 offen sc1\nbuffer_store_dwordx4 {vr(FA+4,4)}, v3, {WS}, s22 offen offset:1024 sc1', 'ht', 2))
    return it

def k2_setup():
    A(f'''
    s_load_dwordx4 s[68:71], s[0:1], 40
    s_load_dwordx2 s[56:57], s[0:1], 96
    s_load_dwordx2 s[60:61], s[0:1], 120
    s_mul_i32 s14, s3, 30
    s_add_u32 s14, s14, s4
    s_mul_i32 s44, s14, 1366
    s_lshr_b32 s44, s44, 16
    s_mul_i32 s13, s44, 48
    s_sub_u32 s47, s14, s13
    s_mul_i32 s45, s47, 86
    s_lshr_b32 s45, s45, 8
    s_mul_i32 s13, s45, 3
    s_sub_u32 s46, s47, s13
    s_lshl_b32 s14, s45, 2
    s_lshr_b32 s13, s7, 1
    s_add_u32 s14, s14, s13
    s_mul_i32 s76, s14, 294912
    s_and_b32 s9, s7, 1
    s_lshr_b32 s10, s7, 2
    s_add_u32 s76, s76, {HF_OFF}
    s_mul_i32 s83, s7, 3072
    s_add_u32 s83, s83, 16384
    s_mul_i32 s80, s46, 384
    s_lshr_b32 s14, s45, 1
    s_lshl_b32 s32, s14, 7
    s_add_u32 s32, s32, {FH_OFF}
    s_waitcnt lgkmcnt(0)
    s_mov_b32 s58, {4608*1152}
    s_mov_b32 s59, 0x20000
    s_add_u32 s60, s60, {E_OFF}
    s_addc_u32 s61, s61, 0
    s_mov_b32 s62, {E_BYTES}
    s_mov_b32 s63, 0x20000
    v_lshlrev_b32 v15, 2, v1
    v_and_b32 v15, 127, v15
    s_lshl_b32 s33, s6, 7
    s_add_u32 s33, s33, {FE_OFF}
    ''')
    lg.q = []
    for i in range(3):
        A(f'''
        s_and_b32 s13, s7, 3
        s_mul_i32 s13, s13, 192
        s_add_u32 s13, s13, {64*i}
        v_add_u32 v12, s13, v1
        v_mul_u32_u24 v13, 2731, v12
        v_lshrrev_b32 v13, 16, v13
        v_mul_u32_u24 v14, 24, v13
        v_sub_u32 v14, v12, v14
        v_bfe_u32 v12, v13, 1, 1
        v_lshlrev_b32 v12, 2, v12
        v_xor_b32 v14, v14, v12
        v_mul_u32_u24 v13, 1152, v13
        v_lshl_add_u32 v{8+i}, v14, 4, v13
        ''')
    poll_issue(12, 15, 's32', 'pg0')
    poll_issue(13, 15, 's33', 'pfe')
for n_ in range(240): assert (n_*1366) >> 16 == n_//48
for n_ in range(48): assert (n_*86) >> 8 == n_//3
def k2_dma_ffn(n):
    slot = ((n + 1) % 4) * K2S
    def g0(dst, sel):
        return f'''s_add_u32 {dst}, s44, {5*n}
        s_lshr_b32 s12, {dst}, 2
        s_lshl_b32 {dst}, {dst}, 1
        s_add_u32 {dst}, {dst}, s12
        s_lshl_b32 {dst}, {dst}, 1
        s_add_u32 {dst}, {dst}, {sel}
        '''
    def g1(dst, sel):
        return f'''s_add_u32 {dst}, s44, {5*n-32}
        s_lshr_b32 s13, {dst}, 4
        s_and_b32 {dst}, {dst}, 15
        s_lshl_b32 {dst}, {dst}, 1
        s_add_u32 {dst}, {dst}, {sel}
        s_lshr_b32 s12, {dst}, 2
        s_lshl_b32 {dst}, {dst}, 1
        s_add_u32 {dst}, {dst}, s12
        s_lshl_b32 {dst}, {dst}, 1
        s_add_u32 {dst}, {dst}, s13
        s_add_u32 {dst}, {dst}, 2
        '''
    def g2(dst, sel):
        return f's_add_u32 {dst}, s44, {5*n-64}\ns_mul_i32 {dst}, {dst}, 18\ns_add_u32 {dst}, {dst}, 16\ns_add_u32 {dst}, {dst}, {sel}\n'
    def calc(dst, sel):
        lo, hi = 5*n, 5*n + 4
        if hi < 32: return g0(dst, sel)
        if lo >= 32 and hi < 64: return g1(dst, sel)
        if lo >= 64: return g2(dst, sel)
        f1, f2, th = (g0, g1, 32 - lo) if lo < 32 else (g1, g2, 64 - lo)
        return f1('s14', sel) + f2(dst, sel) + f's_cmp_lt_u32 s44, {th}\ns_cselect_b32 {dst}, s14, {dst}\n'
    preW = calc('s73', 's10') + f's_mul_i32 s73, s73, {32*1152}\ns_add_u32 s73, s73, s80\n'
    preH = calc('s72', 's9') + 's_lshl_b32 s72, s72, 11\ns_add_u32 s72, s72, s76\n'
    for i in range(3): bg.push_m((preW if i == 0 else '') + dma_txt(8+i, 's[56:59]', 's73', f's_add_u32 m0, s83, {slot+1024*i}'), f'k{n}', 1)
    bg.push_m(preH + dma_txt(3, WS, 's72', f's_add_u32 m0, s82, {slot}', sc=LSC), f'k{n}', 1)
    bg.push_m(dma_txt(3, WS, 's72', f's_add_u32 m0, s82, {slot}', imm=1024, sc=LSC), f'k{n}', 1)
def k2_dma_ssm(n, m):
    slot = ((n + 1) % 4) * K2S
    e0 = {14: -2, 15: 3, 16: 9, 17: 14}[n]
    sp = 's_cmp_eq_u32 s44, 3\ns_cselect_b32 s73, 8, s73\ns_min_u32 s73, s73, 17\n' if n == 17 else ''
    pre = f'''s_add_i32 s73, s44, {e0}
    {sp}
    s_cmp_lt_u32 s73, 9
    s_cselect_b32 s64, s68, s70
    s_cselect_b32 s65, s69, s71
    s_cselect_b32 s72, 0, 128
    s_cselect_b32 s12, 0, 9
    s_sub_u32 s73, s73, s12
    s_add_u32 s72, s72, s29
    s_lshl_b32 s12, s73, 14
    s_add_u32 s72, s72, s12
    s_lshl_b32 s73, s73, 7
    s_add_u32 s73, s73, s74
    '''
    for i in range(3):
        bg.push_m((pre if i == 0 else '') + f's_add_u32 s12, s73, {i*8*1152}\n' + dma_txt(5 + (i % 2), 's[64:67]', 's12', f's_add_u32 m0, s83, {slot+1024*i}'), f'k{n}', 1)
    bg.push_m(dma_txt(4, WS, 's72', f's_add_u32 m0, s82, {slot}', sc=LSC), f'k{n}', 1)
    bg.push_m(f's_add_u32 s12, s72, {72*2048}\n' + dma_txt(4, WS, 's12', f's_add_u32 m0, s82, {slot+1024}', sc=LSC), f'k{n}', 1)
def k2_prefetch():
    poll_check(13, 15, 's33', 'pfe')
    poll_check(12, 15, 's32', 'pg0')
    for n in range(3): k2_dma_ffn(n)

def phase_k2():
    ACC2 = 64; AF = 24; BF = 32
    BR = [32, 36, 40, 44, 128, 132]
    RA, RB, SA, SB = 224, 226, 232, 234
    VH, VC, VO, VF = 100+142, 243, 245, 246
    A(f'''
    s_and_b32 s14, s44, 3
    s_lshl_b32 s14, s14, 7
    v_xor_b32 v{RA}, s14, v3
    s_and_b32 s13, s7, 3
    s_lshl_b32 s12, s13, 12
    v_add_u32 v{RA}, s12, v{RA}
    v_add_u32 v{RA+1}, {2*K2S}, v{RA}
    v_lshrrev_b32 v12, 5, v1
    v_lshlrev_b32 v13, 2, v12
    v_bfe_u32 v14, v1, 2, 2
    v_add_u32 v13, v13, v14
    v_mul_u32_u24 v13, 384, v13
    v_bfe_u32 v14, v1, 4, 1
    v_lshl_add_u32 v13, v14, 5, v13
    v_and_b32 v14, 3, v1
    v_lshl_add_u32 v13, v14, 3, v13
    v_add_u32 v13, 16384, v13
    v_bfe_u32 v14, v1, 3, 1
    s_lshr_b32 s77, s7, 2
    s_mul_i32 s77, s77, 3
    ''')
    for jj in range(3):
        A(f's_add_u32 s14, s77, {jj}\nv_xor_b32 v2, s14, v14\nv_lshl_add_u32 v{RB+jj}, v2, 6, v13\nv_add_u32 v{RB+3+jj}, {2*K2S}, v{RB+jj}')
    def setup2():
        A(f'''
        v_lshrrev_b32 v252, 5, v1
        v_lshrrev_b32 v253, 4, v1
        v_lshlrev_b32 v254, 2, v252
        v_and_b32 v255, 7, v1
        v_xor_b32 v254, v254, v255
        v_lshlrev_b32 v254, 4, v254
        v_lshrrev_b32 v255, 3, v1
        v_lshl_add_u32 v4, v255, 8, v254
        v_lshrrev_b32 v254, 3, v1
        v_mul_u32_u24 v254, 1152, v254
        v_and_b32 v255, 7, v1
        v_xor_b32 v255, v255, v253
        v_lshl_add_u32 v5, v255, 4, v254
        s_and_b32 s75, s7, 1
        s_lshl_b32 s75, s75, 6
        v_xor_b32 v5, s75, v5
        v_xor_b32 v6, 64, v5
        s_lshl_b32 s29, s7, 11
        s_mul_i32 s75, s45, {2*72*2048}
        s_add_u32 s29, s29, s75
        s_add_u32 s29, s29, {HT_OFF}
        s_mul_i32 s74, s46, 192
        s_mul_i32 s75, s7, 24
        s_add_u32 s74, s74, s75
        s_mul_i32 s74, s74, 1152
        s_mov_b32 s66, 663552
        s_mov_b32 s67, 0x20000
        s_mov_b32 s64, s68
        s_mov_b32 s65, s69
        v_bfe_u32 v253, v1, 1, 1
        s_and_b32 s75, s44, 1
        v_xor_b32 v253, s75, v253
        v_bfe_u32 v254, v1, 4, 1
        s_bfe_u32 s75, s44, 0x10001
        v_xor_b32 v254, s75, v254
        v_lshlrev_b32 v255, 11, v252
        v_lshl_add_u32 v255, v254, 7, v255
        v_mul_u32_u24 v253, 576, v253
        v_add_u32 v255, v255, v253
        v_bfe_u32 v254, v1, 2, 2
        v_lshl_add_u32 v255, v254, 4, v255
        v_and_b32 v254, 1, v1
        v_lshl_add_u32 v255, v254, 3, v255
        s_bfe_u32 s75, s7, 0x10001
        s_lshl_b32 s75, s75, 10
        v_add_u32 v255, s75, v255
        s_and_b32 s75, s7, 1
        s_lshl_b32 s75, s75, 8
        v_add_u32 v{SA}, s75, v255
        v_add_u32 v{SA+1}, {2*K2S}, v{SA}
        v_xor_b32 v244, 64, v{SA}
        v_xor_b32 v245, 64, v{SA+1}
        v_and_b32 v253, 31, v1
        v_bfe_u32 v254, v1, 1, 3
        v_xor_b32 v254, v254, v252
        v_lshlrev_b32 v254, 4, v254
        v_lshl_add_u32 v253, v253, 7, v254
        s_lshl_b32 s75, s77, 12
        s_add_u32 s75, s75, 16384
        v_add_u32 v253, s75, v253
        ''')
        for sp in range(4): A(f'v_xor_b32 v{SB+sp}, {32*sp}, v253\nv_add_u32 v{SB+4+sp}, {2*K2S}, v{SB+sp}')
        A(f'''
        s_lshl_b32 s75, s45, 2
        s_and_b32 s31, s7, 3
        s_add_u32 s75, s75, s31
        s_lshl_b32 s75, s75, 2
        s_and_b32 s31, s44, 3
        s_add_u32 s75, s75, s31
        s_lshl_b32 s30, s75, 6
        s_add_u32 s30, s30, {STAT_OFF}
        s_mul_i32 s31, s75, {8*2304}
        s_mul_i32 s75, s46, 768
        s_add_u32 s31, s31, s75
        s_lshl_b32 s75, s77, 7
        s_add_u32 s31, s31, s75
        v_mul_u32_u24 v7, {4*2304}, v252
        v_and_b32 v255, 31, v1
        v_lshl_add_u32 v7, v255, 2, v7
        s_lshl_b32 s33, s45, 7
        s_add_u32 s33, s33, {FT_OFF}
        s_add_u32 s28, s33, 64
        v_and_b32 v242, 63, v15
        ''')
    global k2_dma_ssm
    def late_flags():
        flag_store(1, 's_add_u32 s14, s34, 3072', 2)
    def ft_flag():
        flag_store(2, f's_lshr_b32 s14, s11, 4\ns_lshl_b32 s14, s14, 7\ns_and_b32 s12, s11, 15\ns_lshl_b32 s12, s12, 2\ns_add_u32 s14, s14, s12\ns_add_u32 s14, s14, {FT_OFF}', 2)
    S(z='fx')
    bg.flush_m('k0')
    vm.wait('k0')
    A('s_barrier')
    A('s_cmp_lt_u32 s4, 30\ns_cbranch_scc1 K2_GO')
    sv = (list(vm.q), list(lg.q), list(bg.v), list(bg.m))
    A(f'v_lshlrev_b32 v14, 2, v1')
    for k in range(4):
        A(f's_mov_b32 s{24+k}, {FE_OFF+256*k}'); poll_issue(24+k, 14, f's{24+k}', f'pall{k}')
    bg.emit_m(1000); bg.emit_v(10**9)
    vm.wait('h7'); A('s_barrier'); flag_store(0, 's_add_u32 s14, s34, 2048', 2)
    bg.push_v(fix_items()); bg.emit_v(10**9)
    for k in range(4): poll_check(24+k, 14, f's{24+k}', f'pall{k}')
    A('''
    s_lshl_b32 s75, s3, 1
    s_add_u32 s75, s75, s4
    s_sub_u32 s75, s75, 30
    s_lshl_b32 s75, s75, 3
    s_add_u32 s75, s75, s7
    s_lshl_b32 s75, s75, 1
    s_add_u32 s73, s75, 1
    s_mov_b32 s74, 8
    ''')
    fix_loads('s75', 's74'); fix_loads('s73', 's74', 112, 's72'); bg.emit_m(1000)
    vm.wait('h8', 'ht'); A('s_barrier')
    late_flags(); ft_flag()
    A.lab('IDLE_LOOP')
    bg.push_v(fix_items()); bg.emit_v(10**9)
    A('s_cmp_eq_u32 s74, 0\ns_cbranch_scc1 IDLE_DONE\ns_mov_b32 s74, 0\ns_mov_b32 s22, s72')
    for k in range(29): A(f'v_mov_b32 v{FA+k}, v{112+k}')
    A('s_branch IDLE_LOOP')
    A.lab('IDLE_DONE')
    A(f'''
    s_lshr_b32 s14, s75, 4
    s_lshl_b32 s14, s14, 7
    s_and_b32 s12, s75, 15
    s_lshl_b32 s12, s12, 2
    s_add_u32 s14, s14, s12
    s_add_u32 s14, s14, {FT_OFF+64}
    v_mov_b32 v12, {TAG}
    v_mov_b32 v13, {TAG}
    s_mov_b64 exec, 1
    s_waitcnt vmcnt(0)
    buffer_store_dwordx2 v[12:13], off, {WS}, s14 sc1
    s_mov_b64 exec, -1
    s_branch K_FIN
    ''')
    vm.q, lg.q, bg.v, bg.m = sv
    A.lab('K2_GO')
    S(); S(z='k2'); S(z='fx')
    bg.v = [(0, it) for _, it in bg.v]
    fi = fix_items()
    if P('NOFIX', 0): fi = [x for x in fi if not isinstance(x, str) or 'v{}'.format(FT_+22) in x or 'v{},'.format(FT_+21) in x or 'v_add_u32' in x or 'v_and_b32' in x or 'v_lshl' in x]
    bg.push_v(fi); bg.push_v(capture(setup2))
    LK = P('LK', 3)
    def AFR(i): return (24, 28, 248)[(i // 3) % 3] if LK > 3 else AF + 4*((i // 3) % 2)
    def slab_ops(n, typ): return [(n, typ, s, jj) for s in range(4) for jj in range(3)]
    def rd(i, op):
        n, typ, s, jj = op
        slot = (n + 1) % 4; hi = slot // 2; so = (slot % 2) * K2S
        ra = AFR(i); r = BR[i % 6]
        if typ == 'f':
            if jj == 0: A(f'ds_read_b128 {vr(ra,4)}, v{RA+hi} offset:{so+1024*s}'); lg.add(f'q{i}')
            off = so + s*16*384
            A(f'ds_read_b64_tr_b16 {vr(r,2)}, v{RB+3*hi+jj} offset:{off}\nds_read_b64_tr_b16 {vr(r+2,2)}, v{RB+3*hi+jj} offset:{off+8*384}'); lg.add(f'q{i}', 2)
        else:
            if jj == 0:
                A(f'ds_read_b64_tr_b16 {vr(ra,2)}, v{SA+hi} offset:{so+4096*s}\nds_read_b64_tr_b16 {vr(ra+2,2)}, v{244+hi} offset:{so+4096*s}'); lg.add(f'q{i}', 2)
            A(f'ds_read_b128 {vr(r,4)}, v{SB+4*hi+s} offset:{so+4096*jj}'); lg.add(f'q{i}')
    def run(ops, i0, i1, variant):
        N = len(ops)
        for i in range(i0, i1):
            n, typ, s, jj = ops[i]
            j = i + LK
            if j < N:
                if j % 12 == 0: ksync(j // 12, variant)
                rd(j, ops[j])
            lg.wait(f'q{i}')
            a = ACC2 + 16*jj
            A(f'v_mfma_f32_32x32x16_bf16 {vr(a,16)}, {vr(AFR(i),4)}, {vr(BR[i%6],4)}, {"0" if (n == 0 and s == 0) else vr(a,16)}')
            if i % 2 == 1: bg.emit_m(1)
            bg.emit_v(P('K2RATE', 4), i)
            if i % 24 == 23: S(z='k2')
            if i == 9*12 - 1: S()
    def ksync(n, variant):
        if 3 <= n <= 8: S(z='k2b')
        bg.flush_m(f'k{n}'); vm.wait(f'k{n}')
        if n == 2: vm.wait('h7')
        if n == 5: vm.wait('h8')
        if n == 8: vm.wait('ht')
        A('s_barrier')
        if n == 2: flag_store(0, 's_add_u32 s14, s34, 2048', 2)
        if n == 5: late_flags()
        if n == 8: ft_flag()
        nn = n + 2
        if n <= 11: S(z='k2a')
        if 3 <= n <= 8: S(z='k2b')
        if nn == 6: poll_check(12, 15, 's78', 'pg1')
        if nn == 9: poll_check(12, 15, 's79', 'pg1b')
        if nn == 12: poll_check(12, 15, 's8', 'pg2')
        if nn == 14: poll_check(13, 242, 's33', 'pft')
        if nn == 17:
            sk = newlab('NOF8'); vm.wait('pft8')
            A(f's_cmp_lt_u32 s44, 3\ns_cbranch_scc1 {sk}'); poll_check(13, 242, 's28', 'pft8'); A.lab(sk)
        if nn == 3: pass
        elif nn <= 13 or (nn == 14 and variant == 0): k2_dma_ffn(nn)
        elif nn == 14: k2_dma_ssm(14, 3)
        elif nn <= 17: k2_dma_ssm(nn, nn - 15)
        def pq(*args): bg.m.insert(0, (0, lambda: poll_issue(*args), args[3], 0))
        if n == 3: pq(12, 15, 's78', 'pg1')
        if n == 6: pq(12, 15, 's79', 'pg1b')
        if n == 9: pq(12, 15, 's8', 'pg2')
        if n == 11: assert not bg.v, len(bg.v); pq(13, 242, 's33', 'pft')
        if n == 14: pq(13, 242, 's28', 'pft8')
        if n == 13:
            bg.push_m(f'''s_load_dwordx2 s[24:25], s[0:1], 0
            s_load_dwordx2 s[26:27], s[0:1], 64
            v_add_u32 v176, s31, v7
            v_lshrrev_b32 v176, 1, v176
            v_and_b32 v177, 31, v1
            s_mul_i32 s12, s46, 6
            s_add_u32 s12, s12, s77
            s_lshl_b32 s12, s12, 6
            v_lshl_add_u32 v177, v177, 1, s12
            v_lshrrev_b32 v178, 5, v1
            v_lshlrev_b32 v178, 5, v178
            s_waitcnt lgkmcnt(0)
            buffer_load_dwordx4 v[168:171], v178, {WS}, s30 offen sc1
            buffer_load_dwordx4 v[172:175], v178, {WS}, s30 offen offset:16 sc1''', 'base', 2)
            bg.push_m('\n'.join(f'global_load_ushort v{124+jj}, v177, s[26:27] offset:{64*jj}' for jj in range(3)), 'base', 3)
        if n in (14, 15):
            for e in (2*(n-14), 2*(n-14)+1):
                bg.push_m('\n'.join(f'global_load_ushort v{112+4*jj+e}, v176, s[24:25] offset:{1152*e+64*jj}' for jj in range(3)), 'base', 3)
        if n == 16:
            it = [('vmw', 'base'), 's_mov_b32 s13, 0xffff0000']
            for jj in range(3): it.append(f'v_lshlrev_b32 v{124+jj}, 16, v{124+jj}')
            for jj in range(3):
                for e in (0, 2):
                    a0 = 112+4*jj+e; a1 = a0+1; m0, r0, m1, r1 = 168+2*e, 169+2*e, 170+2*e, 171+2*e
                    un = ['v_cvt_pk_bf16_f32 v181, v180, v181', 'v_lshlrev_b32 v180, 16, v181', 'v_and_b32 v181, s13, v181']
                    it += [f'v_lshlrev_b32 v{a0}, 16, v{a0}', f'v_lshlrev_b32 v{a1}, 16, v{a1}', f'v_sub_f32 v180, v{a0}, v{m0}', f'v_sub_f32 v181, v{a1}, v{m1}'] + un
                    it += [f'v_mul_f32 v180, v180, v{r0}', f'v_mul_f32 v181, v181, v{r1}'] + un
                    it += [f'v_mul_f32 v180, v180, v{124+jj}', f'v_mul_f32 v181, v181, v{124+jj}'] + un
                    it += [f'v_add_f32 v{a0}, v{a0}, v180', f'v_add_f32 v{a1}, v{a1}, v181']
            bg.push_v(it, 16*12 + 4)
    ops0 = sum([slab_ops(n, 'f' if n <= 14 else 's') for n in range(18)], [])
    ops1 = sum([slab_ops(n, 'f' if n <= 13 else 's') for n in range(18)], [])
    A('s_add_u32 s78, s32, 1024\ns_add_u32 s79, s32, 2048\ns_add_u32 s8, s32, 3072')
    k2_dma_ffn(3)
    for i in range(LK): rd(i, ops0[i])
    SPLIT = 12*12 - LK
    run(ops0, 0, SPLIT, 0)
    A('s_cmp_ge_u32 s44, 2\ns_cbranch_scc1 K2_V1')
    sv = (list(vm.q), list(lg.q), list(bg.v), list(bg.m)); ns = nstamp[0]
    run(ops0, SPLIT, 216, 0); bg.emit_m(100); rest = list(bg.v); bg.v = []
    A('s_branch K2_J'); A.lab('K2_V1')
    vm.q, lg.q, bg.v, bg.m = sv; nstamp[0] = ns
    run(ops1, SPLIT, 216, 1); bg.emit_m(100); assert rest == bg.v; bg.v = []
    A.lab('K2_J')
    S()
    A(f'''
    s_mul_i32 s35, s47, {16*12288}
    s_mul_i32 s14, s7, 1536
    s_add_u32 s35, s35, s14
    s_add_u32 s35, s35, {PART_OFF}
    v_lshlrev_b32 v2, 3, v1
    s_and_b32 s12, s44, 3
    s_cmp_eq_u32 s44, 4
    s_cselect_b32 s41, 0, 12288
    s_nop 3
    ''')
    def pub(ap):
        r = 136 + 8*ap
        for jj in range(3):
            a = ACC2 + 16*jj + 4*ap
            A(f'v_cvt_pk_bf16_f32 v{r+2*jj}, v{a}, v{a+1}\nv_cvt_pk_bf16_f32 v{r+2*jj+1}, v{a+2}, v{a+3}')
        A(f's_xor_b32 s14, s12, {ap}\ns_mul_i32 s14, s14, {4*12288}\ns_add_u32 s14, s14, s35\ns_mul_i32 s13, s41, {ap}\ns_add_u32 s14, s14, s13')
        A(f'buffer_store_dwordx4 {vr(r,4)}, v3, {WS}, s14 offen sc1\nbuffer_store_dwordx2 {vr(r+4,2)}, v2, {WS}, s14 offen offset:1024 sc1')
    for ap in (1, 2, 3): pub(ap)
    A('s_cmp_lg_u32 s44, 4\ns_cbranch_scc1 NOPUB0')
    pub(0)
    A.lab('NOPUB0')
    if P('PWF', 0):
        A(f'''
    s_lshl_b32 s33, s47, 3
    s_add_u32 s33, s33, s7
    s_lshl_b32 s33, s33, 7
    s_add_u32 s33, s33, {FP_OFF}
    v_min_u32 v14, 4, v1
    v_lshlrev_b32 v14, 2, v14
    s_lshl_b32 s14, s44, 2
    s_add_u32 s14, s14, s33
    v_mov_b32 v12, {TAG}
    s_mov_b64 exec, 1
    s_waitcnt vmcnt(0)
    buffer_store_dword v12, off, {WS}, s14 sc1
    s_mov_b64 exec, -1
    ''')
        vm.q = []; vm.add('fl')
    else:
        A(f'''
    s_lshl_b32 s33, s47, 7
    s_add_u32 s33, s33, {FP_OFF}
    v_min_u32 v14, 4, v1
    v_lshlrev_b32 v14, 2, v14
    s_waitcnt vmcnt(0)
    s_barrier
    ''')
        vm.q = []
        flag_store(0, 's_lshl_b32 s14, s44, 2\ns_add_u32 s14, s14, s33', 12)
    S()
    A('s_cmp_eq_u32 s44, 4\ns_cbranch_scc1 K_FIN')
    if not P('P1W', 0): poll_issue(13, 14, 's33', 'pp')
    A('s_mov_b32 s13, 0xffff0000')
    bg.v = rest; bg.emit_v(10**9)
    for jj in range(3):
        for e in range(4): A(f'v_add_f32 v{ACC2+16*jj+e}, v{ACC2+16*jj+e}, v{112+4*jj+e}')
    A(f's_mul_i32 s14, s44, {4*12288}\ns_add_u32 s14, s14, s35')
    if P('P1W', 0):
        A('s_cmp_lg_u32 s7, 0\ns_cbranch_scc1 PP_W'); poll_issue(13, 14, 's33', 'pp'); poll_check(13, 14, 's33', 'pp'); A.lab('PP_W'); A('s_barrier'); vm.q = []
    else: poll_check(13, 14, 's33', 'pp')
    S()
    for sl in range(4):
        r = 136 + 8*sl
        A(f'buffer_load_dwordx4 {vr(r,4)}, v3, {WS}, s14 offen sc1\nbuffer_load_dwordx2 {vr(r+4,2)}, v2, {WS}, s14 offen offset:1024 sc1')
        if sl < 3: A('s_add_u32 s14, s14, 12288')
    for sl in range(4):
        A(f's_waitcnt vmcnt({2*(3-sl)})')
        r = 136 + 8*sl
        for jj in range(3):
            for h in range(2):
                a = ACC2 + 16*jj + 2*h; p = r + 2*jj + h
                A(f'v_lshlrev_b32 v12, 16, v{p}\nv_and_b32 v13, s13, v{p}\nv_pk_add_f32 {vr(a,2)}, {vr(a,2)}, v[12:13]')
    for e in range(4):
        A(f's_add_u32 s14, s31, {e*2304}')
        for jj in range(3): A(f'buffer_store_dword v{ACC2+16*jj+e}, v7, {OUT}, s14 offen offset:{128*jj}' + os.environ.get('OSC', ''))
    A.lab('K_FIN')
    if STAMP:
        A('s_waitcnt vmcnt(0)'); nstamp[0] = 14; S(force=True); S(True); Sflush()

def main(path):
    hdr = open('parallel_sum__ssm_conv_s5__geglu_ffn__prompt.s.ref').read().split('; Override launch')[0]
    A.raw(hdr.rstrip())
    A.raw('; @launch grid=(256,1,1) block=(512,1,1) lds=163840')
    A.raw('.amdgcn_target "amdgcn-amd-amdhsa--gfx950"\n.text')
    A.raw(f'.globl {NAME}\n.p2align 8\n.type {NAME},@function\n{NAME}:')
    if STAMP:
        for i in range(16): A(f's_mov_b32 s{86+i}, 0')
    phase_a(); phase_k1(); phase_k2()
    A.lab('K_END')
    A('s_endpgm')
    for c in cold: A.raw(c)
    A.lab('K_LAST')
    A('s_endpgm')
    A.raw(f'''.section .rodata,"a"
.p2align 6
.amdhsa_kernel {NAME}
  .amdhsa_next_free_vgpr 256
  .amdhsa_next_free_sgpr 102
  .amdhsa_accum_offset 256
  .amdhsa_group_segment_fixed_size 0
  .amdhsa_kernarg_size 128
  .amdhsa_user_sgpr_count 2
  .amdhsa_user_sgpr_kernarg_segment_ptr 1
  .amdhsa_system_sgpr_workgroup_id_x 1
  .amdhsa_float_denorm_mode_32 3
.end_amdhsa_kernel''')
    open(path, 'w').write('\n'.join(A.L) + '\n')

if __name__ == '__main__':
    main(sys.argv[1] if len(sys.argv) > 1 else 'k3.s')
```
